```python
import torch

def _softmax(x, axis=-1):
    return torch.softmax(x, dim=axis)
def _gelu(x):
    return torch.nn.functional.gelu(x, approximate="tanh")
def _silu(x):
    return torch.nn.functional.silu(x)
def _sigmoid(x):
    return torch.sigmoid(x)
def _layernorm(x, axis=-1, eps=1e-5):
    m = x.mean(dim=axis, keepdim=True)
    v = x.var(dim=axis, keepdim=True, unbiased=False)
    return (x - m) / torch.sqrt(v + eps)
def _scatter_add(tgt, idx, src, axis=0):
    return tgt.clone().index_add_(axis, idx, src)
def _segment_sum(src, seg, n):
    out = torch.zeros((n,) + src.shape[1:], dtype=src.dtype)
    return out.index_add_(0, seg, src)
def _pad(x, pw):
    flat = tuple(v for pair in reversed(pw) for v in pair)
    return torch.nn.functional.pad(x, flat)

kernel_name = 'recurrent_scan__softmax_full_mha__geglu_ffn__prompt'

def setup_inputs():

    _w = (lambda a: (lambda t: t.to(torch.bfloat16) if t.is_floating_point() else t)(torch.as_tensor(a)))
    def _A_setup():
        B, S, D = 1, 2048, 640
        return {
            "x": _w((lambda *s: torch.randn(*s, dtype=torch.bfloat16) * 0.05)(B, S, D)),
            "wqkv": _w((lambda *s: torch.randn(*s, dtype=torch.bfloat16) * 0.05)(D, 3 * D)),
            "wo": _w((lambda *s: torch.randn(*s, dtype=torch.bfloat16) * 0.05)(D, D)),
        }
    _A_in = _A_setup()

    def _B_setup():
        B, S, D, F = 1, 2048, 640, 1728
        return {
            "x": _w((lambda *s: torch.randn(*s, dtype=torch.bfloat16) * 0.05)(B, S, D)),
            "w_gate": _w((lambda *s: torch.randn(*s, dtype=torch.bfloat16) * 0.05)(D, F)),
            "w_up": _w((lambda *s: torch.randn(*s, dtype=torch.bfloat16) * 0.05)(D, F)),
            "w_down": _w((lambda *s: torch.randn(*s, dtype=torch.bfloat16) * 0.05)(F, D)),
        }
    _B_in = _B_setup()

    return {
        "A_x": _A_in["x"],
        "A_wqkv": _A_in["wqkv"],
        "A_wo": _A_in["wo"],
        "B_x": _B_in["x"],
        "B_w_gate": _B_in["w_gate"],
        "B_w_up": _B_in["w_up"],
        "B_w_down": _B_in["w_down"],
    }

def reference(A_x, A_wqkv, A_wo, B_x, B_w_gate, B_w_up, B_w_down):
    def _A_ref(x, wqkv, wo):
        B, S, D = x.shape
        H = 32; Dh = D // H
        qkv = (lambda x, *d: x.permute(*d))((x @ wqkv).reshape(B, S, 3, H, Dh), 2, 0, 3, 1, 4)
        q, k, v = qkv[0], qkv[1], qkv[2]
        scale = Dh ** -0.5
        scores = torch.einsum("bhqd,bhkd->bhqk", q, k) * scale
        p = _softmax(scores, axis=-1)
        o = torch.einsum("bhqk,bhkd->bhqd", p, v)
        return (lambda x, *d: x.permute(*d))(o, 0, 2, 1, 3).reshape(B, S, D) @ wo

    def _B_ref(x, w_gate, w_up, w_down):
        return (_gelu(x @ w_gate) * (x @ w_up)) @ w_down

    x = A_x
    xn = _layernorm(x, axis=-1)
    s = _A_ref(xn, A_wqkv, A_wo)
    g = _silu(_B_ref(xn, B_w_gate, B_w_up, B_w_down))
    return x + s * g
```

```python
import re

def _regs(tok):
    tok = tok.strip()
    neg = tok.lstrip('-')
    if neg.startswith('abs(') or neg.startswith('|'):
        neg = neg.replace('abs(', '').replace(')', '').replace('|', '')
    m = re.fullmatch(r'([vsa])(\d+)', neg)
    if m: return [(m.group(1), int(m.group(2)))]
    m = re.fullmatch(r'([vsa])\[(\d+):(\d+)\]', neg)
    if m: return [(m.group(1), i) for i in range(int(m.group(2)), int(m.group(3)) + 1)]
    if neg == 'vcc': return [('s', 'vcc')]
    if neg in ('vcc_lo', 'vcc_hi'): return [('s', 'vcc')]
    if neg in ('exec', 'exec_lo', 'exec_hi'): return [('s', 'exec')]
    if neg == 'm0': return [('s', 'm0')]
    return []

TRANS = ('v_exp_f32', 'v_log_f32', 'v_rcp_f32', 'v_rsq_f32', 'v_sqrt_f32', 'v_sin_f32', 'v_cos_f32', 'v_rcp_iflag_f32')

def passes(mn):
    if '32x32x4_2b' in mn: return 16
    if '4x4x4' in mn: return 2
    if '32x32' in mn or '16x16x4_4b' in mn: return 8
    if '16x16' in mn: return 4
    raise ValueError(mn)

class Ins:
    def __init__(self, text):
        self.text = text
        t = text.split(';')[0].strip()
        parts = t.split(None, 1)
        self.mn = parts[0]
        rest = parts[1] if len(parts) > 1 else ''
        ops, depth, cur = [], 0, ''
        for ch in rest:
            if ch in '[(': depth += 1
            if ch in '])': depth -= 1
            if ch == ',' and depth == 0: ops.append(cur.strip()); cur = ''
            else: cur += ch
        if cur.strip(): ops.append(cur.strip())
        self.mods = ''
        if ops:
            sp = ops[-1].split(None, 1)
            if len(sp) > 1 and not ops[-1].startswith('hwreg'):
                ops[-1] = sp[0]; self.mods = sp[1]
        self.ops = ops
        mn = self.mn
        self.kind = 'other'; self.w = []; self.r = []; self.ab = []; self.c = []; self.states = 1
        self.dpp = ('_dpp' in mn) or ('quad_perm' in self.mods) or ('row_' in self.mods)
        R = lambda i: _regs(ops[i]) if i < len(ops) else []
        if mn.startswith('v_mfma'):
            self.kind = 'mfma'; self.w = R(0); self.ab = R(1) + R(2); self.c = R(3); self.r = self.ab + self.c; self.p = passes(mn)
        elif mn.startswith('v_smfmac'):
            self.kind = 'mfma'; self.w = R(0); self.ab = R(1) + R(2) + R(3); self.c = R(0); self.r = self.ab + self.c; self.p = passes(mn)
        elif mn.startswith('v_'):
            self.kind = 'valu'
            self.w = R(0); self.r = sum((R(i) for i in range(1, len(ops))), [])
            if mn.startswith(('v_fmac', 'v_dot2c', 'v_writelane')) or 'UNUSED_PRESERVE' in self.mods or self.dpp: self.r += R(0)
            if mn.startswith('v_permlane') and 'swap' in mn: self.w = R(0) + R(1); self.r = R(0) + R(1)
            if mn.startswith('v_cmpx'): self.w += [('s', 'exec')]
            if mn.startswith(('v_add_co', 'v_sub_co', 'v_addc_co')): self.w = R(0) + R(1); self.r = sum((R(i) for i in range(2, len(ops))), [])
        elif mn.startswith('ds_'):
            self.kind = 'ds'
            if mn.startswith(('ds_read', 'ds_bpermute', 'ds_swizzle')): self.w = R(0); self.r = sum((R(i) for i in range(1, len(ops))), [])
            else: self.r = sum((R(i) for i in range(len(ops))), [])
        elif mn.startswith(('buffer_', 'global_')):
            self.kind = 'vmem'
            self.lds = bool(re.search(r'\blds\b', self.mods)) or '_lds_' in mn
            if 'load' in mn and not self.lds: self.w = R(0); self.r = sum((R(i) for i in range(1, len(ops))), [])
            else: self.r = sum((R(i) for i in range(len(ops))), [])
            if self.lds: self.r += [('s', 'm0')]
            self.wide_store = ('store' in mn) and mn.endswith(('x3', 'x4'))
            if self.wide_store: self.sdata = R(0) if mn.startswith('buffer_') else R(1)
        elif mn == 's_nop':
            self.kind = 'nop'; self.states = int(ops[0], 0) + 1
        elif mn.startswith('s_'):
            self.kind = 'salu'
            if not mn.startswith(('s_cmp', 's_cbranch', 's_branch', 's_waitcnt', 's_barrier', 's_endpgm', 's_sleep', 's_setprio', 's_bitcmp')):
                self.w = R(0); self.r = sum((R(i) for i in range(1, len(ops))), [])
                if 'saveexec' in mn: self.w += [('s', 'exec')]
            else:
                self.r = sum((R(i) for i in range(len(ops))), [])

def need(p, c):
    n = 0
    pw = set(p.w); cr = set(c.r); cw = set(c.w)
    pwv = {x for x in pw if x[0] in 'va'}; pws = {x for x in pw if x[0] == 's'}
    if p.kind == 'mfma':
        idx = {2: 0, 4: 1, 8: 2, 16: 3}[p.p]
        if c.kind == 'mfma':
            if pwv & set(c.ab): n = max(n, (5, 8, 12, 20)[idx])
            if pwv & set(c.c):
                if c.c == p.w and c.p == p.p: n = max(n, (2, 0, 0, 0)[idx])
                else: n = max(n, (4, 6, 10, 18)[idx])
            elif pwv & cw:
                if not (c.w == p.w and c.p == p.p): n = max(n, (4, 6, 10, 18)[idx])
        elif c.kind in ('valu', 'ds', 'vmem'):
            if pwv & (cr | cw): n = max(n, (5, 8, 12, 20)[idx])
            if c.kind == 'valu' and set(p.c) & cw: n = max(n, (1, 3, 7, 15)[idx])
    elif p.kind == 'valu':
        if c.kind == 'mfma':
            if pwv & cr: n = max(n, 2)
            if ('s', 'exec') in pws: n = max(n, 4)
        if c.kind == 'valu':
            if p.mn.startswith(TRANS) and not c.mn.startswith(TRANS) and (pwv & cr): n = max(n, 1)
            if (pwv & cr) and (c.dpp or c.mn.startswith('v_permlane')): n = max(n, 2)
            if (pwv & cr) and c.mn.startswith(('v_readlane', 'v_readfirstlane')): n = max(n, 1)
            if ('sdwa' in p.mn or 'op_sel' in p.mods) and (pwv & (cr | cw)): n = max(n, 1)
            crs = {x for x in cr if x[0] == 's'}
            if c.mn.startswith('v_cndmask') and len(c.ops) == 3: crs.add(('s', 'vcc'))
            if pws & crs:
                n = max(n, 4 if c.mn.startswith(('v_readlane', 'v_writelane')) else 2)
            if ('s', 'exec') in pws and (c.dpp): n = max(n, 5)
            if ('s', 'exec') in pws and c.mn.startswith(('v_readlane', 'v_readfirstlane', 'v_writelane', 'v_permlane')): n = max(n, 4)
        if p.mn.startswith(TRANS) and c.kind in ('ds', 'vmem') and (pwv & cr): n = max(n, 1)
        if c.kind == 'vmem' and (pws & cr): n = max(n, 5)
        if c.kind == 'salu' and (pws & cr): n = max(n, 1)
    elif p.kind == 'salu':
        if ('s', 'm0') in pws and c.kind == 'vmem' and c.lds: n = max(n, 1)
    elif p.kind == 'vmem':
        if p.wide_store and (set(p.sdata) & cw): n = max(n, 2 if c.kind in ('valu', 'mfma') else 1)
    return n

class Asm:
    def __init__(self):
        self.items = []
        self.nops = []
        self.auto = True
    def raw(self, s): self.items.append(s)
    def label(self, l): self.items.append(l + ':')
    def comment(self, s): self.items.append('  ; ' + s)
    def _hist(self, upto=None):
        out = []; tot = 0
        for it in reversed(self.items if upto is None else self.items[:upto]):
            if isinstance(it, Ins):
                if it.mn in ('s_endpgm',): break
                out.append(it); tot += it.states
                if tot > 24: break
        return out
    def __call__(self, text):
        for line in text.strip().split('\n'):
            line = line.strip()
            if not line: continue
            if line.startswith(';'): self.items.append('  ' + line); continue
            if line.endswith(':'): self.items.append(line); continue
            ins = Ins(line)
            d = 0; pad = 0
            for p in self._hist():
                pad = max(pad, need(p, ins) - d)
                d += p.states
            if pad > 0:
                if not self.auto: raise RuntimeError(f"hazard: need {pad} more wait states before: {line}")
                self.nops.append((pad, line))
                while pad > 0:
                    k = min(pad, 16); self.items.append(Ins(f's_nop {k-1}')); pad -= k
            self.items.append(ins)
    def check_branches(self):
        labels = {it[:-1]: i for i, it in enumerate(self.items) if isinstance(it, str) and it.endswith(':') and not it.startswith(' ')}
        bad = []
        for i, it in enumerate(self.items):
            if isinstance(it, Ins) and it.mn.startswith(('s_cbranch', 's_branch')):
                tgt = labels[it.ops[0]]
                hist = self._hist(i + 1)
                seq = []; tot = 0
                for nx in self.items[tgt:]:
                    if isinstance(nx, Ins):
                        d = tot
                        for p in hist:
                            if need(p, nx) > d: bad.append((p.text, nx.text, need(p, nx), d))
                            d += p.states
                        tot += nx.states
                        if tot > 24 or nx.mn in ('s_branch', 's_endpgm'): break
        if bad:
            for b in bad: print("BRANCH HAZARD", b)
            raise RuntimeError("hazards across branches")
    def text(self):
        self.check_branches()
        return '\n'.join(('  ' + it.text) if isinstance(it, Ins) else it for it in self.items) + '\n'

class Regs:
    def __init__(self, kind, start, limit):
        self.kind, self.n, self.limit, self.hi = kind, start, limit, start
    def one(self): return self.many(1, 1)
    def many(self, cnt, align=None):
        if align is None: align = 1 if cnt == 1 else (2 if self.kind == 'v' or cnt == 2 else 4)
        self.n = (self.n + align - 1) // align * align
        r = self.n; self.n += cnt
        assert self.n <= self.limit, f"out of {self.kind} regs"
        self.hi = max(self.hi, self.n)
        return r
    def mark(self): return self.n
    def reset(self, m): self.n = m

def vr(a, n): return f"v[{a}:{a+n-1}]" if n > 1 else f"v{a}"
def sr(a, n): return f"s[{a}:{a+n-1}]" if n > 1 else f"s{a}"
```

```python
import sys, math, struct
from asmlib import *

NAME = "recurrent_scan__softmax_full_mha__geglu_ffn__prompt"
S, D, F, NH, DH = 2048, 640, 1728, 32, 20
P_QKV, P_H, P_O = 240 * 512, 216 * 512, 80 * 512
OFF_QKV = 0
OFF_H = OFF_QKV + 64 * P_QKV
OFF_O = OFF_H + 64 * P_H
OFF_WP = OFF_O + 64 * P_O
OFF_ST = OFF_WP + 8 * 74 * 5 * 1024
OFF_FL = OFF_ST + 2048 * 8
WS_USED = OFF_FL + 65536
def f32(x): return "0x%08x" % struct.unpack("<I", struct.pack("<f", x))[0]
LOG2E = 1.4426950408889634
QSCALE = DH ** -0.5 * LOG2E
GC1 = 2 * 0.7978845608028654 * LOG2E
GC3 = GC1 * 0.044715

pX, pWQKV, pWO, pBX, pWG, pWU, pWD, pOUT, pDBG, pWS = 4, 6, 8, 10, 12, 14, 16, 18, 20, 22
sWAVE = 3
SRD_WS = 24
SRD_A = 28
SRD_B = 32
S0 = 36
vLANE = 1

def srd(a, r, ptr, size):
    a(f"s_mov_b32 s{r}, s{ptr}\ns_mov_b32 s{r+1}, s{ptr+1}\ns_mov_b32 s{r+2}, {size}\ns_mov_b32 s{r+3}, 0x20000")

def entry(a, name, nwg, end):
    a.raw(f".globl {name}\n.p2align 8\n.type {name},@function")
    a.label(name)
    a(f"""s_cmp_ge_u32 s2, {nwg}
    s_cbranch_scc1 {end}
    s_load_dwordx16 s[4:19], s[0:1], 0
    s_load_dwordx4 s[20:23], s[0:1], 64
    v_lshrrev_b32 v2, 6, v0
    v_and_b32 v{vLANE}, 63, v0
    v_readfirstlane_b32 s{sWAVE}, v2
    s_waitcnt lgkmcnt(0)""")
    srd(a, SRD_WS, pWS, WS_USED)

def kdesc(name, vgpr=256):
    return f""".section .rodata,"a"
.p2align 6
.amdhsa_kernel {name}
  .amdhsa_next_free_vgpr {vgpr}
  .amdhsa_next_free_sgpr 102
  .amdhsa_accum_offset {vgpr}
  .amdhsa_group_segment_fixed_size 0
  .amdhsa_kernarg_size 80
  .amdhsa_user_sgpr_count 2
  .amdhsa_user_sgpr_kernarg_segment_ptr 1
  .amdhsa_system_sgpr_workgroup_id_x 1
.end_amdhsa_kernel
"""

def wave_sum(a, v):
    for m in ("quad_perm:[1,0,3,2]", "quad_perm:[2,3,0,1]", "row_half_mirror", "row_mirror"):
        a(f"v_add_f32_dpp v{v}, v{v}, v{v} {m} row_mask:0xf bank_mask:0xf")
    a(f"v_add_f32_dpp v{v}, v{v}, v{v} row_bcast:15 row_mask:0xa bank_mask:0xf")
    a(f"v_add_f32_dpp v{v}, v{v}, v{v} row_bcast:31 row_mask:0xc bank_mask:0xf")

def stats(a, sTAG=None):
    V = Regs('v', 2, 256); sg = Regs('s', S0, 102)
    raw = V.many(6, 2); e = V.many(10, 2); t = V.many(4, 2); vo = V.one(); vo2 = V.one()
    sRow = sg.one(); sT = sg.one(); sM = sg.one()
    srd(a, SRD_A, pX, S * D * 2)
    a(f"""s_lshl_b32 s{sRow}, s2, 3
    s_add_u32 s{sRow}, s{sRow}, s{sWAVE}
    s_mul_i32 s{sT}, s{sRow}, 1280
    v_lshlrev_b32 v{vo}, 4, v{vLANE}
    v_lshlrev_b32 v{vo2}, 2, v{vLANE}
    buffer_load_dwordx4 {vr(raw,4)}, v{vo}, {sr(SRD_A,4)}, s{sT} offen
    buffer_load_dword v{raw+4}, v{vo2}, {sr(SRD_A,4)}, s{sT} offen offset:1024
    s_waitcnt vmcnt(0)""")
    for i in range(5):
        a(f"v_lshlrev_b32 v{e+2*i}, 16, v{raw+i}\nv_and_b32 v{e+2*i+1}, 0xffff0000, v{raw+i}")
    a(f"v_add_f32 v{t}, v{e}, v{e+1}")
    for i in range(2, 10): a(f"v_add_f32 v{t}, v{t}, v{e+i}")
    wave_sum(a, t)
    a(f"v_mul_f32 v{t}, {f32(1.0/D)}, v{t}\nv_readlane_b32 s{sM}, v{t}, 63")
    for i in range(10): a(f"v_subrev_f32 v{e+i}, s{sM}, v{e+i}")
    a(f"v_mul_f32 v{t+1}, v{e}, v{e}")
    for i in range(1, 10): a(f"v_fmac_f32 v{t+1}, v{e+i}, v{e+i}")
    wave_sum(a, t + 1)
    a(f"""v_mul_f32 v{t+1}, {f32(1.0/D)}, v{t+1}
    v_cvt_pk_bf16_f32 v{t+1}, v{t+1}, v{t+1}
    v_and_b32 v{t+1}, 0xffff0000, v{t+1}
    v_add_f32 v{t+1}, {f32(1e-5)}, v{t+1}
    v_cvt_pk_bf16_f32 v{t+1}, v{t+1}, v{t+1}
    v_and_b32 v{t+1}, 0xffff0000, v{t+1}
    v_sqrt_f32 v{t+1}, v{t+1}
    v_cvt_pk_bf16_f32 v{t+2}, v{t}, v{t+1}
    v_mov_b32 v{t+3}, {('s%d' % sTAG) if sTAG is not None else 0}
    s_lshl_b32 s{sT}, s{sRow}, 3
    s_add_u32 s{sT}, s{sT}, {OFF_ST}
    v_mov_b32 v{vo}, 0
    s_mov_b32 exec_lo, 0
    s_mov_b32 exec_hi, 0x80000000
    buffer_store_dwordx2 {vr(t+2,2)}, v{vo}, {sr(SRD_WS,4)}, s{sT} offen sc0 sc1
    s_mov_b64 exec, -1""")

def repack(a, sKS, stride, lbl):
    V = Regs('v', 2, 256); sg = Regs('s', S0 + 8, 102)
    vo = V.many(5, 1); va = V.many(5, 1); t = V.many(6, 1); fr = V.many(20, 2); vst = V.one()
    sT = sg.one(); sOff = sg.one(); sDst = sg.one(); sM = sg.one(); sN = sg.one(); sK2 = sg.one()
    a(f"s_lshl_b32 s{sT}, s{sWAVE}, 2")
    for i in range(5):
        a(f"""v_add_u32 v{t}, {64*i}, v{vLANE}
        v_mul_u32_u24 v{t+1}, 820, v{t}
        v_lshrrev_b32 v{t+1}, 16, v{t+1}
        v_mul_u32_u24 v{t+2}, 80, v{t+1}
        v_sub_u32 v{t+2}, v{t}, v{t+2}
        v_add_u32 v{t+3}, s{sT}, v{t+1}
        v_lshrrev_b32 v{t+4}, 1, v{t+3}
        v_and_b32 v{t+4}, 4, v{t+4}
        v_or_b32 v{t+4}, v{t+4}, v{t+1}
        v_lshlrev_b32 v{t+4}, 1, v{t+4}
        v_xor_b32 v{t+2}, v{t+2}, v{t+4}
        v_mul_u32_u24 v{t+3}, 1280, v{t+3}
        v_lshl_add_u32 v{vo+i}, v{t+2}, 4, v{t+3}""")
    a(f"""v_lshrrev_b32 v{t}, 4, v{vLANE}
    v_bfe_u32 v{t+1}, v{vLANE}, 2, 2
    v_lshl_add_u32 v{t+2}, v{t}, 3, v{t+1}
    v_mul_u32_u24 v{t+2}, 1280, v{t+2}
    v_and_b32 v{t+3}, 1, v{vLANE}
    v_lshl_add_u32 v{t+2}, v{t+3}, 3, v{t+2}
    v_and_b32 v{t}, 1, v{t}
    v_lshl_add_u32 v{t}, v{t}, 2, v{t+1}
    v_lshlrev_b32 v{t}, 1, v{t}
    v_bfe_u32 v{t+1}, v{vLANE}, 1, 1
    s_mul_i32 s{sT}, s{sWAVE}, 10
    v_add_u32 v{t+1}, s{sT}, v{t+1}""")
    for ct in range(5):
        a(f"v_add_u32 v{t+3}, {2*ct}, v{t+1}\nv_xor_b32 v{t+3}, v{t+3}, v{t}\nv_lshl_add_u32 v{va+ct}, v{t+3}, 4, v{t+2}")
    a(f"v_lshlrev_b32 v{vst}, 4, v{vLANE}")
    a.label(lbl)
    a(f"""s_mov_b32 s{sT}, {D*D*2}
    s_cmp_lt_u32 s{sKS}, 54
    s_cselect_b32 s{SRD_A}, s{pWD}, s{pWO}
    s_cselect_b32 s{SRD_A+1}, s{pWD+1}, s{pWO+1}
    s_cselect_b32 s{SRD_A+2}, {F*D*2}, s{sT}
    s_mov_b32 s{SRD_A+3}, 0x20000
    s_cselect_b32 s{sT}, 0, 54
    s_cselect_b32 s{sM}, 27, 10
    s_cselect_b32 s{sN}, 0, 27
    s_sub_u32 s{sK2}, s{sKS}, s{sT}
    s_mul_i32 s{sOff}, s{sK2}, 40960
    s_cmp_ge_u32 s{sK2}, s{sM}
    s_cselect_b32 s{sT}, s{sM}, 0
    s_cselect_b32 s{sM}, 37, 0
    s_sub_u32 s{sK2}, s{sK2}, s{sT}
    s_add_u32 s{sK2}, s{sK2}, s{sN}
    s_add_u32 s{sK2}, s{sK2}, s{sM}
    s_mul_i32 s{sT}, s{sWAVE}, 74
    s_add_u32 s{sK2}, s{sK2}, s{sT}
    s_mul_i32 s{sDst}, s{sK2}, 5120
    s_add_u32 s{sDst}, s{sDst}, {OFF_WP}
    s_mul_i32 s{sM}, s{sWAVE}, 5120""")
    for i in range(5):
        a(f"s_add_u32 m0, s{sM}, {1024*i}\nbuffer_load_dwordx4 v{vo+i}, {sr(SRD_A,4)}, s{sOff} offen lds")
    a("s_waitcnt vmcnt(0)\ns_barrier")
    for ct in range(5):
        a(f"ds_read_b64_tr_b16 {vr(fr+4*ct,2)}, v{va+ct}\nds_read_b64_tr_b16 {vr(fr+4*ct+2,2)}, v{va+ct} offset:5120")
    a("s_waitcnt lgkmcnt(0)\ns_barrier")
    for ct in range(4):
        a(f"buffer_store_dwordx4 {vr(fr+4*ct,4)}, v{vst}, {sr(SRD_WS,4)}, s{sDst} offen offset:{1024*ct} sc0 sc1")
    a(f"""s_add_u32 s{sDst}, s{sDst}, 4096
    buffer_store_dwordx4 {vr(fr+16,4)}, v{vst}, {sr(SRD_WS,4)}, s{sDst} offen sc0 sc1
    s_add_u32 s{sKS}, s{sKS}, {stride}
    s_cmp_lt_u32 s{sKS}, 74
    s_waitcnt vmcnt(0)
    s_cbranch_scc1 {lbl}""")

LX, LW, LCS, LDUMMY = 0, 98304, 159744, 160768
def gemm1(a):
    V = Regs('v', 2, 256); sg = Regs('s', S0, 102)
    acc = [[V.many(16, 4) for g in range(2)] for u in range(3)]
    Wf = [[V.many(4, 4) for u in range(3)] for b in range(2)]
    Xf = [[V.many(4, 4) for g in range(2)] for b in range(2)]
    cs = V.many(12, 4); craw = V.many(6, 2); t = V.many(8, 4)
    xb = V.many(4, 1); xa = V.many(4, 1); wb = V.one(); wa = V.one(); cb_ = V.one(); ca = V.one(); voff = V.many(2, 1)
    sRB, sC, sTQ, sCH, sT, sU = (sg.one() for _ in range(6))
    sOff, sStep, sD0, sD1, sM0, sMsz, sMend, sMwrap, sMstep, sSize, sRound = (sg.one() for _ in range(11))
    sWr, sXr = sg.one(), sg.one()
    sCQ, sCF = sg.one(), sg.one()
    a(f"""; rb = (xcd&1)*4 + (j&3) ; c = (j>>2)*4 + (xcd>>1)
    s_and_b32 s{sRB}, s2, 1
    s_lshl_b32 s{sRB}, s{sRB}, 2
    s_bfe_u32 s{sT}, s2, 0x20003
    s_add_u32 s{sRB}, s{sRB}, s{sT}
    s_lshr_b32 s{sC}, s2, 5
    s_lshl_b32 s{sC}, s{sC}, 2
    s_bfe_u32 s{sT}, s2, 0x20001
    s_add_u32 s{sC}, s{sC}, s{sT}
    s_and_b32 s{sTQ}, s{sWAVE}, 3
    s_lshr_b32 s{sCH}, s{sWAVE}, 2
    s_min_u32 s{sCQ}, s{sC}, 29
    s_min_u32 s{sCF}, s{sC}, 26""")
    a(f"""s_cmp_eq_u32 s{sWAVE}, 1
    s_cselect_b32 s{SRD_A}, s{pWG}, s{pWU}
    s_cselect_b32 s{SRD_A+1}, s{pWG+1}, s{pWU+1}
    s_mov_b32 s{sSize}, {D*F*2}
    s_mov_b32 s{sU}, {F*2}
    s_lshl_b32 s{sOff}, s{sCF}, 7
    s_lshl_b32 s{sT}, s{sCQ}, 7
    s_cmp_eq_u32 s{sWAVE}, 0
    s_cselect_b32 s{SRD_A}, s{pWQKV}, s{SRD_A}
    s_cselect_b32 s{SRD_A+1}, s{pWQKV+1}, s{SRD_A+1}
    s_cselect_b32 s{sSize}, {D*3*D*2}, s{sSize}
    s_cselect_b32 s{sU}, {3*D*2}, s{sU}
    s_cselect_b32 s{sOff}, s{sT}, s{sOff}
    s_mov_b32 s{sD0}, 0
    s_mov_b32 s{sD1}, 0
    s_lshl_b32 s{sM0}, s{sTQ}, 12
    s_add_u32 s{sM0}, s{sM0}, {LW}
    s_mov_b32 s{sMsz}, 12288
    s_mov_b32 s{sMend}, {LW+5*12288}
    s_mov_b32 s{sMwrap}, {5*12288}
    s_mov_b32 s{sMstep}, 1024
    s_cmp_eq_u32 s{sWAVE}, 3
    s_cselect_b32 s{sSize}, 0, s{sSize}
    s_cselect_b32 s{sM0}, {LDUMMY}, s{sM0}
    s_cselect_b32 s{sMsz}, 0, s{sMsz}
    s_cselect_b32 s{sMwrap}, 0, s{sMwrap}
    s_cselect_b32 s{sMstep}, 0, s{sMstep}
    s_lshl_b32 s{sT}, s{sRB}, 3
    s_add_u32 s{sT}, s{sT}, s{sTQ}
    s_mul_i32 s{sT}, s{sT}, {32*1280}
    s_lshl_b32 s{sWr}, s{sTQ}, 12
    s_cmp_ge_u32 s{sWAVE}, 4
    s_cselect_b32 s{SRD_A}, s{pX}, s{SRD_A}
    s_cselect_b32 s{SRD_A+1}, s{pX+1}, s{SRD_A+1}
    s_cselect_b32 s{sSize}, {S*D*2}, s{sSize}
    s_cselect_b32 s{sU}, 1280, s{sU}
    s_cselect_b32 s{sOff}, s{sT}, s{sOff}
    s_cselect_b32 s{sD0}, {96*1280}, s{sD0}
    s_cselect_b32 s{sD1}, {(-160*1280+128) & 0xffffffff}, s{sD1}
    s_cselect_b32 s{sM0}, s{sWr}, s{sM0}
    s_cselect_b32 s{sMsz}, 16384, s{sMsz}
    s_cselect_b32 s{sMend}, {6*16384}, s{sMend}
    s_cselect_b32 s{sMwrap}, {6*16384}, s{sMwrap}
    s_mov_b32 s{SRD_A+2}, s{sSize}
    s_mov_b32 s{SRD_A+3}, 0x20000
    s_lshl_b32 s{sStep}, s{sU}, 3
    ; DMA lane offsets: row = l/8, pos = l%8 ; W: chunk = pos ^ (((row>>1)&1)<<2) ; x: chunk = pos ^ ((row>>1) + 4*(i&1))
    v_lshrrev_b32 v{t}, 3, v{vLANE}
    v_mul_lo_u32 v{t}, v{t}, s{sU}
    v_and_b32 v{t+1}, 7, v{vLANE}
    v_lshrrev_b32 v{t+2}, 4, v{vLANE}
    v_and_b32 v{t+3}, 1, v{t+2}
    v_lshlrev_b32 v{t+3}, 2, v{t+3}
    v_or_b32 v{t+4}, 4, v{t+2}
    s_cmp_ge_u32 s{sWAVE}, 4
    s_cselect_b64 vcc, -1, 0
    v_cndmask_b32 v{t+2}, v{t+3}, v{t+2}, vcc
    v_cndmask_b32 v{t+4}, v{t+3}, v{t+4}, vcc
    v_xor_b32 v{t+2}, v{t+2}, v{t+1}
    v_xor_b32 v{t+4}, v{t+4}, v{t+1}
    v_lshl_add_u32 v{voff}, v{t+2}, 4, v{t}
    v_lshl_add_u32 v{voff+1}, v{t+4}, 4, v{t}""")
    def dma_ops(par):
        g = []
        for i in range(4):
            g.append((f"s_mov_b32 m0, s{sM0}" if i == 0 else f"s_add_u32 m0, m0, s{sMstep}") + "\n" +
                     (f"s_add_u32 s{sM0}, s{sM0}, s{sMsz}" if i == 0 else f"s_add_u32 s{sOff}, s{sOff}, s{sStep}") + "\n" +
                     f"buffer_load_dwordx4 v{voff+(i&1)}, {sr(SRD_A,4)}, s{sOff} offen lds")
        g.append(f"""s_add_u32 s{sOff}, s{sOff}, s{sD1 if par else sD0}
        s_cmp_ge_u32 s{sM0}, s{sMend}
        s_cselect_b32 s{sT}, s{sMwrap}, 0
        s_sub_u32 s{sM0}, s{sM0}, s{sT}""")
        return g
    a(f"s_add_u32 s{sD0}, s{sD0}, s{sStep}\ns_add_u32 s{sD1}, s{sD1}, s{sStep}")
    for j in range(4):
        for g in dma_ops(j & 1): a(g)
    a(f"""; x: base = t*128 + ((h ^ ((t>>1)&7))*16) + tq*8192
    v_and_b32 v{t}, 31, v{vLANE}
    v_lshrrev_b32 v{t+1}, 5, v{vLANE}
    v_bfe_u32 v{t+2}, v{vLANE}, 1, 3
    v_xor_b32 v{t+2}, v{t+2}, v{t+1}
    v_lshlrev_b32 v{t+2}, 4, v{t+2}
    v_lshl_add_u32 v{t+2}, v{t}, 7, v{t+2}
    s_lshl_b32 s{sT}, s{sTQ}, 13
    v_add_u32 v{xb}, s{sT}, v{t+2}
    v_xor_b32 v{xb+1}, 32, v{xb}
    v_xor_b32 v{xb+2}, 64, v{xb}
    v_xor_b32 v{xb+3}, 96, v{xb}
    v_bfe_u32 v{t}, v{vLANE}, 2, 2
    v_lshl_add_u32 v{t+2}, v{t+1}, 3, v{t}
    v_lshlrev_b32 v{t+2}, 7, v{t+2}
    v_lshrrev_b32 v{t}, 1, v{t}
    v_xor_b32 v{t}, s{sCH}, v{t}
    v_lshl_add_u32 v{t+2}, v{t}, 6, v{t+2}
    v_bfe_u32 v{t}, v{vLANE}, 4, 1
    v_lshl_add_u32 v{t+2}, v{t}, 5, v{t+2}
    v_and_b32 v{t}, 1, v{vLANE}
    v_lshl_add_u32 v{t+2}, v{t}, 4, v{t+2}
    v_bfe_u32 v{t}, v{vLANE}, 1, 1
    v_lshl_add_u32 v{t+2}, v{t}, 3, v{t+2}
    v_add_u32 v{wb}, {LW}, v{t+2}
    ; csum: row = 4w + l/16 ; byte = ((l%16)*8) ^ (h*64)
    v_lshlrev_b32 v{t}, 3, v{vLANE}
    v_lshlrev_b32 v{t+1}, 6, v{t+1}
    v_xor_b32 v{t}, v{t}, v{t+1}
    s_lshl_b32 s{sT}, s{sWAVE}, 9
    s_add_u32 s{sT}, s{sT}, {LW}
    v_add_u32 v{cb_}, s{sT}, v{t}""")
    for u in range(3):
        for g in range(2):
            for r in range(16): a(f"v_mov_b32 v{acc[u][g]+r}, 0")
    for r in range(12): a(f"v_mov_b32 v{cs+r}, 0")
    a(f"""v_lshlrev_b32 v{t}, 2, v{vLANE}
    v_add_u32 v{t}, {LCS}, v{t}
    ds_write_b32 v{t}, v{cs}
    ds_write_b32 v{t}, v{cs} offset:256
    ds_write_b32 v{t}, v{cs} offset:512""")
    a(f"""s_mov_b32 s{sWr}, 0
    s_mov_b32 s{sXr}, 0
    s_mov_b32 s{sRound}, 4
    v_mov_b32 v{wa}, v{wb}
    v_mov_b32 v{ca}, v{cb_}""")
    for k in range(4): a(f"v_mov_b32 v{xa+k}, v{xb+k}")
    def frag_reads(ks):
        b = ks & 1; L = []
        L.append(f"ds_read_b128 {vr(Xf[b][0],4)}, v{xa+ks}")
        for u in range(3):
            for rd in range(2):
                L.append(f"ds_read_b64_tr_b16 {vr(Wf[b][u]+2*rd,2)}, v{wa} offset:{u*4096 + (ks&1)*2048 + rd*512}")
            if u == 0: L.append(f"ds_read_b128 {vr(Xf[b][1],4)}, v{xa+ks} offset:4096")
        return L
    a("s_waitcnt vmcnt(8) lgkmcnt(0)\ns_barrier")
    for g in dma_ops(0): a(g)
    for r in frag_reads(0): a(r)
    a.raw(".p2align 3")
    a.label("L_g1")
    a.auto = False
    for ks in range(4):
        b = ks & 1
        mf = [f"v_mfma_f32_32x32x16_bf16 {vr(acc[u][g],16)}, {vr(Wf[b][u],4)}, {vr(Xf[b][g],4)}, {vr(acc[u][g],16)}" for u in range(3) for g in range(2)]
        rd = frag_reads((ks + 1) & 3)
        a("s_waitcnt lgkmcnt(0)")
        a(mf[0])
        if ks & 1:
            cops = []
            for u in range(3):
                for k in range(2):
                    r = craw + 2*u + k; tt = t + 2*((2*u+k) & 1)
                    cops += [f"v_lshlrev_b32 v{tt}, 16, v{r}", f"v_and_b32 v{tt+1}, 0xffff0000, v{r}",
                             f"v_add_f32 v{cs+4*u+2*k}, v{cs+4*u+2*k}, v{tt}", f"v_add_f32 v{cs+4*u+2*k+1}, v{cs+4*u+2*k+1}, v{tt+1}"]
            a(f"""s_add_u32 s{sWr}, s{sWr}, 12288
            s_cmp_ge_u32 s{sWr}, {5*12288}
            s_cselect_b32 s{sWr}, 0, s{sWr}
            v_add_u32 v{wa}, s{sWr}, v{wb}
            v_add_u32 v{ca}, s{sWr}, v{cb_}""")
            if ks == 3:
                a(f"""s_add_u32 s{sXr}, s{sXr}, 32768
                s_cmp_ge_u32 s{sXr}, {3*32768}
                s_cselect_b32 s{sXr}, 0, s{sXr}""")
                for k in range(4): a(f"v_add_u32 v{xa+k}, s{sXr}, v{xb+k}")
            a(f"""s_add_u32 s{sRound}, s{sRound}, 1
            s_cmp_lt_u32 s{sRound}, 20
            s_cselect_b32 s{SRD_A+2}, s{sSize}, 0
            s_waitcnt vmcnt({8 if ks == 3 else 12})
            s_barrier""")
            dm = dma_ops(1 if ks == 1 else 0)
            a(mf[1]); a("\n".join(rd[0:3])); a("\n".join(cops[0:4]))
            a(mf[2]); a("\n".join(rd[3:6])); a("\n".join(cops[4:8]))
            a(mf[3]); a("\n".join(rd[6:8])); a(dm[0]); a("\n".join(cops[8:12]))
            a(mf[4]); a(dm[1]); a(dm[2]); a("\n".join(cops[12:18]))
            a(mf[5]); a(dm[3]); a(dm[4]); a("\n".join(cops[18:24]))
        else:
            cr = [f"ds_read_b64 {vr(craw+2*u,2)}, v{ca} offset:{u*4096}" for u in range(3)]
            a("\n".join(rd[0:2])); a(mf[1]); a("\n".join(rd[2:4])); a(mf[2]); a("\n".join(rd[4:6]))
            a(mf[3]); a("\n".join(rd[6:8])); a(mf[4]); a("\n".join(cr)); a(mf[5])
    a(f"s_cmp_lt_u32 s{sRound}, 24\ns_cbranch_scc1 L_g1")
    a.auto = True
    st = Wf[0][0]
    a("s_waitcnt lgkmcnt(0)")
    vst = xa; vlo = xa + 1
    sTG = sRound
    a(f"""; stats for this wave's two token groups
    s_lshl_b32 s{sTG}, s{sRB}, 3
    s_lshl_b32 s{sT}, s{sTQ}, 1
    s_add_u32 s{sTG}, s{sTG}, s{sT}
    s_lshl_b32 s{sT}, s{sTG}, 8
    s_add_u32 s{sT}, s{sT}, {OFF_ST}
    v_and_b32 v{vst}, 31, v{vLANE}
    v_lshlrev_b32 v{vst}, 3, v{vst}
    buffer_load_dwordx2 {vr(t,2)}, v{vst}, {sr(SRD_WS,4)}, s{sT} offen sc0 sc1
    buffer_load_dwordx2 {vr(t+2,2)}, v{vst}, {sr(SRD_WS,4)}, s{sT} offen offset:256 sc0 sc1
    v_and_b32 v{vlo}, 15, v{vLANE}
    v_lshlrev_b32 v{vlo}, 4, v{vlo}
    v_add_u32 v{vlo}, {LCS}, v{vlo}""")
    for u in range(3):
        for e in range(4): a(f"ds_add_f32 v{vlo}, v{cs+4*u+e} offset:{u*256+e*4}")
    a(f"""v_lshrrev_b32 v{vlo}, 5, v{vLANE}
    v_lshlrev_b32 v{vlo}, 5, v{vlo}
    s_lshl_b32 s{sT}, s{sCH}, 7
    s_add_u32 s{sT}, s{sT}, {LCS}
    v_add_u32 v{vlo}, s{sT}, v{vlo}
    s_waitcnt lgkmcnt(0)
    s_barrier""")
    csq = V.many(16, 4); csg = V.many(16, 4); csu = V.many(16, 4)
    for u, dst in enumerate((csq, csg, csu)):
        for q in range(4):
            a(f"ds_read_b128 {vr(dst+4*q,4)}, v{vlo} offset:{u*256 + (q>>1)*64 + (q&1)*16}")
    nm = [t + 4, t + 5]; rs = [t + 6, t + 7]; rq = [t + 1, t + 3]
    a(f"""s_cmp_lt_u32 s{sC}, 10
    s_cselect_b32 s{sU}, {f32(QSCALE)}, 1.0
    v_lshlrev_b32 v{vst}, 4, v{vLANE}
    s_waitcnt vmcnt(0)""")
    for g in range(2):
        a(f"""v_lshlrev_b32 v{nm[g]}, 16, v{t+2*g}
        v_and_b32 v{rs[g]}, 0xffff0000, v{t+2*g}
        v_xor_b32 v{nm[g]}, 0x80000000, v{nm[g]}
        v_rcp_f32 v{rs[g]}, v{rs[g]}""")
    for g in range(2): a(f"v_mul_f32 v{rq[g]}, s{sU}, v{rs[g]}")
    a(f"""s_mov_b32 s{SRD_A}, s{pWS}
    s_mov_b32 s{SRD_A+1}, s{pWS+1}
    s_cmp_lt_u32 s{sC}, 30
    s_cselect_b32 s{SRD_A+2}, {WS_USED}, 0
    s_mov_b32 s{SRD_B}, s{pWS}
    s_mov_b32 s{SRD_B+1}, s{pWS+1}
    s_cmp_lt_u32 s{sC}, 27
    s_cselect_b32 s{SRD_B+2}, {WS_USED}, 0
    s_mov_b32 s{SRD_B+3}, 0x20000
    s_lshl_b32 s{sT}, s{sC}, 12
    s_lshl_b32 s{sU}, s{sCH}, 11
    s_add_u32 s{sT}, s{sT}, s{sU}
    s_mul_i32 s{sOff}, s{sTG}, {P_QKV}
    s_add_u32 s{sOff}, s{sOff}, s{sT}
    s_mul_i32 s{sStep}, s{sTG}, {P_H}
    s_add_u32 s{sStep}, s{sStep}, s{sT}
    s_add_u32 s{sStep}, s{sStep}, {OFF_H}
    s_mov_b32 s{sD0}, {f32(-GC3)}
    s_waitcnt lgkmcnt(0)""")
    for g in range(2):
        A = acc[0][g]
        for r in range(16): a(f"v_fmac_f32 v{A+r}, v{nm[g]}, v{csq+r}")
        for r in range(16): a(f"v_mul_f32 v{A+r}, v{rq[g]}, v{A+r}")
        for r in range(8): a(f"v_cvt_pk_bf16_f32 v{st+8*g+r}, v{A+2*r}, v{A+2*r+1}")
        for jj in range(2):
            a(f"buffer_store_dwordx4 {vr(st+8*g+4*jj,4)}, v{vst}, {sr(SRD_A,4)}, s{sOff} offen offset:{1024*jj} sc0 sc1")
        if g == 0: a(f"s_add_u32 s{sOff}, s{sOff}, {P_QKV}")
    tmp = acc[0][0]
    vc1 = xa + 2
    a(f"v_mov_b32 v{vc1}, {f32(-GC1)}")
    for g in range(2):
        G = acc[1][g]; U = acc[2][g]
        for r in range(16): a(f"v_fmac_f32 v{G+r}, v{nm[g]}, v{csg+r}")
        for r in range(16): a(f"v_mul_f32 v{G+r}, v{rs[g]}, v{G+r}")
        for r in range(16): a(f"v_mul_f32 v{tmp+r}, v{G+r}, v{G+r}")
        for r in range(16): a(f"v_fma_f32 v{tmp+r}, v{tmp+r}, s{sD0}, v{vc1}")
        for r in range(16): a(f"v_mul_f32 v{tmp+r}, v{tmp+r}, v{G+r}")
        for r in range(16): a(f"v_exp_f32 v{tmp+r}, v{tmp+r}\nv_fmac_f32 v{U+r}, v{nm[g]}, v{csu+r}")
        for r in range(16): a(f"v_add_f32 v{tmp+r}, 1.0, v{tmp+r}")
        for r in range(16): a(f"v_rcp_f32 v{tmp+r}, v{tmp+r}\nv_mul_f32 v{U+r}, v{rs[g]}, v{U+r}")
        for r in range(16): a(f"v_mul_f32 v{U+r}, v{U+r}, v{G+r}")
        for r in range(16): a(f"v_mul_f32 v{U+r}, v{U+r}, v{tmp+r}")
        for r in range(8): a(f"v_cvt_pk_bf16_f32 v{st+16+8*g+r}, v{U+2*r}, v{U+2*r+1}")
        for jj in range(2):
            a(f"buffer_store_dwordx4 {vr(st+16+8*g+4*jj,4)}, v{vst}, {sr(SRD_B,4)}, s{sStep} offen offset:{1024*jj} sc0 sc1")
        if g == 0: a(f"s_add_u32 s{sStep}, s{sStep}, {P_H}")
    print("gemm1 vgprs", V.hi, "sgprs", sg.hi, file=sys.stderr)

A_REG, A_SLOT, A_HALF = 2112, 12800, 38400
A_ONES = 2 * A_HALF + 128
A_XCH = 79872
def attention(a):
    V = Regs('v', 2, 256); sg = Regs('s', S0, 102)
    Sb = [V.many(32, 4) for b in range(2)]
    O = [V.many(16, 4) for g in range(2)]
    Qm = [V.many(4, 4) for g in range(2)]; Km = V.many(4, 4); V0 = V.many(4, 4); V1 = V.many(4, 4)
    Qr = V.many(2, 2); Kr = V.many(2, 2)
    idx = V.one(); kma = V.one(); kra = V.one(); va = V.many(3, 1); voff = V.one(); t = V.many(8, 4)
    sHD, sQB, sQP, sKH, sPAR, sPA, sPS, sT, sU, sTG = (sg.one() for _ in range(10))
    sDO = sg.many(3, 1); sDM = sg.many(3, 1)
    a(f"""; hd = xcd*4 + (j>>3) ; qb = j&7
    s_and_b32 s{sHD}, s2, 7
    s_lshl_b32 s{sHD}, s{sHD}, 2
    s_lshr_b32 s{sT}, s2, 6
    s_add_u32 s{sHD}, s{sHD}, s{sT}
    s_bfe_u32 s{sQB}, s2, 0x30003
    s_and_b32 s{sQP}, s{sWAVE}, 3
    s_lshr_b32 s{sKH}, s{sWAVE}, 2
    s_and_b32 s{sPAR}, s{sHD}, 1
    s_mul_i32 s{sT}, s{sHD}, 5
    s_lshr_b32 s{sT}, s{sT}, 1
    s_add_u32 s{sPA}, s{sT}, s{sPAR}
    s_add_u32 s{sPS}, s{sT}, 2
    s_cmp_eq_u32 s{sPAR}, 1
    s_cselect_b32 s{sPS}, s{sT}, s{sPS}
    s_lshl_b32 s{sPA}, s{sPA}, 9
    s_lshl_b32 s{sPS}, s{sPS}, 9""")
    for i in range(3):
        a(f"""s_mul_i32 s{sT}, s{sQP}, 3
        s_add_u32 s{sT}, s{sT}, {i}
        s_lshr_b32 s{sU}, s{sT}, 1
        s_and_b32 s{sT}, s{sT}, 1
        s_mul_i32 s{sDM+i}, s{sU}, {A_REG}
        s_lshl_b32 s{sTG}, s{sT}, 10
        s_add_u32 s{sDM+i}, s{sDM+i}, s{sTG}
        s_mul_i32 s{sTG}, s{sKH}, {A_HALF}
        s_add_u32 s{sDM+i}, s{sDM+i}, s{sTG}
        s_lshl_b32 s{sTG}, s{sKH}, 4
        s_add_u32 s{sTG}, s{sTG}, s{sT}
        s_mul_i32 s{sDO+i}, s{sTG}, {2*P_QKV}
        s_cmp_ge_u32 s{sU}, 3
        s_cselect_b32 s{sT}, 3, 0
        s_cselect_b32 s{sTG}, {80*512}, 0
        s_add_u32 s{sDO+i}, s{sDO+i}, s{sTG}
        s_add_u32 s{sDO+i}, s{sDO+i}, {OFF_QKV + 80*512}
        s_sub_u32 s{sU}, s{sU}, s{sT}
        s_lshl_b32 s{sT}, s{sU}, 9
        s_add_u32 s{sT}, s{sT}, s{sPA}
        s_cmp_eq_u32 s{sU}, 2
        s_cselect_b32 s{sT}, s{sPS}, s{sT}
        s_add_u32 s{sDO+i}, s{sDO+i}, s{sT}""")
    a(f"""v_lshrrev_b32 v{t}, 5, v{vLANE}
    v_and_b32 v{t+1}, 31, v{vLANE}
    v_lshlrev_b32 v{t+1}, 4, v{t+1}
    v_mul_u32_u24 v{voff}, {P_QKV}, v{t}
    v_add_u32 v{voff}, v{voff}, v{t+1}""")
    def dma(c):
        L = []
        for i in range(3):
            L.append(f"""s_add_u32 m0, s{sDM+i}, {(c%3)*A_SLOT}
            s_add_u32 s{sDO+i}, s{sDO+i}, {4*P_QKV if c else 0}
            buffer_load_dwordx4 v{voff}, {sr(SRD_WS,4)}, s{sDO+i} offen sc0 sc1 lds""")
        return L
    for g in dma(0): a(g)
    a(f"""s_lshl_b32 s{sTG}, s{sQB}, 3
    s_lshl_b32 s{sT}, s{sQP}, 1
    s_add_u32 s{sTG}, s{sTG}, s{sT}
    s_add_u32 s{sT}, s{sTG}, s{sKH}
    s_xor_b32 s{sU}, s{sT}, 1
    s_mul_i32 s{sT}, s{sT}, {P_QKV}
    s_mul_i32 s{sU}, s{sU}, {P_QKV}
    s_add_u32 s{sT}, s{sT}, s{sPA}
    s_add_u32 s{sU}, s{sU}, s{sPA}
    v_lshlrev_b32 v{t+2}, 4, v{vLANE}
    buffer_load_dwordx4 {vr(Qm[0],4)}, v{t+2}, {sr(SRD_WS,4)}, s{sT} offen sc0 sc1
    buffer_load_dwordx4 {vr(Qm[1],4)}, v{t+2}, {sr(SRD_WS,4)}, s{sU} offen sc0 sc1
    v_xor_b32 v{t+2}, s{sKH}, v{t}
    v_mul_u32_u24 v{t+2}, {P_QKV}, v{t+2}
    v_add_u32 v{t+2}, v{t+2}, v{t+1}
    s_mul_i32 s{sT}, s{sTG}, {P_QKV}
    s_add_u32 s{sT}, s{sT}, s{sPS}
    s_lshl_b32 s{sU}, s{sPAR}, 3
    s_add_u32 s{sT}, s{sT}, s{sU}
    buffer_load_dwordx2 {vr(Qr,2)}, v{t+2}, {sr(SRD_WS,4)}, s{sT} offen sc0 sc1
    s_add_u32 s{sTG}, s{sTG}, s{sKH}""")
    for g in dma(1): a(g)
    a(f"""; LDS read addresses
    s_mul_i32 s{sT}, s{sKH}, {A_HALF}
    v_mul_u32_u24 v{kma}, {A_REG}, v{t}
    v_add3_u32 v{kma}, v{kma}, v{t+1}, s{sT}
    s_add_u32 s{sU}, s{sU}, s{sT}
    s_add_u32 s{sU}, s{sU}, {2*A_REG}
    v_add_u32 v{kra}, s{sU}, v{t+1}
    v_bfe_u32 v{t+1}, v{vLANE}, 2, 2
    v_lshl_add_u32 v{t+1}, v{t}, 3, v{t+1}
    v_lshlrev_b32 v{t+1}, 4, v{t+1}
    v_and_b32 v{t+2}, 1, v{vLANE}
    v_mul_u32_u24 v{t+2}, {A_REG}, v{t+2}
    v_bfe_u32 v{t+3}, v{vLANE}, 1, 1
    v_lshl_add_u32 v{t+2}, v{t+3}, 3, v{t+2}
    s_add_u32 s{sT}, s{sT}, {3*A_REG}
    v_add_u32 v{t+2}, s{sT}, v{t+2}
    s_add_u32 s{sU}, s{sU}, {3*A_REG}
    v_mov_b32 v{t+3}, s{sU}
    v_and_b32 v{t+4}, 19, v{vLANE}
    v_cmp_eq_u32 vcc, 16, v{t+4}
    v_cndmask_b32 v{t+2}, v{t+2}, v{t+3}, vcc
    v_cmp_lt_u32 vcc, 16, v{t+4}
    v_mov_b32 v{t+3}, {A_ONES}""")
    for k in range(3):
        a(f"""v_add_u32 v{t+4}, {k*A_SLOT}, v{t+2}
        v_cndmask_b32 v{t+4}, v{t+4}, v{t+3}, vcc
        v_add_u32 v{va+k}, v{t+4}, v{t+1}""")
    a(f"""v_mov_b32 v{idx}, 0xdddddddd
    v_mov_b32 v{t+4}, 0x3f803f80
    v_lshlrev_b32 v{t+5}, 2, v0
    v_add_u32 v{t+5}, {A_ONES}, v{t+5}
    ds_write_b32 v{t+5}, v{t+4}""")
    for g in range(2):
        for r in range(16): a(f"v_mov_b32 v{O[g]+r}, 0")
    def rdKr(i): return f"ds_read_b64 {vr(Kr,2)}, v{kra} offset:{((i>>2)%3)*A_SLOT + (i&3)*512}"
    def rdKm(i): return f"ds_read_b128 {vr(Km,4)}, v{kma} offset:{((i>>2)%3)*A_SLOT + (i&3)*512}"
    def rdV(i, s):
        R = V1 if s else V0
        return "\n".join(f"ds_read_b64_tr_b16 {vr(R+2*rd,2)}, v{va+(i>>2)%3} offset:{(i&3)*512 + s*256 + rd*64}" for rd in range(2))
    def m2b(i): return f"v_mfma_f32_32x32x4_2b_bf16 {vr(Sb[i&1],32)}, {vr(Kr,2)}, {vr(Qr,2)}, 0"
    def m16(i, g): return f"v_mfma_f32_32x32x16_bf16 {vr(Sb[i&1]+16*g,16)}, {vr(Km,4)}, {vr(Qm[g],4)}, {vr(Sb[i&1]+16*g,16)}"
    def smf(i, g, s): return f"v_smfmac_f32_32x32x32_bf16 {vr(O[g],16)}, {vr(V1 if s else V0,4)}, {vr(Sb[i&1]+16*g+8*s,8)}, v{idx}"
    a("s_waitcnt vmcnt(3) lgkmcnt(0)\ns_barrier")
    a(rdKr(0)); a(rdKm(0)); a(rdV(0, 0)); a("s_waitcnt lgkmcnt(2)")
    a(m2b(0)); a(rdKr(1)); a(m16(0, 0)); a(m16(0, 1)); a(rdKm(1)); a("s_waitcnt lgkmcnt(0)\ns_nop 8")
    NT = 32
    a.auto = False
    for i in range(NT):
        E = lambda lo, hi: "\n".join(f"v_exp_f32 v{Sb[i&1]+k}, v{Sb[i&1]+k}" for k in range(lo, hi))
        last = i == NT - 1
        a(E(0, 2))
        if i: a(smf(i - 1, 1, 1))
        a(rdV(i, 1)); a(E(2, 5))
        if not last: a(m2b(i + 1))
        newc = (i + 2) % 4 == 0 and i + 2 < NT
        dm = []
        if newc:
            c = (i + 2) // 4
            a("s_waitcnt vmcnt(0)\ns_barrier")
            if c + 1 < 8: dm = dma(c + 1)
        if i + 2 < NT: a(rdKr(i + 2))
        a(E(5, 9))
        if dm: a(dm[0])
        a(E(9, 13))
        a(f"s_waitcnt lgkmcnt({(4 if i + 2 < NT else 3) if not last else 2})")
        a(smf(i, 0, 0))
        if dm: a(dm[1])
        a(E(13, 18)); a("s_waitcnt lgkmcnt(0)"); a(smf(i, 0, 1))
        if dm: a(dm[2])
        a(E(18, 21))
        if not last: a(m16(i + 1, 0))
        a(E(21, 26)); a(smf(i, 1, 0))
        if not last: a(rdV(i + 1, 0))
        a(E(26, 29))
        if not last: a(m16(i + 1, 1))
        if i + 2 < NT: a(rdKm(i + 2))
        a(E(29, 32))
    a.auto = True
    a(smf(NT - 1, 1, 1))
    a(f"""v_lshlrev_b32 v{t}, 4, v{vLANE}
    s_lshl_b32 s{sT}, s{sWAVE}, 12
    s_add_u32 s{sT}, s{sT}, {A_XCH}
    v_add_u32 v{t+1}, s{sT}, v{t}
    s_xor_b32 s{sU}, s{sWAVE}, 4
    s_lshl_b32 s{sU}, s{sU}, 12
    s_add_u32 s{sU}, s{sU}, {A_XCH}
    v_add_u32 v{t+2}, s{sU}, v{t}""")
    for q in range(4): a(f"ds_write_b128 v{t+1}, {vr(O[1]+4*q,4)} offset:{1024*q}")
    a("s_waitcnt lgkmcnt(0)\ns_barrier")
    X = Sb[0]
    for q in range(4): a(f"ds_read_b128 {vr(X+4*q,4)}, v{t+2} offset:{1024*q}")
    a(f"""s_mul_i32 s{sT}, s{sTG}, {P_O}
    s_add_u32 s{sT}, s{sT}, {OFF_O}
    s_add_u32 s{sU}, s{sT}, s{sPS}
    s_add_u32 s{sT}, s{sT}, s{sPA}
    s_lshl_b32 s{sPAR}, s{sPAR}, 3
    s_add_u32 s{sU}, s{sU}, s{sPAR}
    s_waitcnt lgkmcnt(0)""")
    a(f"v_add_f32 v{X+12}, v{X+12}, v{O[0]+12}\nv_rcp_f32 v{X+13}, v{X+12}")
    for r in range(12): a(f"v_add_f32 v{X+r}, v{X+r}, v{O[0]+r}")
    for r in range(12): a(f"v_mul_f32 v{X+r}, v{X+r}, v{X+13}")
    for r in range(6): a(f"v_cvt_pk_bf16_f32 v{X+16+r}, v{X+2*r}, v{X+2*r+1}")
    a(f"""buffer_store_dwordx4 {vr(X+16,4)}, v{t}, {sr(SRD_WS,4)}, s{sT} offen sc0 sc1
    s_mov_b32 exec_hi, 0
    buffer_store_dwordx2 {vr(X+20,2)}, v{t}, {sr(SRD_WS,4)}, s{sU} offen sc0 sc1
    s_mov_b64 exec, -1""")
    print("attn vgprs", V.hi, "sgprs", sg.hi, file=sys.stderr)

G3_SLOT = 40960
G3_RED = 3 * G3_SLOT
def gemm3(a):
    V = Regs('v', 2, 256); sg = Regs('s', S0, 102)
    B = V.many(37 * 4, 4)
    accd = V.many(20, 4); accs = V.many(20, 4)
    Wf = [V.many(20, 4) for b in range(2)]
    t = V.many(8, 4); wa = V.many(3, 1); voff = V.one()
    sTB, sCB, sT4, sKH, sT, sU, sOff, sM0 = (sg.one() for _ in range(8))
    a(f"""; tb = (xcd>>1)*8 + (j&7) ; cb = (xcd&1)*4 + (j>>3)
    s_bfe_u32 s{sTB}, s2, 0x20001
    s_lshl_b32 s{sTB}, s{sTB}, 3
    s_bfe_u32 s{sT}, s2, 0x30003
    s_add_u32 s{sTB}, s{sTB}, s{sT}
    s_and_b32 s{sCB}, s2, 1
    s_lshl_b32 s{sCB}, s{sCB}, 2
    s_lshr_b32 s{sT}, s2, 6
    s_add_u32 s{sCB}, s{sCB}, s{sT}
    s_and_b32 s{sT4}, s{sWAVE}, 3
    s_lshr_b32 s{sKH}, s{sWAVE}, 2
    s_lshl_b32 s{sT}, s{sCB}, 1
    s_add_u32 s{sT}, s{sT}, s{sKH}
    s_mul_i32 s{sT}, s{sT}, 37
    s_add_u32 s{sT}, s{sT}, s{sT4}
    s_mul_i32 s{sOff}, s{sT}, 5120
    s_add_u32 s{sOff}, s{sOff}, {OFF_WP}
    s_mul_i32 s{sM0}, s{sWAVE}, 5120
    v_lshlrev_b32 v{voff}, 4, v{vLANE}""")
    def dma(c):
        L = []
        for i in range(5):
            L.append(f"""s_add_u32 m0, s{sM0}, {(c%3)*G3_SLOT + 1024*i}
            s_add_u32 s{sU}, s{sOff}, {c*4*5120 + 1024*i}
            buffer_load_dwordx4 v{voff}, {sr(SRD_WS,4)}, s{sU} offen sc0 sc1 lds""")
        return L
    for g in dma(0): a(g)
    a(f"""v_lshrrev_b32 v{t}, 4, v{vLANE}
    v_and_b32 v{t+1}, 15, v{vLANE}
    v_lshlrev_b32 v{t+1}, 4, v{t+1}
    v_lshl_add_u32 v{t+2}, v{t}, 9, v{t+1}
    s_and_b32 s{sT}, s{sT4}, 1
    s_lshl_b32 s{sT}, s{sT}, 8
    v_add_u32 v{t+2}, s{sT}, v{t+2}""")
    sTG = sg.one(); sH = sg.one(); sO = sg.one()
    a(f"""s_lshl_b32 s{sTG}, s{sTB}, 1
    s_lshr_b32 s{sT}, s{sT4}, 1
    s_add_u32 s{sTG}, s{sTG}, s{sT}
    s_mul_i32 s{sH}, s{sTG}, {P_H}
    s_mul_i32 s{sT}, s{sKH}, {27*2048}
    s_add_u32 s{sH}, s{sH}, s{sT}
    s_add_u32 s{sH}, s{sH}, {OFF_H}
    s_mul_i32 s{sO}, s{sTG}, {P_O}
    s_mul_i32 s{sT}, s{sKH}, {10*2048}
    s_add_u32 s{sO}, s{sO}, s{sT}
    s_add_u32 s{sO}, s{sO}, {OFF_O}""")
    def bload(n):
        base, k = (sH, n) if n < 27 else (sO, n - 27)
        s = ""
        if k and k % 2 == 0: s += f"s_add_u32 s{base}, s{base}, 4096\n"
        return s + f"buffer_load_dwordx4 {vr(B+4*n,4)}, v{t+2}, {sr(SRD_WS,4)}, s{base} offen offset:{(k&1)*2048} sc0 sc1"
    for n in range(4): a(bload(n))
    for g in dma(1): a(g)
    for n in range(4, 8): a(bload(n))
    a(f"s_mul_i32 s{sT}, s{sKH}, {4*5120}")
    for k in range(3): a(f"s_add_u32 s{sU}, s{sT}, {k*G3_SLOT}\nv_add_u32 v{wa+k}, s{sU}, v{voff}")
    for r in range(20): a(f"v_mov_b32 v{accd+r}, 0\nv_mov_b32 v{accs+r}, 0")
    def rd(n): return [f"ds_read_b128 {vr(Wf[n&1]+4*ct,4)}, v{wa+(n>>2)%3} offset:{(n&3)*5120 + ct*1024}" for ct in range(5)]
    a("s_waitcnt vmcnt(9)\ns_barrier")
    for g in dma(2): a(g)
    for n in range(8, 12): a(bload(n))
    for r in rd(0): a(r)
    for n in range(37):
        A = accd if n < 27 else accs
        mf = [f"v_mfma_f32_16x16x32_bf16 {vr(A+4*ct,4)}, {vr(Wf[n&1]+4*ct,4)}, {vr(B+4*n,4)}, {vr(A+4*ct,4)}" for ct in range(5)]
        a("s_waitcnt lgkmcnt(0)")
        a(mf[0])
        extra = []
        if n % 4 == 3 and n + 1 < 37:
            c = (n + 1) // 4
            nb = lambda cc: min(37, 4*cc + 4) - 4*cc
            a(f"s_waitcnt vmcnt({5 + nb(c+1) if c + 1 < 10 else 0})\ns_barrier")
            if c + 2 < 10:
                extra = dma(c + 2) + [bload(m) for m in range(4*(c+2), min(37, 4*(c+2)+4))]
        r = rd(n + 1) if n + 1 < 37 else [""] * 5
        a(r[0]); a(r[1]); a(mf[1]); a(r[2]); a(r[3]); a(mf[2]); a(r[4]); a(mf[3])
        for e in extra: a(e)
        a(mf[4])
    x2 = B; red = B + 8; g_ = B + 40
    srd(a, SRD_A, pX, S * D * 2); srd(a, SRD_B, pOUT, S * D * 2)
    a(f"""; write address: kh*20480 + (t4*16 + l%16)*320 + (l/16)*16
    v_and_b32 v{t+1}, 15, v{vLANE}
    v_mul_u32_u24 v{t+1}, 320, v{t+1}
    v_lshl_add_u32 v{t+1}, v{t}, 4, v{t+1}
    s_mul_i32 s{sT}, s{sWAVE}, 5120
    s_add_u32 s{sT}, s{sT}, {G3_RED}
    v_add_u32 v{t+1}, s{sT}, v{t+1}
    s_mul_i32 s{sT}, s{sTB}, {64*1280}
    s_mul_i32 s{sU}, s{sCB}, 160
    s_add_u32 s{sOff}, s{sT}, s{sU}""")
    for q in range(3):
        a(f"""v_add_u32 v{t+2}, {512*q}, v0
        v_mul_u32_u24 v{t+3}, 3277, v{t+2}
        v_lshrrev_b32 v{t+3}, 16, v{t+3}
        v_mul_u32_u24 v{t+3}, {1280-160}, v{t+3}
        v_lshl_add_u32 v{t+4+q}, v{t+2}, 3, v{t+3}""")
    a(f"""v_mov_b32 v{t+2}, 0x7ffffff0
    v_cmp_gt_u32 vcc, 256, v0
    v_cndmask_b32 v{t+6}, v{t+2}, v{t+6}, vcc
    v_lshlrev_b32 v{t+2}, 4, v0
    v_add_u32 v{t+2}, {G3_RED}, v{t+2}
    v_and_b32 v{t+3}, 255, v0
    v_lshlrev_b32 v{t+3}, 4, v{t+3}
    v_add_u32 v{t+3}, {G3_RED + 16384}, v{t+3}""")
    for q in range(3): a(f"buffer_load_dwordx2 {vr(x2+2*q,2)}, v{t+4+q}, {sr(SRD_A,4)}, s{sOff} offen")
    def reduce(A):
        for ct in range(5): a(f"ds_write_b128 v{t+1}, {vr(A+4*ct,4)} offset:{64*ct}")
        a("s_waitcnt lgkmcnt(0)\ns_barrier")
        for q in range(3):
            for k in range(2):
                a(f"ds_read_b128 {vr(red+8*q+4*k,4)}, v{t+2 if q < 2 else t+3} offset:{(8192*q if q < 2 else 0) + 20480*k}")
        a("s_waitcnt lgkmcnt(0)")
    reduce(accd)
    a("s_barrier")
    a(f"s_mov_b32 s{sT}, {f32(-LOG2E)}")
    for q in range(3):
        for e in range(4): a(f"v_add_f32 v{g_+4*q+e}, v{red+8*q+e}, v{red+8*q+4+e}")
    for r in range(12): a(f"v_mul_f32 v{red+r}, s{sT}, v{g_+r}")
    for r in range(12): a(f"v_exp_f32 v{red+r}, v{red+r}")
    for r in range(12): a(f"v_add_f32 v{red+r}, 1.0, v{red+r}")
    for r in range(12): a(f"v_rcp_f32 v{red+r}, v{red+r}")
    for r in range(12): a(f"v_mul_f32 v{g_+r}, v{g_+r}, v{red+r}")
    reduce(accs)
    xs = g_ + 12
    a("s_waitcnt vmcnt(0)")
    for q in range(3):
        for k in range(2):
            a(f"v_lshlrev_b32 v{xs+4*q+2*k}, 16, v{x2+2*q+k}\nv_and_b32 v{xs+4*q+2*k+1}, 0xffff0000, v{x2+2*q+k}")
        for e in range(4):
            a(f"v_add_f32 v{red+8*q+e}, v{red+8*q+e}, v{red+8*q+4+e}\nv_fmac_f32 v{xs+4*q+e}, v{red+8*q+e}, v{g_+4*q+e}")
        for k in range(2): a(f"v_cvt_pk_bf16_f32 v{x2+2*q+k}, v{xs+4*q+2*k}, v{xs+4*q+2*k+1}")
        a(f"buffer_store_dwordx2 {vr(x2+2*q,2)}, v{t+4+q}, {sr(SRD_B,4)}, s{sOff} offen")
    print("gemm3 vgprs", V.hi, "sgprs", sg.hi, file=sys.stderr)

def build_multi():
    hdr = open("cdna_kernels/%s.s.ref" % NAME).read().split("; Override launch")[0]
    a = Asm()
    ks = []
    def kern(name, body):
        entry(a, name, 256, "L_end_" + name); body(); a.label("L_end_" + name); a("s_endpgm"); ks.append(name)
    def k0():
        stats(a)
        a(f"s_cmp_ge_u32 s2, 74\ns_cbranch_scc1 L_end_k0_kernel\ns_mov_b32 s{S0+6}, s2")
        repack(a, S0 + 6, 74, "L_rp")
    kern("k0_kernel", k0)
    kern("k1_kernel", lambda: gemm1(a))
    kern("k2_kernel", lambda: attention(a))
    kern("k3_kernel", lambda: gemm3(a))
    out = hdr
    for k in ks: out += f"; @launch kernel={k} grid=(256,1,1) block=(512,1,1) lds=163840\n"
    out += '.amdgcn_target "amdgcn-amd-amdhsa--gfx950"\n.text\n' + a.text()
    for k in ks: out += kdesc(k)
    print("auto nops:", a.nops, file=sys.stderr)
    return out

if __name__ == "__main__":
    path = sys.argv[1] if len(sys.argv) > 1 else "cdna_kernels/%s.s" % NAME
    open(path, "w").write(build_multi())
```

```python
import sys, os, math, struct
from asmlib import *

NAME = "recurrent_scan__softmax_full_mha__geglu_ffn__prompt"
S, D, F, NH, DH = 2048, 640, 1728, 32, 20
P_QKV, P_H, P_O = 240 * 512, 216 * 512, 80 * 512
OFF_QKV = 0
OFF_H = OFF_QKV + 64 * P_QKV
OFF_O = OFF_H + 64 * P_H
OFF_WP = OFF_O + 64 * P_O
OFF_ST = OFF_WP + 8 * 74 * 5 * 1024
OFF_CS = OFF_ST + 2048 * 8
OFF_FQ = OFF_CS + 28 * 192 * 8
OFF_FH = OFF_FQ + 8192
OFF_FW = OFF_FH + 8192
OFF_FO = OFF_FW + 4096
OFF_EP = OFF_FO + 8192
WS_USED = OFF_EP + 256
def f32(x): return "0x%08x" % struct.unpack("<I", struct.pack("<f", x))[0]
LOG2E = 1.4426950408889634
QSCALE = DH ** -0.5 * LOG2E
GC1 = 2 * 0.7978845608028654 * LOG2E
GC3 = GC1 * 0.044715
SPIN_MAX = 1 << 16
SLEEP = int(os.environ.get('SLEEP', '8'))
XF = set(os.environ.get("XF", "").split(","))

pX, pWQKV, pWO, pBX, pWG, pWU, pWD, pOUT, pDBG, pWS = 4, 6, 8, 10, 12, 14, 16, 18, 20, 22
sWAVE = 3
SRD_WS, SRD_A, SRD_B = 24, 28, 32
_sp = Regs('s', 36, 62)
sTAG, sT, sU, sQ4, sHI, sSPIN = (_sp.one() for _ in range(6))
sDO, sDM = _sp.many(3, 1), _sp.many(3, 1)
sQA, sQB_, sQR, sOA, sOR, sFO = (_sp.one() for _ in range(6))
sH, sO3, sWO, sOUT, sFHc, sFWc, sFOc, sFHp = (_sp.one() for _ in range(8))
S0 = 62
vLANE, vL16, vTAG, vIDX, vKMA, vKRA, vVA, vKVO, vQRO, vFQO, vBO = 1, 2, 3, 4, 5, 6, 7, 10, 11, 12, 13
T = 16
HB = 24
WK = 132

STAMP = int(os.environ.get("STAMP", "0"))
OFF_STAMP = WS_USED
if STAMP: WS_USED += 2048 * 128
class Stamper: n = 0
NSTAMP = 16
vST = 252
def stamp(a, real=False, idx=None):
    if not STAMP: return
    i = Stamper.n if idx is None else idx
    if idx is None: Stamper.n += 1
    au = a.auto; a.auto = True
    if STAMP == 2: real = True
    a(f"s_mem{'real' if real else ''}time s[100:101]\ns_waitcnt lgkmcnt(0)\nv_writelane_b32 v{vST}, s100, {i}")
    a.auto = au
def stamp_flush(a):
    if not STAMP: return
    a("s_waitcnt vmcnt(0) lgkmcnt(0)")
    stamp(a); stamp(a, True)
    print("stamps:", Stamper.n, file=sys.stderr)
    a(f"""s_lshl_b32 s{sT}, s2, 3
    s_add_u32 s{sT}, s{sT}, s{sWAVE}
    s_lshl_b32 s{sT}, s{sT}, 7
    s_add_u32 s{sT}, s{sT}, {OFF_STAMP}
    v_lshlrev_b32 v{T}, 2, v{vLANE}
    s_mov_b32 exec_hi, 0
    buffer_store_dword v{vST}, v{T}, {sr(SRD_WS,4)}, s{sT} offen""")

def srd(a, r, ptr, size):
    a(f"s_mov_b32 s{r}, s{ptr}\ns_mov_b32 s{r+1}, s{ptr+1}\ns_mov_b32 s{r+2}, {size}\ns_mov_b32 s{r+3}, 0x20000")
WS = sr(SRD_WS, 4)

def flag(a, soff, imm=0):
    a(f"s_mov_b64 exec, 1\nbuffer_store_dword v{vTAG}, off, {WS}, s{soff} offset:{imm} sc1\ns_mov_b64 exec, -1")

def check_ne(a, regs):
    a(f"v_xor_b32 v{regs[0]}, s{sTAG}, v{regs[0]}")
    for r in regs[1:]:
        a(f"v_xor_b32 v{r}, s{sTAG}, v{r}\nv_or_b32 v{regs[0]}, v{regs[0]}, v{r}")
    a(f"v_cmp_ne_u32 vcc, 0, v{regs[0]}")

def spin(a, lbl, loads, regs, done, after_wait=None):
    a(f"s_mov_b32 s{sSPIN}, {SPIN_MAX}")
    a.label(lbl)
    for l in loads: a(l)
    a("s_waitcnt vmcnt(0)")
    check_ne(a, regs)
    a(f"""s_cbranch_vccz {done}
    s_sleep {SLEEP}
    s_sub_u32 s{sSPIN}, s{sSPIN}, 1
    s_cmp_lg_u32 s{sSPIN}, 0
    s_cbranch_scc1 {lbl}""")

def wave_sum(a, v):
    for m in ("quad_perm:[1,0,3,2]", "quad_perm:[2,3,0,1]", "row_half_mirror", "row_mirror"):
        a(f"v_add_f32_dpp v{v}, v{v}, v{v} {m} row_mask:0xf bank_mask:0xf")
    a(f"v_add_f32_dpp v{v}, v{v}, v{v} row_bcast:15 row_mask:0xa bank_mask:0xf")
    a(f"v_add_f32_dpp v{v}, v{v}, v{v} row_bcast:31 row_mask:0xc bank_mask:0xf")

LX, LW, LDUMMY = 0, 98304, 159744
G3_SLOT = 40960
A_BASE, A_REG, A_HALF, A_SLOT = 2 * G3_SLOT, 2112, 12800, 25600
A_ONES = A_BASE + 3 * A_SLOT + 128
A_XCH = A_BASE + 2 * A_SLOT
G3_RED = 3 * G3_SLOT

class G1: pass
def alloc_g1():
    g = G1(); V = Regs('v', 24, 252); sg = Regs('s', S0, 100)
    g.acc = [[V.many(16, 4) for _ in range(2)] for u in range(3)]
    g.Wf = [[V.many(4, 4) for u in range(3)] for b in range(2)]
    g.Xf = [[V.many(4, 4) for _ in range(2)] for b in range(2)]
    g.xb = V.many(4, 1); g.xa = V.many(4, 1); g.wb = V.one(); g.wa = V.one(); g.voff = V.many(2, 1)
    g.raw = V.many(6, 2); g.e = V.many(10, 2); g.ep = V.one()
    g.tmp = V.many(24, 4)
    for n in "sRB sC sOff sStep sD0 sD1 sM0 sMsz sMend sMwrap sMstep sSize sRound sWr sXr sRow sP".split(): setattr(g, n, sg.one())
    g.V, g.sg = V, sg
    return g

def dma_ops(g, par):
    L = []
    for i in range(4):
        L.append((f"s_mov_b32 m0, s{g.sM0}" if i == 0 else f"s_add_u32 m0, m0, s{g.sMstep}") + "\n" +
                 (f"s_add_u32 s{g.sM0}, s{g.sM0}, s{g.sMsz}" if i == 0 else f"s_add_u32 s{g.sOff}, s{g.sOff}, s{g.sStep}") + "\n" +
                 f"buffer_load_dwordx4 v{g.voff+(i&1)}, {sr(SRD_A,4)}, s{g.sOff} offen lds")
    L.append(f"""s_add_u32 s{g.sOff}, s{g.sOff}, s{g.sD1 if par else g.sD0}
    s_cmp_ge_u32 s{g.sM0}, s{g.sMend}
    s_cselect_b32 s{sT}, s{g.sMwrap}, 0
    s_sub_u32 s{g.sM0}, s{g.sM0}, s{sT}""")
    return L

def prologue(a, g):
    t = T
    name = NAME + "_kernel"
    a.raw(f".globl {name}\n.p2align 8\n.type {name},@function")
    a.label(name)
    a(f"""s_cmp_ge_u32 s2, 256
    s_cbranch_scc1 L_end""")
    stamp(a, True); stamp(a)
    a(f"""s_load_dwordx16 s[4:19], s[0:1], 0
    s_load_dwordx4 s[20:23], s[0:1], 64
    v_lshrrev_b32 v{t}, 6, v0
    v_and_b32 v{vLANE}, 63, v0
    v_readfirstlane_b32 s{sWAVE}, v{t}
    v_lshlrev_b32 v{vL16}, 4, v{vLANE}
    s_and_b32 s{g.sRB}, s2, 1
    s_lshl_b32 s{g.sRB}, s{g.sRB}, 2
    s_bfe_u32 s{sT}, s2, 0x20003
    s_add_u32 s{g.sRB}, s{g.sRB}, s{sT}
    s_lshr_b32 s{g.sC}, s2, 5
    s_lshl_b32 s{g.sC}, s{g.sC}, 2
    s_bfe_u32 s{sT}, s2, 0x20001
    s_add_u32 s{g.sC}, s{g.sC}, s{sT}
    s_and_b32 s{sQ4}, s{sWAVE}, 3
    s_lshr_b32 s{sHI}, s{sWAVE}, 2
    s_lshl_b32 s{g.sRow}, s2, 3
    s_add_u32 s{g.sRow}, s{g.sRow}, s{sWAVE}
    s_cmp_eq_u32 s{g.sC}, 27
    s_cselect_b32 s{sT}, s{sWAVE}, 0
    s_cmp_lt_u32 s{sWAVE}, 3
    s_cselect_b32 s{sT}, s{sT}, 0
    s_sub_u32 s{g.sP}, s{sWAVE}, s{sT}
    s_add_u32 s{g.sOff}, s{g.sC}, s{sT}
    s_lshl_b32 s{g.sOff}, s{g.sOff}, 7
    s_mov_b32 s{g.sSize}, {D*F*2}
    s_movk_i32 s{sU}, {F*2}
    s_cmp_eq_u32 s{g.sP}, 0
    s_cselect_b32 s{g.sSize}, {D*3*D*2}, s{g.sSize}
    s_cselect_b32 s{sU}, {3*D*2}, s{sU}
    s_lshl_b32 s{g.sWr}, s{sQ4}, 12
    s_add_u32 s{g.sM0}, s{g.sWr}, {LW}
    s_movk_i32 s{g.sMsz}, 12288
    s_mov_b32 s{g.sMend}, {LW+5*12288}
    s_mov_b32 s{g.sMwrap}, {5*12288}
    s_movk_i32 s{g.sMstep}, 1024
    s_cmp_eq_u32 s{g.sP}, 3
    s_cselect_b32 s{g.sSize}, 0, s{g.sSize}
    s_cselect_b32 s{g.sM0}, {LDUMMY}, s{g.sM0}
    s_cselect_b32 s{g.sMsz}, 0, s{g.sMsz}
    s_cselect_b32 s{g.sMwrap}, 0, s{g.sMwrap}
    s_cselect_b32 s{g.sMstep}, 0, s{g.sMstep}
    s_lshl_b32 s{sT}, s{g.sRB}, 3
    s_add_u32 s{sT}, s{sT}, s{sQ4}
    s_mul_i32 s{sT}, s{sT}, {32*1280}
    s_cmp_ge_u32 s{g.sP}, 4
    s_cselect_b32 s{g.sSize}, {S*D*2}, s{g.sSize}
    s_cselect_b32 s{sU}, 1280, s{sU}
    s_cselect_b32 s{g.sOff}, s{sT}, s{g.sOff}
    s_cselect_b32 s{g.sD0}, {96*1280}, 0
    s_cselect_b32 s{g.sD1}, {(-160*1280+128) & 0xffffffff}, 0
    s_cselect_b32 s{g.sM0}, s{g.sWr}, s{g.sM0}
    s_cselect_b32 s{g.sMsz}, 16384, s{g.sMsz}
    s_cselect_b32 s{g.sMend}, {6*16384}, s{g.sMend}
    s_cselect_b32 s{g.sMwrap}, {6*16384}, s{g.sMwrap}
    s_cselect_b64 vcc, -1, 0
    s_lshl_b32 s{g.sStep}, s{sU}, 3
    s_add_u32 s{g.sD0}, s{g.sD0}, s{g.sStep}
    s_add_u32 s{g.sD1}, s{g.sD1}, s{g.sStep}
    ; DMA lane offsets: row = l/8, pos = l%8 ; W: chunk = pos ^ (((row>>1)&1)<<2) ; x: chunk = pos ^ ((row>>1) + 4*(i&1))
    v_lshrrev_b32 v{t}, 3, v{vLANE}
    v_mul_lo_u32 v{t}, v{t}, s{sU}
    v_and_b32 v{t+1}, 7, v{vLANE}
    v_lshrrev_b32 v{t+2}, 4, v{vLANE}
    v_and_b32 v{t+3}, 1, v{t+2}
    v_lshlrev_b32 v{t+3}, 2, v{t+3}
    v_or_b32 v{t+4}, 4, v{t+2}
    v_cndmask_b32 v{t+2}, v{t+3}, v{t+2}, vcc
    v_cndmask_b32 v{t+4}, v{t+3}, v{t+4}, vcc
    v_xor_b32 v{t+2}, v{t+2}, v{t+1}
    v_xor_b32 v{t+4}, v{t+4}, v{t+1}
    v_lshl_add_u32 v{g.voff}, v{t+2}, 4, v{t}
    v_lshl_add_u32 v{g.voff+1}, v{t+4}, 4, v{t}
    v_lshlrev_b32 v{t}, 2, v{vLANE}
    s_mul_i32 s{sT}, s{g.sRow}, 1280
    s_mov_b32 s{sU}, {OFF_EP}
    s_mov_b32 s{SRD_WS+2}, {WS_USED}
    s_mov_b32 s{SRD_WS+3}, 0x20000
    s_mov_b32 s{SRD_B+2}, {S*D*2}
    s_mov_b32 s{SRD_B+3}, 0x20000
    s_mov_b32 s{SRD_A+2}, s{g.sSize}
    s_mov_b32 s{SRD_A+3}, 0x20000
    s_waitcnt lgkmcnt(0)
    s_mov_b32 s{SRD_WS}, s{pWS}
    s_mov_b32 s{SRD_WS+1}, s{pWS+1}
    s_mov_b32 s{SRD_B}, s{pX}
    s_mov_b32 s{SRD_B+1}, s{pX+1}
    buffer_load_dword v{g.ep}, off, {WS}, s{sU} sc1
    buffer_load_dwordx4 {vr(g.raw,4)}, v{vL16}, {sr(SRD_B,4)}, s{sT} offen
    buffer_load_dword v{g.raw+4}, v{t}, {sr(SRD_B,4)}, s{sT} offen offset:1024
    s_cmp_eq_u32 s{g.sP}, 1
    s_cselect_b32 s{SRD_A}, s{pWG}, s{pWU}
    s_cselect_b32 s{SRD_A+1}, s{pWG+1}, s{pWU+1}
    s_cmp_eq_u32 s{g.sP}, 0
    s_cselect_b32 s{SRD_A}, s{pWQKV}, s{SRD_A}
    s_cselect_b32 s{SRD_A+1}, s{pWQKV+1}, s{SRD_A+1}
    s_cmp_ge_u32 s{g.sP}, 4
    s_cselect_b32 s{SRD_A}, s{pX}, s{SRD_A}
    s_cselect_b32 s{SRD_A+1}, s{pX+1}, s{SRD_A+1}
    s_cmp_ge_u32 s{g.sC}, 28
    s_cselect_b32 s{SRD_A+2}, 0, s{SRD_A+2}""")
    for j in range(2):
        for x in dma_ops(g, j): a(x)

def params(a, g):
    t = T
    sHD, sPA, sPS, sPAR, sTG, sX = g.sRound, g.sXr, sOA, sOR, sFO, sSPIN
    a(f"""; attention: hd = xcd*4 + (j>>3) ; qb = j&7
    s_and_b32 s{sHD}, s2, 7
    s_lshl_b32 s{sHD}, s{sHD}, 2
    s_lshr_b32 s{sT}, s2, 6
    s_add_u32 s{sHD}, s{sHD}, s{sT}
    s_and_b32 s{sPAR}, s{sHD}, 1
    s_mul_i32 s{sT}, s{sHD}, 5
    s_lshr_b32 s{sT}, s{sT}, 1
    s_add_u32 s{sPA}, s{sT}, s{sPAR}
    s_add_u32 s{sU}, s{sT}, 2
    s_cmp_eq_u32 s{sPAR}, 1
    s_cselect_b32 s{sPS}, s{sT}, s{sU}
    s_lshl_b32 s{sPA}, s{sPA}, 9
    s_lshl_b32 s{sPS}, s{sPS}, 9
    s_lshl_b32 s{sPAR}, s{sPAR}, 3
    s_lshr_b32 s{sT}, s{sT}, 2
    s_lshr_b32 s{sU}, s{sU}, 2
    s_sub_u32 s{sU}, s{sU}, s{sT}
    v_lshrrev_b32 v{t}, 5, v{vLANE}
    v_and_b32 v{t+1}, 31, v{vLANE}
    v_and_b32 v{t+2}, s{sU}, v{t}
    v_add_u32 v{t+2}, s{sT}, v{t+2}
    v_lshlrev_b32 v{t+2}, 7, v{t+2}
    v_lshl_add_u32 v{vFQO}, v{t+1}, 2, v{t+2}
    v_lshlrev_b32 v{t+1}, 4, v{t+1}
    v_mul_u32_u24 v{vKVO}, {P_QKV}, v{t}
    v_add_u32 v{vKVO}, v{vKVO}, v{t+1}
    v_xor_b32 v{vQRO}, s{sHI}, v{t}
    v_mul_u32_u24 v{vQRO}, {P_QKV}, v{vQRO}
    v_add_u32 v{vQRO}, v{vQRO}, v{t+1}""")
    for i in range(3):
        a(f"""s_mul_i32 s{sT}, s{sQ4}, 3
        s_add_u32 s{sT}, s{sT}, {i}
        s_lshr_b32 s{sU}, s{sT}, 1
        s_and_b32 s{sT}, s{sT}, 1
        s_mul_i32 s{sDM+i}, s{sU}, {A_REG}
        s_lshl_b32 s{sX}, s{sT}, 10
        s_add_u32 s{sDM+i}, s{sDM+i}, s{sX}
        s_mul_i32 s{sX}, s{sHI}, {A_HALF}
        s_add_u32 s{sDM+i}, s{sDM+i}, s{sX}
        s_lshl_b32 s{sX}, s{sHI}, 4
        s_add_u32 s{sX}, s{sX}, s{sT}
        s_mul_i32 s{sDO+i}, s{sX}, {2*P_QKV}
        s_cmp_ge_u32 s{sU}, 3
        s_cselect_b32 s{sT}, 3, 0
        s_cselect_b32 s{sX}, {80*512}, 0
        s_add_u32 s{sDO+i}, s{sDO+i}, s{sX}
        s_add_u32 s{sDO+i}, s{sDO+i}, {OFF_QKV + 80*512}
        s_sub_u32 s{sU}, s{sU}, s{sT}
        s_lshl_b32 s{sT}, s{sU}, 9
        s_add_u32 s{sT}, s{sT}, s{sPA}
        s_cmp_eq_u32 s{sU}, 2
        s_cselect_b32 s{sT}, s{sPS}, s{sT}
        s_add_u32 s{sDO+i}, s{sDO+i}, s{sT}""")
    a(f"""; LDS read addresses of attention
    s_mul_i32 s{sT}, s{sHI}, {A_HALF}
    s_add_u32 s{sT}, s{sT}, {A_BASE}
    v_mul_u32_u24 v{vKMA}, {A_REG}, v{t}
    v_add3_u32 v{vKMA}, v{vKMA}, v{t+1}, s{sT}
    s_add_u32 s{sU}, s{sPAR}, s{sT}
    s_add_u32 s{sU}, s{sU}, {2*A_REG}
    v_add_u32 v{vKRA}, s{sU}, v{t+1}
    v_bfe_u32 v{t+1}, v{vLANE}, 2, 2
    v_lshl_add_u32 v{t+1}, v{t}, 3, v{t+1}
    v_lshlrev_b32 v{t+1}, 4, v{t+1}
    v_and_b32 v{t+2}, 1, v{vLANE}
    v_mul_u32_u24 v{t+2}, {A_REG}, v{t+2}
    v_bfe_u32 v{t+3}, v{vLANE}, 1, 1
    v_lshl_add_u32 v{t+2}, v{t+3}, 3, v{t+2}
    s_add_u32 s{sT}, s{sT}, {3*A_REG}
    v_add_u32 v{t+2}, s{sT}, v{t+2}
    s_add_u32 s{sU}, s{sU}, {3*A_REG}
    v_mov_b32 v{t+5}, s{sU}
    v_and_b32 v{t+4}, 19, v{vLANE}
    v_cmp_eq_u32 vcc, 16, v{t+4}
    v_lshlrev_b32 v{t+3}, 3, v{t+3}
    v_add_u32 v{t+3}, {A_ONES}, v{t+3}
    v_cndmask_b32 v{t+2}, v{t+2}, v{t+5}, vcc
    v_cmp_lt_u32 vcc, 16, v{t+4}
    v_mov_b32 v{vIDX}, 0xdddddddd""")
    for k in range(3):
        a(f"""v_add_u32 v{t+4}, {k*A_SLOT}, v{t+2}
        v_cndmask_b32 v{t+4}, v{t+4}, v{t+3}, vcc
        v_add_u32 v{vVA+k}, v{t+4}, v{t+1}""")
    a(f"""; Q / O offsets: token groups qb*8 + qp*2 + (kh: own, kh^1: other)
    s_bfe_u32 s{sTG}, s2, 0x30003
    s_lshl_b32 s{sTG}, s{sTG}, 2
    s_add_u32 s{sTG}, s{sTG}, s{sQ4}
    s_lshl_b32 s{sTG}, s{sTG}, 1
    s_add_u32 s{sPS}, s{sPS}, s{sPAR}
    s_mul_i32 s{sQR}, s{sTG}, {P_QKV}
    s_add_u32 s{sQR}, s{sQR}, s{sPS}
    s_add_u32 s{sTG}, s{sTG}, s{sHI}
    s_xor_b32 s{sU}, s{sTG}, 1
    s_mul_i32 s{sQA}, s{sTG}, {P_QKV}
    s_mul_i32 s{sQB_}, s{sU}, {P_QKV}
    s_add_u32 s{sQA}, s{sQA}, s{sPA}
    s_add_u32 s{sQB_}, s{sQB_}, s{sPA}
    s_mul_i32 s{sT}, s{sTG}, {P_O}
    s_add_u32 s{sT}, s{sT}, {OFF_O}
    s_add_u32 s{sOR}, s{sT}, s{sPS}
    s_add_u32 s{sOA}, s{sT}, s{sPA}
    s_lshl_b32 s{sFO}, s{sTG}, 5
    s_add_u32 s{sFO}, s{sFO}, s{sHD}
    s_lshl_b32 s{sFO}, s{sFO}, 2
    s_add_u32 s{sFO}, s{sFO}, {OFF_FO}""")
    sTB, sCB = g.sRound, g.sXr
    a(f"""; phase 3: tb = (xcd>>1)*8 + (j&7) ; cb = (xcd&1)*4 + (j>>3)
    s_bfe_u32 s{sTB}, s2, 0x20001
    s_lshl_b32 s{sTB}, s{sTB}, 3
    s_bfe_u32 s{sT}, s2, 0x30003
    s_add_u32 s{sTB}, s{sTB}, s{sT}
    s_and_b32 s{sCB}, s2, 1
    s_lshl_b32 s{sCB}, s{sCB}, 2
    s_lshr_b32 s{sT}, s2, 6
    s_add_u32 s{sCB}, s{sCB}, s{sT}
    s_lshl_b32 s{sT}, s{sCB}, 1
    s_add_u32 s{sT}, s{sT}, s{sHI}
    s_lshl_b32 s{sFWc}, s{sT}, 8
    s_add_u32 s{sFWc}, s{sFWc}, {OFF_FW}
    s_mul_i32 s{sT}, s{sT}, 37
    s_add_u32 s{sT}, s{sT}, s{sQ4}
    s_mul_i32 s{sWO}, s{sT}, 5120
    s_add_u32 s{sWO}, s{sWO}, {OFF_WP}
    s_lshl_b32 s{sFHc}, s{sTB}, 8
    s_mul_i32 s{sT}, s{sHI}, {27*4}
    s_add_u32 s{sFHc}, s{sFHc}, s{sT}
    s_add_u32 s{sFHc}, s{sFHc}, {OFF_FH}
    s_mul_i32 s{sOUT}, s{sTB}, {64*1280}
    s_mul_i32 s{sT}, s{sCB}, 160
    s_add_u32 s{sOUT}, s{sOUT}, s{sT}
    s_lshl_b32 s{sTB}, s{sTB}, 1
    s_lshr_b32 s{sT}, s{sQ4}, 1
    s_add_u32 s{sTB}, s{sTB}, s{sT}
    s_mul_i32 s{sH}, s{sTB}, {P_H}
    s_mul_i32 s{sT}, s{sHI}, {27*2048}
    s_add_u32 s{sH}, s{sH}, s{sT}
    s_add_u32 s{sH}, s{sH}, {OFF_H}
    s_mul_i32 s{sO3}, s{sTB}, {P_O}
    s_mul_i32 s{sT}, s{sHI}, {10*2048}
    s_add_u32 s{sO3}, s{sO3}, s{sT}
    s_add_u32 s{sO3}, s{sO3}, {OFF_O}
    s_lshl_b32 s{sFOc}, s{sTB}, 7
    s_lshl_b32 s{sT}, s{sHI}, 6
    s_add_u32 s{sFOc}, s{sFOc}, s{sT}
    s_add_u32 s{sFOc}, s{sFOc}, {OFF_FO}
    v_lshrrev_b32 v{t}, 4, v{vLANE}
    v_and_b32 v{t+1}, 15, v{vLANE}
    v_lshlrev_b32 v{t+1}, 4, v{t+1}
    v_lshl_add_u32 v{vBO}, v{t}, 9, v{t+1}
    s_and_b32 s{sT}, s{sQ4}, 1
    s_lshl_b32 s{sT}, s{sT}, 8
    v_add_u32 v{vBO}, s{sT}, v{vBO}
    s_lshl_b32 s{sT}, s{g.sC}, 1
    s_add_u32 s{sT}, s{sT}, s{sHI}
    s_cmp_lt_u32 s{g.sC}, 27
    s_cselect_b32 s{sT}, s{sT}, 63
    s_lshl_b32 s{sU}, s{g.sRB}, 2
    s_add_u32 s{sU}, s{sU}, s{sQ4}
    s_lshl_b32 s{sU}, s{sU}, 6
    s_add_u32 s{sT}, s{sT}, s{sU}
    s_lshl_b32 s{sT}, s{sT}, 2
    s_add_u32 s{sFHp}, s{sT}, {OFF_FH}""")

def stats(a, g):
    raw, e, t = g.raw, g.e, T
    a(f"""s_waitcnt vmcnt(8)
    v_readfirstlane_b32 s{sTAG}, v{g.ep}""")
    for i in range(5):
        a(f"v_lshlrev_b32 v{e+2*i}, 16, v{raw+i}\nv_and_b32 v{e+2*i+1}, 0xffff0000, v{raw+i}")
    a(f"""s_mul_i32 s{sTAG}, s{sTAG}, 0x9e3779b1
    s_add_u32 s{sTAG}, s{sTAG}, 0x7f4a7c15
    v_add_f32 v{t}, v{e}, v{e+1}""")
    for i in range(2, 10): a(f"v_add_f32 v{t}, v{t}, v{e+i}")
    a(f"v_mov_b32 v{vTAG}, s{sTAG}")
    wave_sum(a, t)
    a(f"v_mul_f32 v{t}, {f32(1.0/D)}, v{t}\nv_readlane_b32 s{sT}, v{t}, 63")
    for i in range(10): a(f"v_subrev_f32 v{e+i}, s{sT}, v{e+i}")
    a(f"v_mul_f32 v{t+1}, v{e}, v{e}")
    for i in range(1, 10): a(f"v_fmac_f32 v{t+1}, v{e+i}, v{e+i}")
    wave_sum(a, t + 1)
    a(f"""v_mul_f32 v{t+1}, {f32(1.0/D)}, v{t+1}
    v_cvt_pk_bf16_f32 v{t+1}, v{t+1}, v{t+1}
    v_and_b32 v{t+1}, 0xffff0000, v{t+1}
    v_add_f32 v{t+1}, {f32(1e-5)}, v{t+1}
    v_cvt_pk_bf16_f32 v{t+1}, v{t+1}, v{t+1}
    v_and_b32 v{t+1}, 0xffff0000, v{t+1}
    v_sqrt_f32 v{t+1}, v{t+1}
    v_mov_b32 v{t+3}, v{vTAG}
    v_cvt_pk_bf16_f32 v{t+2}, v{t}, v{t+1}
    s_lshl_b32 s{sT}, s{g.sRow}, 3
    s_add_u32 s{sT}, s{sT}, {OFF_ST}
    s_mov_b32 exec_lo, 0
    s_brev_b32 exec_hi, 1
    buffer_store_dwordx2 {vr(t+2,2)}, off, {WS}, s{sT} sc1
    s_mov_b64 exec, -1""")

def gemm1(a, g):
    t = T; acc, Wf, Xf, xb, xa, wb, wa = g.acc, g.Wf, g.Xf, g.xb, g.xa, g.wb, g.wa
    for j in range(2):
        for x in dma_ops(g, j): a(x)
    a(f"""; x: base = t*128 + ((h ^ ((t>>1)&7))*16) + tq*8192
    v_and_b32 v{t}, 31, v{vLANE}
    v_lshrrev_b32 v{t+1}, 5, v{vLANE}
    v_bfe_u32 v{t+2}, v{vLANE}, 1, 3
    v_xor_b32 v{t+2}, v{t+2}, v{t+1}
    v_lshlrev_b32 v{t+2}, 4, v{t+2}
    v_lshl_add_u32 v{t+2}, v{t}, 7, v{t+2}
    s_lshl_b32 s{sT}, s{sQ4}, 13
    v_add_u32 v{xb}, s{sT}, v{t+2}
    v_xor_b32 v{xb+1}, 32, v{xb}
    v_xor_b32 v{xb+2}, 64, v{xb}
    v_xor_b32 v{xb+3}, 96, v{xb}
    v_bfe_u32 v{t}, v{vLANE}, 2, 2
    v_lshl_add_u32 v{t+2}, v{t+1}, 3, v{t}
    v_lshlrev_b32 v{t+2}, 7, v{t+2}
    v_lshrrev_b32 v{t}, 1, v{t}
    v_xor_b32 v{t}, s{sHI}, v{t}
    v_lshl_add_u32 v{t+2}, v{t}, 6, v{t+2}
    v_bfe_u32 v{t}, v{vLANE}, 4, 1
    v_lshl_add_u32 v{t+2}, v{t}, 5, v{t+2}
    v_and_b32 v{t}, 1, v{vLANE}
    v_lshl_add_u32 v{t+2}, v{t}, 4, v{t+2}
    v_bfe_u32 v{t}, v{vLANE}, 1, 1
    v_lshl_add_u32 v{t+2}, v{t}, 3, v{t+2}
    v_add_u32 v{wb}, {LW}, v{t+2}""")
    for u in range(3):
        for q in range(2):
            for r in range(16): a(f"v_mov_b32 v{acc[u][q]+r}, 0")
    a(f"""s_mov_b32 s{g.sWr}, 0
    s_mov_b32 s{g.sXr}, 0
    s_mov_b32 s{g.sRound}, 4
    v_mov_b32 v{wa}, v{wb}""")
    for k in range(4): a(f"v_mov_b32 v{xa+k}, v{xb+k}")
    def frag_reads(ks):
        b = ks & 1; L = []
        L.append(f"ds_read_b128 {vr(Xf[b][0],4)}, v{xa+ks}")
        for u in range(3):
            for rd in range(2):
                L.append(f"ds_read_b64_tr_b16 {vr(Wf[b][u]+2*rd,2)}, v{wa} offset:{u*4096 + (ks&1)*2048 + rd*512}")
            if u == 0: L.append(f"ds_read_b128 {vr(Xf[b][1],4)}, v{xa+ks} offset:4096")
        return L
    stamp(a)
    a("s_waitcnt vmcnt(9)\ns_barrier")
    stamp(a)
    for r in frag_reads(0): a(r)
    for x in dma_ops(g, 0)[:2]: a(x)
    a.raw(".p2align 3")
    a.label("L_g1")
    a.auto = False
    J = "\n".join
    for ks in range(4):
        b = ks & 1
        mf = [f"v_mfma_f32_32x32x16_bf16 {vr(acc[u][q],16)}, {vr(Wf[b][u],4)}, {vr(Xf[b][q],4)}, {vr(acc[u][q],16)}" for u in range(3) for q in range(2)]
        rd = frag_reads((ks + 1) & 3)
        dm = dma_ops(g, 1 if ks in (1, 2) else 0)
        if ks & 1:
            a("s_waitcnt lgkmcnt(0)")
            a(mf[0])
            a(f"""s_add_u32 s{g.sWr}, s{g.sWr}, 12288
            s_cmp_ge_u32 s{g.sWr}, {5*12288}
            s_cselect_b32 s{g.sWr}, 0, s{g.sWr}
            v_add_u32 v{wa}, s{g.sWr}, v{wb}""")
            a(f"""s_add_u32 s{g.sRound}, s{g.sRound}, 1
            s_cmp_lt_u32 s{g.sRound}, 20
            s_cselect_b32 s{SRD_A+2}, s{g.sSize}, 0
            s_waitcnt vmcnt({8 if ks == 3 else 12})
            s_barrier""")
            a(mf[1]); a(J(rd[0:3])); a(mf[2]); a(J(rd[3:6])); a(dm[0])
            a(mf[3]); a(J(rd[6:8])); a(mf[4]); a(mf[5]); a(dm[1])
        else:
            a("s_waitcnt lgkmcnt(0)")
            a(mf[0])
            a(J(rd[0:2])); a(mf[1]); a(J(rd[2:4])); a(mf[2]); a(J(rd[4:6])); a(dm[2])
            a(mf[3]); a(J(rd[6:8])); a(mf[4])
            if ks == 2:
                a(f"""s_add_u32 s{g.sXr}, s{g.sXr}, 32768
                s_cmp_ge_u32 s{g.sXr}, {3*32768}
                s_cselect_b32 s{g.sXr}, 0, s{g.sXr}""")
                for k in range(4): a(f"v_add_u32 v{xa+k}, s{g.sXr}, v{xb+k}")
            a(mf[5]); a(dm[3]); a(dm[4])
    a(f"s_cmp_lt_u32 s{g.sRound}, 24\ns_cbranch_scc1 L_g1")
    a.auto = True
    stamp(a)
    gr = g.tmp; vst, vcs = xa, xa + 1; sTG = g.sRound; sCS = g.sXr
    a(f"""s_lshl_b32 s{sTG}, s{g.sRB}, 2
    s_add_u32 s{sTG}, s{sTG}, s{sQ4}
    s_lshl_b32 s{g.sWr}, s{sTG}, 9
    s_add_u32 s{g.sWr}, s{g.sWr}, {OFF_ST}
    s_mul_i32 s{sCS}, s{g.sC}, {192*8}
    s_lshl_b32 s{sT}, s{sHI}, 8
    s_add_u32 s{sCS}, s{sCS}, s{sT}
    s_add_u32 s{sCS}, s{sCS}, {OFF_CS}
    v_and_b32 v{vst}, 31, v{vLANE}
    v_lshlrev_b32 v{vst}, 3, v{vst}
    v_and_b32 v{vcs}, 19, v{vLANE}
    v_bfe_u32 v{t}, v{vLANE}, 2, 1
    v_lshl_or_b32 v{vcs}, v{t}, 3, v{vcs}
    v_bfe_u32 v{t}, v{vLANE}, 3, 1
    v_lshl_or_b32 v{vcs}, v{t}, 2, v{vcs}
    v_lshlrev_b32 v{vcs}, 3, v{vcs}""")
    loads = [f"buffer_load_dwordx2 {vr(gr+2*q,2)}, v{vst}, {WS}, s{g.sWr} offen offset:{256*q} sc1" for q in range(2)]
    loads += [f"buffer_load_dwordx2 {vr(gr+4+2*u,2)}, v{vcs}, {WS}, s{sCS} offen offset:{512*u} sc1" for u in range(3)]
    spin(a, "L_sp_st", loads, [gr + 1, gr + 3, gr + 5, gr + 7, gr + 9], "L_sp_st_done")
    a.label("L_sp_st_done")
    sd = [t + 4, t + 5]; rs = [t + 6, t + 7]; rq = [t, t + 1]
    a(f"""s_waitcnt lgkmcnt(0)
    s_barrier
    v_cmp_gt_u32 vcc, 32, v{vLANE}
    s_mov_b32 s{sT}, 0x01000100
    s_cmp_lt_u32 s{g.sC}, 10
    s_cselect_b32 s{sU}, {f32(QSCALE)}, 1.0""")
    for q in range(2):
        a(f"""v_and_b32 v{sd[q]}, 0xffff0000, v{gr+2*q}
        v_perm_b32 v{gr+2*q}, v{gr+2*q}, v{gr+2*q}, s{sT}
        v_xor_b32 v{gr+2*q}, 0x80008000, v{gr+2*q}
        v_rcp_f32 v{rs[q]}, v{sd[q]}
        v_cndmask_b32 v{gr+2*q}, 0, v{gr+2*q}, vcc""")
    for u in range(3):
        for q in range(2):
            a(f"v_mfma_f32_32x32x8_bf16 {vr(acc[u][q],16)}, {vr(gr+4+2*u,2)}, {vr(gr+2*q,2)}, {vr(acc[u][q],16)}")
    for q in range(2): a(f"v_mul_f32 v{rq[q]}, s{sU}, v{rs[q]}")
    a(f"""s_lshl_b32 s{sT}, s{g.sC}, 12
    s_lshl_b32 s{sU}, s{sHI}, 11
    s_add_u32 s{sT}, s{sT}, s{sU}
    s_mul_i32 s{g.sOff}, s{sTG}, {2*P_QKV}
    s_add_u32 s{g.sOff}, s{g.sOff}, s{sT}
    s_add_u32 s{g.sD1}, s{g.sOff}, {P_QKV}
    s_mul_i32 s{g.sStep}, s{sTG}, {2*P_H}
    s_add_u32 s{g.sStep}, s{g.sStep}, s{sT}
    s_add_u32 s{g.sStep}, s{g.sStep}, {OFF_H}
    s_mov_b32 s{g.sD0}, {f32(-GC3)}
    s_lshr_b32 s{sT}, s{sT}, 4
    s_lshl_b32 s{sU}, s{sTG}, 2
    s_add_u32 s{g.sM0}, s{sT}, s{sU}
    s_add_u32 s{g.sM0}, s{g.sM0}, {OFF_FQ}""")
    st = Wf[0][0]
    def qkv_out(u, so):
        for q in range(2):
            A = acc[u][q]
            for r in range(16): a(f"v_mul_f32 v{A+r}, v{rq[q]}, v{A+r}")
            for r in range(8): a(f"v_cvt_pk_bf16_f32 v{so+8*q+r}, v{A+2*r}, v{A+2*r+1}")
            for jj in range(2):
                a(f"buffer_store_dwordx4 {vr(so+8*q+4*jj,4)}, v{vL16}, {WS}, s{g.sD1 if q else g.sOff} offen offset:{1024*jj} sc1")
    g.qkv_out = qkv_out
    qkv_out(0, st)
    stamp(a)
    a(f"s_cmp_eq_u32 s{g.sC}, 27\ns_cbranch_scc1 L_special")
    tmp = acc[0][0]; vc1 = xa + 2
    a(f"v_mov_b32 v{vc1}, {f32(-GC1)}")
    for q in range(2):
        G = acc[1][q]; U = acc[2][q]
        for r in range(16): a(f"v_mul_f32 v{G+r}, v{rs[q]}, v{G+r}")
        for r in range(16): a(f"v_mul_f32 v{tmp+r}, v{G+r}, v{G+r}")
        for r in range(16): a(f"v_fma_f32 v{tmp+r}, v{tmp+r}, s{g.sD0}, v{vc1}")
        for r in range(16): a(f"v_mul_f32 v{tmp+r}, v{tmp+r}, v{G+r}")
        for r in range(16): a(f"v_exp_f32 v{tmp+r}, v{tmp+r}")
        for r in range(16): a(f"v_mul_f32 v{U+r}, v{U+r}, v{G+r}")
        for r in range(16): a(f"v_fma_f32 v{tmp+r}, v{tmp+r}, v{sd[q]}, v{sd[q]}")
        for r in range(16): a(f"v_rcp_f32 v{tmp+r}, v{tmp+r}")
        if q == 0:
            a("s_waitcnt vmcnt(0)"); flag(a, g.sM0)
        for r in range(16): a(f"v_mul_f32 v{U+r}, v{U+r}, v{tmp+r}")
        for r in range(8): a(f"v_cvt_pk_bf16_f32 v{st+16+8*q+r}, v{U+2*r}, v{U+2*r+1}")
        for jj in range(2):
            a(f"buffer_store_dwordx4 {vr(st+16+8*q+4*jj,4)}, v{vL16}, {WS}, s{g.sStep} offen offset:{1024*jj} sc1")
        if q == 0: a(f"s_add_u32 s{g.sStep}, s{g.sStep}, {P_H}")

def special(a, g):
    a.label("L_special")
    for u in (1, 2):
        a(f"s_add_u32 s{g.sOff}, s{g.sOff}, 4096\ns_add_u32 s{g.sD1}, s{g.sD1}, 4096")
        g.qkv_out(u, g.acc[0][u - 1])
    a("s_waitcnt vmcnt(0)")
    for u in range(3): flag(a, g.sM0, 256 * u)
    a("s_branch L_attn")

def helper(a, g):
    a.label("L_helper")
    V = Regs('v', 24, 252); sg = Regs('s', S0 + 20, 100); t = T
    raw = [V.many(12, 4) for b in range(2)]; ac = V.many(24, 4); u2 = V.many(2, 2); vq = V.one(); vf = V.one()
    sCG, sKS, sN = sg.one(), sg.one(), sg.one(); sOf = sg.many(3, 1); sSt = sg.many(2, 1); SRD_C = sg.many(4, 4)
    a(f"""s_lshl_b32 s{sCG}, s{g.sRB}, 2
    s_add_u32 s{sCG}, s{sCG}, s{g.sC}
    s_sub_u32 s{sCG}, s{sCG}, 28
    s_waitcnt vmcnt(0)
    s_barrier
    s_cmp_ge_u32 s{sCG}, 28
    s_cbranch_scc1 L_repack_init""")
    srd(a, SRD_A, pWQKV, D * 3 * D * 2)
    a(f"""s_mov_b32 s{sT}, {D*F*2}
    s_movk_i32 s{sU}, {F*2}
    s_cmp_eq_u32 s{sCG}, 27
    s_cselect_b32 s{SRD_B}, s{pWQKV}, s{pWG}
    s_cselect_b32 s{SRD_B+1}, s{pWQKV+1}, s{pWG+1}
    s_cselect_b32 s{SRD_B+2}, s{SRD_A+2}, s{sT}
    s_cselect_b32 s{SRD_C}, s{pWQKV}, s{pWU}
    s_cselect_b32 s{SRD_C+1}, s{pWQKV+1}, s{pWU+1}
    s_cselect_b32 s{SRD_C+2}, s{SRD_A+2}, s{sT}
    s_mov_b32 s{SRD_C+3}, 0x20000
    s_cselect_b32 s{sU}, {3*D*2}, s{sU}
    s_cselect_b32 s{sT}, 128, 0
    s_mov_b32 s{sSt}, {64*3*D*2}
    s_lshl_b32 s{sSt+1}, s{sU}, 6
    s_lshl_b32 s{sOf}, s{sCG}, 7
    s_add_u32 s{sOf+1}, s{sOf}, s{sT}
    s_add_u32 s{sOf+2}, s{sOf+1}, s{sT}
    v_lshrrev_b32 v{t}, 3, v0
    v_and_b32 v{t+1}, 7, v0
    v_lshlrev_b32 v{t+1}, 4, v{t+1}
    v_mul_u32_u24 v{vq}, {3*D*2}, v{t}
    v_add_u32 v{vq}, v{vq}, v{t+1}
    v_mul_lo_u32 v{vf}, v{t}, s{sU}
    v_add_u32 v{vf}, v{vf}, v{t+1}
    s_mov_b32 s{sN}, 5""")
    for r in range(24): a(f"v_mov_b32 v{ac+r}, 0")
    def ld(b):
        for u, (R, vo) in enumerate(((SRD_A, vq), (SRD_B, vf), (SRD_C, vf))):
            a(f"buffer_load_dwordx4 {vr(raw[b]+4*u,4)}, v{vo}, {sr(R,4)}, s{sOf+u} offen\ns_add_u32 s{sOf+u}, s{sOf+u}, s{sSt+(1 if u else 0)}")
    def acc(b):
        for r in range(12):
            a(f"v_lshlrev_b32 v{u2}, 16, v{raw[b]+r}\nv_and_b32 v{u2+1}, 0xffff0000, v{raw[b]+r}\nv_pk_add_f32 {vr(ac+2*r,2)}, {vr(ac+2*r,2)}, {vr(u2,2)}")
    ld(0)
    a.label("L_cs")
    ld(1); a("s_waitcnt vmcnt(3)"); acc(0)
    ld(0); a("s_waitcnt vmcnt(3)"); acc(1)
    a(f"s_sub_u32 s{sN}, s{sN}, 1\ns_cmp_lg_u32 s{sN}, 0\ns_cbranch_scc1 L_cs")
    for r in range(12): a(f"v_permlane32_swap_b32 v{ac+2*r}, v{ac+2*r+1}")
    for r in range(12): a(f"v_add_f32 v{ac+2*r}, v{ac+2*r}, v{ac+2*r+1}")
    for r in range(6): a(f"v_permlane16_swap_b32 v{ac+4*r}, v{ac+4*r+2}")
    for r in range(6): a(f"v_add_f32 v{ac+4*r}, v{ac+4*r}, v{ac+4*r+2}")
    for r in range(6): a(f"v_add_f32_dpp v{ac+4*r}, v{ac+4*r}, v{ac+4*r} row_ror:8 row_mask:0xf bank_mask:0xf")
    a(f"""v_bfe_u32 v{t}, v{vLANE}, 3, 1
    v_cmp_eq_u32 vcc, 1, v{t}
    v_and_b32 v{t+1}, 7, v{vLANE}
    v_lshlrev_b32 v{t+1}, 3, v{t+1}
    v_lshl_add_u32 v{t+1}, v{t}, 2, v{t+1}
    v_bfe_u32 v{t}, v{vLANE}, 4, 1
    v_lshl_add_u32 v{t+1}, v{t}, 1, v{t+1}
    v_lshrrev_b32 v{t}, 5, v{vLANE}
    v_add_u32 v{t+1}, v{t+1}, v{t}
    s_mul_i32 s{sT}, s{sWAVE}, 768
    v_lshl_add_u32 v{t+1}, v{t+1}, 2, s{sT}""")
    for u in range(3):
        a(f"v_cndmask_b32 v{ac+8*u}, v{ac+8*u}, v{ac+8*u+4}, vcc\nds_write_b32 v{t+1}, v{ac+8*u} offset:{256*u}")
    a(f"""s_waitcnt vmcnt(0) lgkmcnt(0)
    s_barrier
    v_min_u32 v{t}, 191, v0
    v_lshlrev_b32 v{t+1}, 2, v{t}""")
    for w in range(8): a(f"ds_read_b32 v{ac+w}, v{t+1} offset:{768*w}")
    a("s_waitcnt lgkmcnt(0)\ns_barrier")
    for w in range(1, 8): a(f"v_add_f32 v{ac}, v{ac}, v{ac+w}")
    a(f"""v_cvt_pk_bf16_f32 v{ac+1}, v{ac}, v{ac}
    v_and_b32 v{ac+1}, 0xffff0000, v{ac+1}
    v_sub_f32 v{ac+2}, v{ac}, v{ac+1}
    v_cvt_pk_bf16_f32 v{ac+4}, v{ac+1}, v{ac+2}
    v_mov_b32 v{ac+5}, v{vTAG}
    v_lshlrev_b32 v{t+1}, 3, v{t}
    s_mul_i32 s{sT}, s{sCG}, {192*8}
    s_add_u32 s{sT}, s{sT}, {OFF_CS}
    s_cmp_ge_u32 s{sWAVE}, 3
    s_cbranch_scc1 L_repack_init
    buffer_store_dwordx2 {vr(ac+4,2)}, v{t+1}, {WS}, s{sT} offen sc1""")
    a.label("L_repack_init")
    V = Regs('v', 24 + 48 + 8, 252)
    vo = V.many(5, 1); va = V.many(5, 1); fr = V.many(20, 4)
    sOff, sDst, sM, sK2, sInc, sEnd = sOf, sOf + 1, sOf + 2, sSt, sSt + 1, sg.one()
    a(f"""s_add_u32 s{sT}, s{sCG}, 28
    s_cmp_ge_u32 s{sCG}, 28
    s_cselect_b32 s{sKS}, s{sT}, s{sCG}
    s_cselect_b32 s{sInc}, 4, 28
    s_cselect_b32 s{sEnd}, 74, 56
    s_lshl_b32 s{sT}, s{sWAVE}, 2""")
    for i in range(5):
        a(f"""v_add_u32 v{t}, {64*i}, v{vLANE}
        v_mul_u32_u24 v{t+1}, 820, v{t}
        v_lshrrev_b32 v{t+1}, 16, v{t+1}
        v_mul_u32_u24 v{t+2}, 80, v{t+1}
        v_sub_u32 v{t+2}, v{t}, v{t+2}
        v_add_u32 v{t+3}, s{sT}, v{t+1}
        v_lshrrev_b32 v{t+4}, 1, v{t+3}
        v_and_b32 v{t+4}, 4, v{t+4}
        v_or_b32 v{t+4}, v{t+4}, v{t+1}
        v_lshlrev_b32 v{t+4}, 1, v{t+4}
        v_xor_b32 v{t+2}, v{t+2}, v{t+4}
        v_mul_u32_u24 v{t+3}, 1280, v{t+3}
        v_lshl_add_u32 v{vo+i}, v{t+2}, 4, v{t+3}""")
    a(f"""v_lshrrev_b32 v{t}, 4, v{vLANE}
    v_bfe_u32 v{t+1}, v{vLANE}, 2, 2
    v_lshl_add_u32 v{t+2}, v{t}, 3, v{t+1}
    v_mul_u32_u24 v{t+2}, 1280, v{t+2}
    v_and_b32 v{t+3}, 1, v{vLANE}
    v_lshl_add_u32 v{t+2}, v{t+3}, 3, v{t+2}
    v_and_b32 v{t}, 1, v{t}
    v_lshl_add_u32 v{t}, v{t}, 2, v{t+1}
    v_lshlrev_b32 v{t}, 1, v{t}
    v_bfe_u32 v{t+1}, v{vLANE}, 1, 1
    s_mul_i32 s{sT}, s{sWAVE}, 10
    v_add_u32 v{t+1}, s{sT}, v{t+1}""")
    for ct in range(5):
        a(f"v_add_u32 v{t+3}, {2*ct}, v{t+1}\nv_xor_b32 v{t+3}, v{t+3}, v{t}\nv_lshl_add_u32 v{va+ct}, v{t+3}, 4, v{t+2}")
    a.label("L_rp")
    a(f"""s_mov_b32 s{sT}, {D*D*2}
    s_cmp_lt_u32 s{sKS}, 54
    s_cselect_b32 s{SRD_A}, s{pWD}, s{pWO}
    s_cselect_b32 s{SRD_A+1}, s{pWD+1}, s{pWO+1}
    s_cselect_b32 s{SRD_A+2}, {F*D*2}, s{sT}
    s_cselect_b32 s{sT}, 0, 54
    s_cselect_b32 s{sM}, 27, 10
    s_cselect_b32 s{sN}, 0, 27
    s_sub_u32 s{sK2}, s{sKS}, s{sT}
    s_mul_i32 s{sOff}, s{sK2}, 40960
    s_cmp_ge_u32 s{sK2}, s{sM}
    s_cselect_b32 s{sT}, s{sM}, 0
    s_cselect_b32 s{sM}, 1, 0
    s_sub_u32 s{sK2}, s{sK2}, s{sT}
    s_add_u32 s{sK2}, s{sK2}, s{sN}
    s_lshl_b32 s{sT}, s{sWAVE}, 1
    s_add_u32 s{sM}, s{sM}, s{sT}
    s_mul_i32 s{sT}, s{sM}, 37
    s_add_u32 s{sT}, s{sT}, s{sK2}
    s_mul_i32 s{sDst}, s{sT}, 5120
    s_add_u32 s{sDst}, s{sDst}, {OFF_WP}
    s_lshl_b32 s{sM}, s{sM}, 6
    s_add_u32 s{sK2}, s{sK2}, s{sM}
    s_lshl_b32 s{sK2}, s{sK2}, 2
    s_add_u32 s{sK2}, s{sK2}, {OFF_FW}
    s_mul_i32 s{sM}, s{sWAVE}, 5120""")
    for i in range(5):
        a(f"s_add_u32 m0, s{sM}, {1024*i}\nbuffer_load_dwordx4 v{vo+i}, {sr(SRD_A,4)}, s{sOff} offen lds")
    a("s_waitcnt vmcnt(0)\ns_barrier")
    for ct in range(5):
        a(f"ds_read_b64_tr_b16 {vr(fr+4*ct,2)}, v{va+ct}\nds_read_b64_tr_b16 {vr(fr+4*ct+2,2)}, v{va+ct} offset:5120")
    a("s_waitcnt lgkmcnt(0)\ns_barrier")
    for ct in range(4):
        a(f"buffer_store_dwordx4 {vr(fr+4*ct,4)}, v{vL16}, {WS}, s{sDst} offen offset:{1024*ct} sc1")
    a(f"""s_add_u32 s{sDst}, s{sDst}, 4096
    buffer_store_dwordx4 {vr(fr+16,4)}, v{vL16}, {WS}, s{sDst} offen sc1
    s_add_u32 s{sKS}, s{sKS}, s{sInc}
    s_waitcnt vmcnt(0)""")
    flag(a, sK2)
    a(f"s_cmp_lt_u32 s{sKS}, s{sEnd}\ns_cbranch_scc1 L_rp")
    if STAMP:
        for i in (2, 3, 4, 5): stamp(a, idx=i)
    a("s_branch L_attn")

class AT: pass
def alloc_at():
    w = AT(); V = Regs('v', WK, 252)
    w.Sb = [V.many(32, 4) for b in range(2)]; w.O = [V.many(16, 4) for q in range(2)]
    w.Qm = [V.many(4, 4) for q in range(2)]; w.Km = V.many(4, 4); w.V0 = V.many(4, 4); w.V1 = V.many(4, 4)
    w.Qr = V.many(2, 2); w.Kr = V.many(2, 2)
    return w

sM3 = S0
def w3_dma(c, R=SRD_WS):
    return [f"""s_add_u32 m0, s{sM3}, {(c%3)*G3_SLOT + 1024*i}
    s_add_u32 s{sU}, s{sWO}, {c*4*5120 + 1024*i}
    buffer_load_dwordx4 v{vL16}, {sr(R,4)}, s{sU} offen sc1 lds""" for i in range(5)]
def b_load(dst, base, k):
    s = f"s_add_u32 s{base}, s{base}, 4096\n" if k and k % 2 == 0 else ""
    return s + f"buffer_load_dwordx4 {vr(dst,4)}, v{vBO}, {WS}, s{base} offen offset:{(k&1)*2048} sc1"

def attention(a, w):
    t = T; Sb, O, Qm, Km, V0, V1, Qr, Kr = w.Sb, w.O, w.Qm, w.Km, w.V0, w.V1, w.Qr, w.Kr
    a.label("L_attn")
    stamp(a)
    a(f"""s_mov_b32 s{sT}, {OFF_FQ}
    s_mov_b32 s{sU}, {OFF_FQ + 2560}""")
    loads = [f"buffer_load_dword v{t}, v{vFQO}, {WS}, s{sT} offen sc1",
             f"buffer_load_dword v{t+1}, v{vFQO}, {WS}, s{sU} offen sc1",
             f"buffer_load_dword v{t+2}, v{vFQO}, {WS}, s{sU} offen offset:2560 sc1"]
    a(f"""v_and_b32 v{t+4}, 3, v0
    v_cmp_eq_u32 vcc, 0, v{t+4}
    v_mov_b32 v{t+4}, 0x3f80
    v_lshlrev_b32 v{t+5}, 2, v0
    v_cndmask_b32 v{t+4}, 0, v{t+4}, vcc
    v_add_u32 v{t+5}, {A_ONES}, v{t+5}
    ds_write_b32 v{t+5}, v{t+4}
    s_mul_i32 s{sM3}, s{sWAVE}, 5120
    v_min_u32 v{t+6}, 26, v{vLANE}
    v_min_u32 v{t+7}, 36, v{vLANE}
    v_lshlrev_b32 v{t+6}, 2, v{t+6}
    v_lshlrev_b32 v{t+7}, 2, v{t+7}""")
    for q in range(2):
        for r in range(16): a(f"v_mov_b32 v{O[q]+r}, 0")
    a(f"s_cmp_lg_u32 s{sWAVE}, 0\ns_cbranch_scc1 L_sp_q_done")
    spin(a, "L_sp_q", loads, [t, t + 1, t + 2], "L_sp_q_done")
    a.label("L_sp_q_done")
    a("s_barrier")
    stamp(a)
    def dma(c):
        return [f"""s_add_u32 m0, s{sDM+i}, {A_BASE + (c%3)*A_SLOT}
        s_add_u32 s{sDO+i}, s{sDO+i}, {4*P_QKV if c else 0}
        buffer_load_dwordx4 v{vKVO}, {WS}, s{sDO+i} offen sc1 lds""" for i in range(3)]
    for x in dma(0): a(x)
    a(f"""buffer_load_dwordx4 {vr(Qm[0],4)}, v{vL16}, {WS}, s{sQA} offen sc1
    buffer_load_dwordx4 {vr(Qm[1],4)}, v{vL16}, {WS}, s{sQB_} offen sc1
    buffer_load_dwordx2 {vr(Qr,2)}, v{vQRO}, {WS}, s{sQR} offen sc1""")
    for x in dma(1): a(x)
    a(f"""s_or_b32 s{sT}, s2, s{sWAVE}
    s_cmp_lg_u32 s{sT}, 0
    s_cbranch_scc1 L_noep
    s_mov_b32 s{sT}, {OFF_EP}
    s_waitcnt vmcnt(0)""")
    flag(a, sT)
    a.label("L_noep")
    def rdKr(i): return f"ds_read_b64 {vr(Kr,2)}, v{vKRA} offset:{((i>>2)%3)*A_SLOT + (i&3)*512}"
    def rdKm(i): return f"ds_read_b128 {vr(Km,4)}, v{vKMA} offset:{((i>>2)%3)*A_SLOT + (i&3)*512}"
    def rdV(i, s):
        R = V1 if s else V0
        return "\n".join(f"ds_read_b64_tr_b16 {vr(R+2*rd,2)}, v{vVA+(i>>2)%3} offset:{(i&3)*512 + s*256 + rd*64}" for rd in range(2))
    def m2b(i): return f"v_mfma_f32_32x32x4_2b_bf16 {vr(Sb[i&1],32)}, {vr(Kr,2)}, {vr(Qr,2)}, 0"
    def m16(i, q): return f"v_mfma_f32_32x32x16_bf16 {vr(Sb[i&1]+16*q,16)}, {vr(Km,4)}, {vr(Qm[q],4)}, {vr(Sb[i&1]+16*q,16)}"
    def smf(i, q, s): return f"v_smfmac_f32_32x32x32_bf16 {vr(O[q],16)}, {vr(V1 if s else V0,4)}, {vr(Sb[i&1]+16*q+8*s,8)}, v{vIDX}"
    a("s_waitcnt vmcnt(3) lgkmcnt(0)\ns_barrier")
    flag(a, sFHp)
    stamp(a)
    a(rdKr(0)); a(rdKm(0)); a(rdV(0, 0)); a("s_waitcnt lgkmcnt(2)")
    a(m2b(0)); a(rdKr(1)); a(m16(0, 0)); a(m16(0, 1)); a(rdKm(1)); a("s_waitcnt lgkmcnt(0)\ns_nop 8")
    NT = 32
    floads = [f"buffer_load_dword v{t}, v{t+6}, {WS}, s{sFHc} offen sc1", f"buffer_load_dword v{t+1}, v{t+7}, {WS}, s{sFWc} offen sc1"]
    w.floads = floads
    pre = [b_load(HB + 4 * n, sH, n) for n in range(27)]
    wd = w3_dma(0) + w3_dma(1)
    queue = []
    for n in range(27):
        queue.append(pre[n])
        if n % 3 == 1 and wd: queue.append(wd.pop(0))
    queue += wd
    young = 0
    a.auto = False
    for i in range(NT):
        E = lambda lo, hi: "\n".join(f"v_exp_f32 v{Sb[i&1]+k}, v{Sb[i&1]+k}" for k in range(lo, hi))
        last = i == NT - 1
        a(E(0, 2))
        if i: a(smf(i - 1, 1, 1))
        a(rdV(i, 1)); a(E(2, 5))
        if not last: a(m2b(i + 1))
        newc = (i + 2) % 4 == 0 and i + 2 < NT
        dm = []
        if newc:
            c = (i + 2) // 4
            a(f"s_waitcnt vmcnt({0 if c <= 2 else young})")
            if c == 2:
                a.auto = True
                check_ne(a, [t, t + 1])
                a("s_cbranch_vccnz L_sp_h")
                a.label("L_sp_h_done")
                a.auto = False
            a("s_barrier")
            if c + 1 < 8: dm = dma(c + 1); young = 0
        elif i == 3: dm = floads + [""]
        elif i > 6:
            dm = [queue.pop(0) if queue else "" for _ in range(3)]
            young += sum(1 for x in dm if x)
        if i + 2 < NT: a(rdKr(i + 2))
        a(E(5, 9))
        if dm: a(dm[0])
        a(E(9, 13))
        a(f"s_waitcnt lgkmcnt({(4 if i + 2 < NT else 3) if not last else 2})")
        a(smf(i, 0, 0))
        if dm: a(dm[1])
        a(E(13, 18)); a("s_waitcnt lgkmcnt(0)"); a(smf(i, 0, 1))
        if dm: a(dm[2])
        a(E(18, 21))
        if not last: a(m16(i + 1, 0))
        a(E(21, 26)); a(smf(i, 1, 0))
        if not last: a(rdV(i + 1, 0))
        a(E(26, 29))
        if not last: a(m16(i + 1, 1))
        if i + 2 < NT: a(rdKm(i + 2))
        a(E(29, 32))
    assert not queue
    a.auto = True
    a(smf(NT - 1, 1, 1))
    stamp(a)
    a(f"""s_mul_i32 s{sT}, s{sWAVE}, 3200
    s_add_u32 s{sT}, s{sT}, {A_XCH}
    v_add_u32 v{t+1}, s{sT}, v{vL16}
    s_xor_b32 s{sU}, s{sWAVE}, 4
    s_mul_i32 s{sU}, s{sU}, 3200
    s_add_u32 s{sU}, s{sU}, {A_XCH}
    v_add_u32 v{t+2}, s{sU}, v{vL16}""")
    for q in range(3): a(f"ds_write_b128 v{t+1}, {vr(O[1]+4*q,4)} offset:{1024*q}")
    a("s_waitcnt vmcnt(0) lgkmcnt(0)\ns_barrier")
    X = Sb[0]; w.X = X
    for q in range(3): a(f"ds_read_b128 {vr(X+4*q,4)}, v{t+2} offset:{1024*q}")
    for x in w3_dma(2): a(x)
    a("s_waitcnt lgkmcnt(0)")
    for r in range(12): a(f"v_add_f32 v{X+r}, v{X+r}, v{O[0]+r}")
    a(f"""v_mov_b32 v{X+12}, v{X+8}
    v_mov_b32 v{X+13}, v{X+8}
    v_mul_f32 v{X+14}, 0, v{X}""")
    a(f"v_permlane32_swap_b32 v{X+13}, v{X+12}")
    for r in range(1, 12): a(f"v_fmac_f32 v{X+14}, 0, v{X+r}")
    a(f"""v_add_f32 v{X+14}, v{X+14}, v{X+12}
    v_cmp_nle_f32 vcc, {f32(2.0**-64)}, v{X+14}
    s_mov_b64 s[{S0+2}:{S0+3}], vcc
    v_cmp_nge_f32 vcc, {f32(2.0**64)}, v{X+14}
    s_or_b64 vcc, vcc, s[{S0+2}:{S0+3}]
    s_cbranch_scc1 L_slow""" if "force_slow" not in XF else "s_branch L_slow")
    a.label("L_slow_done")
    a(f"v_rcp_f32 v{X+13}, v{X+12}")
    for r in range(12): a(f"v_mul_f32 v{X+r}, v{X+r}, v{X+13}")
    for r in range(6): a(f"v_cvt_pk_bf16_f32 v{X+16+r}, v{X+2*r}, v{X+2*r+1}")
    a(f"""buffer_store_dwordx4 {vr(X+16,4)}, v{vL16}, {WS}, s{sOA} offen sc1
    s_mov_b32 exec_hi, 0
    buffer_store_dwordx2 {vr(X+20,2)}, v{vL16}, {WS}, s{sOR} offen sc1
    s_mov_b64 exec, -1""")
    stamp(a)

def attn_cold(a, w):
    t = T; Sb, O, Qm, Km, V0, V1, Qr, Kr, X = w.Sb, w.O, w.Qm, w.Km, w.V0, w.V1, w.Qr, w.Kr, w.X
    a.label("L_sp_h")
    spin(a, "L_sp_h_loop", w.floads, [t, t + 1], "L_sp_h_done")
    a("s_branch L_sp_h_done")
    a.label("L_slow")
    Sx = Sb[1]; NM = Sb[1] + 16; Oa = O[1]; vb = O[0]; mx = O[0] + 8; vho = O[0] + 9; vwa = O[0] + 10; vws = O[0] + 11; vra = O[0] + 12
    sKA, sKS_, sN, sSC = S0 + 2, S0 + 3, S0 + 4, S0 + 5
    a(f"""s_xor_b32 s{sSC}, s{sWAVE}, 4
    s_mul_i32 s{sSC}, s{sSC}, 3200
    s_add_u32 s{sSC}, s{sSC}, {A_XCH}
    v_cmp_gt_u32 vcc, 32, v{vLANE}
    v_and_b32 v{vho}, 31, v{vLANE}
    v_lshlrev_b32 v{vho}, 4, v{vho}
    v_cndmask_b32 v{Qr}, 0, v{Qr}, vcc
    v_cndmask_b32 v{Qr+1}, 0, v{Qr+1}, vcc
    v_mov_b32 v{mx}, 0xff800000
    v_add_u32 v{vwa}, s{sSC}, v{vL16}
    v_add_u32 v{vws}, s{sSC}, v{vho}
    s_bfe_u32 s{sT}, s2, 0x30003
    s_lshl_b32 s{sT}, s{sT}, 2
    s_add_u32 s{sT}, s{sT}, s{sQ4}
    s_mul_i32 s{sT}, s{sT}, {2*P_QKV}
    s_sub_u32 s{sKS_}, s{sQR}, s{sT}
    s_mul_i32 s{sU}, s{sHI}, {P_QKV}
    s_add_u32 s{sT}, s{sT}, s{sU}
    s_sub_u32 s{sKA}, s{sQA}, s{sT}
    s_add_u32 s{sKA}, s{sKA}, {80*512}
    s_add_u32 s{sKS_}, s{sKS_}, {80*512}
    v_bfe_u32 v{t+1}, v{vLANE}, 2, 2
    v_lshrrev_b32 v{t}, 5, v{vLANE}
    v_lshl_add_u32 v{t+1}, v{t}, 3, v{t+1}
    v_lshlrev_b32 v{t+1}, 4, v{t+1}
    v_and_b32 v{t+2}, 1, v{vLANE}
    v_lshlrev_b32 v{t+2}, 9, v{t+2}
    v_bfe_u32 v{t+3}, v{vLANE}, 1, 1
    v_lshl_add_u32 v{t+2}, v{t+3}, 3, v{t+2}
    v_mov_b32 v{t+5}, 1024
    v_and_b32 v{t+4}, 19, v{vLANE}
    v_cmp_eq_u32 vcc, 16, v{t+4}
    v_lshlrev_b32 v{t+3}, 3, v{t+3}
    v_add_u32 v{t+3}, {A_ONES}, v{t+3}
    v_cndmask_b32 v{t+2}, v{t+2}, v{t+5}, vcc
    v_cmp_lt_u32 vcc, 16, v{t+4}
    v_add_u32 v{t+2}, s{sSC}, v{t+2}
    v_cndmask_b32 v{t+2}, v{t+2}, v{t+3}, vcc
    v_add_u32 v{vra}, v{t+2}, v{t+1}
    s_mov_b32 s{sN}, 0""")
    def kload():
        a(f"""s_add_u32 s{sT}, s{sKA}, s{sN}
        s_add_u32 s{sU}, s{sKS_}, s{sN}
        buffer_load_dwordx4 {vr(Km,4)}, v{vL16}, {WS}, s{sT} offen sc1
        buffer_load_dwordx2 {vr(Kr,2)}, v{vho}, {WS}, s{sU} offen sc1""")
    def qk(c):
        a(f"""v_mfma_f32_32x32x16_bf16 {vr(Sx,16)}, {vr(Km,4)}, {vr(Qm[0],4)}, {c}
        v_mfma_f32_32x32x8_bf16 {vr(Sx,16)}, {vr(Kr,2)}, {vr(Qr,2)}, {vr(Sx,16)}""")
    def nxt(l): a(f"s_add_u32 s{sN}, s{sN}, {P_QKV}\ns_cmp_lt_u32 s{sN}, {64*P_QKV}\ns_cbranch_scc1 {l}")
    a.label("L_slow_a")
    kload(); a("s_waitcnt vmcnt(0)"); qk("0")
    for r in range(0, 16, 2): a(f"v_max3_f32 v{mx}, v{Sx+r}, v{Sx+r+1}, v{mx}")
    nxt("L_slow_a")
    a(f"""v_mov_b32 v{t}, v{mx}
    v_permlane32_swap_b32 v{t}, v{mx}
    v_max_f32 v{mx}, v{mx}, v{t}
    s_mov_b32 s{sN}, 0""")
    for r in range(16): a(f"v_sub_f32 v{NM+r}, 0, v{mx}\nv_mov_b32 v{Oa+r}, 0")
    a.label("L_slow_b")
    kload()
    a(f"""s_add_u32 s{sT}, s{sT}, {80*512}
    s_add_u32 s{sU}, s{sU}, {80*512}
    buffer_load_dwordx4 {vr(vb,4)}, v{vL16}, {WS}, s{sT} offen sc1
    buffer_load_dwordx2 {vr(vb+4,2)}, v{vho}, {WS}, s{sU} offen sc1
    s_waitcnt vmcnt(0)
    ds_write_b128 v{vwa}, {vr(vb,4)}
    ds_write_b64 v{vws}, {vr(vb+4,2)} offset:1024""")
    qk(vr(NM, 16))
    a("s_waitcnt lgkmcnt(0)")
    for s in range(2):
        for rd in range(2): a(f"ds_read_b64_tr_b16 {vr((V1 if s else V0)+2*rd,2)}, v{vra} offset:{s*256+rd*64}")
    for r in range(16): a(f"v_exp_f32 v{Sx+r}, v{Sx+r}")
    a("s_waitcnt lgkmcnt(0)")
    for s in range(2): a(f"v_smfmac_f32_32x32x32_bf16 {vr(Oa,16)}, {vr(V1 if s else V0,4)}, {vr(Sx+8*s,8)}, v{vIDX}")
    nxt("L_slow_b")
    for r in range(12): a(f"v_mov_b32 v{X+r}, v{Oa+r}")
    a(f"""v_mov_b32 v{X+12}, v{Oa+8}
    v_mov_b32 v{X+13}, v{Oa+8}
    v_permlane32_swap_b32 v{X+13}, v{X+12}
    s_nop 1
    s_branch L_slow_done""")

def gemm3(a, w):
    t = T; V = Regs('v', WK, 252)
    OB = V.many(40, 4); accd = V.many(20, 4); accs = V.many(20, 4); Wf = [V.many(20, 4) for b in range(2)]
    wa = vKMA
    a(f"s_mul_i32 s{sT}, s{sHI}, {4*5120}")
    for k in range(3): a(f"s_add_u32 s{sU}, s{sT}, {k*G3_SLOT}\nv_add_u32 v{wa+k}, s{sU}, v{vL16}")
    def rd(n): return [f"ds_read_b128 {vr(Wf[n&1]+4*ct,4)}, v{wa+(n>>2)%3} offset:{(n&3)*5120 + ct*1024}" for ct in range(5)]
    for r in rd(0): a(r)
    a(f"""s_mov_b32 s{SRD_A}, s{pWS}
    s_mov_b32 s{SRD_A+1}, s{pWS+1}
    s_cmp_eq_u32 s{sQ4}, 0
    s_cselect_b32 s{SRD_A+2}, {WS_USED}, 0
    v_and_b32 v{t+7}, 15, v{vLANE}
    v_lshlrev_b32 v{t+7}, 2, v{t+7}""")
    srd(a, SRD_B, pX, S * D * 2)
    vo = 8
    for q in range(3):
        a(f"""v_add_u32 v{t+2}, {512*q}, v0
        v_mul_u32_u24 v{t+3}, 3277, v{t+2}
        v_lshrrev_b32 v{t+3}, 16, v{t+3}
        v_bfe_u32 v{t+4}, v{t+3}, 1, 2
        v_xor_b32 v{t+2}, v{t+2}, v{t+4}
        v_mul_u32_u24 v{t+3}, {1280-160}, v{t+3}
        v_lshl_add_u32 v{vo+q}, v{t+2}, 3, v{t+3}""")
    a(f"""v_mov_b32 v{t+2}, 0x7ffffff0
    v_cmp_gt_u32 vcc, 256, v0
    v_lshlrev_b32 v11, 4, v0
    v_add_u32 v11, {G3_RED}, v11
    v_cndmask_b32 v{vo+2}, v{t+2}, v{vo+2}, vcc
    v_and_b32 v12, 255, v0
    v_lshlrev_b32 v12, 4, v12
    v_add_u32 v12, {G3_RED + 16384}, v12
    v_lshrrev_b32 v{t+2}, 4, v{vLANE}
    v_bfe_u32 v{t+3}, v{vLANE}, 1, 2
    v_xor_b32 v{t+2}, v{t+2}, v{t+3}
    v_mul_u32_u24 v14, 80, v{t+7}
    v_lshl_add_u32 v14, v{t+2}, 4, v14
    s_add_u32 s{sT}, s{sM3}, {G3_RED}
    v_add_u32 v14, s{sT}, v14""")
    x2 = HB; red = HB + 8; g_ = HB + 32; xs = HB + 44
    out = ["w2"] * 5 + ["ost"] * 2
    def issue(tag, txt): a(txt); out.append(tag)
    def wait_for(tag):
        idx = max(i for i, x in enumerate(out) if x == tag)
        a(f"s_waitcnt vmcnt({len(out) - 1 - idx})")
        del out[:idx + 1]
    oflag = f"buffer_load_dword v{t}, v{t+7}, {WS}, s{sFOc} offen sc1"
    w.oflag = oflag
    N_FLAG, N_POLL, N_CHK = 3, 15, 19
    for n in range(37):
        A = accd if n < 27 else accs
        Bn = HB + 4 * n if n < 27 else OB + 4 * (n - 27)
        first = n in (0, 27)
        mf = [f"v_mfma_f32_16x16x32_bf16 {vr(A+4*ct,4)}, {vr(Wf[n&1]+4*ct,4)}, {vr(Bn,4)}, {'0' if first else vr(A+4*ct,4)}" for ct in range(5)]
        a("s_waitcnt lgkmcnt(0)")
        if n >= 27 and f"o{n-27}" in out: wait_for(f"o{n-27}")
        a(mf[0])
        extra = []
        if n == N_FLAG:
            wait_for("ost"); flag(a, sFO); out.append("fl")
        if n == N_CHK:
            wait_for("of")
            check_ne(a, [t])
            a("s_cbranch_vccnz L_sp_o")
            a.label("L_sp_o_done")
            stamp(a)
        if n % 4 == 3 and n + 1 < 37:
            c = (n + 1) // 4
            if f"w{c}" in out: wait_for(f"w{c}")
            a("s_barrier")
            if c + 2 < 10: extra += [(f"w{c+2}", x) for x in w3_dma(c + 2, SRD_WS if c + 2 < 9 else SRD_A)]
        if n == N_POLL: extra = [("of", oflag)] + extra
        if N_CHK <= n < N_CHK + 5:
            k = 2 * (n - N_CHK)
            extra = [(f"o{k}", b_load(OB + 4 * k, sO3, k)), (f"o{k+1}", b_load(OB + 4 * k + 4, sO3, k + 1))] + extra
        if n == 8:
            extra += [("x", f"buffer_load_dwordx2 {vr(x2+2*q,2)}, v{vo+q}, {sr(SRD_B,4)}, s{sOUT} offen") for q in range(3)]
        r = rd(n + 1) if n + 1 < 37 else [""] * 5
        a(r[0]); a(r[1]); a(mf[1]); a(r[2]); a(r[3]); a(mf[2]); a(r[4]); a(mf[3])
        for tag, x in extra: issue(tag, x)
        if n == 28:
            for ct in range(5): a(f"ds_write_b128 v14, {vr(accd+4*ct,4)} offset:{64*ct}")
        if n == 32:
            for q in range(3):
                for k in range(2):
                    a(f"ds_read_b128 {vr(red+8*q+4*k,4)}, v{11 if q < 2 else 12} offset:{(8192*q if q < 2 else 0) + 20480*k}")
        if n == 33:
            a(f"s_mov_b32 s{sT}, {f32(-LOG2E)}")
            for q in range(3):
                for e in range(4): a(f"v_add_f32 v{g_+4*q+e}, v{red+8*q+e}, v{red+8*q+4+e}")
            for r_ in range(12): a(f"v_mul_f32 v{red+r_}, s{sT}, v{g_+r_}")
        if n == 34:
            for r_ in range(12): a(f"v_exp_f32 v{red+r_}, v{red+r_}")
            for r_ in range(12): a(f"v_add_f32 v{red+r_}, 1.0, v{red+r_}")
        if n == 35:
            for r_ in range(12): a(f"v_rcp_f32 v{red+r_}, v{red+r_}")
            for r_ in range(12): a(f"v_mul_f32 v{g_+r_}, v{g_+r_}, v{red+r_}")
        a(mf[4])
    stamp(a)
    srd(a, SRD_B, pOUT, S * D * 2)
    for q in range(3):
        for k in range(2):
            a(f"v_lshlrev_b32 v{xs+4*q+2*k}, 16, v{x2+2*q+k}\nv_and_b32 v{xs+4*q+2*k+1}, 0xffff0000, v{x2+2*q+k}")
    for ct in range(5): a(f"ds_write_b128 v14, {vr(accs+4*ct,4)} offset:{64*ct}")
    a("s_waitcnt lgkmcnt(0)\ns_barrier")
    for q in range(3):
        for k in range(2):
            a(f"ds_read_b128 {vr(red+8*q+4*k,4)}, v{11 if q < 2 else 12} offset:{(8192*q if q < 2 else 0) + 20480*k}")
    for q in range(3):
        a(f"s_waitcnt lgkmcnt({4-2*q})")
        for e in range(4):
            a(f"v_add_f32 v{red+8*q+e}, v{red+8*q+e}, v{red+8*q+4+e}\nv_fmac_f32 v{xs+4*q+e}, v{red+8*q+e}, v{g_+4*q+e}")
        for k in range(2): a(f"v_cvt_pk_bf16_f32 v{x2+2*q+k}, v{xs+4*q+2*k}, v{xs+4*q+2*k+1}")
        a(f"buffer_store_dwordx2 {vr(x2+2*q,2)}, v{vo+q}, {sr(SRD_B,4)}, s{sOUT} offen")
    assert "x" not in out

def build():
    hdr = open("cdna_kernels/%s.s.ref" % NAME).read().split("; Override launch")[0]
    a = Asm(); g = alloc_g1(); w = alloc_at()
    prologue(a, g); params(a, g); stats(a, g)
    a(f"s_cmp_ge_u32 s{g.sC}, 28\ns_cbranch_scc1 L_helper")
    gemm1(a, g); attention(a, w); gemm3(a, w)
    stamp_flush(a)
    a.label("L_end"); a("s_endpgm")
    a.label("L_sp_o")
    spin(a, "L_sp_o_loop", [w.oflag], [T], "L_sp_o_done"); a("s_branch L_sp_o_done")
    special(a, g); helper(a, g); attn_cold(a, w)
    out = hdr + "; @launch grid=(256,1,1) block=(512,1,1) lds=163840\n"
    out += '.amdgcn_target "amdgcn-amd-amdhsa--gfx950"\n.text\n' + a.text()
    out += f""".section .rodata,"a"
.p2align 6
.amdhsa_kernel {NAME}_kernel
  .amdhsa_next_free_vgpr 256
  .amdhsa_next_free_sgpr 102
  .amdhsa_accum_offset 256
  .amdhsa_group_segment_fixed_size 0
  .amdhsa_kernarg_size 80
  .amdhsa_user_sgpr_count 2
  .amdhsa_user_sgpr_kernarg_segment_ptr 1
  .amdhsa_system_sgpr_workgroup_id_x 1
.end_amdhsa_kernel
"""
    if os.environ.get("NOPS"): print("auto nops:", *a.nops, sep="\n  ", file=sys.stderr)
    return out

if __name__ == "__main__":
    path = sys.argv[1] if len(sys.argv) > 1 else "cdna_kernels/%s.s" % NAME
    open(path, "w").write(build())
```

```python
import sys, os, math, struct
from asmlib import *

NAME = "recurrent_scan__softmax_full_mha__geglu_ffn__prompt"
S, D, F, NH, DH = 2048, 640, 1728, 32, 20
P_QKV, P_H, P_O = 240 * 512, 216 * 512, 80 * 512
OFF_QKV = 0
OFF_H = OFF_QKV + 64 * P_QKV
OFF_O = OFF_H + 64 * P_H
OFF_WP = OFF_O + 64 * P_O
OFF_ST = OFF_WP + 8 * 74 * 5 * 1024
OFF_CS = OFF_ST + 2048 * 8
OFF_FQ = OFF_CS + 28 * 192 * 8
OFF_FH = OFF_FQ + 8192
OFF_FW = OFF_FH + 8192
OFF_FO = OFF_FW + 4096
OFF_EP = OFF_FO + 8192
WS_USED = OFF_EP + 256
def f32(x): return "0x%08x" % struct.unpack("<I", struct.pack("<f", x))[0]
LOG2E = 1.4426950408889634
QSCALE = DH ** -0.5 * LOG2E
GC1 = 2 * 0.7978845608028654 * LOG2E
GC3 = GC1 * 0.044715
SPIN_MAX = 1 << 16
SLEEP = int(os.environ.get('SLEEP', '8'))
XF = set(os.environ.get("XF", "").split(","))

pX, pWQKV, pWO, pBX, pWG, pWU, pWD, pOUT, pDBG, pWS = 4, 6, 8, 10, 12, 14, 16, 18, 20, 22
sWAVE = 3
SRD_WS, SRD_A, SRD_B = 24, 28, 32
_sp = Regs('s', 36, 62)
sTAG, sT, sU, sQ4, sHI, sSPIN = (_sp.one() for _ in range(6))
sDO, sDM = _sp.many(3, 1), _sp.many(3, 1)
sQA, sQB_, sQR, sOA, sOR, sFO = (_sp.one() for _ in range(6))
sH, sO3, sWO, sOUT, sFHc, sFWc, sFOc, sFHp = (_sp.one() for _ in range(8))
S0 = 62
vLANE, vL16, vTAG, vIDX, vKMA, vKRA, vVA, vKVO, vQRO, vFQO, vBO = 1, 2, 3, 4, 5, 6, 7, 10, 11, 12, 13
T = 16
HB = 24
WK = 132

STAMP = int(os.environ.get("STAMP", "0"))
REPORT = int(os.environ.get("REPORT", "0")); REPWG = int(os.environ.get("REPWG", "0"))
OFF_STAMP = WS_USED
if STAMP: WS_USED += 2048 * 128
class Stamper: n = 0
NSTAMP = 16
vST = 252
def stamp(a, real=False, idx=None):
    i = Stamper.n if idx is None else idx
    if idx is None: Stamper.n += 1
    if REPORT and i in (0, REPORT):
        au = a.auto; a.auto = True
        k = 96 if i == 0 else 98
        a(f"s_memrealtime s[{k}:{k+1}]\ns_waitcnt lgkmcnt(0)")
        a.auto = au
    if not STAMP: return
    au = a.auto; a.auto = True
    if STAMP == 2: real = True
    a(f"s_mem{'real' if real else ''}time s[100:101]\ns_waitcnt lgkmcnt(0)\nv_writelane_b32 v{vST}, s100, {i}")
    a.auto = au
def stamp_flush(a):
    if REPORT:
        a("s_waitcnt vmcnt(0) lgkmcnt(0)")
        stamp(a)
        a(f"""s_cmp_lg_u32 s2, {REPWG}
        s_cbranch_scc1 L_end
        s_sub_u32 s98, s98, s96
        s_mul_i32 s98, s98, 4
        s_memrealtime s[96:97]
        s_waitcnt lgkmcnt(0)""")
        a.label("L_rep")
        a("""s_memrealtime s[100:101]
        s_waitcnt lgkmcnt(0)
        s_sub_u32 s100, s100, s96
        s_cmp_lt_u32 s100, s98
        s_cbranch_scc1 L_rep""")
        return
    if not STAMP: return
    a("s_waitcnt vmcnt(0) lgkmcnt(0)")
    stamp(a); stamp(a, True)
    print("stamps:", Stamper.n, file=sys.stderr)
    a(f"""s_lshl_b32 s{sT}, s2, 3
    s_add_u32 s{sT}, s{sT}, s{sWAVE}
    s_lshl_b32 s{sT}, s{sT}, 7
    s_add_u32 s{sT}, s{sT}, {OFF_STAMP}
    v_lshlrev_b32 v{T}, 2, v{vLANE}
    s_mov_b32 exec_hi, 0
    buffer_store_dword v{vST}, v{T}, {sr(SRD_WS,4)}, s{sT} offen""")

def srd(a, r, ptr, size):
    a(f"s_mov_b32 s{r}, s{ptr}\ns_mov_b32 s{r+1}, s{ptr+1}\ns_mov_b32 s{r+2}, {size}\ns_mov_b32 s{r+3}, 0x20000")
WS = sr(SRD_WS, 4)

def flag(a, soff, imm=0):
    a(f"s_mov_b64 exec, 1\nbuffer_store_dword v{vTAG}, off, {WS}, s{soff} offset:{imm} sc1\ns_mov_b64 exec, -1")

def check_ne(a, regs):
    a(f"v_xor_b32 v{regs[0]}, s{sTAG}, v{regs[0]}")
    for r in regs[1:]:
        a(f"v_xor_b32 v{r}, s{sTAG}, v{r}\nv_or_b32 v{regs[0]}, v{regs[0]}, v{r}")
    a(f"v_cmp_ne_u32 vcc, 0, v{regs[0]}")

def spin(a, lbl, loads, regs, done, after_wait=None):
    a(f"s_mov_b32 s{sSPIN}, {SPIN_MAX}")
    a.label(lbl)
    for l in loads: a(l)
    a("s_waitcnt vmcnt(0)")
    check_ne(a, regs)
    a(f"""s_cbranch_vccz {done}
    s_sleep {SLEEP}
    s_sub_u32 s{sSPIN}, s{sSPIN}, 1
    s_cmp_lg_u32 s{sSPIN}, 0
    s_cbranch_scc1 {lbl}""")

def wave_sum(a, v):
    for m in ("quad_perm:[1,0,3,2]", "quad_perm:[2,3,0,1]", "row_half_mirror", "row_mirror"):
        a(f"v_add_f32_dpp v{v}, v{v}, v{v} {m} row_mask:0xf bank_mask:0xf")
    a(f"v_add_f32_dpp v{v}, v{v}, v{v} row_bcast:15 row_mask:0xa bank_mask:0xf")
    a(f"v_add_f32_dpp v{v}, v{v}, v{v} row_bcast:31 row_mask:0xc bank_mask:0xf")

LX, LW, LDUMMY = 0, 98304, 159744
G3_SLOT = 40960
A_BASE, A_REG, A_HALF, A_SLOT = 2 * G3_SLOT, 2112, 12800, 25600
A_ONES = A_BASE + 3 * A_SLOT + 128
A_XCH = A_BASE + 2 * A_SLOT
G3_RED = 3 * G3_SLOT

class G1: pass
def alloc_g1():
    g = G1(); V = Regs('v', 24, 252); sg = Regs('s', S0, 100)
    g.acc = [[V.many(16, 4) for _ in range(2)] for u in range(3)]
    g.Wf = [[V.many(4, 4) for u in range(3)] for b in range(2)]
    g.Xf = [[V.many(4, 4) for _ in range(2)] for b in range(2)]
    g.xb = V.many(4, 1); g.xa = V.many(4, 1); g.wb = V.one(); g.wa = V.one(); g.voff = V.many(2, 1)
    g.raw = V.many(6, 2); g.e = V.many(10, 2); g.ep = V.one()
    g.tmp = V.many(24, 4)
    for n in "sRB sC sOff sStep sD0 sD1 sM0 sMsz sMend sMwrap sMstep sSize sRound sWr sXr sRow sP".split(): setattr(g, n, sg.one())
    g.V, g.sg = V, sg
    return g

def dma_ops(g, par):
    L = []
    for i in range(4):
        L.append((f"s_mov_b32 m0, s{g.sM0}" if i == 0 else f"s_add_u32 m0, m0, s{g.sMstep}") + "\n" +
                 (f"s_add_u32 s{g.sM0}, s{g.sM0}, s{g.sMsz}" if i == 0 else f"s_add_u32 s{g.sOff}, s{g.sOff}, s{g.sStep}") + "\n" +
                 f"buffer_load_dwordx4 v{g.voff+(i&1)}, {sr(SRD_A,4)}, s{g.sOff} offen lds")
    L.append(f"""s_add_u32 s{g.sOff}, s{g.sOff}, s{g.sD1 if par else g.sD0}
    s_cmp_ge_u32 s{g.sM0}, s{g.sMend}
    s_cselect_b32 s{sT}, s{g.sMwrap}, 0
    s_sub_u32 s{g.sM0}, s{g.sM0}, s{sT}""")
    return L

def prologue(a, g):
    t = T
    name = NAME + "_kernel"
    a.raw(f".globl {name}\n.p2align 8\n.type {name},@function")
    a.label(name)
    a(f"""s_cmp_ge_u32 s2, 256
    s_cbranch_scc1 L_end""")
    stamp(a, True); stamp(a)
    a(f"""s_load_dwordx16 s[4:19], s[0:1], 0
    s_load_dwordx4 s[20:23], s[0:1], 64
    v_lshrrev_b32 v{t}, 6, v0
    v_and_b32 v{vLANE}, 63, v0
    v_readfirstlane_b32 s{sWAVE}, v{t}
    v_lshlrev_b32 v{vL16}, 4, v{vLANE}
    s_and_b32 s{g.sRB}, s2, 1
    s_lshl_b32 s{g.sRB}, s{g.sRB}, 2
    s_bfe_u32 s{sT}, s2, 0x20003
    s_add_u32 s{g.sRB}, s{g.sRB}, s{sT}
    s_lshr_b32 s{g.sC}, s2, 5
    s_lshl_b32 s{g.sC}, s{g.sC}, 2
    s_bfe_u32 s{sT}, s2, 0x20001
    s_add_u32 s{g.sC}, s{g.sC}, s{sT}
    s_and_b32 s{sQ4}, s{sWAVE}, 3
    s_lshr_b32 s{sHI}, s{sWAVE}, 2
    s_lshl_b32 s{g.sRow}, s2, 3
    s_add_u32 s{g.sRow}, s{g.sRow}, s{sWAVE}
    s_cmp_eq_u32 s{g.sC}, 27
    s_cselect_b32 s{sT}, s{sWAVE}, 0
    s_cmp_lt_u32 s{sWAVE}, 3
    s_cselect_b32 s{sT}, s{sT}, 0
    s_sub_u32 s{g.sP}, s{sWAVE}, s{sT}
    s_add_u32 s{g.sOff}, s{g.sC}, s{sT}
    s_lshl_b32 s{g.sOff}, s{g.sOff}, 7
    s_mov_b32 s{g.sSize}, {D*F*2}
    s_movk_i32 s{sU}, {F*2}
    s_cmp_eq_u32 s{g.sP}, 0
    s_cselect_b32 s{g.sSize}, {D*3*D*2}, s{g.sSize}
    s_cselect_b32 s{sU}, {3*D*2}, s{sU}
    s_lshl_b32 s{g.sWr}, s{sQ4}, 12
    s_add_u32 s{g.sM0}, s{g.sWr}, {LW}
    s_movk_i32 s{g.sMsz}, 12288
    s_mov_b32 s{g.sMend}, {LW+5*12288}
    s_mov_b32 s{g.sMwrap}, {5*12288}
    s_movk_i32 s{g.sMstep}, 1024
    s_cmp_eq_u32 s{g.sP}, 3
    s_cselect_b32 s{g.sSize}, 0, s{g.sSize}
    s_cselect_b32 s{g.sM0}, {LDUMMY}, s{g.sM0}
    s_cselect_b32 s{g.sMsz}, 0, s{g.sMsz}
    s_cselect_b32 s{g.sMwrap}, 0, s{g.sMwrap}
    s_cselect_b32 s{g.sMstep}, 0, s{g.sMstep}
    s_lshl_b32 s{sT}, s{g.sRB}, 3
    s_add_u32 s{sT}, s{sT}, s{sQ4}
    s_mul_i32 s{sT}, s{sT}, {32*1280}
    s_cmp_ge_u32 s{g.sP}, 4
    s_cselect_b32 s{g.sSize}, {S*D*2}, s{g.sSize}
    s_cselect_b32 s{sU}, 1280, s{sU}
    s_cselect_b32 s{g.sOff}, s{sT}, s{g.sOff}
    s_cselect_b32 s{g.sD0}, {96*1280}, 0
    s_cselect_b32 s{g.sD1}, {(-160*1280+128) & 0xffffffff}, 0
    s_cselect_b32 s{g.sM0}, s{g.sWr}, s{g.sM0}
    s_cselect_b32 s{g.sMsz}, 16384, s{g.sMsz}
    s_cselect_b32 s{g.sMend}, {6*16384}, s{g.sMend}
    s_cselect_b32 s{g.sMwrap}, {6*16384}, s{g.sMwrap}
    s_cselect_b64 vcc, -1, 0
    s_lshl_b32 s{g.sStep}, s{sU}, 3
    s_add_u32 s{g.sD0}, s{g.sD0}, s{g.sStep}
    s_add_u32 s{g.sD1}, s{g.sD1}, s{g.sStep}
    ; DMA lane offsets: row = l/8, pos = l%8 ; W: chunk = pos ^ (((row>>1)&1)<<2) ; x: chunk = pos ^ ((row>>1) + 4*(i&1))
    v_lshrrev_b32 v{t}, 3, v{vLANE}
    v_mul_lo_u32 v{t}, v{t}, s{sU}
    v_and_b32 v{t+1}, 7, v{vLANE}
    v_lshrrev_b32 v{t+2}, 4, v{vLANE}
    v_and_b32 v{t+3}, 1, v{t+2}
    v_lshlrev_b32 v{t+3}, 2, v{t+3}
    v_or_b32 v{t+4}, 4, v{t+2}
    v_cndmask_b32 v{t+2}, v{t+3}, v{t+2}, vcc
    v_cndmask_b32 v{t+4}, v{t+3}, v{t+4}, vcc
    v_xor_b32 v{t+2}, v{t+2}, v{t+1}
    v_xor_b32 v{t+4}, v{t+4}, v{t+1}
    v_lshl_add_u32 v{g.voff}, v{t+2}, 4, v{t}
    v_lshl_add_u32 v{g.voff+1}, v{t+4}, 4, v{t}
    v_lshlrev_b32 v{t}, 2, v{vLANE}
    s_mul_i32 s{sT}, s{g.sRow}, 1280
    s_mov_b32 s{sU}, {OFF_EP}
    s_mov_b32 s{SRD_WS+2}, {WS_USED}
    s_mov_b32 s{SRD_WS+3}, 0x20000
    s_mov_b32 s{SRD_B+2}, {S*D*2}
    s_mov_b32 s{SRD_B+3}, 0x20000
    s_mov_b32 s{SRD_A+2}, s{g.sSize}
    s_mov_b32 s{SRD_A+3}, 0x20000
    s_waitcnt lgkmcnt(0)
    s_mov_b32 s{SRD_WS}, s{pWS}
    s_mov_b32 s{SRD_WS+1}, s{pWS+1}
    s_mov_b32 s{SRD_B}, s{pX}
    s_mov_b32 s{SRD_B+1}, s{pX+1}
    buffer_load_dword v{g.ep}, off, {WS}, s{sU} sc1
    buffer_load_dwordx4 {vr(g.raw,4)}, v{vL16}, {sr(SRD_B,4)}, s{sT} offen
    buffer_load_dword v{g.raw+4}, v{t}, {sr(SRD_B,4)}, s{sT} offen offset:1024
    s_cmp_eq_u32 s{g.sP}, 1
    s_cselect_b32 s{SRD_A}, s{pWG}, s{pWU}
    s_cselect_b32 s{SRD_A+1}, s{pWG+1}, s{pWU+1}
    s_cmp_eq_u32 s{g.sP}, 0
    s_cselect_b32 s{SRD_A}, s{pWQKV}, s{SRD_A}
    s_cselect_b32 s{SRD_A+1}, s{pWQKV+1}, s{SRD_A+1}
    s_cmp_ge_u32 s{g.sP}, 4
    s_cselect_b32 s{SRD_A}, s{pX}, s{SRD_A}
    s_cselect_b32 s{SRD_A+1}, s{pX+1}, s{SRD_A+1}
    s_cmp_ge_u32 s{g.sC}, 28
    s_cselect_b32 s{SRD_A+2}, 0, s{SRD_A+2}""")
    for j in range(2):
        for x in dma_ops(g, j): a(x)

def params(a, g):
    t = T
    sHD, sPA, sPS, sPAR, sTG, sX = g.sRound, g.sXr, sOA, sOR, sFO, sSPIN
    a(f"""; attention: hd = xcd*4 + (j>>3) ; qb = j&7
    s_and_b32 s{sHD}, s2, 7
    s_lshl_b32 s{sHD}, s{sHD}, 2
    s_lshr_b32 s{sT}, s2, 6
    s_add_u32 s{sHD}, s{sHD}, s{sT}
    s_and_b32 s{sPAR}, s{sHD}, 1
    s_mul_i32 s{sT}, s{sHD}, 5
    s_lshr_b32 s{sT}, s{sT}, 1
    s_add_u32 s{sPA}, s{sT}, s{sPAR}
    s_add_u32 s{sU}, s{sT}, 2
    s_cmp_eq_u32 s{sPAR}, 1
    s_cselect_b32 s{sPS}, s{sT}, s{sU}
    s_lshl_b32 s{sPA}, s{sPA}, 9
    s_lshl_b32 s{sPS}, s{sPS}, 9
    s_lshl_b32 s{sPAR}, s{sPAR}, 3
    s_lshr_b32 s{sT}, s{sT}, 2
    s_lshr_b32 s{sU}, s{sU}, 2
    s_sub_u32 s{sU}, s{sU}, s{sT}
    v_lshrrev_b32 v{t}, 5, v{vLANE}
    v_and_b32 v{t+1}, 31, v{vLANE}
    v_and_b32 v{t+2}, s{sU}, v{t}
    v_add_u32 v{t+2}, s{sT}, v{t+2}
    v_lshlrev_b32 v{t+2}, 7, v{t+2}
    v_lshl_add_u32 v{vFQO}, v{t+1}, 2, v{t+2}
    v_lshlrev_b32 v{t+1}, 4, v{t+1}
    v_mul_u32_u24 v{vKVO}, {P_QKV}, v{t}
    v_add_u32 v{vKVO}, v{vKVO}, v{t+1}
    v_xor_b32 v{vQRO}, s{sHI}, v{t}
    v_mul_u32_u24 v{vQRO}, {P_QKV}, v{vQRO}
    v_add_u32 v{vQRO}, v{vQRO}, v{t+1}""")
    for i in range(3):
        a(f"""s_mul_i32 s{sT}, s{sQ4}, 3
        s_add_u32 s{sT}, s{sT}, {i}
        s_lshr_b32 s{sU}, s{sT}, 1
        s_and_b32 s{sT}, s{sT}, 1
        s_mul_i32 s{sDM+i}, s{sU}, {A_REG}
        s_lshl_b32 s{sX}, s{sT}, 10
        s_add_u32 s{sDM+i}, s{sDM+i}, s{sX}
        s_mul_i32 s{sX}, s{sHI}, {A_HALF}
        s_add_u32 s{sDM+i}, s{sDM+i}, s{sX}
        s_lshl_b32 s{sX}, s{sHI}, 4
        s_add_u32 s{sX}, s{sX}, s{sT}
        s_mul_i32 s{sDO+i}, s{sX}, {2*P_QKV}
        s_cmp_ge_u32 s{sU}, 3
        s_cselect_b32 s{sT}, 3, 0
        s_cselect_b32 s{sX}, {80*512}, 0
        s_add_u32 s{sDO+i}, s{sDO+i}, s{sX}
        s_add_u32 s{sDO+i}, s{sDO+i}, {OFF_QKV + 80*512}
        s_sub_u32 s{sU}, s{sU}, s{sT}
        s_lshl_b32 s{sT}, s{sU}, 9
        s_add_u32 s{sT}, s{sT}, s{sPA}
        s_cmp_eq_u32 s{sU}, 2
        s_cselect_b32 s{sT}, s{sPS}, s{sT}
        s_add_u32 s{sDO+i}, s{sDO+i}, s{sT}""")
    a(f"""; LDS read addresses of attention
    s_mul_i32 s{sT}, s{sHI}, {A_HALF}
    s_add_u32 s{sT}, s{sT}, {A_BASE}
    v_mul_u32_u24 v{vKMA}, {A_REG}, v{t}
    v_add3_u32 v{vKMA}, v{vKMA}, v{t+1}, s{sT}
    s_add_u32 s{sU}, s{sPAR}, s{sT}
    s_add_u32 s{sU}, s{sU}, {2*A_REG}
    v_add_u32 v{vKRA}, s{sU}, v{t+1}
    v_bfe_u32 v{t+1}, v{vLANE}, 2, 2
    v_lshl_add_u32 v{t+1}, v{t}, 3, v{t+1}
    v_lshlrev_b32 v{t+1}, 4, v{t+1}
    v_and_b32 v{t+2}, 1, v{vLANE}
    v_mul_u32_u24 v{t+2}, {A_REG}, v{t+2}
    v_bfe_u32 v{t+3}, v{vLANE}, 1, 1
    v_lshl_add_u32 v{t+2}, v{t+3}, 3, v{t+2}
    s_add_u32 s{sT}, s{sT}, {3*A_REG}
    v_add_u32 v{t+2}, s{sT}, v{t+2}
    s_add_u32 s{sU}, s{sU}, {3*A_REG}
    v_mov_b32 v{t+5}, s{sU}
    v_and_b32 v{t+4}, 19, v{vLANE}
    v_cmp_eq_u32 vcc, 16, v{t+4}
    v_lshlrev_b32 v{t+3}, 3, v{t+3}
    v_add_u32 v{t+3}, {A_ONES}, v{t+3}
    v_cndmask_b32 v{t+2}, v{t+2}, v{t+5}, vcc
    v_cmp_lt_u32 vcc, 16, v{t+4}
    v_mov_b32 v{vIDX}, 0xdddddddd""")
    for k in range(3):
        a(f"""v_add_u32 v{t+4}, {k*A_SLOT}, v{t+2}
        v_cndmask_b32 v{t+4}, v{t+4}, v{t+3}, vcc
        v_add_u32 v{vVA+k}, v{t+4}, v{t+1}""")
    a(f"""; Q / O offsets: token groups qb*8 + qp*2 + (kh: own, kh^1: other)
    s_bfe_u32 s{sTG}, s2, 0x30003
    s_lshl_b32 s{sTG}, s{sTG}, 2
    s_add_u32 s{sTG}, s{sTG}, s{sQ4}
    s_lshl_b32 s{sTG}, s{sTG}, 1
    s_add_u32 s{sPS}, s{sPS}, s{sPAR}
    s_mul_i32 s{sQR}, s{sTG}, {P_QKV}
    s_add_u32 s{sQR}, s{sQR}, s{sPS}
    s_add_u32 s{sTG}, s{sTG}, s{sHI}
    s_xor_b32 s{sU}, s{sTG}, 1
    s_mul_i32 s{sQA}, s{sTG}, {P_QKV}
    s_mul_i32 s{sQB_}, s{sU}, {P_QKV}
    s_add_u32 s{sQA}, s{sQA}, s{sPA}
    s_add_u32 s{sQB_}, s{sQB_}, s{sPA}
    s_mul_i32 s{sT}, s{sTG}, {P_O}
    s_add_u32 s{sT}, s{sT}, {OFF_O}
    s_add_u32 s{sOR}, s{sT}, s{sPS}
    s_add_u32 s{sOA}, s{sT}, s{sPA}
    s_lshl_b32 s{sFO}, s{sTG}, 5
    s_add_u32 s{sFO}, s{sFO}, s{sHD}
    s_lshl_b32 s{sFO}, s{sFO}, 2
    s_add_u32 s{sFO}, s{sFO}, {OFF_FO}""")
    sTB, sCB = g.sRound, g.sXr
    a(f"""; phase 3: tb = (xcd>>1)*8 + (j&7) ; cb = (xcd&1)*4 + (j>>3)
    s_bfe_u32 s{sTB}, s2, 0x20001
    s_lshl_b32 s{sTB}, s{sTB}, 3
    s_bfe_u32 s{sT}, s2, 0x30003
    s_add_u32 s{sTB}, s{sTB}, s{sT}
    s_and_b32 s{sCB}, s2, 1
    s_lshl_b32 s{sCB}, s{sCB}, 2
    s_lshr_b32 s{sT}, s2, 6
    s_add_u32 s{sCB}, s{sCB}, s{sT}
    s_lshl_b32 s{sT}, s{sCB}, 1
    s_add_u32 s{sT}, s{sT}, s{sHI}
    s_lshl_b32 s{sFWc}, s{sT}, 8
    s_add_u32 s{sFWc}, s{sFWc}, {OFF_FW}
    s_mul_i32 s{sT}, s{sT}, 37
    s_add_u32 s{sT}, s{sT}, s{sQ4}
    s_mul_i32 s{sWO}, s{sT}, 5120
    s_add_u32 s{sWO}, s{sWO}, {OFF_WP}
    s_lshl_b32 s{sFHc}, s{sTB}, 8
    s_mul_i32 s{sT}, s{sHI}, {27*4}
    s_add_u32 s{sFHc}, s{sFHc}, s{sT}
    s_add_u32 s{sFHc}, s{sFHc}, {OFF_FH}
    s_mul_i32 s{sOUT}, s{sTB}, {64*1280}
    s_mul_i32 s{sT}, s{sCB}, 160
    s_add_u32 s{sOUT}, s{sOUT}, s{sT}
    s_lshl_b32 s{sTB}, s{sTB}, 1
    s_lshr_b32 s{sT}, s{sQ4}, 1
    s_add_u32 s{sTB}, s{sTB}, s{sT}
    s_mul_i32 s{sH}, s{sTB}, {P_H}
    s_mul_i32 s{sT}, s{sHI}, {27*2048}
    s_add_u32 s{sH}, s{sH}, s{sT}
    s_add_u32 s{sH}, s{sH}, {OFF_H}
    s_mul_i32 s{sO3}, s{sTB}, {P_O}
    s_mul_i32 s{sT}, s{sHI}, {10*2048}
    s_add_u32 s{sO3}, s{sO3}, s{sT}
    s_add_u32 s{sO3}, s{sO3}, {OFF_O}
    s_lshl_b32 s{sFOc}, s{sTB}, 7
    s_lshl_b32 s{sT}, s{sHI}, 6
    s_add_u32 s{sFOc}, s{sFOc}, s{sT}
    s_add_u32 s{sFOc}, s{sFOc}, {OFF_FO}
    v_lshrrev_b32 v{t}, 4, v{vLANE}
    v_and_b32 v{t+1}, 15, v{vLANE}
    v_lshlrev_b32 v{t+1}, 4, v{t+1}
    v_lshl_add_u32 v{vBO}, v{t}, 9, v{t+1}
    s_and_b32 s{sT}, s{sQ4}, 1
    s_lshl_b32 s{sT}, s{sT}, 8
    v_add_u32 v{vBO}, s{sT}, v{vBO}
    s_lshl_b32 s{sT}, s{g.sC}, 1
    s_add_u32 s{sT}, s{sT}, s{sHI}
    s_cmp_lt_u32 s{g.sC}, 27
    s_cselect_b32 s{sT}, s{sT}, 63
    s_lshl_b32 s{sU}, s{g.sRB}, 2
    s_add_u32 s{sU}, s{sU}, s{sQ4}
    s_lshl_b32 s{sU}, s{sU}, 6
    s_add_u32 s{sT}, s{sT}, s{sU}
    s_lshl_b32 s{sT}, s{sT}, 2
    s_add_u32 s{sFHp}, s{sT}, {OFF_FH}""")

def stats(a, g):
    raw, e, t = g.raw, g.e, T
    a(f"""s_waitcnt vmcnt(8)
    v_readfirstlane_b32 s{sTAG}, v{g.ep}""")
    for i in range(5):
        a(f"v_lshlrev_b32 v{e+2*i}, 16, v{raw+i}\nv_and_b32 v{e+2*i+1}, 0xffff0000, v{raw+i}")
    a(f"""s_mul_i32 s{sTAG}, s{sTAG}, 0x9e3779b1
    s_add_u32 s{sTAG}, s{sTAG}, 0x7f4a7c15
    v_add_f32 v{t}, v{e}, v{e+1}""")
    for i in range(2, 10): a(f"v_add_f32 v{t}, v{t}, v{e+i}")
    a(f"v_mov_b32 v{vTAG}, s{sTAG}")
    wave_sum(a, t)
    a(f"v_mul_f32 v{t}, {f32(1.0/D)}, v{t}\nv_readlane_b32 s{sT}, v{t}, 63")
    for i in range(10): a(f"v_subrev_f32 v{e+i}, s{sT}, v{e+i}")
    a(f"v_mul_f32 v{t+1}, v{e}, v{e}")
    for i in range(1, 10): a(f"v_fmac_f32 v{t+1}, v{e+i}, v{e+i}")
    wave_sum(a, t + 1)
    a(f"""v_mul_f32 v{t+1}, {f32(1.0/D)}, v{t+1}
    v_cvt_pk_bf16_f32 v{t+1}, v{t+1}, v{t+1}
    v_and_b32 v{t+1}, 0xffff0000, v{t+1}
    v_add_f32 v{t+1}, {f32(1e-5)}, v{t+1}
    v_cvt_pk_bf16_f32 v{t+1}, v{t+1}, v{t+1}
    v_and_b32 v{t+1}, 0xffff0000, v{t+1}
    v_sqrt_f32 v{t+1}, v{t+1}
    v_mov_b32 v{t+3}, v{vTAG}
    v_cvt_pk_bf16_f32 v{t+2}, v{t}, v{t+1}
    s_lshl_b32 s{sT}, s{g.sRow}, 3
    s_add_u32 s{sT}, s{sT}, {OFF_ST}
    s_mov_b32 exec_lo, 0
    s_brev_b32 exec_hi, 1
    buffer_store_dwordx2 {vr(t+2,2)}, off, {WS}, s{sT} sc1
    s_mov_b64 exec, -1""")

def gemm1(a, g):
    t = T; acc, Wf, Xf, xb, xa, wb, wa = g.acc, g.Wf, g.Xf, g.xb, g.xa, g.wb, g.wa
    for j in range(2):
        for x in dma_ops(g, j): a(x)
    a(f"""; x: base = t*128 + ((h ^ ((t>>1)&7))*16) + tq*8192
    v_and_b32 v{t}, 31, v{vLANE}
    v_lshrrev_b32 v{t+1}, 5, v{vLANE}
    v_bfe_u32 v{t+2}, v{vLANE}, 1, 3
    v_xor_b32 v{t+2}, v{t+2}, v{t+1}
    v_lshlrev_b32 v{t+2}, 4, v{t+2}
    v_lshl_add_u32 v{t+2}, v{t}, 7, v{t+2}
    s_lshl_b32 s{sT}, s{sQ4}, 13
    v_add_u32 v{xb}, s{sT}, v{t+2}
    v_xor_b32 v{xb+1}, 32, v{xb}
    v_xor_b32 v{xb+2}, 64, v{xb}
    v_xor_b32 v{xb+3}, 96, v{xb}
    v_bfe_u32 v{t}, v{vLANE}, 2, 2
    v_lshl_add_u32 v{t+2}, v{t+1}, 3, v{t}
    v_lshlrev_b32 v{t+2}, 7, v{t+2}
    v_lshrrev_b32 v{t}, 1, v{t}
    v_xor_b32 v{t}, s{sHI}, v{t}
    v_lshl_add_u32 v{t+2}, v{t}, 6, v{t+2}
    v_bfe_u32 v{t}, v{vLANE}, 4, 1
    v_lshl_add_u32 v{t+2}, v{t}, 5, v{t+2}
    v_and_b32 v{t}, 1, v{vLANE}
    v_lshl_add_u32 v{t+2}, v{t}, 4, v{t+2}
    v_bfe_u32 v{t}, v{vLANE}, 1, 1
    v_lshl_add_u32 v{t+2}, v{t}, 3, v{t+2}
    v_add_u32 v{wb}, {LW}, v{t+2}""")
    for u in range(3):
        for q in range(2):
            for r in range(16): a(f"v_mov_b32 v{acc[u][q]+r}, 0")
    a(f"""s_mov_b32 s{g.sWr}, 0
    s_mov_b32 s{g.sXr}, 0
    s_mov_b32 s{g.sRound}, 4
    v_mov_b32 v{wa}, v{wb}""")
    for k in range(4): a(f"v_mov_b32 v{xa+k}, v{xb+k}")
    def frag_reads(ks):
        b = ks & 1; L = []
        L.append(f"ds_read_b128 {vr(Xf[b][0],4)}, v{xa+ks}")
        for u in range(3):
            for rd in range(2):
                L.append(f"ds_read_b64_tr_b16 {vr(Wf[b][u]+2*rd,2)}, v{wa} offset:{u*4096 + (ks&1)*2048 + rd*512}")
            if u == 0: L.append(f"ds_read_b128 {vr(Xf[b][1],4)}, v{xa+ks} offset:4096")
        return L
    stamp(a)
    a("s_waitcnt vmcnt(9)\ns_barrier")
    stamp(a)
    for r in frag_reads(0): a(r)
    for x in dma_ops(g, 0)[:2]: a(x)
    a.raw(".p2align 3")
    a.label("L_g1")
    a.auto = False
    J = "\n".join
    for ks in range(4):
        b = ks & 1
        mf = [f"v_mfma_f32_32x32x16_bf16 {vr(acc[u][q],16)}, {vr(Wf[b][u],4)}, {vr(Xf[b][q],4)}, {vr(acc[u][q],16)}" for u in range(3) for q in range(2)]
        rd = frag_reads((ks + 1) & 3)
        dm = dma_ops(g, 1 if ks in (1, 2) else 0)
        if ks & 1:
            a("s_waitcnt lgkmcnt(0)")
            a(mf[0])
            a(f"""s_add_u32 s{g.sWr}, s{g.sWr}, 12288
            s_cmp_ge_u32 s{g.sWr}, {5*12288}
            s_cselect_b32 s{g.sWr}, 0, s{g.sWr}
            v_add_u32 v{wa}, s{g.sWr}, v{wb}""")
            a(f"""s_add_u32 s{g.sRound}, s{g.sRound}, 1
            s_cmp_lt_u32 s{g.sRound}, 20
            s_cselect_b32 s{SRD_A+2}, s{g.sSize}, 0
            s_waitcnt vmcnt({8 if ks == 3 else 12})
            s_barrier""")
            a(mf[1]); a(J(rd[0:3])); a(mf[2]); a(J(rd[3:6])); a(dm[0])
            a(mf[3]); a(J(rd[6:8])); a(mf[4]); a(mf[5]); a(dm[1])
        else:
            a("s_waitcnt lgkmcnt(0)")
            a(mf[0])
            a(J(rd[0:2])); a(mf[1]); a(J(rd[2:4])); a(mf[2]); a(J(rd[4:6])); a(dm[2])
            a(mf[3]); a(J(rd[6:8])); a(mf[4])
            if ks == 2:
                a(f"""s_add_u32 s{g.sXr}, s{g.sXr}, 32768
                s_cmp_ge_u32 s{g.sXr}, {3*32768}
                s_cselect_b32 s{g.sXr}, 0, s{g.sXr}""")
                for k in range(4): a(f"v_add_u32 v{xa+k}, s{g.sXr}, v{xb+k}")
            a(mf[5]); a(dm[3]); a(dm[4])
    a(f"s_cmp_lt_u32 s{g.sRound}, 24\ns_cbranch_scc1 L_g1")
    a.auto = True
    stamp(a)
    gr = g.tmp; vst, vcs = xa, xa + 1; sTG = g.sRound; sCS = g.sXr
    a(f"""s_lshl_b32 s{sTG}, s{g.sRB}, 2
    s_add_u32 s{sTG}, s{sTG}, s{sQ4}
    s_lshl_b32 s{g.sWr}, s{sTG}, 9
    s_add_u32 s{g.sWr}, s{g.sWr}, {OFF_ST}
    s_mul_i32 s{sCS}, s{g.sC}, {192*8}
    s_lshl_b32 s{sT}, s{sHI}, 8
    s_add_u32 s{sCS}, s{sCS}, s{sT}
    s_add_u32 s{sCS}, s{sCS}, {OFF_CS}
    v_and_b32 v{vst}, 31, v{vLANE}
    v_lshlrev_b32 v{vst}, 3, v{vst}
    v_and_b32 v{vcs}, 19, v{vLANE}
    v_bfe_u32 v{t}, v{vLANE}, 2, 1
    v_lshl_or_b32 v{vcs}, v{t}, 3, v{vcs}
    v_bfe_u32 v{t}, v{vLANE}, 3, 1
    v_lshl_or_b32 v{vcs}, v{t}, 2, v{vcs}
    v_lshlrev_b32 v{vcs}, 3, v{vcs}""")
    loads = [f"buffer_load_dwordx2 {vr(gr+2*q,2)}, v{vst}, {WS}, s{g.sWr} offen offset:{256*q} sc1" for q in range(2)]
    loads += [f"buffer_load_dwordx2 {vr(gr+4+2*u,2)}, v{vcs}, {WS}, s{sCS} offen offset:{512*u} sc1" for u in range(3)]
    spin(a, "L_sp_st", loads, [gr + 1, gr + 3, gr + 5, gr + 7, gr + 9], "L_sp_st_done")
    a.label("L_sp_st_done")
    sd = [t + 4, t + 5]; rs = [t + 6, t + 7]; rq = [t, t + 1]
    a(f"""s_waitcnt lgkmcnt(0)
    s_barrier
    v_cmp_gt_u32 vcc, 32, v{vLANE}
    s_mov_b32 s{sT}, 0x01000100
    s_cmp_lt_u32 s{g.sC}, 10
    s_cselect_b32 s{sU}, {f32(QSCALE)}, 1.0""")
    for q in range(2):
        a(f"""v_and_b32 v{sd[q]}, 0xffff0000, v{gr+2*q}
        v_perm_b32 v{gr+2*q}, v{gr+2*q}, v{gr+2*q}, s{sT}
        v_xor_b32 v{gr+2*q}, 0x80008000, v{gr+2*q}
        v_rcp_f32 v{rs[q]}, v{sd[q]}
        v_cndmask_b32 v{gr+2*q}, 0, v{gr+2*q}, vcc""")
    for u in range(3):
        for q in range(2):
            a(f"v_mfma_f32_32x32x8_bf16 {vr(acc[u][q],16)}, {vr(gr+4+2*u,2)}, {vr(gr+2*q,2)}, {vr(acc[u][q],16)}")
    for q in range(2): a(f"v_mul_f32 v{rq[q]}, s{sU}, v{rs[q]}")
    a(f"""s_lshl_b32 s{sT}, s{g.sC}, 12
    s_lshl_b32 s{sU}, s{sHI}, 11
    s_add_u32 s{sT}, s{sT}, s{sU}
    s_mul_i32 s{g.sOff}, s{sTG}, {2*P_QKV}
    s_add_u32 s{g.sOff}, s{g.sOff}, s{sT}
    s_add_u32 s{g.sD1}, s{g.sOff}, {P_QKV}
    s_mul_i32 s{g.sStep}, s{sTG}, {2*P_H}
    s_add_u32 s{g.sStep}, s{g.sStep}, s{sT}
    s_add_u32 s{g.sStep}, s{g.sStep}, {OFF_H}
    s_mov_b32 s{g.sD0}, {f32(-GC3)}
    s_lshr_b32 s{sT}, s{sT}, 4
    s_lshl_b32 s{sU}, s{sTG}, 2
    s_add_u32 s{g.sM0}, s{sT}, s{sU}
    s_add_u32 s{g.sM0}, s{g.sM0}, {OFF_FQ}""")
    st = Wf[0][0]
    def qkv_out(u, so):
        for q in range(2):
            A = acc[u][q]
            for r in range(16): a(f"v_mul_f32 v{A+r}, v{rq[q]}, v{A+r}")
            for r in range(8): a(f"v_cvt_pk_bf16_f32 v{so+8*q+r}, v{A+2*r}, v{A+2*r+1}")
            for jj in range(2):
                a(f"buffer_store_dwordx4 {vr(so+8*q+4*jj,4)}, v{vL16}, {WS}, s{g.sD1 if q else g.sOff} offen offset:{1024*jj} sc1")
    g.qkv_out = qkv_out
    qkv_out(0, st)
    stamp(a)
    a(f"s_cmp_eq_u32 s{g.sC}, 27\ns_cbranch_scc1 L_special")
    tmp = acc[0][0]; vc1 = xa + 2
    a(f"v_mov_b32 v{vc1}, {f32(-GC1)}")
    for q in range(2):
        G = acc[1][q]; U = acc[2][q]
        for r in range(16): a(f"v_mul_f32 v{G+r}, v{rs[q]}, v{G+r}")
        for r in range(16): a(f"v_mul_f32 v{tmp+r}, v{G+r}, v{G+r}")
        for r in range(16): a(f"v_fma_f32 v{tmp+r}, v{tmp+r}, s{g.sD0}, v{vc1}")
        for r in range(16): a(f"v_mul_f32 v{tmp+r}, v{tmp+r}, v{G+r}")
        for r in range(16): a(f"v_exp_f32 v{tmp+r}, v{tmp+r}")
        for r in range(16): a(f"v_mul_f32 v{U+r}, v{U+r}, v{G+r}")
        for r in range(16): a(f"v_fma_f32 v{tmp+r}, v{tmp+r}, v{sd[q]}, v{sd[q]}")
        for r in range(16): a(f"v_rcp_f32 v{tmp+r}, v{tmp+r}")
        if q == 0:
            a("s_waitcnt vmcnt(0)"); flag(a, g.sM0)
        for r in range(16): a(f"v_mul_f32 v{U+r}, v{U+r}, v{tmp+r}")
        for r in range(8): a(f"v_cvt_pk_bf16_f32 v{st+16+8*q+r}, v{U+2*r}, v{U+2*r+1}")
        for jj in range(2):
            a(f"buffer_store_dwordx4 {vr(st+16+8*q+4*jj,4)}, v{vL16}, {WS}, s{g.sStep} offen offset:{1024*jj} sc1")
        if q == 0: a(f"s_add_u32 s{g.sStep}, s{g.sStep}, {P_H}")

def special(a, g):
    a.label("L_special")
    for u in (1, 2):
        a(f"s_add_u32 s{g.sOff}, s{g.sOff}, 4096\ns_add_u32 s{g.sD1}, s{g.sD1}, 4096")
        g.qkv_out(u, g.acc[0][u - 1])
    a("s_waitcnt vmcnt(0)")
    for u in range(3): flag(a, g.sM0, 256 * u)
    a("s_branch L_attn")

def helper(a, g):
    a.label("L_helper")
    V = Regs('v', 24, 252); sg = Regs('s', S0 + 17, 96); t = T
    raw = [V.many(12, 4) for b in range(2)]; ac = V.many(24, 4); u2 = V.many(2, 2); vq = V.one(); vf = V.one()
    sCG, sKS, sN = sg.one(), sg.one(), sg.one(); sOf = sg.many(3, 1); sSt = sg.many(2, 1); SRD_C = sg.many(4, 4)
    a(f"""s_lshl_b32 s{sCG}, s{g.sRB}, 2
    s_add_u32 s{sCG}, s{sCG}, s{g.sC}
    s_sub_u32 s{sCG}, s{sCG}, 28
    s_waitcnt vmcnt(0)
    s_barrier
    s_cmp_ge_u32 s{sCG}, 28
    s_cbranch_scc1 L_repack_init""")
    srd(a, SRD_A, pWQKV, D * 3 * D * 2)
    a(f"""s_mov_b32 s{sT}, {D*F*2}
    s_movk_i32 s{sU}, {F*2}
    s_cmp_eq_u32 s{sCG}, 27
    s_cselect_b32 s{SRD_B}, s{pWQKV}, s{pWG}
    s_cselect_b32 s{SRD_B+1}, s{pWQKV+1}, s{pWG+1}
    s_cselect_b32 s{SRD_B+2}, s{SRD_A+2}, s{sT}
    s_cselect_b32 s{SRD_C}, s{pWQKV}, s{pWU}
    s_cselect_b32 s{SRD_C+1}, s{pWQKV+1}, s{pWU+1}
    s_cselect_b32 s{SRD_C+2}, s{SRD_A+2}, s{sT}
    s_mov_b32 s{SRD_C+3}, 0x20000
    s_cselect_b32 s{sU}, {3*D*2}, s{sU}
    s_cselect_b32 s{sT}, 128, 0
    s_mov_b32 s{sSt}, {64*3*D*2}
    s_lshl_b32 s{sSt+1}, s{sU}, 6
    s_lshl_b32 s{sOf}, s{sCG}, 7
    s_add_u32 s{sOf+1}, s{sOf}, s{sT}
    s_add_u32 s{sOf+2}, s{sOf+1}, s{sT}
    v_lshrrev_b32 v{t}, 3, v0
    v_and_b32 v{t+1}, 7, v0
    v_lshlrev_b32 v{t+1}, 4, v{t+1}
    v_mul_u32_u24 v{vq}, {3*D*2}, v{t}
    v_add_u32 v{vq}, v{vq}, v{t+1}
    v_mul_lo_u32 v{vf}, v{t}, s{sU}
    v_add_u32 v{vf}, v{vf}, v{t+1}
    s_mov_b32 s{sN}, 5""")
    for r in range(24): a(f"v_mov_b32 v{ac+r}, 0")
    def ld(b):
        for u, (R, vo) in enumerate(((SRD_A, vq), (SRD_B, vf), (SRD_C, vf))):
            a(f"buffer_load_dwordx4 {vr(raw[b]+4*u,4)}, v{vo}, {sr(R,4)}, s{sOf+u} offen\ns_add_u32 s{sOf+u}, s{sOf+u}, s{sSt+(1 if u else 0)}")
    def acc(b):
        for r in range(12):
            a(f"v_lshlrev_b32 v{u2}, 16, v{raw[b]+r}\nv_and_b32 v{u2+1}, 0xffff0000, v{raw[b]+r}\nv_pk_add_f32 {vr(ac+2*r,2)}, {vr(ac+2*r,2)}, {vr(u2,2)}")
    ld(0)
    a.label("L_cs")
    ld(1); a("s_waitcnt vmcnt(3)"); acc(0)
    ld(0); a("s_waitcnt vmcnt(3)"); acc(1)
    a(f"s_sub_u32 s{sN}, s{sN}, 1\ns_cmp_lg_u32 s{sN}, 0\ns_cbranch_scc1 L_cs")
    for r in range(12): a(f"v_permlane32_swap_b32 v{ac+2*r}, v{ac+2*r+1}")
    for r in range(12): a(f"v_add_f32 v{ac+2*r}, v{ac+2*r}, v{ac+2*r+1}")
    for r in range(6): a(f"v_permlane16_swap_b32 v{ac+4*r}, v{ac+4*r+2}")
    for r in range(6): a(f"v_add_f32 v{ac+4*r}, v{ac+4*r}, v{ac+4*r+2}")
    for r in range(6): a(f"v_add_f32_dpp v{ac+4*r}, v{ac+4*r}, v{ac+4*r} row_ror:8 row_mask:0xf bank_mask:0xf")
    a(f"""v_bfe_u32 v{t}, v{vLANE}, 3, 1
    v_cmp_eq_u32 vcc, 1, v{t}
    v_and_b32 v{t+1}, 7, v{vLANE}
    v_lshlrev_b32 v{t+1}, 3, v{t+1}
    v_lshl_add_u32 v{t+1}, v{t}, 2, v{t+1}
    v_bfe_u32 v{t}, v{vLANE}, 4, 1
    v_lshl_add_u32 v{t+1}, v{t}, 1, v{t+1}
    v_lshrrev_b32 v{t}, 5, v{vLANE}
    v_add_u32 v{t+1}, v{t+1}, v{t}
    s_mul_i32 s{sT}, s{sWAVE}, 768
    v_lshl_add_u32 v{t+1}, v{t+1}, 2, s{sT}""")
    for u in range(3):
        a(f"v_cndmask_b32 v{ac+8*u}, v{ac+8*u}, v{ac+8*u+4}, vcc\nds_write_b32 v{t+1}, v{ac+8*u} offset:{256*u}")
    a(f"""s_waitcnt vmcnt(0) lgkmcnt(0)
    s_barrier
    v_min_u32 v{t}, 191, v0
    v_lshlrev_b32 v{t+1}, 2, v{t}""")
    for w in range(8): a(f"ds_read_b32 v{ac+w}, v{t+1} offset:{768*w}")
    a("s_waitcnt lgkmcnt(0)\ns_barrier")
    for w in range(1, 8): a(f"v_add_f32 v{ac}, v{ac}, v{ac+w}")
    a(f"""v_cvt_pk_bf16_f32 v{ac+1}, v{ac}, v{ac}
    v_and_b32 v{ac+1}, 0xffff0000, v{ac+1}
    v_sub_f32 v{ac+2}, v{ac}, v{ac+1}
    v_cvt_pk_bf16_f32 v{ac+4}, v{ac+1}, v{ac+2}
    v_mov_b32 v{ac+5}, v{vTAG}
    v_lshlrev_b32 v{t+1}, 3, v{t}
    s_mul_i32 s{sT}, s{sCG}, {192*8}
    s_add_u32 s{sT}, s{sT}, {OFF_CS}
    s_cmp_ge_u32 s{sWAVE}, 3
    s_cbranch_scc1 L_repack_init
    buffer_store_dwordx2 {vr(ac+4,2)}, v{t+1}, {WS}, s{sT} offen sc1""")
    a.label("L_repack_init")
    V = Regs('v', 24 + 48 + 8, 252)
    vo = V.many(5, 1); va = V.many(5, 1); fr = V.many(20, 4)
    sOff, sDst, sM, sK2, sInc, sEnd = sOf, sOf + 1, sOf + 2, sSt, sSt + 1, sg.one()
    a(f"""s_add_u32 s{sT}, s{sCG}, 28
    s_cmp_ge_u32 s{sCG}, 28
    s_cselect_b32 s{sKS}, s{sT}, s{sCG}
    s_cselect_b32 s{sInc}, 4, 28
    s_cselect_b32 s{sEnd}, 74, 56
    s_lshl_b32 s{sT}, s{sWAVE}, 2""")
    for i in range(5):
        a(f"""v_add_u32 v{t}, {64*i}, v{vLANE}
        v_mul_u32_u24 v{t+1}, 820, v{t}
        v_lshrrev_b32 v{t+1}, 16, v{t+1}
        v_mul_u32_u24 v{t+2}, 80, v{t+1}
        v_sub_u32 v{t+2}, v{t}, v{t+2}
        v_add_u32 v{t+3}, s{sT}, v{t+1}
        v_lshrrev_b32 v{t+4}, 1, v{t+3}
        v_and_b32 v{t+4}, 4, v{t+4}
        v_or_b32 v{t+4}, v{t+4}, v{t+1}
        v_lshlrev_b32 v{t+4}, 1, v{t+4}
        v_xor_b32 v{t+2}, v{t+2}, v{t+4}
        v_mul_u32_u24 v{t+3}, 1280, v{t+3}
        v_lshl_add_u32 v{vo+i}, v{t+2}, 4, v{t+3}""")
    a(f"""v_lshrrev_b32 v{t}, 4, v{vLANE}
    v_bfe_u32 v{t+1}, v{vLANE}, 2, 2
    v_lshl_add_u32 v{t+2}, v{t}, 3, v{t+1}
    v_mul_u32_u24 v{t+2}, 1280, v{t+2}
    v_and_b32 v{t+3}, 1, v{vLANE}
    v_lshl_add_u32 v{t+2}, v{t+3}, 3, v{t+2}
    v_and_b32 v{t}, 1, v{t}
    v_lshl_add_u32 v{t}, v{t}, 2, v{t+1}
    v_lshlrev_b32 v{t}, 1, v{t}
    v_bfe_u32 v{t+1}, v{vLANE}, 1, 1
    s_mul_i32 s{sT}, s{sWAVE}, 10
    v_add_u32 v{t+1}, s{sT}, v{t+1}""")
    for ct in range(5):
        a(f"v_add_u32 v{t+3}, {2*ct}, v{t+1}\nv_xor_b32 v{t+3}, v{t+3}, v{t}\nv_lshl_add_u32 v{va+ct}, v{t+3}, 4, v{t+2}")
    a.label("L_rp")
    a(f"""s_mov_b32 s{sT}, {D*D*2}
    s_cmp_lt_u32 s{sKS}, 54
    s_cselect_b32 s{SRD_A}, s{pWD}, s{pWO}
    s_cselect_b32 s{SRD_A+1}, s{pWD+1}, s{pWO+1}
    s_cselect_b32 s{SRD_A+2}, {F*D*2}, s{sT}
    s_cselect_b32 s{sT}, 0, 54
    s_cselect_b32 s{sM}, 27, 10
    s_cselect_b32 s{sN}, 0, 27
    s_sub_u32 s{sK2}, s{sKS}, s{sT}
    s_mul_i32 s{sOff}, s{sK2}, 40960
    s_cmp_ge_u32 s{sK2}, s{sM}
    s_cselect_b32 s{sT}, s{sM}, 0
    s_cselect_b32 s{sM}, 1, 0
    s_sub_u32 s{sK2}, s{sK2}, s{sT}
    s_add_u32 s{sK2}, s{sK2}, s{sN}
    s_lshl_b32 s{sT}, s{sWAVE}, 1
    s_add_u32 s{sM}, s{sM}, s{sT}
    s_mul_i32 s{sT}, s{sM}, 37
    s_add_u32 s{sT}, s{sT}, s{sK2}
    s_mul_i32 s{sDst}, s{sT}, 5120
    s_add_u32 s{sDst}, s{sDst}, {OFF_WP}
    s_lshl_b32 s{sM}, s{sM}, 6
    s_add_u32 s{sK2}, s{sK2}, s{sM}
    s_lshl_b32 s{sK2}, s{sK2}, 2
    s_add_u32 s{sK2}, s{sK2}, {OFF_FW}
    s_mul_i32 s{sM}, s{sWAVE}, 5120""")
    for i in range(5):
        a(f"s_add_u32 m0, s{sM}, {1024*i}\nbuffer_load_dwordx4 v{vo+i}, {sr(SRD_A,4)}, s{sOff} offen lds")
    a("s_waitcnt vmcnt(0)\ns_barrier")
    for ct in range(5):
        a(f"ds_read_b64_tr_b16 {vr(fr+4*ct,2)}, v{va+ct}\nds_read_b64_tr_b16 {vr(fr+4*ct+2,2)}, v{va+ct} offset:5120")
    a("s_waitcnt lgkmcnt(0)\ns_barrier")
    for ct in range(4):
        a(f"buffer_store_dwordx4 {vr(fr+4*ct,4)}, v{vL16}, {WS}, s{sDst} offen offset:{1024*ct} sc1")
    a(f"""s_add_u32 s{sDst}, s{sDst}, 4096
    buffer_store_dwordx4 {vr(fr+16,4)}, v{vL16}, {WS}, s{sDst} offen sc1
    s_add_u32 s{sKS}, s{sKS}, s{sInc}
    s_waitcnt vmcnt(0)""")
    flag(a, sK2)
    a(f"s_cmp_lt_u32 s{sKS}, s{sEnd}\ns_cbranch_scc1 L_rp")
    if STAMP:
        for i in (2, 3, 4, 5): stamp(a, idx=i)
    a("s_branch L_attn")

class AT: pass
def alloc_at():
    w = AT(); V = Regs('v', WK, 252)
    w.Sb = [V.many(32, 4) for b in range(2)]; w.O = [V.many(16, 4) for q in range(2)]
    w.Qm = [V.many(4, 4) for q in range(2)]; w.Km = V.many(4, 4); w.V0 = V.many(4, 4); w.V1 = V.many(4, 4)
    w.Qr = V.many(2, 2); w.Kr = V.many(2, 2)
    return w

sM3 = S0
def w3_dma(c, R=SRD_WS):
    return [f"""s_add_u32 m0, s{sM3}, {(c%3)*G3_SLOT + 1024*i}
    s_add_u32 s{sU}, s{sWO}, {c*4*5120 + 1024*i}
    buffer_load_dwordx4 v{vL16}, {sr(R,4)}, s{sU} offen sc1 lds""" for i in range(5)]
def b_load(dst, base, k):
    s = f"s_add_u32 s{base}, s{base}, 4096\n" if k and k % 2 == 0 else ""
    return s + f"buffer_load_dwordx4 {vr(dst,4)}, v{vBO}, {WS}, s{base} offen offset:{(k&1)*2048} sc1"

def attention(a, w):
    t = T; Sb, O, Qm, Km, V0, V1, Qr, Kr = w.Sb, w.O, w.Qm, w.Km, w.V0, w.V1, w.Qr, w.Kr
    a.label("L_attn")
    stamp(a)
    a(f"""s_mov_b32 s{sT}, {OFF_FQ}
    s_mov_b32 s{sU}, {OFF_FQ + 2560}""")
    loads = [f"buffer_load_dword v{t}, v{vFQO}, {WS}, s{sT} offen sc1",
             f"buffer_load_dword v{t+1}, v{vFQO}, {WS}, s{sU} offen sc1",
             f"buffer_load_dword v{t+2}, v{vFQO}, {WS}, s{sU} offen offset:2560 sc1"]
    a(f"""v_and_b32 v{t+4}, 3, v0
    v_cmp_eq_u32 vcc, 0, v{t+4}
    v_mov_b32 v{t+4}, 0x3f80
    v_lshlrev_b32 v{t+5}, 2, v0
    v_cndmask_b32 v{t+4}, 0, v{t+4}, vcc
    v_add_u32 v{t+5}, {A_ONES}, v{t+5}
    ds_write_b32 v{t+5}, v{t+4}
    s_mul_i32 s{sM3}, s{sWAVE}, 5120
    v_min_u32 v{t+6}, 26, v{vLANE}
    v_min_u32 v{t+7}, 36, v{vLANE}
    v_lshlrev_b32 v{t+6}, 2, v{t+6}
    v_lshlrev_b32 v{t+7}, 2, v{t+7}""")
    for q in range(2):
        for r in range(16): a(f"v_mov_b32 v{O[q]+r}, 0")
    a(f"s_cmp_lg_u32 s{sWAVE}, 0\ns_cbranch_scc1 L_sp_q_done")
    spin(a, "L_sp_q", loads, [t, t + 1, t + 2], "L_sp_q_done")
    a.label("L_sp_q_done")
    a("s_barrier")
    stamp(a)
    def dma(c):
        return [f"""s_add_u32 m0, s{sDM+i}, {A_BASE + (c%3)*A_SLOT}
        s_add_u32 s{sDO+i}, s{sDO+i}, {4*P_QKV if c else 0}
        buffer_load_dwordx4 v{vKVO}, {WS}, s{sDO+i} offen sc1 lds""" for i in range(3)]
    for x in dma(0): a(x)
    a(f"""buffer_load_dwordx4 {vr(Qm[0],4)}, v{vL16}, {WS}, s{sQA} offen sc1
    buffer_load_dwordx4 {vr(Qm[1],4)}, v{vL16}, {WS}, s{sQB_} offen sc1
    buffer_load_dwordx2 {vr(Qr,2)}, v{vQRO}, {WS}, s{sQR} offen sc1""")
    for x in dma(1): a(x)
    a(f"""s_or_b32 s{sT}, s2, s{sWAVE}
    s_cmp_lg_u32 s{sT}, 0
    s_cbranch_scc1 L_noep
    s_mov_b32 s{sT}, {OFF_EP}
    s_waitcnt vmcnt(0)""")
    flag(a, sT)
    a.label("L_noep")
    def rdKr(i): return f"ds_read_b64 {vr(Kr,2)}, v{vKRA} offset:{((i>>2)%3)*A_SLOT + (i&3)*512}"
    def rdKm(i): return f"ds_read_b128 {vr(Km,4)}, v{vKMA} offset:{((i>>2)%3)*A_SLOT + (i&3)*512}"
    def rdV(i, s):
        R = V1 if s else V0
        return "\n".join(f"ds_read_b64_tr_b16 {vr(R+2*rd,2)}, v{vVA+(i>>2)%3} offset:{(i&3)*512 + s*256 + rd*64}" for rd in range(2))
    def m2b(i): return f"v_mfma_f32_32x32x4_2b_bf16 {vr(Sb[i&1],32)}, {vr(Kr,2)}, {vr(Qr,2)}, 0"
    def m16(i, q): return f"v_mfma_f32_32x32x16_bf16 {vr(Sb[i&1]+16*q,16)}, {vr(Km,4)}, {vr(Qm[q],4)}, {vr(Sb[i&1]+16*q,16)}"
    def smf(i, q, s): return f"v_smfmac_f32_32x32x32_bf16 {vr(O[q],16)}, {vr(V1 if s else V0,4)}, {vr(Sb[i&1]+16*q+8*s,8)}, v{vIDX}"
    a("s_waitcnt vmcnt(3) lgkmcnt(0)\ns_barrier")
    flag(a, sFHp)
    stamp(a)
    a(rdKr(0)); a(rdKm(0)); a(rdV(0, 0)); a("s_waitcnt lgkmcnt(2)")
    a(m2b(0)); a(rdKr(1)); a(m16(0, 0)); a(m16(0, 1)); a(rdKm(1)); a("s_waitcnt lgkmcnt(0)\ns_nop 8")
    NT = 32
    floads = [f"buffer_load_dword v{t}, v{t+6}, {WS}, s{sFHc} offen sc1", f"buffer_load_dword v{t+1}, v{t+7}, {WS}, s{sFWc} offen sc1"]
    w.floads = floads
    pre = [b_load(HB + 4 * n, sH, n) for n in range(27)]
    wd = w3_dma(0) + w3_dma(1)
    queue = []
    for n in range(27):
        queue.append(pre[n])
        if n % 3 == 1 and wd: queue.append(wd.pop(0))
    queue += wd
    young = 0
    a.auto = False
    for i in range(NT):
        E = lambda lo, hi: "\n".join(f"v_exp_f32 v{Sb[i&1]+k}, v{Sb[i&1]+k}" for k in range(lo, hi))
        last = i == NT - 1
        a(E(0, 2))
        if i: a(smf(i - 1, 1, 1))
        a(rdV(i, 1)); a(E(2, 5))
        if not last: a(m2b(i + 1))
        newc = (i + 2) % 4 == 0 and i + 2 < NT
        dm = []
        if newc:
            c = (i + 2) // 4
            a(f"s_waitcnt vmcnt({0 if c <= 2 else young})")
            if c == 2:
                a.auto = True
                check_ne(a, [t, t + 1])
                a("s_cbranch_vccnz L_sp_h")
                a.label("L_sp_h_done")
                a.auto = False
            a("s_barrier")
            if c + 1 < 8: dm = dma(c + 1); young = 0
        elif i == 3: dm = floads + [""]
        elif i > 6:
            dm = [queue.pop(0) if queue else "" for _ in range(3)]
            young += sum(1 for x in dm if x)
        if i + 2 < NT: a(rdKr(i + 2))
        a(E(5, 9))
        if dm: a(dm[0])
        a(E(9, 13))
        a(f"s_waitcnt lgkmcnt({(4 if i + 2 < NT else 3) if not last else 2})")
        a(smf(i, 0, 0))
        if dm: a(dm[1])
        a(E(13, 18)); a("s_waitcnt lgkmcnt(0)"); a(smf(i, 0, 1))
        if dm: a(dm[2])
        a(E(18, 21))
        if not last: a(m16(i + 1, 0))
        a(E(21, 26)); a(smf(i, 1, 0))
        if not last: a(rdV(i + 1, 0))
        a(E(26, 29))
        if not last: a(m16(i + 1, 1))
        if i + 2 < NT: a(rdKm(i + 2))
        a(E(29, 32))
    assert not queue
    a.auto = True
    a(smf(NT - 1, 1, 1))
    stamp(a)
    a(f"""s_mul_i32 s{sT}, s{sWAVE}, 3200
    s_add_u32 s{sT}, s{sT}, {A_XCH}
    v_add_u32 v{t+1}, s{sT}, v{vL16}
    s_xor_b32 s{sU}, s{sWAVE}, 4
    s_mul_i32 s{sU}, s{sU}, 3200
    s_add_u32 s{sU}, s{sU}, {A_XCH}
    v_add_u32 v{t+2}, s{sU}, v{vL16}""")
    for q in range(3): a(f"ds_write_b128 v{t+1}, {vr(O[1]+4*q,4)} offset:{1024*q}")
    a("s_waitcnt vmcnt(0) lgkmcnt(0)\ns_barrier")
    X = Sb[0]; w.X = X
    for q in range(3): a(f"ds_read_b128 {vr(X+4*q,4)}, v{t+2} offset:{1024*q}")
    for x in w3_dma(2): a(x)
    a("s_waitcnt lgkmcnt(0)")
    for r in range(12): a(f"v_add_f32 v{X+r}, v{X+r}, v{O[0]+r}")
    a(f"""v_mov_b32 v{X+12}, v{X+8}
    v_mov_b32 v{X+13}, v{X+8}
    v_mul_f32 v{X+14}, 0, v{X}""")
    a(f"v_permlane32_swap_b32 v{X+13}, v{X+12}")
    for r in range(1, 12): a(f"v_fmac_f32 v{X+14}, 0, v{X+r}")
    a(f"""v_add_f32 v{X+14}, v{X+14}, v{X+12}
    v_cmp_nle_f32 vcc, {f32(2.0**-64)}, v{X+14}
    s_mov_b64 s[{S0+2}:{S0+3}], vcc
    v_cmp_nge_f32 vcc, {f32(2.0**64)}, v{X+14}
    s_or_b64 vcc, vcc, s[{S0+2}:{S0+3}]
    s_cbranch_scc1 L_slow""" if "force_slow" not in XF else "s_branch L_slow")
    a.label("L_slow_done")
    a(f"v_rcp_f32 v{X+13}, v{X+12}")
    for r in range(12): a(f"v_mul_f32 v{X+r}, v{X+r}, v{X+13}")
    for r in range(6): a(f"v_cvt_pk_bf16_f32 v{X+16+r}, v{X+2*r}, v{X+2*r+1}")
    a(f"""buffer_store_dwordx4 {vr(X+16,4)}, v{vL16}, {WS}, s{sOA} offen sc1
    s_mov_b32 exec_hi, 0
    buffer_store_dwordx2 {vr(X+20,2)}, v{vL16}, {WS}, s{sOR} offen sc1
    s_mov_b64 exec, -1""")
    stamp(a)

def attn_cold(a, w):
    t = T; Sb, O, Qm, Km, V0, V1, Qr, Kr, X = w.Sb, w.O, w.Qm, w.Km, w.V0, w.V1, w.Qr, w.Kr, w.X
    a.label("L_sp_h")
    spin(a, "L_sp_h_loop", w.floads, [t, t + 1], "L_sp_h_done")
    a("s_branch L_sp_h_done")
    a.label("L_slow")
    Sx = Sb[1]; NM = Sb[1] + 16; Oa = O[1]; vb = O[0]; mx = O[0] + 8; vho = O[0] + 9; vwa = O[0] + 10; vws = O[0] + 11; vra = O[0] + 12
    sKA, sKS_, sN, sSC = S0 + 2, S0 + 3, S0 + 4, S0 + 5
    a(f"""s_xor_b32 s{sSC}, s{sWAVE}, 4
    s_mul_i32 s{sSC}, s{sSC}, 3200
    s_add_u32 s{sSC}, s{sSC}, {A_XCH}
    v_cmp_gt_u32 vcc, 32, v{vLANE}
    v_and_b32 v{vho}, 31, v{vLANE}
    v_lshlrev_b32 v{vho}, 4, v{vho}
    v_cndmask_b32 v{Qr}, 0, v{Qr}, vcc
    v_cndmask_b32 v{Qr+1}, 0, v{Qr+1}, vcc
    v_mov_b32 v{mx}, 0xff800000
    v_add_u32 v{vwa}, s{sSC}, v{vL16}
    v_add_u32 v{vws}, s{sSC}, v{vho}
    s_bfe_u32 s{sT}, s2, 0x30003
    s_lshl_b32 s{sT}, s{sT}, 2
    s_add_u32 s{sT}, s{sT}, s{sQ4}
    s_mul_i32 s{sT}, s{sT}, {2*P_QKV}
    s_sub_u32 s{sKS_}, s{sQR}, s{sT}
    s_mul_i32 s{sU}, s{sHI}, {P_QKV}
    s_add_u32 s{sT}, s{sT}, s{sU}
    s_sub_u32 s{sKA}, s{sQA}, s{sT}
    s_add_u32 s{sKA}, s{sKA}, {80*512}
    s_add_u32 s{sKS_}, s{sKS_}, {80*512}
    v_bfe_u32 v{t+1}, v{vLANE}, 2, 2
    v_lshrrev_b32 v{t}, 5, v{vLANE}
    v_lshl_add_u32 v{t+1}, v{t}, 3, v{t+1}
    v_lshlrev_b32 v{t+1}, 4, v{t+1}
    v_and_b32 v{t+2}, 1, v{vLANE}
    v_lshlrev_b32 v{t+2}, 9, v{t+2}
    v_bfe_u32 v{t+3}, v{vLANE}, 1, 1
    v_lshl_add_u32 v{t+2}, v{t+3}, 3, v{t+2}
    v_mov_b32 v{t+5}, 1024
    v_and_b32 v{t+4}, 19, v{vLANE}
    v_cmp_eq_u32 vcc, 16, v{t+4}
    v_lshlrev_b32 v{t+3}, 3, v{t+3}
    v_add_u32 v{t+3}, {A_ONES}, v{t+3}
    v_cndmask_b32 v{t+2}, v{t+2}, v{t+5}, vcc
    v_cmp_lt_u32 vcc, 16, v{t+4}
    v_add_u32 v{t+2}, s{sSC}, v{t+2}
    v_cndmask_b32 v{t+2}, v{t+2}, v{t+3}, vcc
    v_add_u32 v{vra}, v{t+2}, v{t+1}
    s_mov_b32 s{sN}, 0""")
    def kload():
        a(f"""s_add_u32 s{sT}, s{sKA}, s{sN}
        s_add_u32 s{sU}, s{sKS_}, s{sN}
        buffer_load_dwordx4 {vr(Km,4)}, v{vL16}, {WS}, s{sT} offen sc1
        buffer_load_dwordx2 {vr(Kr,2)}, v{vho}, {WS}, s{sU} offen sc1""")
    def qk(c):
        a(f"""v_mfma_f32_32x32x16_bf16 {vr(Sx,16)}, {vr(Km,4)}, {vr(Qm[0],4)}, {c}
        v_mfma_f32_32x32x8_bf16 {vr(Sx,16)}, {vr(Kr,2)}, {vr(Qr,2)}, {vr(Sx,16)}""")
    def nxt(l): a(f"s_add_u32 s{sN}, s{sN}, {P_QKV}\ns_cmp_lt_u32 s{sN}, {64*P_QKV}\ns_cbranch_scc1 {l}")
    a.label("L_slow_a")
    kload(); a("s_waitcnt vmcnt(0)"); qk("0")
    for r in range(0, 16, 2): a(f"v_max3_f32 v{mx}, v{Sx+r}, v{Sx+r+1}, v{mx}")
    nxt("L_slow_a")
    a(f"""v_mov_b32 v{t}, v{mx}
    v_permlane32_swap_b32 v{t}, v{mx}
    v_max_f32 v{mx}, v{mx}, v{t}
    s_mov_b32 s{sN}, 0""")
    for r in range(16): a(f"v_sub_f32 v{NM+r}, 0, v{mx}\nv_mov_b32 v{Oa+r}, 0")
    a.label("L_slow_b")
    kload()
    a(f"""s_add_u32 s{sT}, s{sT}, {80*512}
    s_add_u32 s{sU}, s{sU}, {80*512}
    buffer_load_dwordx4 {vr(vb,4)}, v{vL16}, {WS}, s{sT} offen sc1
    buffer_load_dwordx2 {vr(vb+4,2)}, v{vho}, {WS}, s{sU} offen sc1
    s_waitcnt vmcnt(0)
    ds_write_b128 v{vwa}, {vr(vb,4)}
    ds_write_b64 v{vws}, {vr(vb+4,2)} offset:1024""")
    qk(vr(NM, 16))
    a("s_waitcnt lgkmcnt(0)")
    for s in range(2):
        for rd in range(2): a(f"ds_read_b64_tr_b16 {vr((V1 if s else V0)+2*rd,2)}, v{vra} offset:{s*256+rd*64}")
    for r in range(16): a(f"v_exp_f32 v{Sx+r}, v{Sx+r}")
    a("s_waitcnt lgkmcnt(0)")
    for s in range(2): a(f"v_smfmac_f32_32x32x32_bf16 {vr(Oa,16)}, {vr(V1 if s else V0,4)}, {vr(Sx+8*s,8)}, v{vIDX}")
    nxt("L_slow_b")
    for r in range(12): a(f"v_mov_b32 v{X+r}, v{Oa+r}")
    a(f"""v_mov_b32 v{X+12}, v{Oa+8}
    v_mov_b32 v{X+13}, v{Oa+8}
    v_permlane32_swap_b32 v{X+13}, v{X+12}
    s_nop 1
    s_branch L_slow_done""")

def gemm3(a, w):
    t = T; V = Regs('v', WK, 252)
    OB = V.many(40, 4); accd = V.many(20, 4); accs = V.many(20, 4); Wf = [V.many(20, 4) for b in range(2)]
    wa = vKMA
    a(f"s_mul_i32 s{sT}, s{sHI}, {4*5120}")
    for k in range(3): a(f"s_add_u32 s{sU}, s{sT}, {k*G3_SLOT}\nv_add_u32 v{wa+k}, s{sU}, v{vL16}")
    def rd(n): return [f"ds_read_b128 {vr(Wf[n&1]+4*ct,4)}, v{wa+(n>>2)%3} offset:{(n&3)*5120 + ct*1024}" for ct in range(5)]
    for r in rd(0): a(r)
    a(f"""s_mov_b32 s{SRD_A}, s{pWS}
    s_mov_b32 s{SRD_A+1}, s{pWS+1}
    s_cmp_eq_u32 s{sQ4}, 0
    s_cselect_b32 s{SRD_A+2}, {WS_USED}, 0
    v_and_b32 v{t+7}, 15, v{vLANE}
    v_lshlrev_b32 v{t+7}, 2, v{t+7}""")
    srd(a, SRD_B, pX, S * D * 2)
    vo = 8
    for q in range(3):
        a(f"""v_add_u32 v{t+2}, {512*q}, v0
        v_mul_u32_u24 v{t+3}, 3277, v{t+2}
        v_lshrrev_b32 v{t+3}, 16, v{t+3}
        v_bfe_u32 v{t+4}, v{t+3}, 1, 2
        v_xor_b32 v{t+2}, v{t+2}, v{t+4}
        v_mul_u32_u24 v{t+3}, {1280-160}, v{t+3}
        v_lshl_add_u32 v{vo+q}, v{t+2}, 3, v{t+3}""")
    a(f"""v_mov_b32 v{t+2}, 0x7ffffff0
    v_cmp_gt_u32 vcc, 256, v0
    v_lshlrev_b32 v11, 4, v0
    v_add_u32 v11, {G3_RED}, v11
    v_cndmask_b32 v{vo+2}, v{t+2}, v{vo+2}, vcc
    v_and_b32 v12, 255, v0
    v_lshlrev_b32 v12, 4, v12
    v_add_u32 v12, {G3_RED + 16384}, v12
    v_lshrrev_b32 v{t+2}, 4, v{vLANE}
    v_bfe_u32 v{t+3}, v{vLANE}, 1, 2
    v_xor_b32 v{t+2}, v{t+2}, v{t+3}
    v_mul_u32_u24 v14, 80, v{t+7}
    v_lshl_add_u32 v14, v{t+2}, 4, v14
    s_add_u32 s{sT}, s{sM3}, {G3_RED}
    v_add_u32 v14, s{sT}, v14""")
    x2 = HB; red = HB + 8; g_ = HB + 32; xs = HB + 44
    out = ["w2"] * 5 + ["ost"] * 2
    def issue(tag, txt): a(txt); out.append(tag)
    def wait_for(tag):
        idx = max(i for i, x in enumerate(out) if x == tag)
        a(f"s_waitcnt vmcnt({len(out) - 1 - idx})")
        del out[:idx + 1]
    oflag = f"buffer_load_dword v{t}, v{t+7}, {WS}, s{sFOc} offen sc1"
    w.oflag = oflag
    N_FLAG, N_POLL, N_CHK = 3, 15, 19
    for n in range(37):
        A = accd if n < 27 else accs
        Bn = HB + 4 * n if n < 27 else OB + 4 * (n - 27)
        first = n in (0, 27)
        mf = [f"v_mfma_f32_16x16x32_bf16 {vr(A+4*ct,4)}, {vr(Wf[n&1]+4*ct,4)}, {vr(Bn,4)}, {'0' if first else vr(A+4*ct,4)}" for ct in range(5)]
        a("s_waitcnt lgkmcnt(0)")
        if n >= 27 and f"o{n-27}" in out: wait_for(f"o{n-27}")
        a(mf[0])
        extra = []
        if n == N_FLAG:
            wait_for("ost"); flag(a, sFO); out.append("fl")
        if n == N_CHK:
            wait_for("of")
            check_ne(a, [t])
            a("s_cbranch_vccnz L_sp_o")
            a.label("L_sp_o_done")
            stamp(a)
        if n % 4 == 3 and n + 1 < 37:
            c = (n + 1) // 4
            if f"w{c}" in out: wait_for(f"w{c}")
            a("s_barrier")
            if c + 2 < 10: extra += [(f"w{c+2}", x) for x in w3_dma(c + 2, SRD_WS if c + 2 < 9 else SRD_A)]
        if n == N_POLL: extra = [("of", oflag)] + extra
        if N_CHK <= n < N_CHK + 5:
            k = 2 * (n - N_CHK)
            extra = [(f"o{k}", b_load(OB + 4 * k, sO3, k)), (f"o{k+1}", b_load(OB + 4 * k + 4, sO3, k + 1))] + extra
        if n == 8:
            extra += [("x", f"buffer_load_dwordx2 {vr(x2+2*q,2)}, v{vo+q}, {sr(SRD_B,4)}, s{sOUT} offen") for q in range(3)]
        r = rd(n + 1) if n + 1 < 37 else [""] * 5
        a(r[0]); a(r[1]); a(mf[1]); a(r[2]); a(r[3]); a(mf[2]); a(r[4]); a(mf[3])
        for tag, x in extra: issue(tag, x)
        if n == 28:
            for ct in range(5): a(f"ds_write_b128 v14, {vr(accd+4*ct,4)} offset:{64*ct}")
        if n == 32:
            for q in range(3):
                for k in range(2):
                    a(f"ds_read_b128 {vr(red+8*q+4*k,4)}, v{11 if q < 2 else 12} offset:{(8192*q if q < 2 else 0) + 20480*k}")
        if n == 33:
            a(f"s_mov_b32 s{sT}, {f32(-LOG2E)}")
            for q in range(3):
                for e in range(4): a(f"v_add_f32 v{g_+4*q+e}, v{red+8*q+e}, v{red+8*q+4+e}")
            for r_ in range(12): a(f"v_mul_f32 v{red+r_}, s{sT}, v{g_+r_}")
        if n == 34:
            for r_ in range(12): a(f"v_exp_f32 v{red+r_}, v{red+r_}")
            for r_ in range(12): a(f"v_add_f32 v{red+r_}, 1.0, v{red+r_}")
        if n == 35:
            for r_ in range(12): a(f"v_rcp_f32 v{red+r_}, v{red+r_}")
            for r_ in range(12): a(f"v_mul_f32 v{g_+r_}, v{g_+r_}, v{red+r_}")
        a(mf[4])
    stamp(a)
    srd(a, SRD_B, pOUT, S * D * 2)
    for q in range(3):
        for k in range(2):
            a(f"v_lshlrev_b32 v{xs+4*q+2*k}, 16, v{x2+2*q+k}\nv_and_b32 v{xs+4*q+2*k+1}, 0xffff0000, v{x2+2*q+k}")
    for ct in range(5): a(f"ds_write_b128 v14, {vr(accs+4*ct,4)} offset:{64*ct}")
    a("s_waitcnt lgkmcnt(0)\ns_barrier")
    for q in range(3):
        for k in range(2):
            a(f"ds_read_b128 {vr(red+8*q+4*k,4)}, v{11 if q < 2 else 12} offset:{(8192*q if q < 2 else 0) + 20480*k}")
    for q in range(3):
        a(f"s_waitcnt lgkmcnt({4-2*q})")
        for e in range(4):
            a(f"v_add_f32 v{red+8*q+e}, v{red+8*q+e}, v{red+8*q+4+e}\nv_fmac_f32 v{xs+4*q+e}, v{red+8*q+e}, v{g_+4*q+e}")
        for k in range(2): a(f"v_cvt_pk_bf16_f32 v{x2+2*q+k}, v{xs+4*q+2*k}, v{xs+4*q+2*k+1}")
        a(f"buffer_store_dwordx2 {vr(x2+2*q,2)}, v{vo+q}, {sr(SRD_B,4)}, s{sOUT} offen")
    assert "x" not in out

def build():
    hdr = open("cdna_kernels/%s.s.ref" % NAME).read().split("; Override launch")[0]
    a = Asm(); g = alloc_g1(); w = alloc_at()
    prologue(a, g); params(a, g); stats(a, g)
    a(f"s_cmp_ge_u32 s{g.sC}, 28\ns_cbranch_scc1 L_helper")
    gemm1(a, g); attention(a, w); gemm3(a, w)
    stamp_flush(a)
    a.label("L_end"); a("s_endpgm")
    a.label("L_sp_o")
    spin(a, "L_sp_o_loop", [w.oflag], [T], "L_sp_o_done"); a("s_branch L_sp_o_done")
    special(a, g); helper(a, g); attn_cold(a, w)
    out = hdr + "; @launch grid=(256,1,1) block=(512,1,1) lds=163840\n"
    out += '.amdgcn_target "amdgcn-amd-amdhsa--gfx950"\n.text\n' + a.text()
    out += f""".section .rodata,"a"
.p2align 6
.amdhsa_kernel {NAME}_kernel
  .amdhsa_next_free_vgpr 256
  .amdhsa_next_free_sgpr 102
  .amdhsa_accum_offset 256
  .amdhsa_group_segment_fixed_size 0
  .amdhsa_kernarg_size 80
  .amdhsa_user_sgpr_count 2
  .amdhsa_user_sgpr_kernarg_segment_ptr 1
  .amdhsa_system_sgpr_workgroup_id_x 1
.end_amdhsa_kernel
"""
    if os.environ.get("NOPS"): print("auto nops:", *a.nops, sep="\n  ", file=sys.stderr)
    return out

if __name__ == "__main__":
    path = sys.argv[1] if len(sys.argv) > 1 else "cdna_kernels/%s.s" % NAME
    open(path, "w").write(build())
```

```python
import sys, os, math, struct
from asmlib import *

NAME = "recurrent_scan__softmax_full_mha__geglu_ffn__prompt"
S, D, F, NH, DH = 2048, 640, 1728, 32, 20
P_QKV, P_H, P_O = 240 * 512, 216 * 512, 80 * 512
OFF_QKV = 0
OFF_H = OFF_QKV + 64 * P_QKV
OFF_O = OFF_H + 64 * P_H
OFF_WP = OFF_O + 64 * P_O
OFF_ST = OFF_WP + 8 * 74 * 5 * 1024
OFF_CS = OFF_ST + 2048 * 8
OFF_FQ = OFF_CS + 90 * 4096
OFF_FH = OFF_FQ + 8192
OFF_FW = OFF_FH + 8192
OFF_FO = OFF_FW + 4096
OFF_EP = OFF_FO + 8192
WS_USED = OFF_EP + 256
def f32(x): return "0x%08x" % struct.unpack("<I", struct.pack("<f", x))[0]
LOG2E = 1.4426950408889634
QSCALE = DH ** -0.5 * LOG2E
GC1 = 2 * 0.7978845608028654 * LOG2E
GC3 = GC1 * 0.044715
SPIN_MAX = 1 << 16
SLEEP = int(os.environ.get('SLEEP', '8'))
XF = set(os.environ.get("XF", "").split(","))

pX, pWQKV, pWO, pBX, pWG, pWU, pWD, pOUT, pDBG, pWS = 4, 6, 8, 10, 12, 14, 16, 18, 20, 22
sWAVE = 3
SRD_WS, SRD_A, SRD_B = 24, 28, 32
_sp = Regs('s', 36, 64)
sTAG, sT, sU, sQ4, sHI, sSPIN = (_sp.one() for _ in range(6))
sDO, sDM = _sp.many(3, 1), _sp.many(3, 1)
sQA, sQB_, sQR, sOA, sOR, sFO = (_sp.one() for _ in range(6))
sH, sO3, sWO, sOUT, sFHc, sFWc, sFOc, sFHp, sHS, sM3 = (_sp.one() for _ in range(10))
S0 = 64
vLANE, vL16, vTAG, vIDX, vKMA, vKRA, vVA, vKVO, vQRO, vFQO, vBO, vSO = 1, 2, 3, 4, 5, 6, 7, 10, 11, 12, 13, 15
T = 16
HB = 24
WK = 132

STAMP = int(os.environ.get("STAMP", "0"))
REPORT = int(os.environ.get("REPORT", "0")); REPWG = int(os.environ.get("REPWG", "0"))
OFF_STAMP = WS_USED
if STAMP: WS_USED += 2048 * 128
class Stamper: n = 0
NSTAMP = 16
vST = 252
def stamp(a, real=False, idx=None):
    i = Stamper.n if idx is None else idx
    if idx is None: Stamper.n += 1
    if REPORT and i in (0, REPORT):
        au = a.auto; a.auto = True
        k = 96 if i == 0 else 98
        a(f"s_memrealtime s[{k}:{k+1}]\ns_waitcnt lgkmcnt(0)")
        a.auto = au
    if not STAMP: return
    au = a.auto; a.auto = True
    if STAMP == 2: real = True
    a(f"s_mem{'real' if real else ''}time s[100:101]\ns_waitcnt lgkmcnt(0)\nv_writelane_b32 v{vST}, s100, {i}")
    a.auto = au
def stamp_flush(a):
    if "probe" in XF:
        a(f"""s_waitcnt vmcnt(0) lgkmcnt(0)
        s_or_b32 s{sT}, s2, s{sWAVE}
        s_cmp_lg_u32 s{sT}, 0
        s_cbranch_scc1 L_probe_done""")
        srd(a, SRD_A, pBX, S * D * 2)
        a(f"s_mov_b32 s{sT}, 0")
        a.label("L_probe")
        a(f"""buffer_load_dword v{T}, off, {sr(SRD_A,4)}, s{sT}
        s_add_u32 s{sT}, s{sT}, {16384+128}
        s_waitcnt vmcnt(0)
        s_cmp_lt_u32 s{sT}, {128*(16384+128)}
        s_cbranch_scc1 L_probe""")
        a.label("L_probe_done")
    if REPORT:
        a("s_waitcnt vmcnt(0) lgkmcnt(0)")
        stamp(a)
        a(f"""s_cmp_lg_u32 s2, {REPWG}
        s_cbranch_scc1 L_end
        s_sub_u32 s98, s98, s96
        s_mul_i32 s98, s98, 4
        s_memrealtime s[96:97]
        s_waitcnt lgkmcnt(0)""")
        a.label("L_rep")
        a("""s_memrealtime s[100:101]
        s_waitcnt lgkmcnt(0)
        s_sub_u32 s100, s100, s96
        s_cmp_lt_u32 s100, s98
        s_cbranch_scc1 L_rep""")
        return
    if not STAMP: return
    a("s_waitcnt vmcnt(0) lgkmcnt(0)")
    stamp(a); stamp(a, True)
    print("stamps:", Stamper.n, file=sys.stderr)
    a(f"""s_lshl_b32 s{sT}, s2, 3
    s_add_u32 s{sT}, s{sT}, s{sWAVE}
    s_lshl_b32 s{sT}, s{sT}, 7
    s_add_u32 s{sT}, s{sT}, {OFF_STAMP}
    v_lshlrev_b32 v{T}, 2, v{vLANE}
    s_mov_b32 exec_hi, 0
    buffer_store_dword v{vST}, v{T}, {sr(SRD_WS,4)}, s{sT} offen""")

def srd(a, r, ptr, size):
    a(f"s_mov_b32 s{r}, s{ptr}\ns_mov_b32 s{r+1}, s{ptr+1}\ns_mov_b32 s{r+2}, {size}\ns_mov_b32 s{r+3}, 0x20000")
WS = sr(SRD_WS, 4)

def flag(a, soff, imm=0):
    a(f"s_mov_b64 exec, 1\nbuffer_store_dword v{vTAG}, off, {WS}, s{soff} offset:{imm} sc1\ns_mov_b64 exec, -1")

def check_ne(a, regs):
    a(f"v_xor_b32 v{regs[0]}, s{sTAG}, v{regs[0]}")
    for r in regs[1:]:
        a(f"v_xor_b32 v{r}, s{sTAG}, v{r}\nv_or_b32 v{regs[0]}, v{regs[0]}, v{r}")
    a(f"v_cmp_ne_u32 vcc, 0, v{regs[0]}")

def spin(a, lbl, loads, regs, done, after_wait=None):
    a(f"s_mov_b32 s{sSPIN}, {SPIN_MAX}")
    a.label(lbl)
    for l in loads: a(l)
    a("s_waitcnt vmcnt(0)")
    check_ne(a, regs)
    a(f"""s_cbranch_vccz {done}
    s_sleep {SLEEP}
    s_sub_u32 s{sSPIN}, s{sSPIN}, 1
    s_cmp_lg_u32 s{sSPIN}, 0
    s_cbranch_scc1 {lbl}""")

def wave_sum(a, v):
    for m in ("quad_perm:[1,0,3,2]", "quad_perm:[2,3,0,1]", "row_half_mirror", "row_mirror"):
        a(f"v_add_f32_dpp v{v}, v{v}, v{v} {m} row_mask:0xf bank_mask:0xf")
    a(f"v_add_f32_dpp v{v}, v{v}, v{v} row_bcast:15 row_mask:0xa bank_mask:0xf")
    a(f"v_add_f32_dpp v{v}, v{v}, v{v} row_bcast:31 row_mask:0xc bank_mask:0xf")

LW, LDUMMY, LX = 0, 61440, 65536
G3_SLOT = 40960
A_BASE, A_REG, A_HALF, A_SLOT = 2 * G3_SLOT, 2112, 12800, 25600
A_ONES = A_BASE + 3 * A_SLOT + 128
A_XCH = A_BASE + 2 * A_SLOT
G3_RED = 3 * G3_SLOT

class G1: pass
def alloc_g1():
    g = G1(); V = Regs('v', 24, 252); sg = Regs('s', S0, 96)
    g.acc = [V.many(32, 4) for u in range(3)]
    g.Wf = [V.many(24, 4) for b in range(2)]
    g.Xf = [V.many(16, 4) for b in range(2)]
    g.X19 = V.many(16, 4)
    g.gr = V.many(20, 4)
    g.xb = V.many(2, 1); g.xa = V.many(2, 1); g.wb = V.many(2, 1); g.wa = V.many(2, 1); g.voff = V.many(4, 1); g.vtch = V.one(); g.x2 = g.wa
    g.raw = g.gr; g.e = g.gr + 6; g.ep = g.gr + 5
    for n in "sRB sC sOff sStep sD0 sD1 sM0 sMsz sMend sWrapW sWrapX sSize sRound sWr sXr sRow sGP".split(): setattr(g, n, sg.one())
    g.V, g.sg = V, sg
    return g

def dma_ops(g, j, rolled=False):
    L = [f"buffer_load_dwordx4 v{g.voff+i}, {sr(SRD_A,4)}, s{g.sOff} offen offset:{1024*i} lds" for i in range(4)]
    L[0] = f"s_mov_b32 m0, s{g.sM0}\ns_add_u32 s{g.sM0}, s{g.sM0}, s{g.sMsz}\n" + L[0]
    e = f"s_add_u32 s{g.sOff}, s{g.sOff}, s{g.sD1 if j & 1 else g.sD0}"
    if rolled:
        e += f"""\ns_cmp_ge_u32 s{g.sM0}, s{g.sMend}
        s_cselect_b32 s{sT}, s{g.sWrapW}, 0
        s_sub_u32 s{g.sM0}, s{g.sM0}, s{sT}"""
    else:
        if j % 5 == 4: e += f"\ns_sub_u32 s{g.sM0}, s{g.sM0}, s{g.sWrapW}"
        if j % 6 == 5: e += f"\ns_sub_u32 s{g.sM0}, s{g.sM0}, s{g.sWrapX}"
    L[3] += "\n" + e
    return L

BURST = [int(x) for x in os.environ.get("BURST", "4,3,3").split(",")]
BSTAGE = [int(x) for x in os.environ.get("BSTAGE", "0,3,7").split(",")]
def cs_load(g, k):
    return f"buffer_load_dwordx4 {vr(g.X19+4*k,4)}, v{g.vtch}, {sr(SRD_A,4)}, s{g.sRow} offen offset:3072\ns_add_u32 s{g.sRow}, s{g.sRow}, s{g.sStep}"
def cs_setup(a, g):
    sel = g.gr + 16; t = T
    a(f"""v_and_b32 v{t}, 1, v{vLANE}
    v_lshlrev_b32 v{t}, 4, v{t}
    v_mov_b32 v{t+1}, 0x3f80
    v_lshlrev_b32 v{t}, v{t}, v{t+1}
    v_bfe_u32 v{t+1}, v{vLANE}, 1, 2""")
    for r in range(4): a(f"v_cmp_eq_u32 vcc, {r}, v{t+1}\nv_cndmask_b32 v{sel+r}, 0, v{t}, vcc")
_csn = [0]
def cs_acc(a, g, n, first):
    ac = g.gr + 8; sel = g.gr + 16
    _csn[0] += 1
    L = [f"s_cmp_ge_u32 s{sWAVE}, 3", f"s_cbranch_scc1 L_cs{_csn[0]}"]
    L += [f"v_mfma_f32_16x16x32_bf16 {vr(ac,4)}, {vr(sel,4)}, {vr(g.X19+4*k,4)}, {'0' if first and k == 0 else vr(ac,4)}" for k in range(n)]
    a.atom("\n".join(L + [f"L_cs{_csn[0]}:"]))
def cs_publish(a, g):
    ac = g.gr + 8; t = T
    a(f"""v_bfe_u32 v{t}, v{vLANE}, 3, 1
    v_cmp_eq_u32 vcc, 1, v{t}
    v_and_b32 v{t+1}, 7, v{vLANE}
    v_lshl_add_u32 v{t+1}, v{t+1}, 3, v{t}
    v_bfe_u32 v{t}, v{vLANE}, 4, 1
    v_lshl_add_u32 v{t+1}, v{t}, 2, v{t+1}
    v_lshrrev_b32 v{t}, 5, v{vLANE}
    v_lshlrev_b32 v{t}, 1, v{t}""")
    for r in range(4): a(f"v_add_f32_dpp v{ac+r}, v{ac+r}, v{ac+r} row_ror:8 row_mask:0xf bank_mask:0xf")
    a(f"""v_cndmask_b32 v{ac}, v{ac}, v{ac+1}, vcc
    v_cndmask_b32 v{ac+2}, v{ac+2}, v{ac+3}, vcc
    v_cmp_lt_u32 vcc, 31, v{vLANE}
    s_nop 0
    v_cndmask_b32 v{ac}, v{ac}, v{ac+2}, vcc
    v_cvt_pk_bf16_f32 v{ac+1}, v{ac}, v{ac}
    v_add_lshl_u32 v{t+1}, v{t+1}, v{t}, 4
    v_and_b32 v{ac+1}, 0xffff0000, v{ac+1}
    v_sub_f32 v{ac}, v{ac}, v{ac+1}
    v_mov_b32 v{ac+3}, v{vTAG}
    v_cvt_pk_bf16_f32 v{ac+2}, v{ac+1}, v{ac}
    s_mul_i32 s{sT}, s{sWAVE}, 30
    s_add_u32 s{sT}, s{sT}, s{g.sC}
    s_lshl_b32 s{sT}, s{sT}, 2
    s_lshr_b32 s{sU}, s{g.sRB}, 1
    s_add_u32 s{sT}, s{sT}, s{sU}
    s_lshl_b32 s{sT}, s{sT}, 7
    s_and_b32 s{sU}, s{g.sRB}, 1
    s_add_u32 s{sT}, s{sT}, s{sU}
    s_lshl_b32 s{sT}, s{sT}, 3
    s_add_u32 s{sT}, s{sT}, {OFF_CS}
    s_cmp_lt_u32 s{sWAVE}, 3
    s_cselect_b32 s{sT}, s{sT}, 0x7ff00000
    buffer_store_dwordx2 {vr(ac+2,2)}, v{t+1}, {WS}, s{sT} offen sc1""")

def prologue(a, g):
    t = T
    name = NAME + "_kernel"
    a.raw(f".globl {name}\n.p2align 8\n.type {name},@function")
    a.label(name)
    a(f"""s_cmp_ge_u32 s2, 256
    s_cbranch_scc1 L_end""")
    stamp(a, True); stamp(a)
    a(f"""s_load_dwordx16 s[4:19], s[0:1], 0
    s_load_dwordx4 s[20:23], s[0:1], 64
    v_lshrrev_b32 v{t}, 6, v0
    v_and_b32 v{vLANE}, 63, v0
    v_readfirstlane_b32 s{sWAVE}, v{t}
    v_lshlrev_b32 v{vL16}, 4, v{vLANE}
    s_and_b32 s{g.sRB}, s2, 1
    s_lshl_b32 s{g.sRB}, s{g.sRB}, 2
    s_bfe_u32 s{sT}, s2, 0x20003
    s_add_u32 s{g.sRB}, s{g.sRB}, s{sT}
    s_lshr_b32 s{g.sC}, s2, 5
    s_lshl_b32 s{g.sC}, s{g.sC}, 2
    s_bfe_u32 s{sT}, s2, 0x20001
    s_add_u32 s{g.sC}, s{g.sC}, s{sT}
    s_and_b32 s{sQ4}, s{sWAVE}, 3
    s_lshr_b32 s{sHI}, s{sWAVE}, 2
    s_lshl_b32 s{g.sRow}, s2, 3
    s_add_u32 s{g.sRow}, s{g.sRow}, s{sWAVE}
    ; DMA role by wave: 0 wqkv, 1 gate, 2 up, 3 none, 4.. x ; groups 27..29 have no gate/up unit (zeros)
    s_cmp_lt_u32 s{g.sC}, 27
    s_cselect_b32 s{g.sSize}, {D*F*2+3072}, 0
    s_movk_i32 s{sU}, {F*2}
    s_cmp_eq_u32 s{sWAVE}, 0
    s_cselect_b32 s{g.sSize}, {D*3*D*2+3072}, s{g.sSize}
    s_cselect_b32 s{sU}, {3*D*2}, s{sU}
    s_lshl_b32 s{g.sOff}, s{g.sC}, 7
    s_lshl_b32 s{g.sM0}, s{sQ4}, 12
    s_add_u32 s{g.sWr}, s{g.sM0}, {LX}
    s_movk_i32 s{g.sMsz}, 12288
    s_mov_b32 s{g.sWrapW}, {5*12288}
    s_cmp_eq_u32 s{sWAVE}, 3
    s_cselect_b32 s{g.sSize}, 0, s{g.sSize}
    s_cselect_b32 s{g.sM0}, {LDUMMY}, s{g.sM0}
    s_cselect_b32 s{g.sMsz}, 0, s{g.sMsz}
    s_cselect_b32 s{g.sWrapW}, 0, s{g.sWrapW}
    s_lshl_b32 s{sT}, s{g.sRB}, 1
    s_lshr_b32 s{g.sGP}, s2, 7
    s_add_u32 s{sT}, s{sT}, s{g.sGP}
    s_lshl_b32 s{sT}, s{sT}, 4
    s_add_u32 s{sT}, s{sT}, s{sQ4}
    s_mul_i32 s{sT}, s{sT}, {8*1280}
    s_mul_i32 s{g.sD1}, s{g.sGP}, {2*128*1280}
    s_sub_u32 s{g.sD0}, {128*1280}, s{g.sD1}
    s_sub_u32 s{g.sD1}, 128, s{g.sD0}
    s_lshl_b32 s{g.sStep}, s{sU}, 3
    s_lshl_b32 s{g.sMend}, s{sU}, 5
    s_bfe_u32 s{g.sGP}, s2, 0x20005
    s_and_b32 s{g.sXr}, s{g.sRB}, 3
    s_cmp_ge_u32 s{sWAVE}, 4
    s_cselect_b32 s{g.sSize}, {S*D*2+3072}, s{g.sSize}
    s_cselect_b32 s{sU}, 1280, s{sU}
    s_cselect_b32 s{g.sOff}, s{sT}, s{g.sOff}
    s_cselect_b32 s{g.sD0}, s{g.sD0}, s{g.sMend}
    s_cselect_b32 s{g.sD1}, s{g.sD1}, s{g.sMend}
    s_cselect_b32 s{g.sM0}, s{g.sWr}, s{g.sM0}
    s_cselect_b32 s{g.sMsz}, 16384, s{g.sMsz}
    s_cselect_b32 s{g.sWrapW}, 0, s{g.sWrapW}
    s_cselect_b32 s{g.sWrapX}, {6*16384}, 0
    s_cselect_b32 s{g.sGP}, s{g.sGP}, s{g.sXr}
    s_cselect_b32 s{g.sMend}, {32*1280}, s{g.sStep}
    s_cselect_b64 vcc, -1, 0
    s_cmp_ge_u32 s{g.sC}, 30
    s_cselect_b32 s{g.sSize}, 0, s{g.sSize}
    ; lane part: row l/8, pos = l%8 ; W: chunk = pos ^ (((row>>1)&1)<<2 | (i&1)<<1) ; x: chunk = pos ^ ((row>>1) + 4*(wave&1))
    v_lshrrev_b32 v{t}, 3, v{vLANE}
    v_mul_lo_u32 v{t}, v{t}, s{sU}
    v_and_b32 v{t+1}, 7, v{vLANE}
    v_lshrrev_b32 v{t+2}, 4, v{vLANE}
    v_and_b32 v{t+3}, 1, v{t+2}
    v_lshlrev_b32 v{t+3}, 2, v{t+3}
    s_and_b32 s{sT}, s{sWAVE}, 1
    v_lshl_or_b32 v{t+2}, s{sT}, 2, v{t+2}
    v_or_b32 v{t+5}, 2, v{t+3}
    v_cndmask_b32 v{t+4}, v{t+5}, v{t+2}, vcc
    v_cndmask_b32 v{t+2}, v{t+3}, v{t+2}, vcc
    v_xor_b32 v{t+2}, v{t+2}, v{t+1}
    v_xor_b32 v{t+4}, v{t+4}, v{t+1}
    v_lshl_add_u32 v{t+2}, v{t+2}, 4, v{t}
    v_lshl_add_u32 v{t+4}, v{t+4}, 4, v{t}""")
    for i in range(4):
        a(f"""s_xor_b32 s{sT}, s{g.sGP}, {i}
        s_mul_i32 s{sT}, s{sT}, s{g.sMend}
        s_add_u32 s{sT}, s{sT}, {3072 - 1024*i}
        v_add_u32 v{g.voff+i}, s{sT}, v{t+2+2*(i&1)}""")
    a(f"""
    v_lshl_add_u32 v{g.vtch}, v{t+1}, 4, v{t}
    v_mov_b32 v{t+1}, 0x7ffffff0
    v_cndmask_b32 v{g.vtch}, v{g.vtch}, v{t+1}, vcc
    v_lshlrev_b32 v{t}, 2, v{vLANE}
    s_mul_i32 s{g.sRound}, s{g.sRow}, 1280
    s_mul_i32 s{g.sRow}, s{g.sRB}, s{g.sStep}
    s_lshl_b32 s{g.sStep}, s{g.sStep}, 3
    s_add_u32 s{g.sRow}, s{g.sRow}, s{g.sOff}
    s_mov_b32 s{sU}, {OFF_EP}
    s_mov_b32 s{SRD_WS+2}, {WS_USED}
    s_mov_b32 s{SRD_WS+3}, 0x20000
    s_mov_b32 s{SRD_B+2}, {S*D*2}
    s_mov_b32 s{SRD_B+3}, 0x20000
    s_mov_b32 s{SRD_A+2}, s{g.sSize}
    s_mov_b32 s{SRD_A+3}, 0x20000
    s_waitcnt lgkmcnt(0)
    s_mov_b32 s{SRD_WS}, s{pWS}
    s_mov_b32 s{SRD_WS+1}, s{pWS+1}
    s_mov_b32 s{SRD_B}, s{pX}
    s_mov_b32 s{SRD_B+1}, s{pX+1}
    buffer_load_dwordx4 {vr(g.raw,4)}, v{vL16}, {sr(SRD_B,4)}, s{g.sRound} offen
    buffer_load_dword v{g.raw+4}, v{t}, {sr(SRD_B,4)}, s{g.sRound} offen offset:1024
    s_load_dword s{sTAG}, s[{pWS}:{pWS+1}], s{sU}
    s_cmp_eq_u32 s{sWAVE}, 1
    s_cselect_b32 s{SRD_A}, s{pWG}, s{pWU}
    s_cselect_b32 s{SRD_A+1}, s{pWG+1}, s{pWU+1}
    s_cmp_eq_u32 s{sWAVE}, 0
    s_cselect_b32 s{SRD_A}, s{pWQKV}, s{SRD_A}
    s_cselect_b32 s{SRD_A+1}, s{pWQKV+1}, s{SRD_A+1}
    s_cmp_ge_u32 s{sWAVE}, 4
    s_cselect_b32 s{SRD_A}, s{pX}, s{SRD_A}
    s_cselect_b32 s{SRD_A+1}, s{pX+1}, s{SRD_A+1}
    s_sub_u32 s{SRD_A}, s{SRD_A}, 3072
    s_subb_u32 s{SRD_A+1}, s{SRD_A+1}, 0""")
    a(f"s_cmp_ge_u32 s{sWAVE}, 3\ns_cbranch_scc1 L_nocs")
    for n in range(BURST[0]): a(cs_load(g, n))
    a.label("L_nocs")
    a("s_barrier")
    for x in dma_ops(g, 0): a(x)

def g1_addr(a, g):
    t = T
    a(f"""; x fragments: (t16>>3)*4096 + (t16&7)*128 + (((g ^ r) ^ (t16>>1))*16) + (tq>>1)*16384 + (tq&1)*2048
    v_and_b32 v{t}, 7, v{vLANE}
    v_lshrrev_b32 v{t+1}, 4, v{vLANE}
    v_bfe_u32 v{t+2}, v{vLANE}, 1, 3
    v_xor_b32 v{t+2}, v{t+2}, v{t+1}
    v_xor_b32 v{t+2}, s{g.sXr}, v{t+2}
    v_lshlrev_b32 v{t+2}, 4, v{t+2}
    v_lshl_add_u32 v{t+2}, v{t}, 7, v{t+2}
    v_bfe_u32 v{t}, v{vLANE}, 3, 1
    v_lshl_add_u32 v{t+2}, v{t}, 12, v{t+2}
    s_lshr_b32 s{sT}, s{sQ4}, 1
    s_mul_i32 s{sT}, s{sT}, 6
    s_add_u32 s{sT}, s{sT}, s{sQ4}
    s_lshl_b32 s{sT}, s{sT}, 11
    s_add_u32 s{sT}, s{sT}, {LX}
    v_add_u32 v{g.xb}, s{sT}, v{t+2}
    v_xor_b32 v{g.xb+1}, 64, v{g.xb}
    v_add_u32 v{g.x2}, 0x10000, v{g.xb}
    v_add_u32 v{g.x2+1}, 0x10000, v{g.xb+1}
    v_bfe_u32 v{t}, v{vLANE}, 2, 2
    v_lshl_add_u32 v{t+2}, v{t+1}, 3, v{t}
    v_lshlrev_b32 v{t+2}, 7, v{t+2}
    v_lshrrev_b32 v{t}, 1, v{t}
    v_xor_b32 v{t}, s{sHI}, v{t}
    v_lshl_add_u32 v{t+2}, v{t}, 6, v{t+2}
    v_and_b32 v{t}, 1, v{t+1}
    v_lshl_add_u32 v{t+2}, v{t}, 5, v{t+2}
    v_and_b32 v{t}, 3, v{vLANE}
    v_lshl_add_u32 v{g.wb}, v{t}, 3, v{t+2}
    v_xor_b32 v{g.wb+1}, 32, v{g.wb}""")

def g1_setup(a, g):
    g1_addr(a, g); cs_setup(a, g); params(a, g)
    if "pst" in XF: stamp(a)
    a(f"s_waitcnt vmcnt({4 + BURST[0]})\ns_cmp_lt_u32 s{sWAVE}, 3\ns_cbranch_scc1 L_rows\ns_waitcnt vmcnt(4)")
    a.label("L_rows")
    if "pst" in XF: stamp(a)
    stats(a, g)
    if "pst" in XF: stamp(a)

def params(a, g):
    t = T
    sHD, sPA, sPS, sPAR, sTG, sX = g.sRound, g.sXr, sOA, sOR, sFO, sSPIN
    a(f"""; attention: hd = xcd*4 + (j>>3) ; qb = j&7
    s_and_b32 s{sHD}, s2, 7
    s_lshl_b32 s{sHD}, s{sHD}, 2
    s_lshr_b32 s{sT}, s2, 6
    s_add_u32 s{sHD}, s{sHD}, s{sT}
    s_and_b32 s{sPAR}, s{sHD}, 1
    s_mul_i32 s{sT}, s{sHD}, 5
    s_lshr_b32 s{sT}, s{sT}, 1
    s_add_u32 s{sPA}, s{sT}, s{sPAR}
    s_add_u32 s{sU}, s{sT}, 2
    s_cmp_eq_u32 s{sPAR}, 1
    s_cselect_b32 s{sPS}, s{sT}, s{sU}
    s_lshl_b32 s{sPA}, s{sPA}, 9
    s_lshl_b32 s{sPS}, s{sPS}, 9
    s_lshl_b32 s{sPAR}, s{sPAR}, 3
    s_lshr_b32 s{sT}, s{sT}, 2
    s_lshr_b32 s{sU}, s{sU}, 2
    s_sub_u32 s{sU}, s{sU}, s{sT}
    v_lshrrev_b32 v{t}, 5, v{vLANE}
    v_and_b32 v{t+1}, 31, v{vLANE}
    v_and_b32 v{t+2}, s{sU}, v{t}
    v_add_u32 v{t+2}, s{sT}, v{t+2}
    v_lshlrev_b32 v{t+2}, 7, v{t+2}
    v_lshl_add_u32 v{vFQO}, v{t+1}, 2, v{t+2}
    v_lshlrev_b32 v{t+1}, 4, v{t+1}
    v_mul_u32_u24 v{vKVO}, {P_QKV}, v{t}
    v_add_u32 v{vKVO}, v{vKVO}, v{t+1}
    v_xor_b32 v{vQRO}, s{sHI}, v{t}
    v_mul_u32_u24 v{vQRO}, {P_QKV}, v{vQRO}
    v_add_u32 v{vQRO}, v{vQRO}, v{t+1}""")
    for i in range(3):
        a(f"""s_mul_i32 s{sT}, s{sQ4}, 3
        s_add_u32 s{sT}, s{sT}, {i}
        s_lshr_b32 s{sU}, s{sT}, 1
        s_and_b32 s{sT}, s{sT}, 1
        s_mul_i32 s{sDM+i}, s{sU}, {A_REG}
        s_lshl_b32 s{sX}, s{sT}, 10
        s_add_u32 s{sDM+i}, s{sDM+i}, s{sX}
        s_mul_i32 s{sX}, s{sHI}, {A_HALF}
        s_add_u32 s{sDM+i}, s{sDM+i}, s{sX}
        s_lshl_b32 s{sX}, s{sHI}, 4
        s_add_u32 s{sX}, s{sX}, s{sT}
        s_mul_i32 s{sDO+i}, s{sX}, {2*P_QKV}
        s_cmp_ge_u32 s{sU}, 3
        s_cselect_b32 s{sT}, 3, 0
        s_cselect_b32 s{sX}, {80*512}, 0
        s_add_u32 s{sDO+i}, s{sDO+i}, s{sX}
        s_add_u32 s{sDO+i}, s{sDO+i}, {OFF_QKV + 80*512}
        s_sub_u32 s{sU}, s{sU}, s{sT}
        s_lshl_b32 s{sT}, s{sU}, 9
        s_add_u32 s{sT}, s{sT}, s{sPA}
        s_cmp_eq_u32 s{sU}, 2
        s_cselect_b32 s{sT}, s{sPS}, s{sT}
        s_add_u32 s{sDO+i}, s{sDO+i}, s{sT}""")
    a(f"""; LDS read addresses of attention
    s_mul_i32 s{sT}, s{sHI}, {A_HALF}
    s_add_u32 s{sT}, s{sT}, {A_BASE}
    v_mul_u32_u24 v{vKMA}, {A_REG}, v{t}
    v_add3_u32 v{vKMA}, v{vKMA}, v{t+1}, s{sT}
    s_add_u32 s{sU}, s{sPAR}, s{sT}
    s_add_u32 s{sU}, s{sU}, {2*A_REG}
    v_add_u32 v{vKRA}, s{sU}, v{t+1}
    v_bfe_u32 v{t+1}, v{vLANE}, 2, 2
    v_lshl_add_u32 v{t+1}, v{t}, 3, v{t+1}
    v_lshlrev_b32 v{t+1}, 4, v{t+1}
    v_and_b32 v{t+2}, 1, v{vLANE}
    v_mul_u32_u24 v{t+2}, {A_REG}, v{t+2}
    v_bfe_u32 v{t+3}, v{vLANE}, 1, 1
    v_lshl_add_u32 v{t+2}, v{t+3}, 3, v{t+2}
    s_add_u32 s{sT}, s{sT}, {3*A_REG}
    v_add_u32 v{t+2}, s{sT}, v{t+2}
    s_add_u32 s{sU}, s{sU}, {3*A_REG}
    v_mov_b32 v{t+5}, s{sU}
    v_and_b32 v{t+4}, 19, v{vLANE}
    v_cmp_eq_u32 vcc, 16, v{t+4}
    v_lshlrev_b32 v{t+3}, 3, v{t+3}
    v_add_u32 v{t+3}, {A_ONES}, v{t+3}
    v_cndmask_b32 v{t+2}, v{t+2}, v{t+5}, vcc
    v_cmp_lt_u32 vcc, 16, v{t+4}
    v_mov_b32 v{vIDX}, 0xdddddddd""")
    for k in range(3):
        a(f"""v_add_u32 v{t+4}, {k*A_SLOT}, v{t+2}
        v_cndmask_b32 v{t+4}, v{t+4}, v{t+3}, vcc
        v_add_u32 v{vVA+k}, v{t+4}, v{t+1}""")
    a(f"""; Q / O offsets: token groups qb*8 + qp*2 + (kh: own, kh^1: other)
    s_bfe_u32 s{sTG}, s2, 0x30003
    s_lshl_b32 s{sTG}, s{sTG}, 2
    s_add_u32 s{sTG}, s{sTG}, s{sQ4}
    s_lshl_b32 s{sTG}, s{sTG}, 1
    s_add_u32 s{sPS}, s{sPS}, s{sPAR}
    s_mul_i32 s{sQR}, s{sTG}, {P_QKV}
    s_add_u32 s{sQR}, s{sQR}, s{sPS}
    s_add_u32 s{sTG}, s{sTG}, s{sHI}
    s_xor_b32 s{sU}, s{sTG}, 1
    s_mul_i32 s{sQA}, s{sTG}, {P_QKV}
    s_mul_i32 s{sQB_}, s{sU}, {P_QKV}
    s_add_u32 s{sQA}, s{sQA}, s{sPA}
    s_add_u32 s{sQB_}, s{sQB_}, s{sPA}
    s_mul_i32 s{sT}, s{sTG}, {P_O}
    s_add_u32 s{sT}, s{sT}, {OFF_O}
    s_add_u32 s{sOR}, s{sT}, s{sPS}
    s_add_u32 s{sOA}, s{sT}, s{sPA}
    s_lshl_b32 s{sFO}, s{sTG}, 5
    s_add_u32 s{sFO}, s{sFO}, s{sHD}
    s_lshl_b32 s{sFO}, s{sFO}, 2
    s_add_u32 s{sFO}, s{sFO}, {OFF_FO}""")
    sTB, sCB = g.sRound, g.sXr
    a(f"""; phase 3: tb = (xcd>>1)*8 + (j&7) ; cb = (xcd&1)*4 + (j>>3)
    s_bfe_u32 s{sTB}, s2, 0x20001
    s_lshl_b32 s{sTB}, s{sTB}, 3
    s_bfe_u32 s{sT}, s2, 0x30003
    s_add_u32 s{sTB}, s{sTB}, s{sT}
    s_and_b32 s{sCB}, s2, 1
    s_lshl_b32 s{sCB}, s{sCB}, 2
    s_lshr_b32 s{sT}, s2, 6
    s_add_u32 s{sCB}, s{sCB}, s{sT}
    s_lshl_b32 s{sT}, s{sCB}, 1
    s_add_u32 s{sT}, s{sT}, s{sHI}
    s_lshl_b32 s{sFWc}, s{sT}, 8
    s_add_u32 s{sFWc}, s{sFWc}, {OFF_FW}
    s_mul_i32 s{sT}, s{sT}, 37
    s_add_u32 s{sT}, s{sT}, s{sQ4}
    s_mul_i32 s{sWO}, s{sT}, 5120
    s_add_u32 s{sWO}, s{sWO}, {OFF_WP}
    s_lshl_b32 s{sFHc}, s{sTB}, 8
    s_mul_i32 s{sT}, s{sHI}, {27*4}
    s_add_u32 s{sFHc}, s{sFHc}, s{sT}
    s_add_u32 s{sFHc}, s{sFHc}, {OFF_FH}
    s_mul_i32 s{sOUT}, s{sTB}, {64*1280}
    s_mul_i32 s{sT}, s{sCB}, 160
    s_add_u32 s{sOUT}, s{sOUT}, s{sT}
    s_lshl_b32 s{sTB}, s{sTB}, 1
    s_lshr_b32 s{sT}, s{sQ4}, 1
    s_add_u32 s{sTB}, s{sTB}, s{sT}
    s_mul_i32 s{sH}, s{sTB}, {P_H}
    s_mul_i32 s{sT}, s{sHI}, {27*2048}
    s_add_u32 s{sH}, s{sH}, s{sT}
    s_add_u32 s{sH}, s{sH}, {OFF_H}
    s_mul_i32 s{sO3}, s{sTB}, {P_O}
    s_mul_i32 s{sT}, s{sHI}, {10*2048}
    s_add_u32 s{sO3}, s{sO3}, s{sT}
    s_add_u32 s{sO3}, s{sO3}, {OFF_O}
    s_lshl_b32 s{sFOc}, s{sTB}, 7
    s_lshl_b32 s{sT}, s{sHI}, 6
    s_add_u32 s{sFOc}, s{sFOc}, s{sT}
    s_add_u32 s{sFOc}, s{sFOc}, {OFF_FO}
    v_lshrrev_b32 v{t}, 4, v{vLANE}
    v_and_b32 v{t+1}, 15, v{vLANE}
    v_lshlrev_b32 v{t+1}, 4, v{t+1}
    v_lshl_add_u32 v{vBO}, v{t}, 9, v{t+1}
    s_and_b32 s{sT}, s{sQ4}, 1
    s_lshl_b32 s{sT}, s{sT}, 8
    v_add_u32 v{vBO}, s{sT}, v{vBO}
    s_lshl_b32 s{sT}, s{g.sC}, 1
    s_add_u32 s{sT}, s{sT}, s{sHI}
    s_cmp_lt_u32 s{g.sC}, 27
    s_cselect_b32 s{sT}, s{sT}, 63
    s_lshr_b32 s{sU}, s2, 6
    s_xor_b32 s{sU}, s{sU}, s{sQ4}
    s_lshl2_add_u32 s{sU}, s{g.sRB}, s{sU}
    s_lshl_b32 s{sU}, s{sU}, 6
    s_add_u32 s{sT}, s{sT}, s{sU}
    s_lshl_b32 s{sT}, s{sT}, 2
    s_add_u32 s{sFHp}, s{sT}, {OFF_FH}""")

def stats(a, g):
    raw, e, t = g.raw, g.e, T
    for i in range(5):
        a(f"v_lshlrev_b32 v{e+2*i}, 16, v{raw+i}\nv_and_b32 v{e+2*i+1}, 0xffff0000, v{raw+i}")
    a(f"v_add_f32 v{t}, v{e}, v{e+1}")
    for i in range(2, 10): a(f"v_add_f32 v{t}, v{t}, v{e+i}")
    wave_sum(a, t)
    a(f"v_mul_f32 v{t}, {f32(1.0/D)}, v{t}\nv_readlane_b32 s{sT}, v{t}, 63")
    for i in range(10): a(f"v_subrev_f32 v{e+i}, s{sT}, v{e+i}")
    a(f"v_mul_f32 v{t+1}, v{e}, v{e}")
    for i in range(1, 10): a(f"v_fmac_f32 v{t+1}, v{e+i}, v{e+i}")
    a(f"""s_waitcnt lgkmcnt(0)
    s_mul_i32 s{sTAG}, s{sTAG}, 0x9e3779b1
    s_add_u32 s{sTAG}, s{sTAG}, 0x7f4a7c15
    v_mov_b32 v{vTAG}, s{sTAG}""")
    wave_sum(a, t + 1)
    a(f"""v_mul_f32 v{t+1}, {f32(1.0/D)}, v{t+1}
    v_cvt_pk_bf16_f32 v{t+1}, v{t+1}, v{t+1}
    v_and_b32 v{t+1}, 0xffff0000, v{t+1}
    v_add_f32 v{t+1}, {f32(1e-5)}, v{t+1}
    v_cvt_pk_bf16_f32 v{t+1}, v{t+1}, v{t+1}
    v_and_b32 v{t+1}, 0xffff0000, v{t+1}
    v_sqrt_f32 v{t+1}, v{t+1}
    v_mov_b32 v{t+3}, v{vTAG}
    v_cvt_pk_bf16_f32 v{t+2}, v{t}, v{t+1}
    s_lshl_b32 s{sT}, s2, 3
    s_add_u32 s{sT}, s{sT}, s{sWAVE}
    s_lshl_b32 s{sT}, s{sT}, 3
    s_add_u32 s{sT}, s{sT}, {OFF_ST}""")
    g.st_store = f"""s_mov_b32 exec_lo, 0
    s_brev_b32 exec_hi, 1
    buffer_store_dwordx2 {vr(t+2,2)}, off, {WS}, s{sT} sc1
    s_mov_b64 exec, -1"""

def x_reads(g, dst, ks): return [f"ds_read_b128 {vr(dst+4*q,4)}, v{g.xa+ks} offset:{q*2048}" for q in range(4)]
def w_reads(g, dst, u, base=None, off=0):
    A = g.wa if base is None else base
    return [f"ds_read_b64_tr_b16 {vr(dst+4*p+2*rd,2)}, v{A+p} offset:{off + u*4096 + rd*512}" for p in range(2) for rd in range(2)]
def mm(g, u, W, X, qs=range(4)):
    return [f"v_mfma_f32_16x16x32_bf16 {vr(g.acc[u]+8*q+4*p,4)}, {vr(W+4*p,4)}, {vr(X+4*q,4)}, {vr(g.acc[u]+8*q+4*p,4)}" for p in range(2) for q in qs]
def weave(a, mf, fill):
    for k, m in enumerate(mf):
        a(m)
        for x in fill.get(k, []): a(x)

class Rec:
    def __init__(self): self.L = []
    def __call__(self, text):
        self.L += [l.strip() for l in text.strip().split("\n") if l.strip() and not l.strip().startswith(";")]
    def atom(self, text): self.L.append(text)
Asm.atom = lambda self, text: self(text)

def xs_reads(g, dst, i):
    sl = (i >> 1) % 3
    return [f"ds_read_b128 {vr(dst+4*q,4)}, v{(g.x2 if sl == 2 else g.xb)+(i&1)} offset:{(sl&1)*32768*(sl < 2) + (q&1)*8192 + (q>>1)*1024}" for q in range(4)]
def ws_reads(g, dst, i, u): return w_reads(g, dst, u, g.wb, LW + (i % 5) * 12288)

def g1_start(a, g):
    for x in dma_ops(g, 1): a(x)
    a(g.st_store)
    a("s_barrier")
    for x in dma_ops(g, 2): a(x)
    stamp(a)
    a("s_waitcnt vmcnt(5)\ns_barrier")
    stamp(a)
    for r in xs_reads(g, g.Xf[0], 0): a(r)
    for u in range(3):
        for r in ws_reads(g, g.Wf[0] + 8 * u, 0, u): a(r)

def g1_main(a, g):
    def rec(f, *args):
        r = Rec(); f(r, *args); return r.L
    side = rec(cs_acc, g, BURST[0], True)
    side += [("at", BSTAGE[1])] + [("vm", "c1", cs_load(g, k)) for k in range(BURST[1])]
    side += [("at", BSTAGE[2]), ("wait", "c1")] + rec(cs_acc, g, BURST[1], False)
    side += [("vm", "c2", cs_load(g, k)) for k in range(BURST[2])]
    side += [("at", BSTAGE[2] + 3), ("wait", "c2")] + rec(cs_acc, g, BURST[2], False) + rec(cs_publish, g)
    if "noside" in XF:
        for x in side:
            if isinstance(x, tuple):
                if x[0] == "wait": a("s_waitcnt vmcnt(0)")
                if x[0] == "vm": a(x[2])
            else: a(x)
        side = []
    out = ["st"] + ["r2"] * 4
    def wait(need):
        idx = max([j for j, x in enumerate(out) if x in need], default=-1)
        if idx >= 0:
            a(f"s_waitcnt vmcnt({len(out)-1-idx})"); del out[:idx + 1]
    PER = int(os.environ.get("SIDE", "1"))
    for i in range(16):
        b = i & 1; n = b ^ 1
        mf = sum((mm(g, u, g.Wf[b] + 8 * u, g.Xf[b]) for u in range(3)), [])
        if i == 0: mf = [m[:m.rindex(",")] + ", 0" for m in mf]
        xr = xs_reads(g, g.Xf[n], i + 1); wr = [ws_reads(g, g.Wf[n] + 8 * u, i + 1, u) for u in range(3)]
        rd = [xr[0]] + wr[0][:2] + xr[1:] + wr[0][2:] + wr[1] + wr[2]
        vm = {}
        if i < 2:
            for k, x in enumerate(dma_ops(g, 3 + 2 * i) + dma_ops(g, 4 + 2 * i)): vm[2 + 3 * k] = (f"r{3 + 2 * i + k // 4}", x)
        elif i + 5 < 20:
            for pos, x in zip((4, 10, 16, 22), dma_ops(g, i + 5)): vm[pos] = (f"r{i+5}", x)
        a("s_waitcnt lgkmcnt(0)")
        if "sst" in XF: stamp(a)
        if "nodma" in XF: vm = {}
        for k, m in enumerate(mf):
            a(m)
            if k == 1:
                wait([f"r{i+1}"] + ([f"r{i+2}"] if b else []))
                a("s_barrier")
            if k >= 2 and rd: a(rd.pop(0))
            if k in vm: a(vm[k][1]); out.append(vm[k][0])
            if k == 1: continue
            left = PER
            while left and side:
                x = side[0]
                if isinstance(x, tuple):
                    if x[0] == "at" and i < x[1]: break
                    side.pop(0)
                    if x[0] == "wait": wait([x[1]])
                    if x[0] == "vm": a(x[2]); out.append(x[1]); left = 0
                    continue
                side.pop(0); a(x); left -= 1
                if "buffer_store" in x: out.append("st")
                while side and isinstance(side[0], str) and ((x.startswith("s_cmp") and "\n" not in x) or side[0].startswith("s_cselect")):
                    x = side.pop(0); a(x)
        if os.environ.get("NOPS"): print("stage", i, "side left", len(side), file=sys.stderr)
    assert not side
    return out

def gran_setup(a, g):
    t = T; vst = g.voff; vcs = g.voff + 2; sTG = g.sRound
    a(f"""s_lshr_b32 s{sTG}, s2, 6
    s_xor_b32 s{sTG}, s{sTG}, s{sQ4}
    s_lshl2_add_u32 s{sTG}, s{g.sRB}, s{sTG}
    s_bfe_u32 s{g.sGP}, s2, 0x10005
    s_lshl1_add_u32 s{g.sGP}, s{sTG}, s{g.sGP}
    s_lshl_b32 s{g.sMsz}, s{g.sGP}, 8
    s_xor_b32 s{g.sStep}, s{g.sMsz}, 256
    s_add_u32 s{g.sMsz}, s{g.sMsz}, {OFF_ST}
    s_add_u32 s{g.sStep}, s{g.sStep}, {OFF_ST}
    s_lshl_b32 s{g.sMend}, s{g.sC}, 3
    s_add_u32 s{g.sMend}, s{g.sMend}, s{sHI}
    s_lshl_b32 s{g.sMend}, s{g.sMend}, 9
    s_add_u32 s{g.sMend}, s{g.sMend}, {OFF_CS}
    s_add_u32 s{g.sWrapW}, s{g.sMend}, {30*4096}
    s_add_u32 s{g.sWrapX}, s{g.sMend}, {60*4096}
    v_and_b32 v{vst}, 15, v{vLANE}
    v_lshrrev_b32 v{vcs}, 4, v{vLANE}
    v_lshlrev_b32 v{vcs}, 6, v{vcs}
    v_add_lshl_u32 v{vcs}, v{vcs}, v{vst}, 4
    v_lshlrev_b32 v{vst}, 3, v{vst}""")
def st_loads(g): return [f"buffer_load_dwordx2 {vr(g.gr+2*q,2)}, v{g.voff}, {WS}, s{g.sStep if q >= 2 else g.sMsz} offen offset:{128*(q&1)} sc1" for q in range(4)], [g.gr + 2 * q + 1 for q in range(4)]
def cs_loads(g, u):
    return ([f"buffer_load_dwordx4 {vr(g.gr+8+4*p,4)}, v{g.voff+2}, {WS}, s{(g.sMend, g.sWrapW, g.sWrapX)[u]} offen offset:{256*p} sc1" for p in range(2)],
            [g.gr + 9 + 2 * k for k in range(4)])
def gate(a, g, name, loads, tags):
    check_ne(a, tags)
    a(f"s_cbranch_vccnz {name}")
    a.label(name + "_done")
    g.spins.append((name, loads, tags))
    for p in range(2): a(f"v_mov_b32 v{g.gr+9+4*p}, v{g.gr+10+4*p}")

def gran_use(a, g):
    t = T; sTG = g.sRound; vso = g.voff + 1
    a(f"s_mov_b32 s{sT}, 0x01000100")
    for q in range(4):
        a(f"""v_and_b32 v{t+q}, 0xffff0000, v{g.gr+2*q}
        v_perm_b32 v{g.gr+2*q}, v{g.gr+2*q}, v{g.gr+2*q}, s{sT}
        v_rcp_f32 v{t+4+q}, v{t+q}
        v_xor_b32 v{g.gr+2*q+1}, 0x80008000, v{g.gr+2*q}
        v_xor_b32 v{g.gr+2*q}, 0x80008000, v{g.gr+2*q}""")
    a(f"""; store offset: piece swap2(g), row t16
    v_bfe_u32 v{vso}, v{vLANE}, 4, 1
    v_lshlrev_b32 v{vso}, 10, v{vso}
    v_lshrrev_b32 v{g.xb}, 5, v{vLANE}
    v_lshl_add_u32 v{vso}, v{g.xb}, 9, v{vso}
    v_lshl_add_u32 v{vSO}, v{g.voff}, 1, v{vso}
    s_lshl_b32 s{sT}, s{g.sC}, 12
    s_lshl_b32 s{sU}, s{sHI}, 11
    s_add_u32 s{sT}, s{sT}, s{sU}
    s_xor_b32 s{sU}, s{g.sGP}, 1
    s_mul_i32 s{g.sOff}, s{g.sGP}, {P_QKV}
    s_mul_i32 s{g.sD1}, s{sU}, {P_QKV}
    s_add_u32 s{g.sOff}, s{g.sOff}, s{sT}
    s_add_u32 s{g.sD1}, s{g.sD1}, s{sT}
    s_mul_i32 s{sHS}, s{g.sGP}, {P_H}
    s_mul_i32 s{g.sXr}, s{sU}, {P_H}
    s_add_u32 s{sU}, s{sT}, {OFF_H}
    s_add_u32 s{sHS}, s{sHS}, s{sU}
    s_add_u32 s{g.sXr}, s{g.sXr}, s{sU}
    s_lshr_b32 s{sT}, s{sT}, 4
    s_lshl_b32 s{sU}, s{sTG}, 2
    s_add_u32 s{g.sM0}, s{sT}, s{sU}
    s_add_u32 s{g.sM0}, s{g.sM0}, {OFF_FQ}
    s_cmp_lt_u32 s{g.sC}, 10
    s_cselect_b32 s{sU}, {f32(QSCALE)}, 1.0""")
def corr(g, u):
    return [f"v_mfma_f32_16x16x16_bf16 {vr(g.acc[u]+8*q+4*p,4)}, {vr(g.gr+8+4*p,2)}, {vr(g.gr+2*q,2)}, {vr(g.acc[u]+8*q+4*p,4)}" for q in range(4) for p in range(2)]
def pack(A):
    return [f"v_cvt_pk_bf16_f32 v{A+r}, v{A+2*r}, v{A+2*r+1}" for r in range(4)]
def swaps(A): return [f"v_permlane16_swap_b32 v{A}, v{A+2}", f"v_permlane16_swap_b32 v{A+1}, v{A+3}"]
def epi_q(g):
    out = []
    for q in range(4):
        A = g.acc[0] + 8 * q; rq = g.xb + (q & 1)
        L = [f"v_mul_f32 v{rq}, s{sU}, v{T+4+q}"] + [f"v_mul_f32 v{A+r}, v{rq}, v{A+r}" for r in range(8)] + pack(A)
        out.append((L, swaps(A), f"buffer_store_dwordx4 {vr(A,4)}, v{vSO}, {WS}, s{g.sD1 if q >= 2 else g.sOff} offen offset:{256*(q&1)} sc1"))
    return out

def gemm1(a, g, w):
    t = T
    out = g1_main(a, g)
    stamp(a)
    X = [g.Xf[0], g.Xf[1], g.Wf[1] + 8, g.X19]; Wa, Wb = g.Wf[0], g.Wf[1]
    wof = lambda i: LW + (i % 5) * 12288
    xof = lambda i: ((i >> 1) % 3) * 32768
    gran_setup(a, g)
    g.spins = []
    loads, tags = [x + y for x, y in zip(st_loads(g), cs_loads(g, 0))]
    for l in loads: a(l)
    def xr(i): return xs_reads(g, X[i - 16], i)
    def wr(i, u, dst): return ws_reads(g, dst, i, u)
    def step(u, W, i, rd, pre=None, extra=None):
        fill = {}
        for k, r in enumerate(rd): fill.setdefault(k if pre is None else min(7, k + 1), []).append(r)
        if pre: fill[0] = [pre]
        for k, x in enumerate(extra or []): fill.setdefault(k * 8 // len(extra), []).append(x)
        weave(a, mm(g, u, W, X[i - 16]), fill)
    a("s_waitcnt lgkmcnt(0)"); step(0, Wa, 16, wr(17, 0, Wb) + xr(17))
    a("s_waitcnt lgkmcnt(0)"); step(0, Wb, 17, wr(18, 0, Wa) + xr(18), pre=f"s_waitcnt vmcnt({len(loads)})\ns_barrier")
    a("s_waitcnt lgkmcnt(0)"); step(0, Wa, 18, wr(19, 0, Wb) + xr(19))
    a("s_waitcnt lgkmcnt(0)"); step(0, Wb, 19, wr(17, 1, Wa))
    a("s_waitcnt vmcnt(0)")
    gate(a, g, "L_sp_st", loads, tags)
    gran_use(a, g)
    for m in corr(g, 0): a(m)
    l1, t1 = cs_loads(g, 1); l2, t2 = cs_loads(g, 2)
    step(1, g.Wf[0] + 8, 16, wr(18, 1, Wb) + l1)
    eq = epi_q(g)
    a("s_waitcnt lgkmcnt(4)"); step(1, Wa, 17, [], extra=eq[0][0] + eq[1][0] + eq[0][1] + [eq[0][2]])
    a("s_waitcnt lgkmcnt(0)"); step(1, Wb, 18, wr(19, 1, Wa), extra=eq[1][1] + [eq[1][2]] + eq[2][0] + eq[3][0][:5])
    a("s_waitcnt lgkmcnt(0)"); step(1, Wa, 19, wr(17, 2, Wb), extra=eq[2][1] + [eq[2][2]] + eq[3][0][5:] + eq[3][1] + [eq[3][2]])
    a("s_waitcnt vmcnt(4)")
    gate(a, g, "L_sp_g", l1, t1)
    weave(a, corr(g, 1), {0: wr(18, 2, Wa), 7: l2})
    stamp(a)
    tmp = g.acc[0]; G = g.acc[1]; U = g.acc[2]; vc1 = g.xb
    a(f"s_mov_b32 s{g.sD0}, {f32(-GC3)}\nv_mov_b32 v{vc1}, {f32(-GC1)}")
    for h in range(2):
        R = range(16 * h, 16 * h + 16)
        for r in R: a(f"v_mul_f32 v{G+r}, v{t+4+r//8}, v{G+r}")
        for r in R: a(f"v_mul_f32 v{tmp+r}, v{G+r}, v{G+r}")
        for r in R: a(f"v_fma_f32 v{tmp+r}, v{tmp+r}, s{g.sD0}, v{vc1}")
        for r in R: a(f"v_mul_f32 v{tmp+r}, v{tmp+r}, v{G+r}")
        for r in R: a(f"v_exp_f32 v{tmp+r}, v{tmp+r}")
        for r in R: a(f"v_fma_f32 v{tmp+r}, v{tmp+r}, v{t+r//8}, v{t+r//8}")
        for r in R: a(f"v_rcp_f32 v{tmp+r}, v{tmp+r}")
        for r in R: a(f"v_mul_f32 v{G+r}, v{G+r}, v{tmp+r}")
        if h == 0:
            a("s_waitcnt vmcnt(0)"); flag(a, g.sM0)
    step(2, g.Wf[0] + 16, 16, [])
    a("s_waitcnt lgkmcnt(0)"); step(2, Wb, 17, [])
    step(2, Wa, 18, wr(19, 2, Wb))
    a("s_waitcnt lgkmcnt(0)"); step(2, Wb, 19, [])
    gate(a, g, "L_sp_u", l2, t2)
    for m in corr(g, 2): a(m)
    attn_open(a, w)
    for r in range(32): a(f"v_mul_f32 v{U+r}, v{U+r}, v{G+r}")
    for q in range(4):
        for x in pack(U + 8 * q): a(x)
    for q in range(4):
        for x in swaps(U + 8 * q): a(x)
    w.hst = [f"buffer_store_dwordx4 {vr(U+8*q,4)}, v{vSO}, {sr(SRD_B,4)}, s{g.sXr if q >= 2 else sHS} offen offset:{256*(q&1)} sc1" for q in range(4)]

def role_r(a, g, w):
    a.label("L_role_r")
    a(g.st_store)
    sg = Regs('s', S0 + 17, 96); t = T
    sKS, sOff, sDst, sM, sN, sK2 = (sg.one() for _ in range(6)); sFl = sg.many(5, 1)
    V = Regs('v', 24 + 48 + 8, 252)
    vo = V.many(5, 1); va = V.many(5, 1); fr = V.many(20, 4)
    a(f"s_lshl_b32 s{sT}, s{sWAVE}, 2")
    for i in range(5):
        a(f"""v_add_u32 v{t}, {64*i}, v{vLANE}
        v_mul_u32_u24 v{t+1}, 820, v{t}
        v_lshrrev_b32 v{t+1}, 16, v{t+1}
        v_mul_u32_u24 v{t+2}, 80, v{t+1}
        v_sub_u32 v{t+2}, v{t}, v{t+2}
        v_add_u32 v{t+3}, s{sT}, v{t+1}
        v_lshrrev_b32 v{t+4}, 1, v{t+3}
        v_and_b32 v{t+4}, 4, v{t+4}
        v_or_b32 v{t+4}, v{t+4}, v{t+1}
        v_lshlrev_b32 v{t+4}, 1, v{t+4}
        v_xor_b32 v{t+2}, v{t+2}, v{t+4}
        v_mul_u32_u24 v{t+3}, 1280, v{t+3}
        v_lshl_add_u32 v{vo+i}, v{t+2}, 4, v{t+3}""")
    a(f"""v_lshrrev_b32 v{t}, 4, v{vLANE}
    v_bfe_u32 v{t+1}, v{vLANE}, 2, 2
    v_lshl_add_u32 v{t+2}, v{t}, 3, v{t+1}
    v_mul_u32_u24 v{t+2}, 1280, v{t+2}
    v_and_b32 v{t+3}, 1, v{vLANE}
    v_lshl_add_u32 v{t+2}, v{t+3}, 3, v{t+2}
    v_and_b32 v{t}, 1, v{t}
    v_lshl_add_u32 v{t}, v{t}, 2, v{t+1}
    v_lshlrev_b32 v{t}, 1, v{t}
    v_bfe_u32 v{t+1}, v{vLANE}, 1, 1
    s_mul_i32 s{sT}, s{sWAVE}, 10
    v_add_u32 v{t+1}, s{sT}, v{t+1}""")
    for ct in range(5):
        a(f"v_add_u32 v{t+3}, {2*ct}, v{t+1}\nv_xor_b32 v{t+3}, v{t+3}, v{t}\nv_lshl_add_u32 v{va+ct}, v{t+3}, 4, v{t+2}")
    a(f"""s_sub_u32 s{sKS}, s{g.sC}, 30
    s_lshl_b32 s{sKS}, s{sKS}, 3
    s_add_u32 s{sKS}, s{sKS}, s{g.sRB}
    s_mul_i32 s{sM}, s{sWAVE}, 5120
    s_waitcnt vmcnt(0)
    s_barrier""")
    def fetch(st):
        if st < 3:
            a(f"s_mov_b32 s{SRD_A}, s{pWD}\ns_mov_b32 s{SRD_A+1}, s{pWD+1}\ns_mov_b32 s{SRD_A+2}, {F*D*2}\ns_add_u32 s{sT}, s{sKS}, {16*st}")
        else:
            a(f"""s_mov_b32 s{sT}, {D*D*2}
            s_add_u32 s{sU}, s{sKS}, {16*st}
            s_cmp_lt_u32 s{sU}, 54
            s_cselect_b32 s{SRD_A}, s{pWD}, s{pWO}
            s_cselect_b32 s{SRD_A+1}, s{pWD+1}, s{pWO+1}
            s_cselect_b32 s{SRD_A+2}, {F*D*2}, s{sT}
            s_cselect_b32 s{sT}, 0, 54
            s_sub_u32 s{sT}, s{sU}, s{sT}""")
        a(f"s_mul_i32 s{sOff}, s{sT}, 40960")
        for i in range(5):
            a(f"s_add_u32 m0, s{sM}, {(st%4)*40960 + 1024*i}\nbuffer_load_dwordx4 v{vo+i}, {sr(SRD_A,4)}, s{sOff} offen lds")
    for st in range(4): fetch(st)
    stamp(a, idx=2); stamp(a, idx=3)
    for st in range(5):
        a(f"""s_add_u32 s{sK2}, s{sKS}, {16*st}
        s_cmp_lt_u32 s{sK2}, 54
        s_cselect_b32 s{sT}, 0, 54
        s_cselect_b32 s{sU}, 27, 10
        s_cselect_b32 s{sN}, 0, 27
        s_sub_u32 s{sK2}, s{sK2}, s{sT}
        s_cmp_ge_u32 s{sK2}, s{sU}
        s_cselect_b32 s{sT}, s{sU}, 0
        s_cselect_b32 s{sU}, 1, 0
        s_sub_u32 s{sK2}, s{sK2}, s{sT}
        s_add_u32 s{sK2}, s{sK2}, s{sN}
        s_lshl_b32 s{sT}, s{sWAVE}, 1
        s_add_u32 s{sU}, s{sU}, s{sT}
        s_mul_i32 s{sT}, s{sU}, 37
        s_add_u32 s{sT}, s{sT}, s{sK2}
        s_mul_i32 s{sDst}, s{sT}, 5120
        s_add_u32 s{sDst}, s{sDst}, {OFF_WP}
        s_lshl_b32 s{sU}, s{sU}, 6
        s_add_u32 s{sK2}, s{sK2}, s{sU}
        s_lshl_b32 s{sK2}, s{sK2}, 2
        s_add_u32 s{sFl+st}, s{sK2}, {OFF_FW}""")
        if st == 4:
            a(f"s_cmp_lt_u32 s{sKS}, 10\ns_cselect_b32 s{sDst}, s{sDst}, 0x7ff00000\ns_cselect_b32 s{sFl+st}, s{sFl+st}, 0x7ff00000")
        a(f"s_waitcnt vmcnt({(15, 20, 20, 20, 20)[st]})\ns_barrier")
        for ct in range(5):
            a(f"ds_read_b64_tr_b16 {vr(fr+4*ct,2)}, v{va+ct}\nds_read_b64_tr_b16 {vr(fr+4*ct+2,2)}, v{va+ct} offset:5120")
        for ct in range(5):
            if st < 4: a(f"v_add_u32 v{va+ct}, {40960 if st < 3 else (-3*40960) & 0xffffffff}, v{va+ct}")
        a("s_waitcnt lgkmcnt(0)")
        if st == 0:
            a("s_barrier"); fetch(4)
        for ct in range(4):
            a(f"buffer_store_dwordx4 {vr(fr+4*ct,4)}, v{vL16}, {WS}, s{sDst} offen offset:{1024*ct} sc1")
        a(f"""s_add_u32 s{sDst}, s{sDst}, 4096
        buffer_store_dwordx4 {vr(fr+16,4)}, v{vL16}, {WS}, s{sDst} offen sc1""")
    stamp(a, idx=4)
    a(f"v_mov_b32 v{vSO}, 0\ns_mov_b32 s{sHS}, 0\ns_waitcnt vmcnt(0)")
    for st in range(5): flag(a, sFl + st)
    stamp(a, idx=5)
    n0 = Stamper.n; Stamper.n = w.open_stamp
    attn_open(a, w, "_b")
    Stamper.n = n0
    a("s_branch L_attn")

class AT: pass
def alloc_at():
    w = AT(); V = Regs('v', WK, 252)
    w.Sb = [V.many(32, 4) for b in range(2)]; w.O = [V.many(16, 4) for q in range(2)]
    w.Qm = [V.many(4, 4) for q in range(2)]; w.Km = V.many(4, 4); w.V0 = V.many(4, 4); w.V1 = V.many(4, 4)
    w.Qr = V.many(2, 2); w.Kr = V.many(2, 2)
    return w

def w3_dma(c, R=SRD_WS):
    return [f"""s_add_u32 m0, s{sM3}, {(c%3)*G3_SLOT + 1024*i}
    s_add_u32 s{sU}, s{sWO}, {c*4*5120 + 1024*i}
    buffer_load_dwordx4 v{vL16}, {sr(R,4)}, s{sU} offen sc1 lds""" for i in range(5)]
def b_load(dst, base, k):
    s = f"s_add_u32 s{base}, s{base}, 4096\n" if k and k % 2 == 0 else ""
    return s + f"buffer_load_dwordx4 {vr(dst,4)}, v{vBO}, {WS}, s{base} offen offset:{(k&1)*2048} sc1"

def kv_dma(c):
    return [f"""s_add_u32 m0, s{sDM+i}, {A_BASE + (c%3)*A_SLOT}
    s_add_u32 s{sDO+i}, s{sDO+i}, {4*P_QKV if c else 0}
    buffer_load_dwordx4 v{vKVO}, {WS}, s{sDO+i} offen sc1 lds""" for i in range(3)]

def attn_open(a, w, sfx=""):
    t = T
    w.open_stamp = Stamper.n
    stamp(a)
    loads = [f"buffer_load_dword v{t}, v{vFQO}, {WS}, s{sT} offen sc1",
             f"buffer_load_dword v{t+1}, v{vFQO}, {WS}, s{sU} offen sc1",
             f"buffer_load_dword v{t+2}, v{vFQO}, {WS}, s{sU} offen offset:2560 sc1"]
    a(f"""s_cmp_lg_u32 s{sWAVE}, 0
    s_cbranch_scc1 L_sp_q_done{sfx}
    s_mov_b32 s{sT}, {OFF_FQ}
    s_mov_b32 s{sU}, {OFF_FQ + 2560}""")
    spin(a, "L_sp_q" + sfx, loads, [t, t + 1, t + 2], "L_sp_q_done" + sfx)
    a.label("L_sp_q_done" + sfx)
    a("s_barrier")
    stamp(a)
    for x in kv_dma(0): a(x)
    a(f"""buffer_load_dwordx4 {vr(w.Qm[0],4)}, v{vL16}, {WS}, s{sQA} offen sc1
    buffer_load_dwordx4 {vr(w.Qm[1],4)}, v{vL16}, {WS}, s{sQB_} offen sc1
    buffer_load_dwordx2 {vr(w.Qr,2)}, v{vQRO}, {WS}, s{sQR} offen sc1""")
    for x in kv_dma(1): a(x)

def attention(a, w, g):
    t = T; Sb, O, Qm, Km, V0, V1, Qr, Kr = w.Sb, w.O, w.Qm, w.Km, w.V0, w.V1, w.Qr, w.Kr
    dma = kv_dma
    a.label("L_attn")
    a(f"""v_and_b32 v{t+4}, 3, v0
    v_cmp_eq_u32 vcc, 0, v{t+4}
    v_mov_b32 v{t+4}, 0x3f80
    v_lshlrev_b32 v{t+5}, 2, v0
    v_cndmask_b32 v{t+4}, 0, v{t+4}, vcc
    v_add_u32 v{t+5}, {A_ONES}, v{t+5}
    ds_write_b32 v{t+5}, v{t+4}
    s_mul_i32 s{sM3}, s{sWAVE}, 5120
    v_min_u32 v{t+6}, 26, v{vLANE}
    v_min_u32 v{t+7}, 36, v{vLANE}
    v_lshlrev_b32 v{t+6}, 2, v{t+6}
    v_lshlrev_b32 v{t+7}, 2, v{t+7}
    s_mov_b32 s{SRD_B}, s{pWS}
    s_mov_b32 s{SRD_B+1}, s{pWS+1}
    s_cmp_lt_u32 s{g.sC}, 27
    s_cselect_b32 s{SRD_B+2}, {WS_USED}, 0""")
    for q in range(2):
        for r in range(16): a(f"v_mov_b32 v{O[q]+r}, 0")
    a(f"""s_or_b32 s{sT}, s2, s{sWAVE}
    s_cmp_lg_u32 s{sT}, 0
    s_cbranch_scc1 L_noep
    s_mov_b32 s{sT}, {OFF_EP}
    s_waitcnt vmcnt(0)""")
    flag(a, sT)
    a.label("L_noep")
    def rdKr(i): return f"ds_read_b64 {vr(Kr,2)}, v{vKRA} offset:{((i>>2)%3)*A_SLOT + (i&3)*512}"
    def rdKm(i): return f"ds_read_b128 {vr(Km,4)}, v{vKMA} offset:{((i>>2)%3)*A_SLOT + (i&3)*512}"
    def rdV(i, s):
        R = V1 if s else V0
        return "\n".join(f"ds_read_b64_tr_b16 {vr(R+2*rd,2)}, v{vVA+(i>>2)%3} offset:{(i&3)*512 + s*256 + rd*64}" for rd in range(2))
    def m2b(i): return f"v_mfma_f32_32x32x4_2b_bf16 {vr(Sb[i&1],32)}, {vr(Kr,2)}, {vr(Qr,2)}, 0"
    def m16(i, q): return f"v_mfma_f32_32x32x16_bf16 {vr(Sb[i&1]+16*q,16)}, {vr(Km,4)}, {vr(Qm[q],4)}, {vr(Sb[i&1]+16*q,16)}"
    def smf(i, q, s): return f"v_smfmac_f32_32x32x32_bf16 {vr(O[q],16)}, {vr(V1 if s else V0,4)}, {vr(Sb[i&1]+16*q+8*s,8)}, v{vIDX}"
    a("s_waitcnt vmcnt(3) lgkmcnt(0)\ns_barrier")
    stamp(a)
    a(rdKr(0)); a(rdKm(0)); a(rdV(0, 0)); a("s_waitcnt lgkmcnt(2)")
    a(m2b(0)); a(rdKr(1)); a(m16(0, 0)); a(m16(0, 1)); a(rdKm(1)); a("s_waitcnt lgkmcnt(0)\ns_nop 8")
    NT = 32
    floads = [f"buffer_load_dword v{t}, v{t+6}, {WS}, s{sFHc} offen sc1", f"buffer_load_dword v{t+1}, v{t+7}, {WS}, s{sFWc} offen sc1"]
    w.floads = floads
    pre = [b_load(HB + 4 * n, sH, n) for n in range(27)]
    wd = w3_dma(0) + w3_dma(1)
    queue = []
    for n in range(27):
        queue.append(pre[n])
        if n % 3 == 1 and wd: queue.append(wd.pop(0))
    queue += wd
    young = 0
    a.auto = False
    for i in range(NT):
        E = lambda lo, hi: "\n".join(f"v_exp_f32 v{Sb[i&1]+k}, v{Sb[i&1]+k}" for k in range(lo, hi))
        last = i == NT - 1
        a(E(0, 2))
        if i: a(smf(i - 1, 1, 1))
        a(rdV(i, 1)); a(E(2, 5))
        if not last: a(m2b(i + 1))
        newc = (i + 2) % 4 == 0 and i + 2 < NT
        dm = []
        if newc:
            c = (i + 2) // 4
            a(f"s_waitcnt vmcnt({0 if c == 3 else young})")
            if c == 3:
                a.auto = True
                check_ne(a, [t, t + 1])
                a("s_cbranch_vccnz L_sp_h")
                a.label("L_sp_h_done")
                a.auto = False
            a("s_barrier")
            if c + 1 < 8: dm = dma(c + 1); young = 0
        elif i < 2: dm = [w.hst[2 * i], "", w.hst[2 * i + 1]]; young += 2
        elif i == 4:
            a("s_waitcnt vmcnt(3)"); flag(a, sFHp); young += 1
        elif i == 9: dm = floads + [""]
        elif i > 10:
            dm = [queue.pop(0) if queue else "" for _ in range(3)]
            young += sum(1 for x in dm if x)
        if i + 2 < NT: a(rdKr(i + 2))
        a(E(5, 9))
        if dm: a(dm[0])
        a(E(9, 13))
        a(f"s_waitcnt lgkmcnt({(4 if i + 2 < NT else 3) if not last else 2})")
        a(smf(i, 0, 0))
        if dm: a(dm[1])
        a(E(13, 18)); a("s_waitcnt lgkmcnt(0)"); a(smf(i, 0, 1))
        if dm: a(dm[2])
        a(E(18, 21))
        if not last: a(m16(i + 1, 0))
        a(E(21, 26)); a(smf(i, 1, 0))
        if not last: a(rdV(i + 1, 0))
        a(E(26, 29))
        if not last: a(m16(i + 1, 1))
        if i + 2 < NT: a(rdKm(i + 2))
        a(E(29, 32))
    assert not queue
    a.auto = True
    a(smf(NT - 1, 1, 1))
    stamp(a)
    a(f"""s_mul_i32 s{sT}, s{sWAVE}, 3200
    s_add_u32 s{sT}, s{sT}, {A_XCH}
    v_add_u32 v{t+1}, s{sT}, v{vL16}
    s_xor_b32 s{sU}, s{sWAVE}, 4
    s_mul_i32 s{sU}, s{sU}, 3200
    s_add_u32 s{sU}, s{sU}, {A_XCH}
    v_add_u32 v{t+2}, s{sU}, v{vL16}""")
    for q in range(3): a(f"ds_write_b128 v{t+1}, {vr(O[1]+4*q,4)} offset:{1024*q}")
    a("s_waitcnt vmcnt(0) lgkmcnt(0)\ns_barrier")
    X = Sb[0]; w.X = X
    for q in range(3): a(f"ds_read_b128 {vr(X+4*q,4)}, v{t+2} offset:{1024*q}")
    for x in w3_dma(2): a(x)
    a("s_waitcnt lgkmcnt(0)")
    for r in range(12): a(f"v_add_f32 v{X+r}, v{X+r}, v{O[0]+r}")
    a(f"""v_mov_b32 v{X+12}, v{X+8}
    v_mov_b32 v{X+13}, v{X+8}
    v_mul_f32 v{X+14}, 0, v{X}""")
    a(f"v_permlane32_swap_b32 v{X+13}, v{X+12}")
    for r in range(1, 12): a(f"v_fmac_f32 v{X+14}, 0, v{X+r}")
    a(f"""v_add_f32 v{X+14}, v{X+14}, v{X+12}
    v_cmp_nle_f32 vcc, {f32(2.0**-64)}, v{X+14}
    s_mov_b64 s[{S0+20}:{S0+21}], vcc
    v_cmp_nge_f32 vcc, {f32(2.0**64)}, v{X+14}
    s_or_b64 vcc, vcc, s[{S0+20}:{S0+21}]
    s_cbranch_scc1 L_slow""" if "force_slow" not in XF else "s_branch L_slow")
    a.label("L_slow_done")
    a(f"v_rcp_f32 v{X+13}, v{X+12}")
    for r in range(12): a(f"v_mul_f32 v{X+r}, v{X+r}, v{X+13}")
    for r in range(6): a(f"v_cvt_pk_bf16_f32 v{X+16+r}, v{X+2*r}, v{X+2*r+1}")
    a(f"""buffer_store_dwordx4 {vr(X+16,4)}, v{vL16}, {WS}, s{sOA} offen sc1
    s_mov_b32 exec_hi, 0
    buffer_store_dwordx2 {vr(X+20,2)}, v{vL16}, {WS}, s{sOR} offen sc1
    s_mov_b64 exec, -1""")
    stamp(a)

def attn_cold(a, w):
    t = T; Sb, O, Qm, Km, V0, V1, Qr, Kr, X = w.Sb, w.O, w.Qm, w.Km, w.V0, w.V1, w.Qr, w.Kr, w.X
    a.label("L_sp_h")
    spin(a, "L_sp_h_loop", w.floads, [t, t + 1], "L_sp_h_done")
    a("s_branch L_sp_h_done")
    a.label("L_slow")
    Sx = Sb[1]; NM = Sb[1] + 16; Oa = O[1]; vb = O[0]; mx = O[0] + 8; vho = O[0] + 9; vwa = O[0] + 10; vws = O[0] + 11; vra = O[0] + 12
    sKA, sKS_, sN, sSC = S0 + 20, S0 + 21, S0 + 22, S0 + 23
    a(f"""s_xor_b32 s{sSC}, s{sWAVE}, 4
    s_mul_i32 s{sSC}, s{sSC}, 3200
    s_add_u32 s{sSC}, s{sSC}, {A_XCH}
    v_cmp_gt_u32 vcc, 32, v{vLANE}
    v_and_b32 v{vho}, 31, v{vLANE}
    v_lshlrev_b32 v{vho}, 4, v{vho}
    v_cndmask_b32 v{Qr}, 0, v{Qr}, vcc
    v_cndmask_b32 v{Qr+1}, 0, v{Qr+1}, vcc
    v_mov_b32 v{mx}, 0xff800000
    v_add_u32 v{vwa}, s{sSC}, v{vL16}
    v_add_u32 v{vws}, s{sSC}, v{vho}
    s_bfe_u32 s{sT}, s2, 0x30003
    s_lshl_b32 s{sT}, s{sT}, 2
    s_add_u32 s{sT}, s{sT}, s{sQ4}
    s_mul_i32 s{sT}, s{sT}, {2*P_QKV}
    s_sub_u32 s{sKS_}, s{sQR}, s{sT}
    s_mul_i32 s{sU}, s{sHI}, {P_QKV}
    s_add_u32 s{sT}, s{sT}, s{sU}
    s_sub_u32 s{sKA}, s{sQA}, s{sT}
    s_add_u32 s{sKA}, s{sKA}, {80*512}
    s_add_u32 s{sKS_}, s{sKS_}, {80*512}
    ; transposed V reads from the private scratch [A 512][B 512][S 512]
    v_bfe_u32 v{t+1}, v{vLANE}, 2, 2
    v_lshrrev_b32 v{t}, 5, v{vLANE}
    v_lshl_add_u32 v{t+1}, v{t}, 3, v{t+1}
    v_lshlrev_b32 v{t+1}, 4, v{t+1}
    v_and_b32 v{t+2}, 1, v{vLANE}
    v_lshlrev_b32 v{t+2}, 9, v{t+2}
    v_bfe_u32 v{t+3}, v{vLANE}, 1, 1
    v_lshl_add_u32 v{t+2}, v{t+3}, 3, v{t+2}
    v_mov_b32 v{t+5}, 1024
    v_and_b32 v{t+4}, 19, v{vLANE}
    v_cmp_eq_u32 vcc, 16, v{t+4}
    v_lshlrev_b32 v{t+3}, 3, v{t+3}
    v_add_u32 v{t+3}, {A_ONES}, v{t+3}
    v_cndmask_b32 v{t+2}, v{t+2}, v{t+5}, vcc
    v_cmp_lt_u32 vcc, 16, v{t+4}
    v_add_u32 v{t+2}, s{sSC}, v{t+2}
    v_cndmask_b32 v{t+2}, v{t+2}, v{t+3}, vcc
    v_add_u32 v{vra}, v{t+2}, v{t+1}
    s_mov_b32 s{sN}, 0""")
    def kload():
        a(f"""s_add_u32 s{sT}, s{sKA}, s{sN}
        s_add_u32 s{sU}, s{sKS_}, s{sN}
        buffer_load_dwordx4 {vr(Km,4)}, v{vL16}, {WS}, s{sT} offen sc1
        buffer_load_dwordx2 {vr(Kr,2)}, v{vho}, {WS}, s{sU} offen sc1""")
    def qk(c):
        a(f"""v_mfma_f32_32x32x16_bf16 {vr(Sx,16)}, {vr(Km,4)}, {vr(Qm[0],4)}, {c}
        v_mfma_f32_32x32x8_bf16 {vr(Sx,16)}, {vr(Kr,2)}, {vr(Qr,2)}, {vr(Sx,16)}""")
    def nxt(l): a(f"s_add_u32 s{sN}, s{sN}, {P_QKV}\ns_cmp_lt_u32 s{sN}, {64*P_QKV}\ns_cbranch_scc1 {l}")
    a.label("L_slow_a")
    kload(); a("s_waitcnt vmcnt(0)"); qk("0")
    for r in range(0, 16, 2): a(f"v_max3_f32 v{mx}, v{Sx+r}, v{Sx+r+1}, v{mx}")
    nxt("L_slow_a")
    a(f"""v_mov_b32 v{t}, v{mx}
    v_permlane32_swap_b32 v{t}, v{mx}
    v_max_f32 v{mx}, v{mx}, v{t}
    s_mov_b32 s{sN}, 0""")
    for r in range(16): a(f"v_sub_f32 v{NM+r}, 0, v{mx}\nv_mov_b32 v{Oa+r}, 0")
    a.label("L_slow_b")
    kload()
    a(f"""s_add_u32 s{sT}, s{sT}, {80*512}
    s_add_u32 s{sU}, s{sU}, {80*512}
    buffer_load_dwordx4 {vr(vb,4)}, v{vL16}, {WS}, s{sT} offen sc1
    buffer_load_dwordx2 {vr(vb+4,2)}, v{vho}, {WS}, s{sU} offen sc1
    s_waitcnt vmcnt(0)
    ds_write_b128 v{vwa}, {vr(vb,4)}
    ds_write_b64 v{vws}, {vr(vb+4,2)} offset:1024""")
    qk(vr(NM, 16))
    a("s_waitcnt lgkmcnt(0)")
    for s in range(2):
        for rd in range(2): a(f"ds_read_b64_tr_b16 {vr((V1 if s else V0)+2*rd,2)}, v{vra} offset:{s*256+rd*64}")
    for r in range(16): a(f"v_exp_f32 v{Sx+r}, v{Sx+r}")
    a("s_waitcnt lgkmcnt(0)")
    for s in range(2): a(f"v_smfmac_f32_32x32x32_bf16 {vr(Oa,16)}, {vr(V1 if s else V0,4)}, {vr(Sx+8*s,8)}, v{vIDX}")
    nxt("L_slow_b")
    for r in range(12): a(f"v_mov_b32 v{X+r}, v{Oa+r}")
    a(f"""v_mov_b32 v{X+12}, v{Oa+8}
    v_mov_b32 v{X+13}, v{Oa+8}
    v_permlane32_swap_b32 v{X+13}, v{X+12}
    s_nop 1
    s_branch L_slow_done""")

def gemm3(a, w):
    t = T; V = Regs('v', WK, 252)
    OB = V.many(40, 4); accd = V.many(20, 4); accs = V.many(20, 4); Wf = [V.many(20, 4) for b in range(2)]
    wa = vKMA
    a(f"s_mul_i32 s{sT}, s{sHI}, {4*5120}")
    for k in range(3): a(f"s_add_u32 s{sU}, s{sT}, {k*G3_SLOT}\nv_add_u32 v{wa+k}, s{sU}, v{vL16}")
    def rd(n): return [f"ds_read_b128 {vr(Wf[n&1]+4*ct,4)}, v{wa+(n>>2)%3} offset:{(n&3)*5120 + ct*1024}" for ct in range(5)]
    for r in rd(0): a(r)
    a(f"""s_mov_b32 s{SRD_A}, s{pWS}
    s_mov_b32 s{SRD_A+1}, s{pWS+1}
    s_cmp_eq_u32 s{sQ4}, 0
    s_cselect_b32 s{SRD_A+2}, {WS_USED}, 0
    v_and_b32 v{t+7}, 15, v{vLANE}
    v_lshlrev_b32 v{t+7}, 2, v{t+7}""")
    srd(a, SRD_B, pX, S * D * 2)
    vo = 8
    for q in range(3):
        a(f"""v_add_u32 v{t+2}, {512*q}, v0
        v_mul_u32_u24 v{t+3}, 3277, v{t+2}
        v_lshrrev_b32 v{t+3}, 16, v{t+3}
        v_bfe_u32 v{t+4}, v{t+3}, 1, 2
        v_xor_b32 v{t+2}, v{t+2}, v{t+4}
        v_mul_u32_u24 v{t+3}, {1280-160}, v{t+3}
        v_lshl_add_u32 v{vo+q}, v{t+2}, 3, v{t+3}""")
    a(f"""v_mov_b32 v{t+2}, 0x7ffffff0
    v_cmp_gt_u32 vcc, 256, v0
    v_lshlrev_b32 v11, 4, v0
    v_add_u32 v11, {G3_RED}, v11
    v_cndmask_b32 v{vo+2}, v{t+2}, v{vo+2}, vcc
    v_and_b32 v12, 255, v0
    v_lshlrev_b32 v12, 4, v12
    v_add_u32 v12, {G3_RED + 16384}, v12
    v_lshrrev_b32 v{t+2}, 4, v{vLANE}
    v_bfe_u32 v{t+3}, v{vLANE}, 1, 2
    v_xor_b32 v{t+2}, v{t+2}, v{t+3}
    v_mul_u32_u24 v14, 80, v{t+7}
    v_lshl_add_u32 v14, v{t+2}, 4, v14
    s_add_u32 s{sT}, s{sM3}, {G3_RED}
    v_add_u32 v14, s{sT}, v14""")
    x2 = HB; red = HB + 8; g_ = HB + 32; xs = HB + 44
    out = ["w2"] * 5 + ["ost"] * 2
    def issue(tag, txt): a(txt); out.append(tag)
    def wait_for(tag):
        idx = max(i for i, x in enumerate(out) if x == tag)
        a(f"s_waitcnt vmcnt({len(out) - 1 - idx})")
        del out[:idx + 1]
    oflag = f"buffer_load_dword v{t}, v{t+7}, {WS}, s{sFOc} offen sc1"
    w.oflag = oflag
    N_FLAG, N_POLL, N_CHK = 3, 15, 19
    for n in range(37):
        A = accd if n < 27 else accs
        Bn = HB + 4 * n if n < 27 else OB + 4 * (n - 27)
        first = n in (0, 27)
        mf = [f"v_mfma_f32_16x16x32_bf16 {vr(A+4*ct,4)}, {vr(Wf[n&1]+4*ct,4)}, {vr(Bn,4)}, {'0' if first else vr(A+4*ct,4)}" for ct in range(5)]
        a("s_waitcnt lgkmcnt(0)")
        if n >= 27 and f"o{n-27}" in out: wait_for(f"o{n-27}")
        a(mf[0])
        extra = []
        if n == N_FLAG:
            wait_for("ost"); flag(a, sFO); out.append("fl")
        if n == N_CHK:
            wait_for("of")
            check_ne(a, [t])
            a("s_cbranch_vccnz L_sp_o")
            a.label("L_sp_o_done")
            stamp(a)
        if n % 4 == 3 and n + 1 < 37:
            c = (n + 1) // 4
            if f"w{c}" in out: wait_for(f"w{c}")
            a("s_barrier")
            if c + 2 < 10: extra += [(f"w{c+2}", x) for x in w3_dma(c + 2, SRD_WS if c + 2 < 9 else SRD_A)]
        if n == N_POLL: extra = [("of", oflag)] + extra
        if N_CHK <= n < N_CHK + 5:
            k = 2 * (n - N_CHK)
            extra = [(f"o{k}", b_load(OB + 4 * k, sO3, k)), (f"o{k+1}", b_load(OB + 4 * k + 4, sO3, k + 1))] + extra
        if n == 8:
            extra += [("x", f"buffer_load_dwordx2 {vr(x2+2*q,2)}, v{vo+q}, {sr(SRD_B,4)}, s{sOUT} offen") for q in range(3)]
        r = rd(n + 1) if n + 1 < 37 else [""] * 5
        a(r[0]); a(r[1]); a(mf[1]); a(r[2]); a(r[3]); a(mf[2]); a(r[4]); a(mf[3])
        for tag, x in extra: issue(tag, x)
        if n == 28:
            for ct in range(5): a(f"ds_write_b128 v14, {vr(accd+4*ct,4)} offset:{64*ct}")
        if n == 32:
            for q in range(3):
                for k in range(2):
                    a(f"ds_read_b128 {vr(red+8*q+4*k,4)}, v{11 if q < 2 else 12} offset:{(8192*q if q < 2 else 0) + 20480*k}")
        if n == 33:
            a(f"s_mov_b32 s{sT}, {f32(-LOG2E)}")
            for q in range(3):
                for e in range(4): a(f"v_add_f32 v{g_+4*q+e}, v{red+8*q+e}, v{red+8*q+4+e}")
            for r_ in range(12): a(f"v_mul_f32 v{red+r_}, s{sT}, v{g_+r_}")
        if n == 34:
            for r_ in range(12): a(f"v_exp_f32 v{red+r_}, v{red+r_}")
            for r_ in range(12): a(f"v_add_f32 v{red+r_}, 1.0, v{red+r_}")
        if n == 35:
            for r_ in range(12): a(f"v_rcp_f32 v{red+r_}, v{red+r_}")
            for r_ in range(12): a(f"v_mul_f32 v{g_+r_}, v{g_+r_}, v{red+r_}")
        a(mf[4])
    stamp(a)
    srd(a, SRD_B, pOUT, S * D * 2)
    for q in range(3):
        for k in range(2):
            a(f"v_lshlrev_b32 v{xs+4*q+2*k}, 16, v{x2+2*q+k}\nv_and_b32 v{xs+4*q+2*k+1}, 0xffff0000, v{x2+2*q+k}")
    for ct in range(5): a(f"ds_write_b128 v14, {vr(accs+4*ct,4)} offset:{64*ct}")
    a("s_waitcnt lgkmcnt(0)\ns_barrier")
    for q in range(3):
        for k in range(2):
            a(f"ds_read_b128 {vr(red+8*q+4*k,4)}, v{11 if q < 2 else 12} offset:{(8192*q if q < 2 else 0) + 20480*k}")
    for q in range(3):
        a(f"s_waitcnt lgkmcnt({4-2*q})")
        for e in range(4):
            a(f"v_add_f32 v{red+8*q+e}, v{red+8*q+e}, v{red+8*q+4+e}\nv_fmac_f32 v{xs+4*q+e}, v{red+8*q+e}, v{g_+4*q+e}")
        for k in range(2): a(f"v_cvt_pk_bf16_f32 v{x2+2*q+k}, v{xs+4*q+2*k}, v{xs+4*q+2*k+1}")
        a(f"buffer_store_dwordx2 {vr(x2+2*q,2)}, v{vo+q}, {sr(SRD_B,4)}, s{sOUT} offen")
    assert "x" not in out

def build():
    hdr = open("cdna_kernels/%s.s.ref" % NAME).read().split("; Override launch")[0]
    a = Asm(); g = alloc_g1(); w = alloc_at()
    prologue(a, g); g1_setup(a, g)
    a(f"s_cmp_ge_u32 s{g.sC}, 30\ns_cbranch_scc1 L_role_r")
    g1_start(a, g)
    gemm1(a, g, w); attention(a, w, g); gemm3(a, w)
    stamp_flush(a)
    a.label("L_end"); a("s_endpgm")
    a.label("L_sp_o")
    spin(a, "L_sp_o_loop", [w.oflag], [T], "L_sp_o_done"); a("s_branch L_sp_o_done")
    for name, loads, tags in g.spins:
        a.label(name)
        spin(a, name + "_loop", loads, tags, name + "_done"); a(f"s_branch {name}_done")
    role_r(a, g, w); attn_cold(a, w)
    out = hdr + "; @launch grid=(256,1,1) block=(512,1,1) lds=163840\n"
    out += '.amdgcn_target "amdgcn-amd-amdhsa--gfx950"\n.text\n' + a.text()
    out += f""".section .rodata,"a"
.p2align 6
.amdhsa_kernel {NAME}_kernel
  .amdhsa_next_free_vgpr 256
  .amdhsa_next_free_sgpr 102
  .amdhsa_accum_offset 256
  .amdhsa_group_segment_fixed_size 0
  .amdhsa_kernarg_size 80
  .amdhsa_user_sgpr_count 2
  .amdhsa_user_sgpr_kernarg_segment_ptr 1
  .amdhsa_system_sgpr_workgroup_id_x 1
.end_amdhsa_kernel
"""
    if os.environ.get("NOPS"): print("auto nops:", *a.nops, sep="\n  ", file=sys.stderr)
    return out

if __name__ == "__main__":
    path = sys.argv[1] if len(sys.argv) > 1 else "cdna_kernels/%s.s" % NAME
    open(path, "w").write(build())
```

```python
import sys, os, math, struct
from asmlib import *

NAME = "recurrent_scan__softmax_full_mha__geglu_ffn__prompt"
S, D, F, NH, DH = 2048, 640, 1728, 32, 20
P_QKV, P_H, P_O = 240 * 512, 216 * 512, 80 * 512
OFF_QKV = 0
OFF_H = OFF_QKV + 64 * P_QKV
OFF_O = OFF_H + 64 * P_H
OFF_WP = OFF_O + 64 * P_O
OFF_ST = OFF_WP + 8 * 74 * 5 * 1024
OFF_CS = OFF_ST + 2048 * 8
OFF_FQ = OFF_CS + 90 * 4096
OFF_FH = OFF_FQ + 8192
OFF_FW = OFF_FH + 8192
OFF_FO = OFF_FW + 4096
OFF_EP = OFF_FO + 8192
WS_USED = OFF_EP + 256
def f32(x): return "0x%08x" % struct.unpack("<I", struct.pack("<f", x))[0]
LOG2E = 1.4426950408889634
QSCALE = DH ** -0.5 * LOG2E
GC1 = 2 * 0.7978845608028654 * LOG2E
GC3 = GC1 * 0.044715
SPIN_MAX = 1 << 16
SLEEP = int(os.environ.get('SLEEP', '8'))
XF = set(os.environ.get("XF", "").split(","))

pX, pWQKV, pWO, pBX, pWG, pWU, pWD, pOUT, pDBG, pWS = 4, 6, 8, 10, 12, 14, 16, 18, 20, 22
sWAVE = 3
SRD_WS, SRD_A, SRD_B = 24, 28, 32
_sp = Regs('s', 36, 64)
sTAG, sT, sU, sQ4, sHI, sSPIN = (_sp.one() for _ in range(6))
sDO, sDM = _sp.many(3, 1), _sp.many(3, 1)
sQA, sQB_, sQR, sOA, sOR, sFO = (_sp.one() for _ in range(6))
sH, sO3, sWO, sOUT, sFHc, sFWc, sFOc, sFHp, sHS, sM3 = (_sp.one() for _ in range(10))
S0 = 64
vLANE, vL16, vTAG, vIDX, vKMA, vKRA, vVA, vKVO, vQRO, vFQO, vBO, vSO = 1, 2, 3, 4, 5, 6, 7, 10, 11, 12, 13, 15
T = 16
HB = 24
WK = 132

STAMP = int(os.environ.get("STAMP", "0"))
REPORT = int(os.environ.get("REPORT", "0")); REPWG = int(os.environ.get("REPWG", "0"))
OFF_STAMP = WS_USED
if STAMP: WS_USED += 2048 * 128
class Stamper: n = 0
NSTAMP = 16
vST = 252
def stamp(a, real=False, idx=None):
    i = Stamper.n if idx is None else idx
    if idx is None: Stamper.n += 1
    if REPORT and i in (0, REPORT):
        au = a.auto; a.auto = True
        k = 96 if i == 0 else 98
        a(f"s_memrealtime s[{k}:{k+1}]\ns_waitcnt lgkmcnt(0)")
        a.auto = au
    if not STAMP: return
    if STAMP == 3:
        if not real: return
        i = 0 if i == 0 else 1
    au = a.auto; a.auto = True
    if STAMP == 2: real = True
    a(f"s_mem{'real' if real else ''}time s[100:101]\ns_waitcnt lgkmcnt(0)\nv_writelane_b32 v{vST}, s100, {i}")
    a.auto = au
def stamp_flush(a):
    if "probe" in XF:
        a(f"""s_waitcnt vmcnt(0) lgkmcnt(0)
        s_or_b32 s{sT}, s2, s{sWAVE}
        s_cmp_lg_u32 s{sT}, 0
        s_cbranch_scc1 L_probe_done""")
        srd(a, SRD_A, pBX, S * D * 2)
        a(f"s_mov_b32 s{sT}, 0")
        a.label("L_probe")
        a(f"""buffer_load_dword v{T}, off, {sr(SRD_A,4)}, s{sT}
        s_add_u32 s{sT}, s{sT}, {16384+128}
        s_waitcnt vmcnt(0)
        s_cmp_lt_u32 s{sT}, {128*(16384+128)}
        s_cbranch_scc1 L_probe""")
        a.label("L_probe_done")
    if REPORT:
        a("s_waitcnt vmcnt(0) lgkmcnt(0)")
        stamp(a)
        a(f"""s_cmp_lg_u32 s2, {REPWG}
        s_cbranch_scc1 L_end
        s_sub_u32 s98, s98, s96
        s_mul_i32 s98, s98, 4
        s_memrealtime s[96:97]
        s_waitcnt lgkmcnt(0)""")
        a.label("L_rep")
        a("""s_memrealtime s[100:101]
        s_waitcnt lgkmcnt(0)
        s_sub_u32 s100, s100, s96
        s_cmp_lt_u32 s100, s98
        s_cbranch_scc1 L_rep""")
        return
    if not STAMP: return
    a("s_waitcnt vmcnt(0) lgkmcnt(0)")
    stamp(a); stamp(a, True)
    print("stamps:", Stamper.n, file=sys.stderr)
    a(f"""s_lshl_b32 s{sT}, s2, 3
    s_add_u32 s{sT}, s{sT}, s{sWAVE}
    s_lshl_b32 s{sT}, s{sT}, 7
    s_add_u32 s{sT}, s{sT}, {OFF_STAMP}
    v_lshlrev_b32 v{T}, 2, v{vLANE}
    s_mov_b32 exec_hi, 0
    buffer_store_dword v{vST}, v{T}, {sr(SRD_WS,4)}, s{sT} offen""")

def srd(a, r, ptr, size):
    a(f"s_mov_b32 s{r}, s{ptr}\ns_mov_b32 s{r+1}, s{ptr+1}\ns_mov_b32 s{r+2}, {size}\ns_mov_b32 s{r+3}, 0x20000")
WS = sr(SRD_WS, 4)

def flag(a, soff, imm=0):
    a(f"s_mov_b64 exec, 1\nbuffer_store_dword v{vTAG}, off, {WS}, s{soff} offset:{imm} sc1\ns_mov_b64 exec, -1")

def check_ne(a, regs):
    a(f"v_xor_b32 v{regs[0]}, s{sTAG}, v{regs[0]}")
    for r in regs[1:]:
        a(f"v_xor_b32 v{r}, s{sTAG}, v{r}\nv_or_b32 v{regs[0]}, v{regs[0]}, v{r}")
    a(f"v_cmp_ne_u32 vcc, 0, v{regs[0]}")

def spin(a, lbl, loads, regs, done, after_wait=None):
    a(f"s_mov_b32 s{sSPIN}, {SPIN_MAX}")
    a.label(lbl)
    for l in loads: a(l)
    a("s_waitcnt vmcnt(0)")
    check_ne(a, regs)
    a(f"""s_cbranch_vccz {done}
    s_sleep {SLEEP}
    s_sub_u32 s{sSPIN}, s{sSPIN}, 1
    s_cmp_lg_u32 s{sSPIN}, 0
    s_cbranch_scc1 {lbl}""")

def wave_sum(a, v):
    for m in ("quad_perm:[1,0,3,2]", "quad_perm:[2,3,0,1]", "row_half_mirror", "row_mirror"):
        a(f"v_add_f32_dpp v{v}, v{v}, v{v} {m} row_mask:0xf bank_mask:0xf")
    a(f"v_add_f32_dpp v{v}, v{v}, v{v} row_bcast:15 row_mask:0xa bank_mask:0xf")
    a(f"v_add_f32_dpp v{v}, v{v}, v{v} row_bcast:31 row_mask:0xc bank_mask:0xf")

LW, LDUMMY, LX = 0, 61440, 65536
G3_SLOT = 40960
A_BASE, A_REG, A_HALF, A_SLOT = 2 * G3_SLOT, 2112, 12800, 25600
A_ONES = A_BASE + 3 * A_SLOT + 128
A_XCH = A_BASE + 2 * A_SLOT
G3_RED = 3 * G3_SLOT

class G1: pass
def alloc_g1():
    g = G1(); V = Regs('v', 24, 252); sg = Regs('s', S0, 96)
    g.acc = [V.many(32, 4) for u in range(3)]
    g.Wf = [V.many(24, 4) for b in range(2)]
    g.Xf = [V.many(16, 4) for b in range(2)]
    g.X19 = V.many(16, 4)
    g.gr = V.many(20, 4)
    g.xb = V.many(2, 1); g.xa = V.many(2, 1); g.wb = V.many(2, 1); g.wa = V.many(2, 1); g.voff = V.many(4, 1); g.vtch = V.one(); g.x2 = g.wa
    g.raw = g.gr; g.e = g.gr + 6; g.ep = g.gr + 5
    for n in "sRB sC sOff sStep sD0 sD1 sM0 sMsz sMend sWrapW sWrapX sSize sRound sWr sXr sRow sGP sG0 sG1 sC0 sC1 sC2 sQ0 sQ1 sFQ sQS".split(): setattr(g, n, sg.one())
    g.V, g.sg = V, sg
    return g

def dma_ops(g, j, rolled=False):
    L = [f"buffer_load_dwordx4 v{g.voff+i}, {sr(SRD_A,4)}, s{g.sOff} offen offset:{1024*i} lds" for i in range(4)]
    L[0] = f"s_mov_b32 m0, s{g.sM0}\ns_add_u32 s{g.sM0}, s{g.sM0}, s{g.sMsz}\n" + L[0]
    e = f"s_add_u32 s{g.sOff}, s{g.sOff}, s{g.sD1 if j & 1 else g.sD0}"
    if rolled:
        e += f"""\ns_cmp_ge_u32 s{g.sM0}, s{g.sMend}
        s_cselect_b32 s{sT}, s{g.sWrapW}, 0
        s_sub_u32 s{g.sM0}, s{g.sM0}, s{sT}"""
    else:
        if j % 5 == 4: e += f"\ns_sub_u32 s{g.sM0}, s{g.sM0}, s{g.sWrapW}"
        if j % 6 == 5: e += f"\ns_sub_u32 s{g.sM0}, s{g.sM0}, s{g.sWrapX}"
    L[3] += "\n" + e
    return L

BURST = [int(x) for x in os.environ.get("BURST", "3,4,3").split(",")]
BSTAGE = [int(x) for x in os.environ.get("BSTAGE", "0,2,6").split(",")]
def cs_load(g, k):
    return f"buffer_load_dwordx4 {vr(g.X19+4*k,4)}, v{g.vtch}, {sr(SRD_A,4)}, s{g.sRow} offen offset:3072\ns_add_u32 s{g.sRow}, s{g.sRow}, s{g.sStep}"
def cs_setup(a, g):
    sel = g.gr + 16; t = T
    a(f"""v_and_b32 v{t}, 1, v{vLANE}
    v_lshlrev_b32 v{t}, 4, v{t}
    v_mov_b32 v{t+1}, 0x3f80
    v_lshlrev_b32 v{t}, v{t}, v{t+1}
    v_bfe_u32 v{t+1}, v{vLANE}, 1, 2""")
    for r in range(4): a(f"v_cmp_eq_u32 vcc, {r}, v{t+1}\nv_cndmask_b32 v{sel+r}, 0, v{t}, vcc")
_csn = [0]
def cs_acc(a, g, n, first):
    ac = g.gr + 8; sel = g.gr + 16
    _csn[0] += 1
    L = [f"s_cmp_ge_u32 s{sWAVE}, 3", f"s_cbranch_scc1 L_cs{_csn[0]}"]
    L += [f"v_mfma_f32_16x16x32_bf16 {vr(ac,4)}, {vr(sel,4)}, {vr(g.X19+4*k,4)}, {'0' if first and k == 0 else vr(ac,4)}" for k in range(n)]
    a.atom("\n".join(L + [f"L_cs{_csn[0]}:"]))
def cs_publish(a, g):
    ac = g.gr + 8; t = T
    a(f"""v_bfe_u32 v{t}, v{vLANE}, 3, 1
    v_cmp_eq_u32 vcc, 1, v{t}
    v_and_b32 v{t+1}, 7, v{vLANE}
    v_lshl_add_u32 v{t+1}, v{t+1}, 3, v{t}
    v_bfe_u32 v{t}, v{vLANE}, 4, 1
    v_lshl_add_u32 v{t+1}, v{t}, 2, v{t+1}
    v_lshrrev_b32 v{t}, 5, v{vLANE}
    v_lshlrev_b32 v{t}, 1, v{t}""")
    for r in range(4): a(f"v_add_f32_dpp v{ac+r}, v{ac+r}, v{ac+r} row_ror:8 row_mask:0xf bank_mask:0xf")
    a(f"""v_cndmask_b32 v{ac}, v{ac}, v{ac+1}, vcc
    v_cndmask_b32 v{ac+2}, v{ac+2}, v{ac+3}, vcc
    v_cmp_lt_u32 vcc, 31, v{vLANE}
    s_nop 0
    v_cndmask_b32 v{ac}, v{ac}, v{ac+2}, vcc
    v_cvt_pk_bf16_f32 v{ac+1}, v{ac}, v{ac}
    v_add_lshl_u32 v{t+1}, v{t+1}, v{t}, 4
    v_and_b32 v{ac+1}, 0xffff0000, v{ac+1}
    v_sub_f32 v{ac}, v{ac}, v{ac+1}
    v_mov_b32 v{ac+3}, v{vTAG}
    v_cvt_pk_bf16_f32 v{ac+2}, v{ac+1}, v{ac}
    s_mul_i32 s{sT}, s{sWAVE}, 30
    s_add_u32 s{sT}, s{sT}, s{g.sC}
    s_lshl_b32 s{sT}, s{sT}, 2
    s_lshr_b32 s{sU}, s{g.sRB}, 1
    s_add_u32 s{sT}, s{sT}, s{sU}
    s_lshl_b32 s{sT}, s{sT}, 7
    s_and_b32 s{sU}, s{g.sRB}, 1
    s_add_u32 s{sT}, s{sT}, s{sU}
    s_lshl_b32 s{sT}, s{sT}, 3
    s_add_u32 s{sT}, s{sT}, {OFF_CS}
    s_cmp_lt_u32 s{sWAVE}, 3
    s_cselect_b32 s{sT}, s{sT}, 0x7ff00000
    buffer_store_dwordx2 {vr(ac+2,2)}, v{t+1}, {WS}, s{sT} offen sc1""")

def prologue(a, g):
    t = T
    name = NAME + "_kernel"
    a.raw(f".globl {name}\n.p2align 8\n.type {name},@function")
    a.label(name)
    a(f"""s_cmp_ge_u32 s2, 256
    s_cbranch_scc1 L_end""")
    stamp(a, True); stamp(a)
    a(f"""s_load_dwordx16 s[4:19], s[0:1], 0
    s_load_dwordx4 s[20:23], s[0:1], 64
    v_lshrrev_b32 v{t}, 6, v0
    v_and_b32 v{vLANE}, 63, v0
    v_readfirstlane_b32 s{sWAVE}, v{t}
    v_lshlrev_b32 v{vL16}, 4, v{vLANE}""")
    if "nocode" not in XF:
        NL = int(os.environ.get("CODEL", "18"))
        a(f"""s_cmp_lg_u32 s{sWAVE}, 3
        s_cbranch_scc1 L_nocode
        s_getpc_b64 s[{S0}:{S0+1}]""")
        a.label("L_pc")
        a(f"""s_bfe_u32 s{sT}, s2, 0x40003
        v_lshl_add_u32 v{t+2}, v{vLANE}, 4, s{sT}
        v_lshlrev_b32 v{t+2}, 7, v{t+2}
        v_min_u32 v{t+2}, L_code_end-L_pc-4, v{t+2}
        v_mov_b32 v{t+3}, s{S0+1}
        v_add_co_u32 v{t+2}, vcc, s{S0}, v{t+2}
        v_addc_co_u32 v{t+3}, vcc, 0, v{t+3}, vcc
        s_mov_b64 exec, {hex((1 << NL) - 1)}
        global_load_dword v{g.gr+5}, v[{t+2}:{t+3}], off
        s_mov_b64 exec, -1""")
        a.label("L_nocode")
    a(f"""
    s_and_b32 s{g.sRB}, s2, 1
    s_lshl_b32 s{g.sRB}, s{g.sRB}, 2
    s_bfe_u32 s{sT}, s2, 0x20003
    s_add_u32 s{g.sRB}, s{g.sRB}, s{sT}
    s_lshr_b32 s{g.sC}, s2, 5
    s_lshl_b32 s{g.sC}, s{g.sC}, 2
    s_bfe_u32 s{sT}, s2, 0x20001
    s_add_u32 s{g.sC}, s{g.sC}, s{sT}
    s_and_b32 s{sQ4}, s{sWAVE}, 3
    s_lshr_b32 s{sHI}, s{sWAVE}, 2
    s_lshl_b32 s{g.sRow}, s2, 3
    s_add_u32 s{g.sRow}, s{g.sRow}, s{sWAVE}
    ; DMA role by wave: 0 wqkv, 1 gate, 2 up, 3 none, 4.. x ; groups 27..29 have no gate/up unit (zeros)
    s_cmp_lt_u32 s{g.sC}, 27
    s_cselect_b32 s{g.sSize}, {D*F*2+3072}, 0
    s_movk_i32 s{sU}, {F*2}
    s_cmp_eq_u32 s{sWAVE}, 0
    s_cselect_b32 s{g.sSize}, {D*3*D*2+3072}, s{g.sSize}
    s_cselect_b32 s{sU}, {3*D*2}, s{sU}
    s_lshl_b32 s{g.sOff}, s{g.sC}, 7
    s_lshl_b32 s{g.sM0}, s{sQ4}, 12
    s_add_u32 s{g.sWr}, s{g.sM0}, {LX}
    s_movk_i32 s{g.sMsz}, 12288
    s_mov_b32 s{g.sWrapW}, {5*12288}
    s_cmp_eq_u32 s{sWAVE}, 3
    s_cselect_b32 s{g.sSize}, 0, s{g.sSize}
    s_cselect_b32 s{g.sM0}, {LDUMMY}, s{g.sM0}
    s_cselect_b32 s{g.sMsz}, 0, s{g.sMsz}
    s_cselect_b32 s{g.sWrapW}, 0, s{g.sWrapW}
    s_lshl_b32 s{sT}, s{g.sRB}, 1
    s_lshr_b32 s{g.sGP}, s2, 7
    s_add_u32 s{sT}, s{sT}, s{g.sGP}
    s_lshl_b32 s{sT}, s{sT}, 4
    s_add_u32 s{sT}, s{sT}, s{sQ4}
    s_mul_i32 s{sT}, s{sT}, {8*1280}
    s_mul_i32 s{g.sD1}, s{g.sGP}, {2*128*1280}
    s_sub_u32 s{g.sD0}, {128*1280}, s{g.sD1}
    s_sub_u32 s{g.sD1}, 128, s{g.sD0}
    s_lshl_b32 s{g.sStep}, s{sU}, 3
    s_lshl_b32 s{g.sMend}, s{sU}, 5
    s_bfe_u32 s{g.sGP}, s2, 0x20005
    s_and_b32 s{g.sXr}, s{g.sRB}, 3
    s_cmp_ge_u32 s{sWAVE}, 4
    s_cselect_b32 s{g.sSize}, {S*D*2+3072}, s{g.sSize}
    s_cselect_b32 s{sU}, 1280, s{sU}
    s_cselect_b32 s{g.sOff}, s{sT}, s{g.sOff}
    s_cselect_b32 s{g.sD0}, s{g.sD0}, s{g.sMend}
    s_cselect_b32 s{g.sD1}, s{g.sD1}, s{g.sMend}
    s_cselect_b32 s{g.sM0}, s{g.sWr}, s{g.sM0}
    s_cselect_b32 s{g.sMsz}, 16384, s{g.sMsz}
    s_cselect_b32 s{g.sWrapW}, 0, s{g.sWrapW}
    s_cselect_b32 s{g.sWrapX}, {6*16384}, 0
    s_cselect_b32 s{g.sGP}, s{g.sGP}, s{g.sXr}
    s_cselect_b32 s{g.sMend}, {32*1280}, s{g.sStep}
    s_cselect_b64 vcc, -1, 0
    s_cmp_ge_u32 s{g.sC}, 30
    s_cselect_b32 s{g.sSize}, 0, s{g.sSize}
    ; lane part: row l/8, pos = l%8 ; W: chunk = pos ^ (((row>>1)&1)<<2 | (i&1)<<1) ; x: chunk = pos ^ ((row>>1) + 4*(wave&1))
    v_lshrrev_b32 v{t}, 3, v{vLANE}
    v_mul_lo_u32 v{t}, v{t}, s{sU}
    v_and_b32 v{t+1}, 7, v{vLANE}
    v_lshrrev_b32 v{t+2}, 4, v{vLANE}
    v_and_b32 v{t+3}, 1, v{t+2}
    v_lshlrev_b32 v{t+3}, 2, v{t+3}
    s_and_b32 s{sT}, s{sWAVE}, 1
    v_lshl_or_b32 v{t+2}, s{sT}, 2, v{t+2}
    v_or_b32 v{t+5}, 2, v{t+3}
    v_cndmask_b32 v{t+4}, v{t+5}, v{t+2}, vcc
    v_cndmask_b32 v{t+2}, v{t+3}, v{t+2}, vcc
    v_xor_b32 v{t+2}, v{t+2}, v{t+1}
    v_xor_b32 v{t+4}, v{t+4}, v{t+1}
    v_lshl_add_u32 v{t+2}, v{t+2}, 4, v{t}
    v_lshl_add_u32 v{t+4}, v{t+4}, 4, v{t}""")
    for i in range(4):
        a(f"""s_xor_b32 s{sT}, s{g.sGP}, {i}
        s_mul_i32 s{sT}, s{sT}, s{g.sMend}
        s_add_u32 s{sT}, s{sT}, {3072 - 1024*i}
        v_add_u32 v{g.voff+i}, s{sT}, v{t+2+2*(i&1)}""")
    a(f"""
    v_lshl_add_u32 v{g.vtch}, v{t+1}, 4, v{t}
    v_mov_b32 v{t+1}, 0x7ffffff0
    v_cndmask_b32 v{g.vtch}, v{g.vtch}, v{t+1}, vcc
    v_lshlrev_b32 v{t}, 2, v{vLANE}
    s_mul_i32 s{g.sRound}, s{g.sRow}, 1280
    s_mul_i32 s{g.sRow}, s{g.sRB}, s{g.sStep}
    s_lshl_b32 s{g.sStep}, s{g.sStep}, 3
    s_add_u32 s{g.sRow}, s{g.sRow}, s{g.sOff}
    s_mov_b32 s{sU}, {OFF_EP}
    s_mov_b32 s{SRD_WS+2}, {WS_USED}
    s_mov_b32 s{SRD_WS+3}, 0x20000
    s_mov_b32 s{SRD_B+2}, {S*D*2}
    s_mov_b32 s{SRD_B+3}, 0x20000
    s_mov_b32 s{SRD_A+2}, s{g.sSize}
    s_mov_b32 s{SRD_A+3}, 0x20000
    s_waitcnt lgkmcnt(0)
    s_mov_b32 s{SRD_WS}, s{pWS}
    s_mov_b32 s{SRD_WS+1}, s{pWS+1}
    s_mov_b32 s{SRD_B}, s{pX}
    s_mov_b32 s{SRD_B+1}, s{pX+1}
    buffer_load_dwordx4 {vr(g.raw,4)}, v{vL16}, {sr(SRD_B,4)}, s{g.sRound} offen
    buffer_load_dword v{g.raw+4}, v{t}, {sr(SRD_B,4)}, s{g.sRound} offen offset:1024
    s_load_dword s{sTAG}, s[{pWS}:{pWS+1}], s{sU}
    s_cmp_eq_u32 s{sWAVE}, 1
    s_cselect_b32 s{SRD_A}, s{pWG}, s{pWU}
    s_cselect_b32 s{SRD_A+1}, s{pWG+1}, s{pWU+1}
    s_cmp_eq_u32 s{sWAVE}, 0
    s_cselect_b32 s{SRD_A}, s{pWQKV}, s{SRD_A}
    s_cselect_b32 s{SRD_A+1}, s{pWQKV+1}, s{SRD_A+1}
    s_cmp_ge_u32 s{sWAVE}, 4
    s_cselect_b32 s{SRD_A}, s{pX}, s{SRD_A}
    s_cselect_b32 s{SRD_A+1}, s{pX+1}, s{SRD_A+1}
    s_sub_u32 s{SRD_A}, s{SRD_A}, 3072
    s_subb_u32 s{SRD_A+1}, s{SRD_A+1}, 0""")
    a(f"s_cmp_ge_u32 s{sWAVE}, 3\ns_cbranch_scc1 L_nocs")
    for n in range(BURST[0]): a(cs_load(g, n))
    a.label("L_nocs")
    a("s_barrier")
    for x in dma_ops(g, 0): a(x)

def g1_addr(a, g):
    t = T
    a(f"""; x fragments: (t16>>3)*4096 + (t16&7)*128 + (((g ^ r) ^ (t16>>1))*16) + (tq>>1)*16384 + (tq&1)*2048
    v_and_b32 v{t}, 7, v{vLANE}
    v_lshrrev_b32 v{t+1}, 4, v{vLANE}
    v_bfe_u32 v{t+2}, v{vLANE}, 1, 3
    v_xor_b32 v{t+2}, v{t+2}, v{t+1}
    v_xor_b32 v{t+2}, s{g.sXr}, v{t+2}
    v_lshlrev_b32 v{t+2}, 4, v{t+2}
    v_lshl_add_u32 v{t+2}, v{t}, 7, v{t+2}
    v_bfe_u32 v{t}, v{vLANE}, 3, 1
    v_lshl_add_u32 v{t+2}, v{t}, 12, v{t+2}
    s_lshr_b32 s{sT}, s{sQ4}, 1
    s_mul_i32 s{sT}, s{sT}, 6
    s_add_u32 s{sT}, s{sT}, s{sQ4}
    s_lshl_b32 s{sT}, s{sT}, 11
    s_add_u32 s{sT}, s{sT}, {LX}
    v_add_u32 v{g.xb}, s{sT}, v{t+2}
    v_xor_b32 v{g.xb+1}, 64, v{g.xb}
    v_add_u32 v{g.x2}, 0x10000, v{g.xb}
    v_add_u32 v{g.x2+1}, 0x10000, v{g.xb+1}
    v_bfe_u32 v{t}, v{vLANE}, 2, 2
    v_lshl_add_u32 v{t+2}, v{t+1}, 3, v{t}
    v_lshlrev_b32 v{t+2}, 7, v{t+2}
    v_lshrrev_b32 v{t}, 1, v{t}
    v_xor_b32 v{t}, s{sHI}, v{t}
    v_lshl_add_u32 v{t+2}, v{t}, 6, v{t+2}
    v_and_b32 v{t}, 1, v{t+1}
    v_lshl_add_u32 v{t+2}, v{t}, 5, v{t+2}
    v_and_b32 v{t}, 3, v{vLANE}
    v_lshl_add_u32 v{g.wb}, v{t}, 3, v{t+2}
    v_xor_b32 v{g.wb+1}, 32, v{g.wb}""")

def g1_setup(a, g):
    g1_addr(a, g); cs_setup(a, g); params(a, g); gran_setup(a, g)
    if "pst" in XF: stamp(a)

def params(a, g):
    t = T
    sHD, sPA, sPS, sPAR, sTG, sX = g.sRound, g.sXr, sOA, sOR, sFO, sSPIN
    a(f"""; attention: hd = xcd*4 + (j>>3) ; qb = j&7
    s_and_b32 s{sHD}, s2, 7
    s_lshl_b32 s{sHD}, s{sHD}, 2
    s_lshr_b32 s{sT}, s2, 6
    s_add_u32 s{sHD}, s{sHD}, s{sT}
    s_and_b32 s{sPAR}, s{sHD}, 1
    s_mul_i32 s{sT}, s{sHD}, 5
    s_lshr_b32 s{sT}, s{sT}, 1
    s_add_u32 s{sPA}, s{sT}, s{sPAR}
    s_add_u32 s{sU}, s{sT}, 2
    s_cmp_eq_u32 s{sPAR}, 1
    s_cselect_b32 s{sPS}, s{sT}, s{sU}
    s_lshl_b32 s{sPA}, s{sPA}, 9
    s_lshl_b32 s{sPS}, s{sPS}, 9
    s_lshl_b32 s{sPAR}, s{sPAR}, 3
    s_lshr_b32 s{sT}, s{sT}, 2
    s_lshr_b32 s{sU}, s{sU}, 2
    s_sub_u32 s{sU}, s{sU}, s{sT}
    v_lshrrev_b32 v{t}, 5, v{vLANE}
    v_and_b32 v{t+1}, 31, v{vLANE}
    v_and_b32 v{t+2}, s{sU}, v{t}
    v_add_u32 v{t+2}, s{sT}, v{t+2}
    v_lshlrev_b32 v{t+2}, 7, v{t+2}
    v_lshl_add_u32 v{vFQO}, v{t+1}, 2, v{t+2}
    v_lshlrev_b32 v{t+1}, 4, v{t+1}
    v_mul_u32_u24 v{vKVO}, {P_QKV}, v{t}
    v_add_u32 v{vKVO}, v{vKVO}, v{t+1}
    v_xor_b32 v{vQRO}, s{sHI}, v{t}
    v_xor_b32 v{vQRO}, 1, v{vQRO}
    v_mul_u32_u24 v{vQRO}, {P_QKV}, v{vQRO}
    v_add_u32 v{vQRO}, v{vQRO}, v{t+1}""")
    for i in range(3):
        a(f"""s_mul_i32 s{sT}, s{sQ4}, 3
        s_add_u32 s{sT}, s{sT}, {i}
        s_lshr_b32 s{sU}, s{sT}, 1
        s_and_b32 s{sT}, s{sT}, 1
        s_mul_i32 s{sDM+i}, s{sU}, {A_REG}
        s_lshl_b32 s{sX}, s{sT}, 10
        s_add_u32 s{sDM+i}, s{sDM+i}, s{sX}
        s_mul_i32 s{sX}, s{sHI}, {A_HALF}
        s_add_u32 s{sDM+i}, s{sDM+i}, s{sX}
        s_lshl_b32 s{sX}, s{sHI}, 4
        s_add_u32 s{sX}, s{sX}, s{sT}
        s_mul_i32 s{sDO+i}, s{sX}, {2*P_QKV}
        s_cmp_ge_u32 s{sU}, 3
        s_cselect_b32 s{sT}, 3, 0
        s_cselect_b32 s{sX}, {80*512}, 0
        s_add_u32 s{sDO+i}, s{sDO+i}, s{sX}
        s_add_u32 s{sDO+i}, s{sDO+i}, {OFF_QKV + 80*512}
        s_sub_u32 s{sU}, s{sU}, s{sT}
        s_lshl_b32 s{sT}, s{sU}, 9
        s_add_u32 s{sT}, s{sT}, s{sPA}
        s_cmp_eq_u32 s{sU}, 2
        s_cselect_b32 s{sT}, s{sPS}, s{sT}
        s_add_u32 s{sDO+i}, s{sDO+i}, s{sT}""")
    a(f"""; LDS read addresses of attention
    s_mul_i32 s{sT}, s{sHI}, {A_HALF}
    s_add_u32 s{sT}, s{sT}, {A_BASE}
    v_mul_u32_u24 v{vKMA}, {A_REG}, v{t}
    v_add3_u32 v{vKMA}, v{vKMA}, v{t+1}, s{sT}
    s_add_u32 s{sU}, s{sPAR}, s{sT}
    s_add_u32 s{sU}, s{sU}, {2*A_REG}
    v_add_u32 v{vKRA}, s{sU}, v{t+1}
    v_bfe_u32 v{t+1}, v{vLANE}, 2, 2
    v_lshl_add_u32 v{t+1}, v{t}, 3, v{t+1}
    v_lshlrev_b32 v{t+1}, 4, v{t+1}
    v_and_b32 v{t+2}, 1, v{vLANE}
    v_mul_u32_u24 v{t+2}, {A_REG}, v{t+2}
    v_bfe_u32 v{t+3}, v{vLANE}, 1, 1
    v_lshl_add_u32 v{t+2}, v{t+3}, 3, v{t+2}
    s_add_u32 s{sT}, s{sT}, {3*A_REG}
    v_add_u32 v{t+2}, s{sT}, v{t+2}
    s_add_u32 s{sU}, s{sU}, {3*A_REG}
    v_mov_b32 v{t+5}, s{sU}
    v_and_b32 v{t+4}, 19, v{vLANE}
    v_cmp_eq_u32 vcc, 16, v{t+4}
    v_lshlrev_b32 v{t+3}, 3, v{t+3}
    v_add_u32 v{t+3}, {A_ONES}, v{t+3}
    v_cndmask_b32 v{t+2}, v{t+2}, v{t+5}, vcc
    v_cmp_lt_u32 vcc, 16, v{t+4}
    v_mov_b32 v{vIDX}, 0xdddddddd""")
    for k in range(3):
        a(f"""v_add_u32 v{t+4}, {k*A_SLOT}, v{t+2}
        v_cndmask_b32 v{t+4}, v{t+4}, v{t+3}, vcc
        v_add_u32 v{vVA+k}, v{t+4}, v{t+1}""")
    a(f"""; Q / O offsets: token groups qb*8 + qp*2 + (kh: own, kh^1: other)
    s_bfe_u32 s{sTG}, s2, 0x30003
    s_lshl_b32 s{sTG}, s{sTG}, 2
    s_add_u32 s{sTG}, s{sTG}, s{sQ4}
    s_lshl_b32 s{sTG}, s{sTG}, 1
    s_add_u32 s{sPS}, s{sPS}, s{sPAR}
    s_mul_i32 s{sQR}, s{sTG}, {P_QKV}
    s_add_u32 s{sQR}, s{sQR}, s{sPS}
    s_add_u32 s{sTG}, s{sTG}, s{sHI}
    s_xor_b32 s{sU}, s{sTG}, 1
    s_mul_i32 s{sQA}, s{sTG}, {P_QKV}
    s_mul_i32 s{sQB_}, s{sU}, {P_QKV}
    s_add_u32 s{sQA}, s{sQA}, s{sPA}
    s_add_u32 s{sQB_}, s{sQB_}, s{sPA}
    s_mul_i32 s{sT}, s{sTG}, {P_O}
    s_add_u32 s{sT}, s{sT}, {OFF_O}
    s_add_u32 s{sOR}, s{sT}, s{sPS}
    s_add_u32 s{sOA}, s{sT}, s{sPA}
    s_lshl_b32 s{sFO}, s{sTG}, 5
    s_add_u32 s{sFO}, s{sFO}, s{sHD}
    s_lshl_b32 s{sFO}, s{sFO}, 2
    s_add_u32 s{sFO}, s{sFO}, {OFF_FO}""")
    sTB, sCB = g.sRound, g.sXr
    a(f"""; phase 3: tb = (xcd>>1)*8 + (j&7) ; cb = (xcd&1)*4 + (j>>3)
    s_bfe_u32 s{sTB}, s2, 0x20001
    s_lshl_b32 s{sTB}, s{sTB}, 3
    s_bfe_u32 s{sT}, s2, 0x30003
    s_add_u32 s{sTB}, s{sTB}, s{sT}
    s_and_b32 s{sCB}, s2, 1
    s_lshl_b32 s{sCB}, s{sCB}, 2
    s_lshr_b32 s{sT}, s2, 6
    s_add_u32 s{sCB}, s{sCB}, s{sT}
    s_lshl_b32 s{sT}, s{sCB}, 1
    s_add_u32 s{sT}, s{sT}, s{sHI}
    s_lshl_b32 s{sFWc}, s{sT}, 8
    s_add_u32 s{sFWc}, s{sFWc}, {OFF_FW}
    s_mul_i32 s{sT}, s{sT}, 37
    s_add_u32 s{sT}, s{sT}, s{sQ4}
    s_mul_i32 s{sWO}, s{sT}, 5120
    s_add_u32 s{sWO}, s{sWO}, {OFF_WP}
    s_lshl_b32 s{sFHc}, s{sTB}, 8
    s_mul_i32 s{sT}, s{sHI}, {27*4}
    s_add_u32 s{sFHc}, s{sFHc}, s{sT}
    s_add_u32 s{sFHc}, s{sFHc}, {OFF_FH}
    s_mul_i32 s{sOUT}, s{sTB}, {64*1280}
    s_mul_i32 s{sT}, s{sCB}, 160
    s_add_u32 s{sOUT}, s{sOUT}, s{sT}
    s_lshl_b32 s{sTB}, s{sTB}, 1
    s_lshr_b32 s{sT}, s{sQ4}, 1
    s_add_u32 s{sTB}, s{sTB}, s{sT}
    s_mul_i32 s{sH}, s{sTB}, {P_H}
    s_mul_i32 s{sT}, s{sHI}, {27*2048}
    s_add_u32 s{sH}, s{sH}, s{sT}
    s_add_u32 s{sH}, s{sH}, {OFF_H}
    s_mul_i32 s{sO3}, s{sTB}, {P_O}
    s_mul_i32 s{sT}, s{sHI}, {10*2048}
    s_add_u32 s{sO3}, s{sO3}, s{sT}
    s_add_u32 s{sO3}, s{sO3}, {OFF_O}
    s_lshl_b32 s{sFOc}, s{sTB}, 7
    s_lshl_b32 s{sT}, s{sHI}, 6
    s_add_u32 s{sFOc}, s{sFOc}, s{sT}
    s_add_u32 s{sFOc}, s{sFOc}, {OFF_FO}
    v_lshrrev_b32 v{t}, 4, v{vLANE}
    v_and_b32 v{t+1}, 15, v{vLANE}
    v_lshlrev_b32 v{t+1}, 4, v{t+1}
    v_lshl_add_u32 v{vBO}, v{t}, 9, v{t+1}
    s_and_b32 s{sT}, s{sQ4}, 1
    s_lshl_b32 s{sT}, s{sT}, 8
    v_add_u32 v{vBO}, s{sT}, v{vBO}
    s_lshl_b32 s{sT}, s{g.sC}, 1
    s_add_u32 s{sT}, s{sT}, s{sHI}
    s_cmp_lt_u32 s{g.sC}, 27
    s_cselect_b32 s{sT}, s{sT}, 63
    s_lshr_b32 s{sU}, s2, 6
    s_xor_b32 s{sU}, s{sU}, s{sQ4}
    s_lshl2_add_u32 s{sU}, s{g.sRB}, s{sU}
    s_lshl_b32 s{sU}, s{sU}, 6
    s_add_u32 s{sT}, s{sT}, s{sU}
    s_lshl_b32 s{sT}, s{sT}, 2
    s_add_u32 s{sFHp}, s{sT}, {OFF_FH}""")

def stats(a, g):
    raw, e, t = g.raw, g.e, T
    for i in range(5):
        a(f"v_lshlrev_b32 v{e+2*i}, 16, v{raw+i}\nv_and_b32 v{e+2*i+1}, 0xffff0000, v{raw+i}")
    a(f"v_add_f32 v{t}, v{e}, v{e+1}")
    for i in range(2, 10): a(f"v_add_f32 v{t}, v{t}, v{e+i}")
    wave_sum(a, t)
    a(f"v_mul_f32 v{t}, {f32(1.0/D)}, v{t}\nv_readlane_b32 s{sT}, v{t}, 63")
    for i in range(10): a(f"v_subrev_f32 v{e+i}, s{sT}, v{e+i}")
    a(f"v_mul_f32 v{t+1}, v{e}, v{e}")
    for i in range(1, 10): a(f"v_fmac_f32 v{t+1}, v{e+i}, v{e+i}")
    a(f"""s_waitcnt lgkmcnt(0)
    s_mul_i32 s{sTAG}, s{sTAG}, 0x9e3779b1
    s_add_u32 s{sTAG}, s{sTAG}, 0x7f4a7c15
    v_mov_b32 v{vTAG}, s{sTAG}""")
    wave_sum(a, t + 1)
    a(f"""v_mul_f32 v{t+1}, {f32(1.0/D)}, v{t+1}
    v_cvt_pk_bf16_f32 v{t+1}, v{t+1}, v{t+1}
    v_and_b32 v{t+1}, 0xffff0000, v{t+1}
    v_add_f32 v{t+1}, {f32(1e-5)}, v{t+1}
    v_cvt_pk_bf16_f32 v{t+1}, v{t+1}, v{t+1}
    v_and_b32 v{t+1}, 0xffff0000, v{t+1}
    v_sqrt_f32 v{t+1}, v{t+1}
    v_mov_b32 v{t+3}, v{vTAG}
    v_cvt_pk_bf16_f32 v{t+2}, v{t}, v{t+1}
    s_lshl_b32 s{sT}, s2, 3
    s_add_u32 s{sT}, s{sT}, s{sWAVE}
    s_lshl_b32 s{sT}, s{sT}, 3
    s_add_u32 s{sT}, s{sT}, {OFF_ST}""")
    g.st_store = f"""s_mov_b32 exec_lo, 0
    s_brev_b32 exec_hi, 1
    buffer_store_dwordx2 {vr(t+2,2)}, off, {WS}, s{sT} sc1
    s_mov_b64 exec, -1"""

def x_reads(g, dst, ks): return [f"ds_read_b128 {vr(dst+4*q,4)}, v{g.xa+ks} offset:{q*2048}" for q in range(4)]
def w_reads(g, dst, u, base=None, off=0):
    A = g.wa if base is None else base
    return [f"ds_read_b64_tr_b16 {vr(dst+4*p+2*rd,2)}, v{A+p} offset:{off + u*4096 + rd*512}" for p in range(2) for rd in range(2)]
def mm(g, u, W, X, qs=range(4)):
    return [f"v_mfma_f32_16x16x32_bf16 {vr(g.acc[u]+8*q+4*p,4)}, {vr(W+4*p,4)}, {vr(X+4*q,4)}, {vr(g.acc[u]+8*q+4*p,4)}" for p in range(2) for q in qs]
def weave(a, mf, fill):
    for k, m in enumerate(mf):
        a(m)
        for x in fill.get(k, []): a(x)

class Rec:
    def __init__(self): self.L = []
    def __call__(self, text):
        self.L += [l.strip() for l in text.strip().split("\n") if l.strip() and not l.strip().startswith(";")]
    def atom(self, text): self.L.append(text)
Asm.atom = lambda self, text: self(text)

def xs_reads(g, dst, i):
    sl = (i >> 1) % 3
    return [f"ds_read_b128 {vr(dst+4*q,4)}, v{(g.x2 if sl == 2 else g.xb)+(i&1)} offset:{(sl&1)*32768*(sl < 2) + (q&1)*8192 + (q>>1)*1024}" for q in range(4)]
def ws_reads(g, dst, i, u): return w_reads(g, dst, u, g.wb, LW + (i % 5) * 12288)

def g1_start(a, g):
    for x in dma_ops(g, 1): a(x)
    a("s_barrier")
    for x in dma_ops(g, 2): a(x)
    if "pst" in XF: stamp(a)
    a("s_waitcnt vmcnt(12)")
    stats(a, g)
    for x in dma_ops(g, 3): a(x)
    a(g.st_store)
    stamp(a)
    a("s_waitcnt vmcnt(9)\ns_barrier")
    stamp(a)
    for r in xs_reads(g, g.Xf[0], 0): a(r)
    for u in range(3):
        for r in ws_reads(g, g.Wf[0] + 8 * u, 0, u): a(r)

def g1_main(a, g):
    def rec(f, *args):
        r = Rec(); f(r, *args); return r.L
    def burst(n, name):
        return ("cs", name, n, "\n".join([f"s_cmp_ge_u32 s{sWAVE}, 3", f"s_cbranch_scc1 L_{name}"] + [cs_load(g, k) for k in range(n)] + [f"L_{name}:"]))
    side = rec(cs_acc, g, BURST[0], True)
    side += [("at", BSTAGE[1]), ("k", 7), burst(BURST[1], "c1")]
    side += [("at", BSTAGE[2]), ("wait", "c1")] + rec(cs_acc, g, BURST[1], False) + [("k", 7), burst(BURST[2], "c2")]
    side += [("at", BSTAGE[2] + 3), ("wait", "c2")] + rec(cs_acc, g, BURST[2], False) + rec(cs_publish, g)
    g.spins = []
    g.l0 = [x + y for x, y in zip(st_loads(g), cs_loads(g, 0))]
    side += [("at", 15)] + sum(([("k", 3 + 6 * j), ("vm", "gr", l)] for j, l in enumerate(g.l0[0])), [])
    if "noside" in XF:
        for x in side:
            if isinstance(x, tuple):
                if x[0] == "wait": a("s_waitcnt vmcnt(0)")
                if x[0] == "vm": a(x[2])
            else: a(x)
        side = []
    out = ["r2"] * 4 + ["r3"] * 4 + ["st"]
    def wait(need):
        idx = max([j for j, x in enumerate(out) if x in need], default=-1)
        if idx >= 0:
            a(f"s_waitcnt vmcnt({sum(1 for x in out[idx+1:] if x[0] != 'c')})"); del out[:idx + 1]
    PER = int(os.environ.get("SIDE", "1"))
    for i in range(16):
        b = i & 1; n = b ^ 1
        mf = sum((mm(g, u, g.Wf[b] + 8 * u, g.Xf[b]) for u in range(3)), [])
        if i == 0: mf = [m[:m.rindex(",")] + ", 0" for m in mf]
        xr = xs_reads(g, g.Xf[n], i + 1); wr = [ws_reads(g, g.Wf[n] + 8 * u, i + 1, u) for u in range(3)]
        rd = [xr[0]] + wr[0][:2] + xr[1:] + wr[0][2:] + wr[1] + wr[2]
        vm = {}
        if i == 0:
            for k, x in enumerate(dma_ops(g, 4) + dma_ops(g, 5)): vm[2 + 3 * k] = (f"r{4 + k // 4}", x)
        elif i + 5 < 20:
            for pos, x in zip((4, 10, 16, 22), dma_ops(g, i + 5)): vm[pos] = (f"r{i+5}", x)
        a("s_waitcnt lgkmcnt(0)")
        if "sst" in XF: stamp(a)
        if "nodma" in XF: vm = {}
        for k, m in enumerate(mf):
            a(m)
            if k == 1:
                wait([f"r{i+1}"] + ([f"r{i+2}"] if b else []))
                a("s_barrier")
            if k >= 2 and rd: a(rd.pop(0))
            if k in vm: a(vm[k][1]); out.append(vm[k][0])
            if k == 1: continue
            left = PER
            while left and side:
                x = side[0]
                if isinstance(x, tuple):
                    if x[0] == "at" and i < x[1]: break
                    if x[0] == "k" and k < x[1]: break
                    side.pop(0)
                    if x[0] == "per": PER = x[1]
                    if x[0] == "wait": wait([x[1]])
                    if x[0] == "vm": a(x[2]); out.append(x[1]); left = 0
                    if x[0] == "cs": a(x[3]); out.extend([x[1]] * x[2]); left = 0
                    continue
                side.pop(0); a(x); left -= 1
                if "buffer_store" in x: out.append("st")
                while side and isinstance(side[0], str) and ((x.startswith("s_cmp") and "\n" not in x) or side[0].startswith("s_cselect")):
                    x = side.pop(0); a(x)
        if os.environ.get("NOPS"): print("stage", i, "side left", len(side), file=sys.stderr)
    assert not side
    return out

def gran_setup(a, g):
    t = T; vst = g.xa; vcs = g.xa + 1; sTG = g.sRound
    a(f"""s_lshr_b32 s{sTG}, s2, 6
    s_xor_b32 s{sTG}, s{sTG}, s{sQ4}
    s_lshl2_add_u32 s{sTG}, s{g.sRB}, s{sTG}
    s_bfe_u32 s{g.sGP}, s2, 0x10005
    s_lshl1_add_u32 s{g.sGP}, s{sTG}, s{g.sGP}
    s_lshl_b32 s{g.sG0}, s{sTG}, 9
    s_add_u32 s{g.sG0}, s{g.sG0}, {OFF_ST}
    s_lshl_b32 s{g.sC0}, s{g.sC}, 3
    s_add_u32 s{g.sC0}, s{g.sC0}, s{sHI}
    s_lshl_b32 s{g.sC0}, s{g.sC0}, 9
    s_add_u32 s{g.sC0}, s{g.sC0}, {OFF_CS}
    s_add_u32 s{g.sC1}, s{g.sC0}, {30*4096}
    s_add_u32 s{g.sC2}, s{g.sC0}, {60*4096}
    v_and_b32 v{vst}, 15, v{vLANE}
    v_lshrrev_b32 v{vcs}, 4, v{vLANE}
    v_lshlrev_b32 v{vcs}, 6, v{vcs}
    v_add_lshl_u32 v{vcs}, v{vcs}, v{vst}, 4
    v_lshlrev_b32 v{vst}, 3, v{vst}
    v_bfe_u32 v{vSO}, v{vLANE}, 4, 1
    v_lshlrev_b32 v{vSO}, 10, v{vSO}
    v_lshrrev_b32 v{t}, 5, v{vLANE}
    v_lshl_add_u32 v{vSO}, v{t}, 9, v{vSO}
    v_lshl_add_u32 v{vSO}, v{vst}, 1, v{vSO}
    s_and_b32 s{sT}, s2, 32
    v_xor_b32 v{vst}, s{sT}, v{vLANE}
    v_lshlrev_b32 v{vst}, 3, v{vst}
    s_lshl_b32 s{sT}, s{g.sC}, 12
    s_lshl_b32 s{sU}, s{sHI}, 11
    s_add_u32 s{sT}, s{sT}, s{sU}
    s_xor_b32 s{sU}, s{g.sGP}, 1
    s_mul_i32 s{g.sQ0}, s{g.sGP}, {P_QKV}
    s_mul_i32 s{g.sQ1}, s{sU}, {P_QKV}
    s_add_u32 s{g.sQ0}, s{g.sQ0}, s{sT}
    s_add_u32 s{g.sQ1}, s{g.sQ1}, s{sT}
    s_mul_i32 s{sHS}, s{g.sGP}, {P_H}
    s_mul_i32 s{g.sXr}, s{sU}, {P_H}
    s_add_u32 s{sU}, s{sT}, {OFF_H}
    s_add_u32 s{sHS}, s{sHS}, s{sU}
    s_add_u32 s{g.sXr}, s{g.sXr}, s{sU}
    s_lshr_b32 s{sT}, s{sT}, 4
    s_lshl2_add_u32 s{g.sFQ}, s{sTG}, s{sT}
    s_add_u32 s{g.sFQ}, s{g.sFQ}, {OFF_FQ}
    s_cmp_lt_u32 s{g.sC}, 10
    s_cselect_b32 s{g.sQS}, {f32(QSCALE)}, 1.0""")
def st_loads(g): return [f"buffer_load_dwordx2 {vr(g.gr,2)}, v{g.xa}, {WS}, s{g.sG0} offen sc1"], [g.gr + 1]
def cs_loads(g, u):
    return ([f"buffer_load_dwordx4 {vr(g.gr+8+4*p,4)}, v{g.xa+1}, {WS}, s{(g.sC0, g.sC1, g.sC2)[u]} offen offset:{256*p} sc1" for p in range(2)],
            [g.gr + 9 + 2 * k for k in range(4)])
def gate(a, g, name, loads, tags):
    check_ne(a, tags)
    a.atom(f"s_cbranch_vccnz {name}\n{name}_done:")
    g.spins.append((name, loads, tags))
    for p in range(2): a(f"v_mov_b32 v{g.gr+9+4*p}, v{g.gr+10+4*p}")

def gran_use(a, g):
    t = T
    a(f"""v_mov_b32 v{g.gr+4}, v{g.gr}
    s_mov_b32 s{sT}, 0x01000100
    v_permlane32_swap_b32 v{g.gr}, v{g.gr+4}
    v_mov_b32 v{g.gr+2}, v{g.gr}
    v_mov_b32 v{g.gr+6}, v{g.gr+4}
    v_permlane16_swap_b32 v{g.gr}, v{g.gr+2}
    v_permlane16_swap_b32 v{g.gr+4}, v{g.gr+6}""")
    for q in range(4):
        a(f"""v_and_b32 v{t+q}, 0xffff0000, v{g.gr+2*q}
        v_perm_b32 v{g.gr+2*q}, v{g.gr+2*q}, v{g.gr+2*q}, s{sT}
        v_rcp_f32 v{t+4+q}, v{t+q}
        v_xor_b32 v{g.gr+2*q+1}, 0x80008000, v{g.gr+2*q}
        v_xor_b32 v{g.gr+2*q}, 0x80008000, v{g.gr+2*q}
        v_mul_f32 v{g.gr+16+q}, s{g.sQS}, v{t+4+q}""")
def corr(g, u):
    return [f"v_mfma_f32_16x16x16_bf16 {vr(g.acc[u]+8*q+4*p,4)}, {vr(g.gr+8+4*p,2)}, {vr(g.gr+2*q,2)}, {vr(g.acc[u]+8*q+4*p,4)}" for q in range(4) for p in range(2)]
def pack(A):
    return [f"v_cvt_pk_bf16_f32 v{A+r}, v{A+2*r}, v{A+2*r+1}" for r in range(4)]
def swaps(A): return [f"v_permlane16_swap_b32 v{A}, v{A+2}", f"v_permlane16_swap_b32 v{A+1}, v{A+3}"]
def epi_q(g):
    out = []
    for q in range(4):
        A = g.acc[0] + 8 * q; rq = g.gr + 16 + q
        L = [f"v_mul_f32 v{A+r}, v{rq}, v{A+r}" for r in range(8)] + pack(A)
        out.append((L, swaps(A), f"buffer_store_dwordx4 {vr(A,4)}, v{vSO}, {WS}, s{g.sQ1 if q >= 2 else g.sQ0} offen offset:{256*(q&1)} sc1"))
    return out

def gemm1(a, g, w):
    t = T
    out = g1_main(a, g)
    stamp(a)
    X = [g.Xf[0], g.Xf[1], g.Wf[1] + 8, g.X19]; Wa, Wb = g.Wf[0], g.Wf[1]
    def xr(i): return xs_reads(g, X[i - 16], i)
    def wr(i, u, dst): return ws_reads(g, dst, i, u)
    def both(i, dst):
        x, v = xr(i), wr(i, 0, dst)
        return v[:2] + x + v[2:]
    def step(u, W, i, rd, pre=None, extra=None, byq=False):
        fill = {}
        if pre: fill[0] = [pre]
        for k, r in enumerate(rd): fill.setdefault(k // 2, []).append(r)
        for k, x in enumerate(extra or []): fill.setdefault(k * 8 // len(extra), []).append(x)
        mf = mm(g, u, W, X[i - 16])
        if byq: mf = [mf[p * 4 + q] for q in range(4) for p in range(2)]
        weave(a, mf, fill)
    PRIO = "noprio" not in XF
    if PRIO: a("s_setprio 2")
    l1, t1 = cs_loads(g, 1); l2, t2 = cs_loads(g, 2)
    r = Rec(); gate(r, g, "L_sp_st", *g.l0); gran_use(r, g); gu = r.L; h1 = len(gu) // 2
    for x in both(17, Wb)[:4]: a(x)
    a("s_waitcnt lgkmcnt(4)"); step(0, Wa, 16, both(17, Wb)[4:])
    a("s_waitcnt lgkmcnt(0)"); step(0, Wb, 17, both(18, Wa), pre="s_waitcnt vmcnt(0)\ns_barrier", extra=gu[:h1])
    a("s_waitcnt lgkmcnt(0)"); step(0, Wa, 18, both(19, Wb), extra=gu[h1:])
    weave(a, corr(g, 0), {0: wr(17, 1, Wa)})
    a("s_waitcnt lgkmcnt(4)"); step(0, Wb, 19, [], extra=["", l1[0], "", l1[1]], byq=True)
    eq = epi_q(g)
    ep = eq[0][0] + eq[1][0][:2] + eq[0][1] + [eq[0][2]] + eq[1][0][2:] + eq[2][0][:2] + eq[1][1] + [eq[1][2]] + eq[2][0][2:] + eq[3][0][:2] + eq[2][1] + [eq[2][2]] + eq[3][0][2:]
    step(1, g.Wf[0] + 8, 16, wr(18, 1, Wb), extra=ep)
    a("s_waitcnt lgkmcnt(4)")
    for x in eq[3][1] + [eq[3][2]]: a(x)
    if PRIO: a("s_setprio 0")
    step(1, Wa, 17, [])
    a("s_waitcnt lgkmcnt(0)"); step(1, Wb, 18, wr(19, 1, Wa))
    a("s_waitcnt vmcnt(4)")
    gate(a, g, "L_sp_g", l1, t1)
    weave(a, corr(g, 1), {0: wr(17, 2, Wb), 7: l2})
    a("s_waitcnt lgkmcnt(4)"); step(1, Wa, 19, [], byq=True)
    for x in wr(18, 2, Wa): a(x)
    stamp(a)
    tmp = g.acc[0]; G = g.acc[1]; U = g.acc[2]; vc1 = g.xb
    a(f"s_mov_b32 s{g.sD0}, {f32(-GC3)}\nv_mov_b32 v{vc1}, {f32(-GC1)}")
    FQ = int(os.environ.get("FQ", "1"))
    for h in range(4):
        if h == FQ:
            a("s_waitcnt vmcnt(0)"); flag(a, g.sFQ)
            gate(a, g, "L_sp_u", l2, t2)
            for m in corr(g, 2): a(m)
        if h == 3: attn_poll(a, w)
        R = range(8 * h, 8 * h + 8)
        for r in R: a(f"v_mul_f32 v{G+r}, v{t+4+h}, v{G+r}")
        for r in R: a(f"v_mul_f32 v{tmp+r}, v{G+r}, v{G+r}")
        for r in R: a(f"v_fma_f32 v{tmp+r}, v{tmp+r}, s{g.sD0}, v{vc1}")
        for r in R: a(f"v_mul_f32 v{tmp+r}, v{tmp+r}, v{G+r}")
        for r in R: a(f"v_exp_f32 v{tmp+r}, v{tmp+r}")
        for r in R: a(f"v_fma_f32 v{tmp+r}, v{tmp+r}, v{t+h}, v{t+h}")
        for r in R: a(f"v_rcp_f32 v{tmp+r}, v{tmp+r}")
        for r in R: a(f"v_mul_f32 v{G+r}, v{G+r}, v{tmp+r}")
    attn_open(a, w, early=True)
    step(2, g.Wf[0] + 16, 16, [])
    a("s_waitcnt lgkmcnt(0)"); step(2, Wb, 17, [])
    step(2, Wa, 18, wr(19, 2, Wb))
    a("s_waitcnt lgkmcnt(0)"); step(2, Wb, 19, [], byq=True)
    for r in range(32): a(f"v_mul_f32 v{U+r}, v{U+r}, v{G+r}")
    for q in range(4):
        for x in pack(U + 8 * q): a(x)
    for q in range(4):
        for x in swaps(U + 8 * q): a(x)
    w.hst = [f"buffer_store_dwordx4 {vr(U+8*q,4)}, v{vSO}, {sr(SRD_B,4)}, s{g.sXr if q >= 2 else sHS} offen offset:{256*(q&1)} sc1" for q in range(4)]

def role_r(a, g, w):
    a.label("L_role_r")
    a("s_waitcnt vmcnt(0)")
    stats(a, g)
    a(g.st_store)
    sg = Regs('s', S0 + 17, 96); t = T
    sKS, sOff, sDst, sM, sN, sK2 = (sg.one() for _ in range(6)); sFl = sg.many(5, 1)
    V = Regs('v', 24 + 48 + 8, 252)
    vo = V.many(5, 1); va = V.many(5, 1); fr = V.many(20, 4)
    a(f"s_lshl_b32 s{sT}, s{sWAVE}, 2")
    for i in range(5):
        a(f"""v_add_u32 v{t}, {64*i}, v{vLANE}
        v_mul_u32_u24 v{t+1}, 820, v{t}
        v_lshrrev_b32 v{t+1}, 16, v{t+1}
        v_mul_u32_u24 v{t+2}, 80, v{t+1}
        v_sub_u32 v{t+2}, v{t}, v{t+2}
        v_add_u32 v{t+3}, s{sT}, v{t+1}
        v_lshrrev_b32 v{t+4}, 1, v{t+3}
        v_and_b32 v{t+4}, 4, v{t+4}
        v_or_b32 v{t+4}, v{t+4}, v{t+1}
        v_lshlrev_b32 v{t+4}, 1, v{t+4}
        v_xor_b32 v{t+2}, v{t+2}, v{t+4}
        v_mul_u32_u24 v{t+3}, 1280, v{t+3}
        v_lshl_add_u32 v{vo+i}, v{t+2}, 4, v{t+3}""")
    a(f"""v_lshrrev_b32 v{t}, 4, v{vLANE}
    v_bfe_u32 v{t+1}, v{vLANE}, 2, 2
    v_lshl_add_u32 v{t+2}, v{t}, 3, v{t+1}
    v_mul_u32_u24 v{t+2}, 1280, v{t+2}
    v_and_b32 v{t+3}, 1, v{vLANE}
    v_lshl_add_u32 v{t+2}, v{t+3}, 3, v{t+2}
    v_and_b32 v{t}, 1, v{t}
    v_lshl_add_u32 v{t}, v{t}, 2, v{t+1}
    v_lshlrev_b32 v{t}, 1, v{t}
    v_bfe_u32 v{t+1}, v{vLANE}, 1, 1
    s_mul_i32 s{sT}, s{sWAVE}, 10
    v_add_u32 v{t+1}, s{sT}, v{t+1}""")
    for ct in range(5):
        a(f"v_add_u32 v{t+3}, {2*ct}, v{t+1}\nv_xor_b32 v{t+3}, v{t+3}, v{t}\nv_lshl_add_u32 v{va+ct}, v{t+3}, 4, v{t+2}")
    a(f"""s_sub_u32 s{sKS}, s{g.sC}, 30
    s_lshl_b32 s{sKS}, s{sKS}, 3
    s_add_u32 s{sKS}, s{sKS}, s{g.sRB}
    s_mul_i32 s{sM}, s{sWAVE}, 5120
    s_waitcnt vmcnt(0)
    s_barrier""")
    def fetch(st):
        if st < 3:
            a(f"s_mov_b32 s{SRD_A}, s{pWD}\ns_mov_b32 s{SRD_A+1}, s{pWD+1}\ns_mov_b32 s{SRD_A+2}, {F*D*2}\ns_add_u32 s{sT}, s{sKS}, {16*st}")
        else:
            a(f"""s_mov_b32 s{sT}, {D*D*2}
            s_add_u32 s{sU}, s{sKS}, {16*st}
            s_cmp_lt_u32 s{sU}, 54
            s_cselect_b32 s{SRD_A}, s{pWD}, s{pWO}
            s_cselect_b32 s{SRD_A+1}, s{pWD+1}, s{pWO+1}
            s_cselect_b32 s{SRD_A+2}, {F*D*2}, s{sT}
            s_cselect_b32 s{sT}, 0, 54
            s_sub_u32 s{sT}, s{sU}, s{sT}""")
        a(f"s_mul_i32 s{sOff}, s{sT}, 40960")
        for i in range(5):
            a(f"s_add_u32 m0, s{sM}, {(st%4)*40960 + 1024*i}\nbuffer_load_dwordx4 v{vo+i}, {sr(SRD_A,4)}, s{sOff} offen lds")
    for st in range(4): fetch(st)
    stamp(a, idx=2); stamp(a, idx=3)
    for st in range(5):
        a(f"""s_add_u32 s{sK2}, s{sKS}, {16*st}
        s_cmp_lt_u32 s{sK2}, 54
        s_cselect_b32 s{sT}, 0, 54
        s_cselect_b32 s{sU}, 27, 10
        s_cselect_b32 s{sN}, 0, 27
        s_sub_u32 s{sK2}, s{sK2}, s{sT}
        s_cmp_ge_u32 s{sK2}, s{sU}
        s_cselect_b32 s{sT}, s{sU}, 0
        s_cselect_b32 s{sU}, 1, 0
        s_sub_u32 s{sK2}, s{sK2}, s{sT}
        s_add_u32 s{sK2}, s{sK2}, s{sN}
        s_lshl_b32 s{sT}, s{sWAVE}, 1
        s_add_u32 s{sU}, s{sU}, s{sT}
        s_mul_i32 s{sT}, s{sU}, 37
        s_add_u32 s{sT}, s{sT}, s{sK2}
        s_mul_i32 s{sDst}, s{sT}, 5120
        s_add_u32 s{sDst}, s{sDst}, {OFF_WP}
        s_lshl_b32 s{sU}, s{sU}, 6
        s_add_u32 s{sK2}, s{sK2}, s{sU}
        s_lshl_b32 s{sK2}, s{sK2}, 2
        s_add_u32 s{sFl+st}, s{sK2}, {OFF_FW}""")
        if st == 4:
            a(f"s_cmp_lt_u32 s{sKS}, 10\ns_cselect_b32 s{sDst}, s{sDst}, 0x7ff00000\ns_cselect_b32 s{sFl+st}, s{sFl+st}, 0x7ff00000")
        a(f"s_waitcnt vmcnt({(15, 20, 20, 20, 20)[st]})\ns_barrier")
        for ct in range(5):
            a(f"ds_read_b64_tr_b16 {vr(fr+4*ct,2)}, v{va+ct}\nds_read_b64_tr_b16 {vr(fr+4*ct+2,2)}, v{va+ct} offset:5120")
        for ct in range(5):
            if st < 4: a(f"v_add_u32 v{va+ct}, {40960 if st < 3 else (-3*40960) & 0xffffffff}, v{va+ct}")
        a("s_waitcnt lgkmcnt(0)")
        if st == 0:
            a("s_barrier"); fetch(4)
        for ct in range(4):
            a(f"buffer_store_dwordx4 {vr(fr+4*ct,4)}, v{vL16}, {WS}, s{sDst} offen offset:{1024*ct} sc1")
        a(f"""s_add_u32 s{sDst}, s{sDst}, 4096
        buffer_store_dwordx4 {vr(fr+16,4)}, v{vL16}, {WS}, s{sDst} offen sc1""")
    stamp(a, idx=4)
    a(f"v_mov_b32 v{vSO}, 0\ns_mov_b32 s{sHS}, 0\ns_waitcnt vmcnt(0)")
    for st in range(5): flag(a, sFl + st)
    stamp(a, idx=5)
    n0 = Stamper.n; Stamper.n = w.open_stamp
    attn_open(a, w, "_b")
    Stamper.n = n0
    a("s_branch L_attn")

class AT: pass
def alloc_at():
    w = AT(); V = Regs('v', WK, 252)
    w.Sb = [V.many(32, 4) for b in range(2)]; w.O = [V.many(16, 4) for q in range(2)]
    w.Qm = [V.many(4, 4) for q in range(2)]; w.Km = V.many(4, 4); w.V0 = V.many(4, 4); w.V1 = V.many(4, 4)
    w.Qr = V.many(2, 2); w.Kr = V.many(2, 2)
    return w

def w3_dma(c, R=SRD_WS, loose=False):
    L = []
    for i in range(5):
        pre = ""
        if i in (0, 4) or loose:
            k = 4096 if i == 4 else 0
            pre = f"s_add_u32 m0, s{sM3}, {(c%4)*G3_SLOT + k}\ns_add_u32 s{sW3}, s{sWO}, {c*4*5120 + k}\n"
        L.append(pre + f"buffer_load_dwordx4 v{vL16}, {sr(R,4)}, s{sW3} offen offset:{1024*(i&3)} sc1 lds")
    return L
sW3 = S0 + 30
def b_load(dst, base, k):
    s = f"s_add_u32 s{base}, s{base}, 4096\n" if k and k % 2 == 0 else ""
    return s + f"buffer_load_dwordx4 {vr(dst,4)}, v{vBO}, {WS}, s{base} offen offset:{(k&1)*2048} sc1"

def kv_dma(c):
    return [f"""s_add_u32 m0, s{sDM+i}, {A_BASE + (c%3)*A_SLOT}
    s_add_u32 s{sDO+i}, s{sDO+i}, {4*P_QKV if c else 0}
    buffer_load_dwordx4 v{vKVO}, {WS}, s{sDO+i} offen sc1 lds""" for i in range(3)]

def q_loads():
    t = T
    return [f"buffer_load_dword v{t}, v{vFQO}, {WS}, s{sT} offen sc1",
            f"buffer_load_dword v{t+1}, v{vFQO}, {WS}, s{sU} offen sc1",
            f"buffer_load_dword v{t+2}, v{vFQO}, {WS}, s{sU} offen offset:2560 sc1"]
PW = int(os.environ.get("PW", "4"))
def attn_poll(a, w):
    a(f"""s_cmp_lg_u32 s{sWAVE}, {PW}
    s_cbranch_scc1 L_q_nopoll
    s_mov_b32 s{sT}, {OFF_FQ}
    s_mov_b32 s{sU}, {OFF_FQ + 2560}""")
    for l in q_loads(): a(l)
    a.label("L_q_nopoll")
def attn_open(a, w, sfx="", early=False):
    t = T
    w.open_stamp = Stamper.n
    stamp(a)
    loads = q_loads()
    a(f"""s_cmp_lg_u32 s{sWAVE}, {PW}
    s_cbranch_scc1 L_sp_q_done{sfx}""")
    if early:
        a("s_waitcnt vmcnt(0)"); check_ne(a, [t, t + 1, t + 2]); a(f"s_cbranch_vccz L_sp_q_done{sfx}")
    else:
        a(f"s_mov_b32 s{sT}, {OFF_FQ}\ns_mov_b32 s{sU}, {OFF_FQ + 2560}")
    spin(a, "L_sp_q" + sfx, loads, [t, t + 1, t + 2], "L_sp_q_done" + sfx)
    a.label("L_sp_q_done" + sfx)
    a("s_barrier")
    stamp(a)
    for x in kv_dma(0): a(x)
    a(f"""buffer_load_dwordx4 {vr(w.Qm[0],4)}, v{vL16}, {WS}, s{sQB_} offen sc1
    buffer_load_dwordx4 {vr(w.Qm[1],4)}, v{vL16}, {WS}, s{sQA} offen sc1
    buffer_load_dwordx2 {vr(w.Qr,2)}, v{vQRO}, {WS}, s{sQR} offen sc1""")
    for x in kv_dma(1): a(x)

def attention(a, w, g):
    t = T; Sb, O, Qm, Km, V0, V1, Qr, Kr = w.Sb, w.O, w.Qm, w.Km, w.V0, w.V1, w.Qr, w.Kr
    dma = kv_dma
    a.label("L_attn")
    a(f"""v_and_b32 v{t+4}, 3, v0
    v_cmp_eq_u32 vcc, 0, v{t+4}
    v_mov_b32 v{t+4}, 0x3f80
    v_lshlrev_b32 v{t+5}, 2, v0
    v_cndmask_b32 v{t+4}, 0, v{t+4}, vcc
    v_add_u32 v{t+5}, {A_ONES}, v{t+5}
    ds_write_b32 v{t+5}, v{t+4}
    s_mul_i32 s{sM3}, s{sWAVE}, 5120
    v_min_u32 v{t+6}, 26, v{vLANE}
    v_min_u32 v{t+7}, 36, v{vLANE}
    v_lshlrev_b32 v{t+6}, 2, v{t+6}
    v_lshlrev_b32 v{t+7}, 2, v{t+7}
    s_mov_b32 s{SRD_B}, s{pWS}
    s_mov_b32 s{SRD_B+1}, s{pWS+1}
    s_cmp_lt_u32 s{g.sC}, 27
    s_cselect_b32 s{SRD_B+2}, {WS_USED}, 0""")
    for q in range(2):
        for r in range(16): a(f"v_mov_b32 v{O[q]+r}, 0")
    a(f"""s_or_b32 s{sT}, s2, s{sWAVE}
    s_cmp_lg_u32 s{sT}, 0
    s_cbranch_scc1 L_noep
    s_mov_b32 s{sT}, {OFF_EP}
    s_waitcnt vmcnt(0)""")
    flag(a, sT)
    a.label("L_noep")
    def rdKr(i): return f"ds_read_b64 {vr(Kr,2)}, v{vKRA} offset:{((i>>2)%3)*A_SLOT + (i&3)*512}"
    def rdKm(i): return f"ds_read_b128 {vr(Km,4)}, v{vKMA} offset:{((i>>2)%3)*A_SLOT + (i&3)*512}"
    def rdV(i, s):
        R = V1 if s else V0
        return "\n".join(f"ds_read_b64_tr_b16 {vr(R+2*rd,2)}, v{vVA+(i>>2)%3} offset:{(i&3)*512 + s*256 + rd*64}" for rd in range(2))
    def m2b(i): return f"v_mfma_f32_32x32x4_2b_bf16 {vr(Sb[i&1],32)}, {vr(Kr,2)}, {vr(Qr,2)}, 0"
    def m16(i, q): return f"v_mfma_f32_32x32x16_bf16 {vr(Sb[i&1]+16*q,16)}, {vr(Km,4)}, {vr(Qm[q],4)}, {vr(Sb[i&1]+16*q,16)}"
    def smf(i, q, s): return f"v_smfmac_f32_32x32x32_bf16 {vr(O[q],16)}, {vr(V1 if s else V0,4)}, {vr(Sb[i&1]+16*q+8*s,8)}, v{vIDX}"
    a("s_waitcnt vmcnt(3) lgkmcnt(0)\ns_barrier")
    stamp(a)
    a(rdKr(0)); a(rdKm(0)); a(rdV(0, 0)); a("s_waitcnt lgkmcnt(2)")
    a(m2b(0)); a(rdKr(1)); a(m16(0, 0)); a(m16(0, 1)); a(rdKm(1)); a("s_waitcnt lgkmcnt(0)\ns_nop 8")
    NT = 32
    floads = [f"buffer_load_dword v{t}, v{t+6}, {WS}, s{sFHc} offen sc1", f"buffer_load_dword v{t+1}, v{t+7}, {WS}, s{sFWc} offen sc1"]
    w.floads = floads
    pre = [b_load(HB + 4 * n, sH, n) for n in range(27)]
    wd = w3_dma(0, loose=True) + w3_dma(1, loose=True)
    queue = []
    for n in range(27):
        queue.append(pre[n])
        if n % 3 == 1 and wd: queue.append(wd.pop(0))
    queue += wd
    if "notouch3" not in XF:
        queue.append(f"""s_bfe_u32 s{sT}, s2, 0x30003
        s_lshl2_add_u32 s{sT}, s{sT}, s{sQ4}
        s_mul_i32 s{sT}, s{sT}, {37*128}
        s_mul_i32 s{sU}, s{sQ4}, 5120
        s_sub_u32 s{sT}, s{sT}, s{sU}
        s_add_u32 s{sT}, s{sT}, s{sWO}
        s_add_u32 s{sT}, s{sT}, {8*5120}
        v_lshlrev_b32 v{t+6}, 5, v{t+7}
        buffer_load_dword v{t}, v{t+6}, {WS}, s{sT} offen sc1""")
    young = 0
    a.auto = False
    for i in range(NT):
        E = lambda lo, hi: "\n".join(f"v_exp_f32 v{Sb[i&1]+k}, v{Sb[i&1]+k}" for k in range(lo, hi))
        last = i == NT - 1
        a(E(0, 2))
        if i: a(smf(i - 1, 1, 1))
        a(rdV(i, 1)); a(E(2, 5))
        if not last: a(m2b(i + 1))
        newc = (i + 2) % 4 == 0 and i + 2 < NT
        dm = []
        if newc:
            c = (i + 2) // 4
            a(f"s_waitcnt vmcnt({0 if c == 3 else young})")
            if c == 3:
                a.auto = True
                check_ne(a, [t, t + 1])
                a("s_cbranch_vccnz L_sp_h")
                a.label("L_sp_h_done")
                a.auto = False
            a("s_barrier")
            if c + 1 < 8: dm = dma(c + 1); young = 0
        elif i < 2: dm = [w.hst[2 * i], "", w.hst[2 * i + 1]]; young += 2
        elif i == 4:
            a("s_waitcnt vmcnt(3)"); flag(a, sFHp); young += 1
        elif i == 9: dm = floads + [""]
        elif i > 10:
            dm = [queue.pop(0) if queue else "" for _ in range(3)]
            young += sum(1 for x in dm if x)
        if i + 2 < NT: a(rdKr(i + 2))
        a(E(5, 9))
        if dm: a(dm[0])
        a(E(9, 13))
        a(f"s_waitcnt lgkmcnt({(4 if i + 2 < NT else 3) if not last else 2})")
        a(smf(i, 0, 0))
        if dm: a(dm[1])
        a(E(13, 18)); a("s_waitcnt lgkmcnt(0)"); a(smf(i, 0, 1))
        if dm: a(dm[2])
        a(E(18, 21))
        if not last: a(m16(i + 1, 0))
        a(E(21, 26)); a(smf(i, 1, 0))
        if not last: a(rdV(i + 1, 0))
        a(E(26, 29))
        if last:
            for q in range(3): a(f"ds_write_b128 v{t+1}, {vr(O[0]+4*q,4)} offset:{1024*q}")
        if i == NT - 2:
            a(f"""s_mul_i32 s{sT}, s{sWAVE}, 3200
            s_add_u32 s{sT}, s{sT}, {A_XCH}
            v_add_u32 v{t+1}, s{sT}, v{vL16}
            s_xor_b32 s{sU}, s{sWAVE}, 4
            s_mul_i32 s{sU}, s{sU}, 3200
            s_add_u32 s{sU}, s{sU}, {A_XCH}
            v_add_u32 v{t+2}, s{sU}, v{vL16}""")
        if not last: a(m16(i + 1, 1))
        if i + 2 < NT: a(rdKm(i + 2))
        a(E(29, 32))
    assert not queue
    a.auto = True
    a(smf(NT - 1, 1, 1))
    stamp(a)
    a("s_waitcnt vmcnt(0) lgkmcnt(0)\ns_barrier")
    X = Sb[0]; w.X = X
    for q in range(3): a(f"ds_read_b128 {vr(X+4*q,4)}, v{t+2} offset:{1024*q}")
    w.npre = int(os.environ.get("NPRE", "2"))
    for x in w3_dma(2)[:w.npre]: a(x)
    a("s_waitcnt lgkmcnt(0)")
    for r in range(12): a(f"v_add_f32 v{X+r}, v{X+r}, v{O[1]+r}")
    a(f"""v_mov_b32 v{X+12}, v{X+8}
    v_mov_b32 v{X+13}, v{X+8}
    v_mul_f32 v{X+14}, 0, v{X}""")
    a(f"v_permlane32_swap_b32 v{X+13}, v{X+12}")
    for r in range(1, 12): a(f"v_fmac_f32 v{X+14}, 0, v{X+r}")
    a(f"""v_add_f32 v{X+14}, v{X+14}, v{X+12}
    v_cmp_nle_f32 vcc, {f32(2.0**-64)}, v{X+14}
    s_mov_b64 s[{S0+26}:{S0+27}], vcc
    v_cmp_nge_f32 vcc, {f32(2.0**64)}, v{X+14}
    s_or_b64 vcc, vcc, s[{S0+26}:{S0+27}]
    s_cbranch_scc1 L_slow""" if "force_slow" not in XF else "s_branch L_slow")
    a.label("L_slow_done")
    a(f"v_rcp_f32 v{X+13}, v{X+12}")
    for r in range(12): a(f"v_mul_f32 v{X+r}, v{X+r}, v{X+13}")
    for r in range(6): a(f"v_cvt_pk_bf16_f32 v{X+16+r}, v{X+2*r}, v{X+2*r+1}")
    a(f"""buffer_store_dwordx4 {vr(X+16,4)}, v{vL16}, {WS}, s{sOA} offen sc1
    s_mov_b32 exec_hi, 0
    buffer_store_dwordx2 {vr(X+20,2)}, v{vL16}, {WS}, s{sOR} offen sc1
    s_mov_b64 exec, -1""")
    stamp(a)

def attn_cold(a, w):
    t = T; Sb, O, Qm, Km, V0, V1, Qr, Kr, X = w.Sb, w.O, w.Qm, w.Km, w.V0, w.V1, w.Qr, w.Kr, w.X
    a.label("L_sp_h")
    spin(a, "L_sp_h_loop", w.floads, [t, t + 1], "L_sp_h_done")
    a("s_branch L_sp_h_done")
    a.label("L_slow")
    Sx = Sb[1]; NM = Sb[1] + 16; Oa = O[1]; vb = O[0]; mx = O[0] + 8; vho = O[0] + 9; vwa = O[0] + 10; vws = O[0] + 11; vra = O[0] + 12
    sKA, sKS_, sN, sSC = S0 + 26, S0 + 27, S0 + 28, S0 + 29
    a(f"""s_xor_b32 s{sSC}, s{sWAVE}, 4
    s_mul_i32 s{sSC}, s{sSC}, 3200
    s_add_u32 s{sSC}, s{sSC}, {A_XCH}
    v_cmp_lt_u32 vcc, 31, v{vLANE}
    v_and_b32 v{vho}, 31, v{vLANE}
    v_lshlrev_b32 v{vho}, 4, v{vho}
    v_cndmask_b32 v{Qr}, 0, v{Qr}, vcc
    v_cndmask_b32 v{Qr+1}, 0, v{Qr+1}, vcc
    v_mov_b32 v{mx}, 0xff800000
    v_add_u32 v{vwa}, s{sSC}, v{vL16}
    v_add_u32 v{vws}, s{sSC}, v{vho}
    s_bfe_u32 s{sT}, s2, 0x30003
    s_lshl_b32 s{sT}, s{sT}, 2
    s_add_u32 s{sT}, s{sT}, s{sQ4}
    s_mul_i32 s{sT}, s{sT}, {2*P_QKV}
    s_sub_u32 s{sKS_}, s{sQR}, s{sT}
    s_mul_i32 s{sU}, s{sHI}, {P_QKV}
    s_add_u32 s{sT}, s{sT}, s{sU}
    s_sub_u32 s{sKA}, s{sQA}, s{sT}
    s_add_u32 s{sKA}, s{sKA}, {80*512}
    s_add_u32 s{sKS_}, s{sKS_}, {80*512}
    ; transposed V reads from the private scratch [A 512][B 512][S 512]
    v_bfe_u32 v{t+1}, v{vLANE}, 2, 2
    v_lshrrev_b32 v{t}, 5, v{vLANE}
    v_lshl_add_u32 v{t+1}, v{t}, 3, v{t+1}
    v_lshlrev_b32 v{t+1}, 4, v{t+1}
    v_and_b32 v{t+2}, 1, v{vLANE}
    v_lshlrev_b32 v{t+2}, 9, v{t+2}
    v_bfe_u32 v{t+3}, v{vLANE}, 1, 1
    v_lshl_add_u32 v{t+2}, v{t+3}, 3, v{t+2}
    v_mov_b32 v{t+5}, 1024
    v_and_b32 v{t+4}, 19, v{vLANE}
    v_cmp_eq_u32 vcc, 16, v{t+4}
    v_lshlrev_b32 v{t+3}, 3, v{t+3}
    v_add_u32 v{t+3}, {A_ONES}, v{t+3}
    v_cndmask_b32 v{t+2}, v{t+2}, v{t+5}, vcc
    v_cmp_lt_u32 vcc, 16, v{t+4}
    v_add_u32 v{t+2}, s{sSC}, v{t+2}
    v_cndmask_b32 v{t+2}, v{t+2}, v{t+3}, vcc
    v_add_u32 v{vra}, v{t+2}, v{t+1}
    s_mov_b32 s{sN}, 0""")
    def kload():
        a(f"""s_add_u32 s{sT}, s{sKA}, s{sN}
        s_add_u32 s{sU}, s{sKS_}, s{sN}
        buffer_load_dwordx4 {vr(Km,4)}, v{vL16}, {WS}, s{sT} offen sc1
        buffer_load_dwordx2 {vr(Kr,2)}, v{vho}, {WS}, s{sU} offen sc1""")
    def qk(c):
        a(f"""v_mfma_f32_32x32x16_bf16 {vr(Sx,16)}, {vr(Km,4)}, {vr(Qm[1],4)}, {c}
        v_mfma_f32_32x32x8_bf16 {vr(Sx,16)}, {vr(Kr,2)}, {vr(Qr,2)}, {vr(Sx,16)}""")
    def nxt(l): a(f"s_add_u32 s{sN}, s{sN}, {P_QKV}\ns_cmp_lt_u32 s{sN}, {64*P_QKV}\ns_cbranch_scc1 {l}")
    a.label("L_slow_a")
    kload(); a("s_waitcnt vmcnt(0)"); qk("0")
    for r in range(0, 16, 2): a(f"v_max3_f32 v{mx}, v{Sx+r}, v{Sx+r+1}, v{mx}")
    nxt("L_slow_a")
    a(f"""v_mov_b32 v{t}, v{mx}
    v_permlane32_swap_b32 v{t}, v{mx}
    v_max_f32 v{mx}, v{mx}, v{t}
    s_mov_b32 s{sN}, 0""")
    for r in range(16): a(f"v_sub_f32 v{NM+r}, 0, v{mx}\nv_mov_b32 v{Oa+r}, 0")
    a.label("L_slow_b")
    kload()
    a(f"""s_add_u32 s{sT}, s{sT}, {80*512}
    s_add_u32 s{sU}, s{sU}, {80*512}
    buffer_load_dwordx4 {vr(vb,4)}, v{vL16}, {WS}, s{sT} offen sc1
    buffer_load_dwordx2 {vr(vb+4,2)}, v{vho}, {WS}, s{sU} offen sc1
    s_waitcnt vmcnt(0)
    ds_write_b128 v{vwa}, {vr(vb,4)}
    ds_write_b64 v{vws}, {vr(vb+4,2)} offset:1024""")
    qk(vr(NM, 16))
    a("s_waitcnt lgkmcnt(0)")
    for s in range(2):
        for rd in range(2): a(f"ds_read_b64_tr_b16 {vr((V1 if s else V0)+2*rd,2)}, v{vra} offset:{s*256+rd*64}")
    for r in range(16): a(f"v_exp_f32 v{Sx+r}, v{Sx+r}")
    a("s_waitcnt lgkmcnt(0)")
    for s in range(2): a(f"v_smfmac_f32_32x32x32_bf16 {vr(Oa,16)}, {vr(V1 if s else V0,4)}, {vr(Sx+8*s,8)}, v{vIDX}")
    nxt("L_slow_b")
    for r in range(12): a(f"v_mov_b32 v{X+r}, v{Oa+r}")
    a(f"""v_mov_b32 v{X+12}, v{Oa+8}
    v_mov_b32 v{X+13}, v{Oa+8}
    v_permlane32_swap_b32 v{X+13}, v{X+12}
    s_nop 1
    s_branch L_slow_done""")

def gemm3(a, w):
    t = T; V = Regs('v', WK, 252)
    OB = V.many(40, 4); accd = V.many(20, 4); accs = V.many(20, 4); Wf = [V.many(20, 4) for b in range(2)]
    wa = vIDX
    RD, RS = 2 * G3_SLOT, 3 * G3_SLOT
    out = ["w2"] * w.npre + ["ost"] * 2
    lq = []
    def vm(tag, txt): a(txt); out.append(tag)
    def lds(tag, txt): a(txt); lq.append(tag)
    def w_vm(tag):
        if tag in out:
            idx = max(i for i, x in enumerate(out) if x == tag)
            a(f"s_waitcnt vmcnt({len(out) - 1 - idx})"); del out[:idx + 1]
    def w_lds(tag):
        if tag in lq:
            idx = max(i for i, x in enumerate(lq) if x == tag)
            a(f"s_waitcnt lgkmcnt({min(15, len(lq) - 1 - idx)})"); del lq[:idx + 1]
    for x in w3_dma(2)[w.npre:]: vm("w2", x)
    a(f"s_mul_i32 s{sT}, s{sHI}, {4*5120}")
    for k in range(4): a(f"s_add_u32 s{sU}, s{sT}, {k*G3_SLOT}\nv_add_u32 v{wa+k}, s{sU}, v{vL16}")
    def rd(n, ct): lds((n, ct), f"ds_read_b128 {vr(Wf[n&1]+4*ct,4)}, v{wa+(n>>2)%4} offset:{(n&3)*5120 + ct*1024}")
    for n in range(2):
        for ct in range(5): rd(n, ct)
    vo = 8
    r = Rec()
    r(f"""v_and_b32 v{t+7}, 15, v{vLANE}
    v_lshlrev_b32 v{t+7}, 2, v{t+7}
    s_mov_b32 s{SRD_A}, s{pWS}
    s_mov_b32 s{SRD_A+1}, s{pWS+1}""")
    r.atom(f"s_cmp_eq_u32 s{sQ4}, 0\ns_cselect_b32 s{SRD_A+2}, {WS_USED}, 0")
    srd(r, SRD_B, pX, S * D * 2)
    for q in range(3):
        r(f"""v_add_u32 v{t+2}, {512*q}, v0
        v_mul_u32_u24 v{t+3}, 3277, v{t+2}
        v_lshrrev_b32 v{t+3}, 16, v{t+3}
        v_bfe_u32 v{t+4}, v{t+3}, 1, 2
        v_xor_b32 v{t+2}, v{t+2}, v{t+4}
        v_mul_u32_u24 v{t+3}, {1280-160}, v{t+3}
        v_lshl_add_u32 v{vo+q}, v{t+2}, 3, v{t+3}""")
    r(f"""v_mov_b32 v{t+2}, 0x7ffffff0
    v_cmp_gt_u32 vcc, 256, v0
    v_lshlrev_b32 v11, 4, v0
    v_add_u32 v11, {RD}, v11
    v_cndmask_b32 v{vo+2}, v{t+2}, v{vo+2}, vcc
    v_and_b32 v12, 255, v0
    v_lshlrev_b32 v12, 4, v12
    v_add_u32 v12, {RD + 16384}, v12
    v_lshrrev_b32 v{t+2}, 4, v{vLANE}
    v_bfe_u32 v{t+3}, v{vLANE}, 1, 2
    v_xor_b32 v{t+2}, v{t+2}, v{t+3}
    v_mul_u32_u24 v14, 80, v{t+7}
    v_lshl_add_u32 v14, v{t+2}, 4, v14
    s_add_u32 s{sT}, s{sM3}, {RD}
    v_add_u32 v14, s{sT}, v14""")
    side = r.L
    x2 = HB; red = HB + 8; g_ = HB + 32; xs = HB + 44
    oflag = f"buffer_load_dword v{t}, v{t+7}, {WS}, s{sFOc} offen sc1"
    w.oflag = oflag
    N_FLAG, N_POLL, N_CHK = (int(x) for x in os.environ.get("G3N", "4,17,21").split(","))
    WGAP, OGAP = (int(x) for x in os.environ.get("G3G", "3,3").split(","))
    vq = []
    def red_reads(delta):
        for q in range(3):
            for k in range(2):
                lds(("red", q), f"ds_read_b128 {vr(red+8*q+4*k,4)}, v{11 if q < 2 else 12} offset:{(8192*q if q < 2 else 0) + 20480*k}")
    for n in range(37):
        A = accd if n < 27 else accs
        Bn = HB + 4 * n if n < 27 else OB + 4 * (n - 27)
        first = n in (0, 27)
        if "g3st" in XF and n in (0, 2, 4, 5, 8, 12, 16, 17, 20, 24, 27, 28, 29, 31, 33, 35): stamp(a)
        if n == N_FLAG:
            w_vm("ost"); flag(a, sFO); out.append("fl")
        if n == N_CHK:
            w_vm("of")
            check_ne(a, [t])
            a("s_cbranch_vccnz L_sp_o")
            a.label("L_sp_o_done")
            stamp(a)
            if STAMP in (1, 2): lq.clear()
            ol = [(f"o{k}", b_load(OB + 4 * k, sO3, k)) for k in range(10)]
        if n % 4 == 2 and n + 2 < 37:
            c = (n + 2) // 4
            assert not any(x[0] == f"w{c}" for x in vq)
            w_vm(f"w{c}")
            if n == 30: w_lds("dw")
            a("s_barrier")
            if c + 2 < 10: vq += [(f"w{c+2}", x) for x in w3_dma(c + 2, SRD_WS if c + 2 < 9 else SRD_A)]
        if n == 28: a("s_barrier")
        if n == N_POLL: vq.insert(0, ("of", oflag))
        if n == 11: vq += [("x", f"buffer_load_dwordx2 {vr(x2+2*q,2)}, v{vo+q}, {sr(SRD_B,4)}, s{sOUT} offen") for q in range(3)]
        if n >= 27:
            assert not any(x[0] == f"o{n-27}" for x in ol)
            w_vm(f"o{n-27}")
        if n == 30: red_reads(0)
        if n == 31:
            w_lds(("red", 2))
            r = Rec(); r(f"s_mov_b32 s{sT}, {f32(-LOG2E)}")
            for q in range(3):
                for e in range(4): r(f"v_add_f32 v{g_+4*q+e}, v{red+8*q+e}, v{red+8*q+4+e}")
            for k in range(12): r(f"v_mul_f32 v{red+k}, s{sT}, v{g_+k}")
            for k in range(12): r(f"v_exp_f32 v{red+k}, v{red+k}")
            for k in range(12): r(f"v_add_f32 v{red+k}, 1.0, v{red+k}")
            for k in range(12): r(f"v_rcp_f32 v{red+k}, v{red+k}")
            for k in range(12): r(f"v_mul_f32 v{g_+k}, v{g_+k}, v{red+k}")
            for q in range(3):
                for k in range(2): r(f"v_lshlrev_b32 v{xs+4*q+2*k}, 16, v{x2+2*q+k}\nv_and_b32 v{xs+4*q+2*k+1}, 0xffff0000, v{x2+2*q+k}")
            for k in (11, 12, 14): r(f"v_add_u32 v{k}, {RS-RD}, v{k}")
            srd(r, SRD_B, pOUT, S * D * 2)
            assert not side and "x" not in out
            side = r.L
        for ct in range(5):
            w_lds((n, ct))
            a(f"v_mfma_f32_16x16x32_bf16 {vr(A+4*ct,4)}, {vr(Wf[n&1]+4*ct,4)}, {vr(Bn,4)}, {'0' if first else vr(A+4*ct,4)}")
            if n + 2 < 37: rd(n + 2, ct)
            if n == 28: lds("dw", f"ds_write_b128 v14, {vr(accd+4*ct,4)} offset:{64*ct}")
            gap = 5 * n + ct
            if n < N_CHK:
                if gap % WGAP == 0 and vq: vm(*vq.pop(0))
            elif gap % OGAP == 0:
                dw = 4 * int(vq[0][0][1:]) - 2 if vq else 99
                do = 27 + int(ol[0][0][1:]) if ol else 99
                if vq and dw <= do: vm(*vq.pop(0))
                elif ol: vm(*ol.pop(0))
            for _ in range(1 if n < 31 else 3):
                if side: a(side.pop(0))
    for x in side: a(x)
    assert not vq and not ol
    stamp(a)
    for ct in range(5): a(f"ds_write_b128 v14, {vr(accs+4*ct,4)} offset:{64*ct}")
    a("s_waitcnt lgkmcnt(0)\ns_barrier")
    red_reads(RS - RD)
    for q in range(3):
        a(f"s_waitcnt lgkmcnt({4-2*q})")
        for e in range(4):
            a(f"v_add_f32 v{red+8*q+e}, v{red+8*q+e}, v{red+8*q+4+e}\nv_fmac_f32 v{xs+4*q+e}, v{red+8*q+e}, v{g_+4*q+e}")
        for k in range(2): a(f"v_cvt_pk_bf16_f32 v{x2+2*q+k}, v{xs+4*q+2*k}, v{xs+4*q+2*k+1}")
        a(f"buffer_store_dwordx2 {vr(x2+2*q,2)}, v{vo+q}, {sr(SRD_B,4)}, s{sOUT} offen")

def build():
    hdr = open("cdna_kernels/%s.s.ref" % NAME).read().split("; Override launch")[0]
    a = Asm(); g = alloc_g1(); w = alloc_at()
    prologue(a, g); g1_setup(a, g)
    a(f"s_cmp_ge_u32 s{g.sC}, 30\ns_cbranch_scc1 L_role_r")
    g1_start(a, g)
    gemm1(a, g, w); attention(a, w, g); gemm3(a, w)
    stamp_flush(a)
    a.label("L_end"); a("s_endpgm")
    a.label("L_sp_o")
    spin(a, "L_sp_o_loop", [w.oflag], [T], "L_sp_o_done"); a("s_branch L_sp_o_done")
    for name, loads, tags in g.spins:
        a.label(name)
        spin(a, name + "_loop", loads, tags, name + "_done"); a(f"s_branch {name}_done")
    role_r(a, g, w)
    a.label("L_code_end")
    attn_cold(a, w)
    out = hdr + "; @launch grid=(256,1,1) block=(512,1,1) lds=163840\n"
    out += '.amdgcn_target "amdgcn-amd-amdhsa--gfx950"\n.text\n' + a.text()
    out += f""".section .rodata,"a"
.p2align 6
.amdhsa_kernel {NAME}_kernel
  .amdhsa_next_free_vgpr 256
  .amdhsa_next_free_sgpr 102
  .amdhsa_accum_offset 256
  .amdhsa_group_segment_fixed_size 0
  .amdhsa_kernarg_size 80
  .amdhsa_user_sgpr_count 2
  .amdhsa_user_sgpr_kernarg_segment_ptr 1
  .amdhsa_system_sgpr_workgroup_id_x 1
.end_amdhsa_kernel
"""
    if os.environ.get("NOPS"): print("auto nops:", *a.nops, sep="\n  ", file=sys.stderr)
    return out

if __name__ == "__main__":
    path = sys.argv[1] if len(sys.argv) > 1 else "cdna_kernels/%s.s" % NAME
    open(path, "w").write(build())
```

```python
import sys, os, math, struct
from asmlib import *

NAME = "recurrent_scan__softmax_full_mha__geglu_ffn__prompt"
S, D, F, NH, DH = 2048, 640, 1728, 32, 20
P_QKV, P_H, P_O = 240 * 512, 216 * 512, 80 * 512
OFF_QKV = 0
OFF_H = OFF_QKV + 64 * P_QKV
OFF_O = OFF_H + 64 * P_H
OFF_WP = OFF_O + 64 * P_O
OFF_ST = OFF_WP + 8 * 74 * 5 * 1024
OFF_CS = OFF_ST + 2048 * 8
OFF_FQ = OFF_CS + 90 * 4096
OFF_FH = OFF_FQ + 8192
OFF_FW = OFF_FH + 8192
OFF_FO = OFF_FW + 4096
OFF_EP = OFF_FO + 8192
WS_USED = OFF_EP + 256
def f32(x): return "0x%08x" % struct.unpack("<I", struct.pack("<f", x))[0]
LOG2E = 1.4426950408889634
QSCALE = DH ** -0.5 * LOG2E
GC1 = 2 * 0.7978845608028654 * LOG2E
GC3 = GC1 * 0.044715
SPIN_MAX = 1 << 16
SLEEP = int(os.environ.get('SLEEP', '8'))
XF = set(os.environ.get("XF", "").split(","))

pX, pWQKV, pWO, pBX, pWG, pWU, pWD, pOUT, pDBG, pWS = 4, 6, 8, 10, 12, 14, 16, 18, 20, 22
sWAVE = 3
SRD_WS, SRD_A, SRD_B = 24, 28, 32
_sp = Regs('s', 36, 64)
sTAG, sT, sU, sQ4, sHI, sSPIN = (_sp.one() for _ in range(6))
sDO, sDM = _sp.many(3, 1), _sp.many(3, 1)
sQA, sQB_, sQR, sOA, sOR, sFO = (_sp.one() for _ in range(6))
sH, sO3, sWO, sOUT, sFHc, sFWc, sFOc, sFHp, sHS, sM3 = (_sp.one() for _ in range(10))
S0 = 64
vLANE, vL16, vTAG, vIDX, vKMA, vKRA, vVA, vKVO, vQRO, vFQO, vBO, vSO = 1, 2, 3, 4, 5, 6, 7, 10, 11, 12, 13, 15
T = 16
HB = 24
WK = 132

STAMP = int(os.environ.get("STAMP", "0"))
REPORT = int(os.environ.get("REPORT", "0")); REPWG = int(os.environ.get("REPWG", "0"))
OFF_STAMP = WS_USED
if STAMP: WS_USED += 2048 * 128
class Stamper: n = 0
NSTAMP = 16
vST = 252
def stamp(a, real=False, idx=None):
    i = Stamper.n if idx is None else idx
    if idx is None: Stamper.n += 1
    if REPORT and i in (0, REPORT):
        au = a.auto; a.auto = True
        k = 96 if i == 0 else 98
        a(f"s_memrealtime s[{k}:{k+1}]\ns_waitcnt lgkmcnt(0)")
        a.auto = au
    if not STAMP: return
    if STAMP == 3:
        if not real: return
        i = 0 if i == 0 else 1
    au = a.auto; a.auto = True
    if STAMP == 2: real = True
    a(f"s_mem{'real' if real else ''}time s[100:101]\ns_waitcnt lgkmcnt(0)\nv_writelane_b32 v{vST}, s100, {i}")
    a.auto = au
def stamp_flush(a):
    if "probe" in XF:
        a(f"""s_waitcnt vmcnt(0) lgkmcnt(0)
        s_or_b32 s{sT}, s2, s{sWAVE}
        s_cmp_lg_u32 s{sT}, 0
        s_cbranch_scc1 L_probe_done""")
        srd(a, SRD_A, pBX, S * D * 2)
        a(f"s_mov_b32 s{sT}, 0")
        a.label("L_probe")
        a(f"""buffer_load_dword v{T}, off, {sr(SRD_A,4)}, s{sT}
        s_add_u32 s{sT}, s{sT}, {16384+128}
        s_waitcnt vmcnt(0)
        s_cmp_lt_u32 s{sT}, {128*(16384+128)}
        s_cbranch_scc1 L_probe""")
        a.label("L_probe_done")
    if REPORT:
        a("s_waitcnt vmcnt(0) lgkmcnt(0)")
        stamp(a)
        a(f"""s_cmp_lg_u32 s2, {REPWG}
        s_cbranch_scc1 L_end
        s_sub_u32 s98, s98, s96
        s_mul_i32 s98, s98, 4
        s_memrealtime s[96:97]
        s_waitcnt lgkmcnt(0)""")
        a.label("L_rep")
        a("""s_memrealtime s[100:101]
        s_waitcnt lgkmcnt(0)
        s_sub_u32 s100, s100, s96
        s_cmp_lt_u32 s100, s98
        s_cbranch_scc1 L_rep""")
        return
    if not STAMP: return
    a("s_waitcnt vmcnt(0) lgkmcnt(0)")
    stamp(a); stamp(a, True)
    print("stamps:", Stamper.n, file=sys.stderr)
    a(f"""s_lshl_b32 s{sT}, s2, 3
    s_add_u32 s{sT}, s{sT}, s{sWAVE}
    s_lshl_b32 s{sT}, s{sT}, 7
    s_add_u32 s{sT}, s{sT}, {OFF_STAMP}
    v_lshlrev_b32 v{T}, 2, v{vLANE}
    s_mov_b32 exec_hi, 0
    buffer_store_dword v{vST}, v{T}, {sr(SRD_WS,4)}, s{sT} offen""")

def srd(a, r, ptr, size):
    a(f"s_mov_b32 s{r}, s{ptr}\ns_mov_b32 s{r+1}, s{ptr+1}\ns_mov_b32 s{r+2}, {size}\ns_mov_b32 s{r+3}, 0x20000")
WS = sr(SRD_WS, 4)

def flag(a, soff, imm=0):
    a(f"s_mov_b64 exec, 1\nbuffer_store_dword v{vTAG}, off, {WS}, s{soff} offset:{imm} sc1\ns_mov_b64 exec, -1")

def check_ne(a, regs):
    a(f"v_xor_b32 v{regs[0]}, s{sTAG}, v{regs[0]}")
    for r in regs[1:]:
        a(f"v_xor_b32 v{r}, s{sTAG}, v{r}\nv_or_b32 v{regs[0]}, v{regs[0]}, v{r}")
    a(f"v_cmp_ne_u32 vcc, 0, v{regs[0]}")

def spin(a, lbl, loads, regs, done, SLEEP=SLEEP):
    a(f"s_mov_b32 s{sSPIN}, {SPIN_MAX}")
    a.label(lbl)
    for l in loads: a(l)
    a("s_waitcnt vmcnt(0)")
    check_ne(a, regs)
    a(f"""s_cbranch_vccz {done}
    s_sleep {SLEEP}
    s_sub_u32 s{sSPIN}, s{sSPIN}, 1
    s_cmp_lg_u32 s{sSPIN}, 0
    s_cbranch_scc1 {lbl}""")

def wave_sum(a, v):
    for m in ("quad_perm:[1,0,3,2]", "quad_perm:[2,3,0,1]", "row_half_mirror", "row_mirror"):
        a(f"v_add_f32_dpp v{v}, v{v}, v{v} {m} row_mask:0xf bank_mask:0xf")
    a(f"v_add_f32_dpp v{v}, v{v}, v{v} row_bcast:15 row_mask:0xa bank_mask:0xf")
    a(f"v_add_f32_dpp v{v}, v{v}, v{v} row_bcast:31 row_mask:0xc bank_mask:0xf")

LW, LDUMMY, LX = 0, 61440, 65536
G3_SLOT = 40960
A_BASE, A_REG, A_HALF, A_SLOT = 2 * G3_SLOT, 2112, 12800, 25600
A_ONES = A_BASE + 3 * A_SLOT + 128
A_XCH = A_BASE + 2 * A_SLOT
G3_RED = 3 * G3_SLOT

class G1: pass
def alloc_g1():
    g = G1(); V = Regs('v', 24, 252); sg = Regs('s', S0, 96)
    g.acc = [V.many(32, 4) for u in range(3)]
    g.Wf = [V.many(24, 4) for b in range(2)]
    g.Xf = [V.many(16, 4) for b in range(2)]
    g.X19 = V.many(16, 4)
    g.gr = V.many(20, 4)
    g.xb = V.many(2, 1); g.xa = V.many(2, 1); g.wb = V.many(2, 1); g.wa = V.many(2, 1); g.voff = V.many(4, 1); g.vtch = V.one(); g.x2 = g.wa
    g.raw = g.gr; g.e = g.gr + 6; g.ep = g.gr + 5
    for n in "sRB sC sOff sStep sD0 sD1 sM0 sMsz sMend sWrapW sWrapX sSize sRound sWr sXr sRow sGP sG0 sG1 sC0 sC1 sC2 sQ0 sQ1 sFQ sQS".split(): setattr(g, n, sg.one())
    g.V, g.sg = V, sg
    return g

def dma_ops(g, j, rolled=False):
    L = [f"buffer_load_dwordx4 v{g.voff+i}, {sr(SRD_A,4)}, s{g.sOff} offen offset:{1024*i} lds" for i in range(4)]
    L[0] = f"s_mov_b32 m0, s{g.sM0}\ns_add_u32 s{g.sM0}, s{g.sM0}, s{g.sMsz}\n" + L[0]
    e = f"s_add_u32 s{g.sOff}, s{g.sOff}, s{g.sD1 if j & 1 else g.sD0}"
    if rolled:
        e += f"""\ns_cmp_ge_u32 s{g.sM0}, s{g.sMend}
        s_cselect_b32 s{sT}, s{g.sWrapW}, 0
        s_sub_u32 s{g.sM0}, s{g.sM0}, s{sT}"""
    else:
        if j % 5 == 4: e += f"\ns_sub_u32 s{g.sM0}, s{g.sM0}, s{g.sWrapW}"
        if j % 6 == 5: e += f"\ns_sub_u32 s{g.sM0}, s{g.sM0}, s{g.sWrapX}"
    L[3] += "\n" + e
    return L

BURST = [int(x) for x in os.environ.get("BURST", "3,4,3").split(",")]
BSTAGE = [int(x) for x in os.environ.get("BSTAGE", "0,2,6").split(",")]
def cs_load(g, k):
    return f"buffer_load_dwordx4 {vr(g.X19+4*k,4)}, v{g.vtch}, {sr(SRD_A,4)}, s{g.sRow} offen offset:3072\ns_add_u32 s{g.sRow}, s{g.sRow}, s{g.sStep}"
def cs_setup(a, g):
    sel = g.gr + 16; t = T
    a(f"""v_and_b32 v{t}, 1, v{vLANE}
    v_lshlrev_b32 v{t}, 4, v{t}
    v_mov_b32 v{t+1}, 0x3f80
    v_lshlrev_b32 v{t}, v{t}, v{t+1}
    v_bfe_u32 v{t+1}, v{vLANE}, 1, 2""")
    for r in range(4): a(f"v_cmp_eq_u32 vcc, {r}, v{t+1}\nv_cndmask_b32 v{sel+r}, 0, v{t}, vcc")
_csn = [0]
def cs_acc(a, g, n, first):
    ac = g.gr + 8; sel = g.gr + 16
    _csn[0] += 1
    L = [f"s_cmp_ge_u32 s{sWAVE}, 3", f"s_cbranch_scc1 L_cs{_csn[0]}"]
    L += [f"v_mfma_f32_16x16x32_bf16 {vr(ac,4)}, {vr(sel,4)}, {vr(g.X19+4*k,4)}, {'0' if first and k == 0 else vr(ac,4)}" for k in range(n)]
    a.atom("\n".join(L + [f"L_cs{_csn[0]}:"]))
def cs_publish(a, g):
    ac = g.gr + 8; t = T
    a(f"""v_bfe_u32 v{t}, v{vLANE}, 3, 1
    v_cmp_eq_u32 vcc, 1, v{t}
    v_and_b32 v{t+1}, 7, v{vLANE}
    v_lshl_add_u32 v{t+1}, v{t+1}, 3, v{t}
    v_bfe_u32 v{t}, v{vLANE}, 4, 1
    v_lshl_add_u32 v{t+1}, v{t}, 2, v{t+1}
    v_lshrrev_b32 v{t}, 5, v{vLANE}
    v_lshlrev_b32 v{t}, 1, v{t}""")
    for r in range(4): a(f"v_add_f32_dpp v{ac+r}, v{ac+r}, v{ac+r} row_ror:8 row_mask:0xf bank_mask:0xf")
    a(f"""v_cndmask_b32 v{ac}, v{ac}, v{ac+1}, vcc
    v_cndmask_b32 v{ac+2}, v{ac+2}, v{ac+3}, vcc
    v_cmp_lt_u32 vcc, 31, v{vLANE}
    s_nop 0
    v_cndmask_b32 v{ac}, v{ac}, v{ac+2}, vcc
    v_cvt_pk_bf16_f32 v{ac+1}, v{ac}, v{ac}
    v_add_lshl_u32 v{t+1}, v{t+1}, v{t}, 4
    v_and_b32 v{ac+1}, 0xffff0000, v{ac+1}
    v_sub_f32 v{ac}, v{ac}, v{ac+1}
    v_mov_b32 v{ac+3}, v{vTAG}
    v_cvt_pk_bf16_f32 v{ac+2}, v{ac+1}, v{ac}
    s_mul_i32 s{sT}, s{sWAVE}, 30
    s_add_u32 s{sT}, s{sT}, s{g.sC}
    s_lshl_b32 s{sT}, s{sT}, 2
    s_lshr_b32 s{sU}, s{g.sRB}, 1
    s_add_u32 s{sT}, s{sT}, s{sU}
    s_lshl_b32 s{sT}, s{sT}, 7
    s_and_b32 s{sU}, s{g.sRB}, 1
    s_add_u32 s{sT}, s{sT}, s{sU}
    s_lshl_b32 s{sT}, s{sT}, 3
    s_add_u32 s{sT}, s{sT}, {OFF_CS}
    s_cmp_lt_u32 s{sWAVE}, 3
    s_cselect_b32 s{sT}, s{sT}, 0x7ff00000
    buffer_store_dwordx2 {vr(ac+2,2)}, v{t+1}, {WS}, s{sT} offen sc1""")

def prologue(a, g):
    t = T
    name = NAME + "_kernel"
    a.raw(f".globl {name}\n.p2align 8\n.type {name},@function")
    a.label(name)
    a(f"""s_cmp_ge_u32 s2, 256
    s_cbranch_scc1 L_end""")
    stamp(a, True); stamp(a)
    a(f"""s_load_dwordx16 s[4:19], s[0:1], 0
    s_load_dwordx4 s[20:23], s[0:1], 64
    v_lshrrev_b32 v{t}, 6, v0
    v_and_b32 v{vLANE}, 63, v0
    v_readfirstlane_b32 s{sWAVE}, v{t}
    v_lshlrev_b32 v{vL16}, 4, v{vLANE}""")
    if "code" in XF:
        NL = int(os.environ.get("CODEL", "18"))
        a(f"""s_cmp_lg_u32 s{sWAVE}, 3
        s_cbranch_scc1 L_nocode
        s_getpc_b64 s[{S0}:{S0+1}]""")
        a.label("L_pc")
        a(f"""s_bfe_u32 s{sT}, s2, 0x40003
        v_lshl_add_u32 v{t+2}, v{vLANE}, 4, s{sT}
        v_lshlrev_b32 v{t+2}, 7, v{t+2}
        v_min_u32 v{t+2}, L_code_end-L_pc-4, v{t+2}
        v_mov_b32 v{t+3}, s{S0+1}
        v_add_co_u32 v{t+2}, vcc, s{S0}, v{t+2}
        v_addc_co_u32 v{t+3}, vcc, 0, v{t+3}, vcc
        s_mov_b64 exec, {hex((1 << NL) - 1)}
        global_load_dword v{g.gr+5}, v[{t+2}:{t+3}], off
        s_mov_b64 exec, -1""")
        a.label("L_nocode")
    a(f"""
    s_and_b32 s{g.sRB}, s2, 1
    s_lshl_b32 s{g.sRB}, s{g.sRB}, 2
    s_bfe_u32 s{sT}, s2, 0x20003
    s_add_u32 s{g.sRB}, s{g.sRB}, s{sT}
    s_lshr_b32 s{g.sC}, s2, 5
    s_lshl_b32 s{g.sC}, s{g.sC}, 2
    s_bfe_u32 s{sT}, s2, 0x20001
    s_add_u32 s{g.sC}, s{g.sC}, s{sT}
    s_and_b32 s{sQ4}, s{sWAVE}, 3
    s_lshr_b32 s{sHI}, s{sWAVE}, 2
    s_lshl_b32 s{g.sRow}, s2, 3
    s_add_u32 s{g.sRow}, s{g.sRow}, s{sWAVE}
    ; DMA role by wave: 0 wqkv, 1 gate, 2 up, 3 none, 4.. x ; groups 27..29 have no gate/up unit (zeros)
    s_cmp_lt_u32 s{g.sC}, 27
    s_cselect_b32 s{g.sSize}, {D*F*2+3072}, 0
    s_movk_i32 s{sU}, {F*2}
    s_cmp_eq_u32 s{sWAVE}, 0
    s_cselect_b32 s{g.sSize}, {D*3*D*2+3072}, s{g.sSize}
    s_cselect_b32 s{sU}, {3*D*2}, s{sU}
    s_lshl_b32 s{g.sOff}, s{g.sC}, 7
    s_lshl_b32 s{g.sM0}, s{sQ4}, 12
    s_add_u32 s{g.sWr}, s{g.sM0}, {LX}
    s_movk_i32 s{g.sMsz}, 12288
    s_mov_b32 s{g.sWrapW}, {5*12288}
    s_cmp_eq_u32 s{sWAVE}, 3
    s_cselect_b32 s{g.sSize}, 0, s{g.sSize}
    s_cselect_b32 s{g.sM0}, {LDUMMY}, s{g.sM0}
    s_cselect_b32 s{g.sMsz}, 0, s{g.sMsz}
    s_cselect_b32 s{g.sWrapW}, 0, s{g.sWrapW}
    s_lshl_b32 s{sT}, s{g.sRB}, 1
    s_lshr_b32 s{g.sGP}, s2, 7
    s_add_u32 s{sT}, s{sT}, s{g.sGP}
    s_lshl_b32 s{sT}, s{sT}, 4
    s_add_u32 s{sT}, s{sT}, s{sQ4}
    s_mul_i32 s{sT}, s{sT}, {8*1280}
    s_mul_i32 s{g.sD1}, s{g.sGP}, {2*128*1280}
    s_sub_u32 s{g.sD0}, {128*1280}, s{g.sD1}
    s_sub_u32 s{g.sD1}, 128, s{g.sD0}
    s_lshl_b32 s{g.sStep}, s{sU}, 3
    s_lshl_b32 s{g.sMend}, s{sU}, 5
    s_bfe_u32 s{g.sGP}, s2, 0x20005
    s_and_b32 s{g.sXr}, s{g.sRB}, 3
    s_cmp_ge_u32 s{sWAVE}, 4
    s_cselect_b32 s{g.sSize}, {S*D*2+3072}, s{g.sSize}
    s_cselect_b32 s{sU}, 1280, s{sU}
    s_cselect_b32 s{g.sOff}, s{sT}, s{g.sOff}
    s_cselect_b32 s{g.sD0}, s{g.sD0}, s{g.sMend}
    s_cselect_b32 s{g.sD1}, s{g.sD1}, s{g.sMend}
    s_cselect_b32 s{g.sM0}, s{g.sWr}, s{g.sM0}
    s_cselect_b32 s{g.sMsz}, 16384, s{g.sMsz}
    s_cselect_b32 s{g.sWrapW}, 0, s{g.sWrapW}
    s_cselect_b32 s{g.sWrapX}, {6*16384}, 0
    s_cselect_b32 s{g.sGP}, s{g.sGP}, s{g.sXr}
    s_cselect_b32 s{g.sMend}, {32*1280}, s{g.sStep}
    s_cselect_b64 vcc, -1, 0
    s_cmp_ge_u32 s{g.sC}, 30
    s_cselect_b32 s{g.sSize}, 0, s{g.sSize}
    ; lane part: row l/8, pos = l%8 ; W: chunk = pos ^ (((row>>1)&1)<<2 | (i&1)<<1) ; x: chunk = pos ^ ((row>>1) + 4*(wave&1))
    v_lshrrev_b32 v{t}, 3, v{vLANE}
    v_mul_lo_u32 v{t}, v{t}, s{sU}
    v_and_b32 v{t+1}, 7, v{vLANE}
    v_lshrrev_b32 v{t+2}, 4, v{vLANE}
    v_and_b32 v{t+3}, 1, v{t+2}
    v_lshlrev_b32 v{t+3}, 2, v{t+3}
    s_and_b32 s{sT}, s{sWAVE}, 1
    v_lshl_or_b32 v{t+2}, s{sT}, 2, v{t+2}
    v_or_b32 v{t+5}, 2, v{t+3}
    v_cndmask_b32 v{t+4}, v{t+5}, v{t+2}, vcc
    v_cndmask_b32 v{t+2}, v{t+3}, v{t+2}, vcc
    v_xor_b32 v{t+2}, v{t+2}, v{t+1}
    v_xor_b32 v{t+4}, v{t+4}, v{t+1}
    v_lshl_add_u32 v{t+2}, v{t+2}, 4, v{t}
    v_lshl_add_u32 v{t+4}, v{t+4}, 4, v{t}""")
    for i in range(4):
        a(f"""s_xor_b32 s{sT}, s{g.sGP}, {i}
        s_mul_i32 s{sT}, s{sT}, s{g.sMend}
        s_add_u32 s{sT}, s{sT}, {3072 - 1024*i}
        v_add_u32 v{g.voff+i}, s{sT}, v{t+2+2*(i&1)}""")
    a(f"""
    v_lshl_add_u32 v{g.vtch}, v{t+1}, 4, v{t}
    v_mov_b32 v{t+1}, 0x7ffffff0
    v_cndmask_b32 v{g.vtch}, v{g.vtch}, v{t+1}, vcc
    v_lshlrev_b32 v{t}, 2, v{vLANE}
    s_mul_i32 s{g.sRound}, s{g.sRow}, 1280
    s_mul_i32 s{g.sRow}, s{g.sRB}, s{g.sStep}
    s_lshl_b32 s{g.sStep}, s{g.sStep}, 3
    s_add_u32 s{g.sRow}, s{g.sRow}, s{g.sOff}
    s_mov_b32 s{sU}, {OFF_EP}
    s_mov_b32 s{SRD_WS+2}, {WS_USED}
    s_mov_b32 s{SRD_WS+3}, 0x20000
    s_mov_b32 s{SRD_B+2}, {S*D*2}
    s_mov_b32 s{SRD_B+3}, 0x20000
    s_mov_b32 s{SRD_A+2}, s{g.sSize}
    s_mov_b32 s{SRD_A+3}, 0x20000
    s_waitcnt lgkmcnt(0)
    s_mov_b32 s{SRD_WS}, s{pWS}
    s_mov_b32 s{SRD_WS+1}, s{pWS+1}
    s_mov_b32 s{SRD_B}, s{pX}
    s_mov_b32 s{SRD_B+1}, s{pX+1}
    buffer_load_dwordx4 {vr(g.raw,4)}, v{vL16}, {sr(SRD_B,4)}, s{g.sRound} offen
    buffer_load_dword v{g.raw+4}, v{t}, {sr(SRD_B,4)}, s{g.sRound} offen offset:1024
    s_load_dword s{sTAG}, s[{pWS}:{pWS+1}], s{sU}
    s_cmp_eq_u32 s{sWAVE}, 1
    s_cselect_b32 s{SRD_A}, s{pWG}, s{pWU}
    s_cselect_b32 s{SRD_A+1}, s{pWG+1}, s{pWU+1}
    s_cmp_eq_u32 s{sWAVE}, 0
    s_cselect_b32 s{SRD_A}, s{pWQKV}, s{SRD_A}
    s_cselect_b32 s{SRD_A+1}, s{pWQKV+1}, s{SRD_A+1}
    s_cmp_ge_u32 s{sWAVE}, 4
    s_cselect_b32 s{SRD_A}, s{pX}, s{SRD_A}
    s_cselect_b32 s{SRD_A+1}, s{pX+1}, s{SRD_A+1}
    s_sub_u32 s{SRD_A}, s{SRD_A}, 3072
    s_subb_u32 s{SRD_A+1}, s{SRD_A+1}, 0""")
    a(f"s_cmp_ge_u32 s{sWAVE}, 3\ns_cbranch_scc1 L_nocs")
    for n in range(BURST[0]): a(cs_load(g, n))
    a.label("L_nocs")
    a("s_barrier")
    for x in dma_ops(g, 0): a(x)

def g1_addr(a, g):
    t = T
    a(f"""; x fragments: (t16>>3)*4096 + (t16&7)*128 + (((g ^ r) ^ (t16>>1))*16) + (tq>>1)*16384 + (tq&1)*2048
    v_and_b32 v{t}, 7, v{vLANE}
    v_lshrrev_b32 v{t+1}, 4, v{vLANE}
    v_bfe_u32 v{t+2}, v{vLANE}, 1, 3
    v_xor_b32 v{t+2}, v{t+2}, v{t+1}
    v_xor_b32 v{t+2}, s{g.sXr}, v{t+2}
    v_lshlrev_b32 v{t+2}, 4, v{t+2}
    v_lshl_add_u32 v{t+2}, v{t}, 7, v{t+2}
    v_bfe_u32 v{t}, v{vLANE}, 3, 1
    v_lshl_add_u32 v{t+2}, v{t}, 12, v{t+2}
    s_lshr_b32 s{sT}, s{sQ4}, 1
    s_mul_i32 s{sT}, s{sT}, 6
    s_add_u32 s{sT}, s{sT}, s{sQ4}
    s_lshl_b32 s{sT}, s{sT}, 11
    s_add_u32 s{sT}, s{sT}, {LX}
    v_add_u32 v{g.xb}, s{sT}, v{t+2}
    v_xor_b32 v{g.xb+1}, 64, v{g.xb}
    v_add_u32 v{g.x2}, 0x10000, v{g.xb}
    v_add_u32 v{g.x2+1}, 0x10000, v{g.xb+1}
    v_bfe_u32 v{t}, v{vLANE}, 2, 2
    v_lshl_add_u32 v{t+2}, v{t+1}, 3, v{t}
    v_lshlrev_b32 v{t+2}, 7, v{t+2}
    v_lshrrev_b32 v{t}, 1, v{t}
    v_xor_b32 v{t}, s{sHI}, v{t}
    v_lshl_add_u32 v{t+2}, v{t}, 6, v{t+2}
    v_and_b32 v{t}, 1, v{t+1}
    v_lshl_add_u32 v{t+2}, v{t}, 5, v{t+2}
    v_and_b32 v{t}, 3, v{vLANE}
    v_lshl_add_u32 v{g.wb}, v{t}, 3, v{t+2}
    v_xor_b32 v{g.wb+1}, 32, v{g.wb}""")

def g1_setup(a, g):
    g1_addr(a, g); cs_setup(a, g); gran_setup(a, g)
    if "pst" in XF: stamp(a)

def _pn(g): return g.sM0, g.sMsz, g.sWrapW, g.sWrapX, g.sOff, g.sD1
def params_a(a, g):
    t = g.voff
    sHD, sPA, sPS, sPAR, sTG, sX = _pn(g)
    a(f"""; attention: hd = xcd*4 + (j>>3) ; qb = j&7
    s_and_b32 s{sHD}, s2, 7
    s_lshr_b32 s{sX}, s2, 6
    s_lshl2_add_u32 s{sHD}, s{sHD}, s{sX}
    s_and_b32 s{sPAR}, s{sHD}, 1
    s_mul_i32 s{sX}, s{sHD}, 5
    s_lshr_b32 s{sX}, s{sX}, 1
    s_add_u32 s{sPA}, s{sX}, s{sPAR}
    s_add_u32 s{sTG}, s{sX}, 2
    s_sub_u32 s{sPS}, s{sTG}, s{sPAR}
    s_sub_u32 s{sPS}, s{sPS}, s{sPAR}
    s_lshl_b32 s{sPA}, s{sPA}, 9
    s_lshl_b32 s{sPS}, s{sPS}, 9
    s_lshl_b32 s{sPAR}, s{sPAR}, 3
    s_lshr_b32 s{sX}, s{sX}, 2
    s_lshr_b32 s{sTG}, s{sTG}, 2
    s_sub_u32 s{sTG}, s{sTG}, s{sX}
    v_lshrrev_b32 v{t}, 5, v{vLANE}
    v_and_b32 v{t+1}, 31, v{vLANE}
    v_and_b32 v{t+2}, s{sTG}, v{t}
    v_add_lshl_u32 v{t+2}, s{sX}, v{t+2}, 7
    v_lshl_add_u32 v{vFQO}, v{t+1}, 2, v{t+2}
    v_lshlrev_b32 v{t+1}, 4, v{t+1}
    s_mov_b32 s{sX}, {P_QKV}
    v_mad_u32_u24 v{vKVO}, v{t}, s{sX}, v{t+1}
    s_xor_b32 s{sTG}, s{sHI}, 1
    v_xor_b32 v{vQRO}, s{sTG}, v{t}
    v_mad_u32_u24 v{vQRO}, v{vQRO}, s{sX}, v{t+1}
    ; staging role: wave&2 -> k or v, wave&1 -> pair of token groups, one instruction per piece
    s_lshr_b32 s{sX}, s{sQ4}, 1
    s_and_b32 s{sTG}, s{sQ4}, 1
    s_mul_i32 s{sDM}, s{sX}, {3*A_REG}
    s_mul_i32 s{sDO}, s{sHI}, {A_HALF}
    s_add_u32 s{sDM}, s{sDM}, s{sDO}
    s_lshl_b32 s{sDO}, s{sTG}, 10
    s_add_u32 s{sDM}, s{sDM}, s{sDO}
    s_lshl4_add_u32 s{sTG}, s{sHI}, s{sTG}
    s_mul_i32 s{sTG}, s{sTG}, 6
    s_add_u32 s{sTG}, s{sTG}, s{sX}
    s_add_u32 s{sTG}, s{sTG}, 1
    s_mul_i32 s{sTG}, s{sTG}, {80*512}
    s_add_u32 s{sDO}, s{sTG}, s{sPA}
    s_add_u32 s{sDO+1}, s{sTG}, s{sPS}
    s_bfe_u32 s{sTG}, s2, 0x30003
    s_lshl2_add_u32 s{sTG}, s{sTG}, s{sQ4}
    s_add_u32 s{sPS}, s{sPS}, s{sPAR}
    s_mul_i32 s{sQR}, s{sTG}, {2*P_QKV}
    s_add_u32 s{sQR}, s{sQR}, s{sPS}
    s_lshl1_add_u32 s{sTG}, s{sTG}, s{sHI}
    s_xor_b32 s{sX}, s{sTG}, 1
    s_mul_i32 s{sQA}, s{sTG}, {P_QKV}
    s_mul_i32 s{sQB_}, s{sX}, {P_QKV}
    s_add_u32 s{sQA}, s{sQA}, s{sPA}
    s_add_u32 s{sQB_}, s{sQB_}, s{sPA}""")
    assert OFF_QKV == 0 and P_QKV == 3 * 80 * 512

def params_b(a, g):
    t = T
    sHD, sPA, sPS, sPAR, sTG, sX = _pn(g)
    a(f"""s_mul_i32 s{sT}, s{sHI}, {A_HALF}
    s_add_u32 s{sT}, s{sT}, {A_BASE}
    v_lshrrev_b32 v{t}, 5, v{vLANE}
    v_and_b32 v{t+1}, 0x1f0, v{vL16}
    v_mul_u32_u24 v{vKMA}, {A_REG}, v{t}
    v_add3_u32 v{vKMA}, v{vKMA}, v{t+1}, s{sT}
    s_add_u32 s{sU}, s{sPAR}, s{sT}
    s_add_u32 s{sU}, s{sU}, {2*A_REG}
    v_add_u32 v{vKRA}, s{sU}, v{t+1}
    v_bfe_u32 v{t+1}, v{vLANE}, 2, 2
    v_lshl_add_u32 v{t+1}, v{t}, 3, v{t+1}
    v_and_b32 v{t+2}, 1, v{vLANE}
    v_mul_u32_u24 v{t+2}, {A_REG}, v{t+2}
    v_bfe_u32 v{t+3}, v{vLANE}, 1, 1
    v_lshlrev_b32 v{t+3}, 3, v{t+3}
    s_add_u32 s{sT}, s{sT}, {3*A_REG}
    v_add3_u32 v{t+2}, v{t+3}, v{t+2}, s{sT}
    s_add_u32 s{sU}, s{sU}, {3*A_REG}
    v_mov_b32 v{t+5}, s{sU}
    v_and_b32 v{t+4}, 19, v{vLANE}
    v_cmp_eq_u32 vcc, 16, v{t+4}
    v_add_u32 v{t+3}, {A_ONES}, v{t+3}
    v_mov_b32 v{vIDX}, 0xdddddddd
    v_cndmask_b32 v{t+2}, v{t+2}, v{t+5}, vcc
    v_cmp_lt_u32 vcc, 16, v{t+4}
    v_mov_b32 v{t+5}, {A_SLOT}
    s_nop 0
    v_cndmask_b32 v{t+2}, v{t+2}, v{t+3}, vcc
    v_cndmask_b32 v{t+5}, v{t+5}, 0, vcc
    v_lshl_add_u32 v{vVA}, v{t+1}, 4, v{t+2}
    v_add_u32 v{vVA+1}, v{vVA}, v{t+5}
    v_add_u32 v{vVA+2}, v{vVA+1}, v{t+5}""")

def params_c(a, g):
    sHD, sPA, sPS, sPAR, sTG, sX = _pn(g)
    a(f"""; H flag of this wave as a producer (dummy word 63 when it produces none)
    s_lshl1_add_u32 s{sFHp}, s{g.sC}, s{sHI}""")
    a.atom(f"s_cmp_lt_u32 s{g.sC}, 27\ns_cselect_b32 s{sFHp}, s{sFHp}, 63")
    sTB, sCB = sPA, sPS
    a(f"""s_lshr_b32 s{sX}, s2, 6
    s_xor_b32 s{sX}, s{sX}, s{sQ4}
    s_lshl2_add_u32 s{sX}, s{g.sRB}, s{sX}
    s_lshl_b32 s{sX}, s{sX}, 8
    s_lshl2_add_u32 s{sFHp}, s{sFHp}, s{sX}
    s_add_u32 s{sFHp}, s{sFHp}, {OFF_FH}
    s_mul_i32 s{sX}, s{sTG}, {P_O}
    s_add_u32 s{sX}, s{sX}, {OFF_O}
    s_add_u32 s{sOR}, s{sX}, s{sPS}
    s_add_u32 s{sOA}, s{sX}, s{sPA}
    s_lshl_b32 s{sFO}, s{sTG}, 7
    s_lshl2_add_u32 s{sFO}, s{sHD}, s{sFO}
    s_add_u32 s{sFO}, s{sFO}, {OFF_FO}
    s_bfe_u32 s{sTB}, s2, 0x20001
    s_bfe_u32 s{sX}, s2, 0x30003
    s_lshl3_add_u32 s{sTB}, s{sTB}, s{sX}
    s_and_b32 s{sCB}, s2, 1
    s_lshr_b32 s{sX}, s2, 6
    s_lshl2_add_u32 s{sCB}, s{sCB}, s{sX}
    s_lshl1_add_u32 s{sX}, s{sCB}, s{sHI}
    s_lshl_b32 s{sFWc}, s{sX}, 8
    s_add_u32 s{sFWc}, s{sFWc}, {OFF_FW}
    s_mul_i32 s{sX}, s{sX}, 37
    s_add_u32 s{sX}, s{sX}, s{sQ4}
    s_mul_i32 s{sWO}, s{sX}, 5120
    s_add_u32 s{sWO}, s{sWO}, {OFF_WP}
    s_lshl_b32 s{sFHc}, s{sTB}, 8
    s_mul_i32 s{sX}, s{sHI}, {27*4}
    s_add_u32 s{sFHc}, s{sFHc}, s{sX}
    s_add_u32 s{sFHc}, s{sFHc}, {OFF_FH}
    s_mul_i32 s{sOUT}, s{sTB}, {64*1280}
    s_mul_i32 s{sX}, s{sCB}, 160
    s_add_u32 s{sOUT}, s{sOUT}, s{sX}
    s_lshr_b32 s{sX}, s{sQ4}, 1
    s_lshl1_add_u32 s{sTB}, s{sTB}, s{sX}
    s_lshl1_add_u32 s{sTB}, s{sTB}, s{sHI}
    s_and_b32 s{sX}, s{sQ4}, 1
    s_lshl_b32 s{sX}, s{sX}, 8
    s_mul_i32 s{sH}, s{sTB}, {P_H//2}
    s_add_u32 s{sH}, s{sH}, s{sX}
    s_add_u32 s{sH}, s{sH}, {OFF_H}
    s_mul_i32 s{sO3}, s{sTB}, {P_O//2}
    s_add_u32 s{sO3}, s{sO3}, s{sX}
    s_add_u32 s{sO3}, s{sO3}, {OFF_O}
    s_lshl_b32 s{sFOc}, s{sTB}, 6
    s_add_u32 s{sFOc}, s{sFOc}, {OFF_FO}
    s_mul_i32 s{sM3}, s{sWAVE}, 5120""")
    assert P_H // 2 == 27 * 2048 and P_O // 2 == 10 * 2048

def stats(a, g):
    raw, e, t = g.raw, g.e, T
    for i in range(5):
        a(f"v_lshlrev_b32 v{e+2*i}, 16, v{raw+i}\nv_and_b32 v{e+2*i+1}, 0xffff0000, v{raw+i}")
    a(f"v_add_f32 v{t}, v{e}, v{e+1}")
    for i in range(2, 10): a(f"v_add_f32 v{t}, v{t}, v{e+i}")
    wave_sum(a, t)
    a(f"v_mul_f32 v{t}, {f32(1.0/D)}, v{t}\nv_readlane_b32 s{sT}, v{t}, 63")
    for i in range(10): a(f"v_subrev_f32 v{e+i}, s{sT}, v{e+i}")
    a(f"v_mul_f32 v{t+1}, v{e}, v{e}")
    for i in range(1, 10): a(f"v_fmac_f32 v{t+1}, v{e+i}, v{e+i}")
    a(f"""s_waitcnt lgkmcnt(0)
    s_mul_i32 s{sTAG}, s{sTAG}, 0x9e3779b1
    s_add_u32 s{sTAG}, s{sTAG}, 0x7f4a7c15
    v_mov_b32 v{vTAG}, s{sTAG}""")
    wave_sum(a, t + 1)
    a(f"""v_mul_f32 v{t+1}, {f32(1.0/D)}, v{t+1}
    v_cvt_pk_bf16_f32 v{t+1}, v{t+1}, v{t+1}
    v_and_b32 v{t+1}, 0xffff0000, v{t+1}
    v_add_f32 v{t+1}, {f32(1e-5)}, v{t+1}
    v_cvt_pk_bf16_f32 v{t+1}, v{t+1}, v{t+1}
    v_and_b32 v{t+1}, 0xffff0000, v{t+1}
    v_sqrt_f32 v{t+1}, v{t+1}
    v_mov_b32 v{t+3}, v{vTAG}
    v_cvt_pk_bf16_f32 v{t+2}, v{t}, v{t+1}
    s_lshl_b32 s{sT}, s2, 3
    s_add_u32 s{sT}, s{sT}, s{sWAVE}
    s_lshl_b32 s{sT}, s{sT}, 3
    s_add_u32 s{sT}, s{sT}, {OFF_ST}""")
    g.st_store = f"""s_mov_b32 exec_lo, 0
    s_brev_b32 exec_hi, 1
    buffer_store_dwordx2 {vr(t+2,2)}, off, {WS}, s{sT} sc1
    s_mov_b64 exec, -1"""

def x_reads(g, dst, ks): return [f"ds_read_b128 {vr(dst+4*q,4)}, v{g.xa+ks} offset:{q*2048}" for q in range(4)]
def w_reads(g, dst, u, base=None, off=0):
    A = g.wa if base is None else base
    return [f"ds_read_b64_tr_b16 {vr(dst+4*p+2*rd,2)}, v{A+p} offset:{off + u*4096 + rd*512}" for p in range(2) for rd in range(2)]
def mm(g, u, W, X, qs=range(4)):
    return [f"v_mfma_f32_16x16x32_bf16 {vr(g.acc[u]+8*q+4*p,4)}, {vr(W+4*p,4)}, {vr(X+4*q,4)}, {vr(g.acc[u]+8*q+4*p,4)}" for p in range(2) for q in qs]
def weave(a, mf, fill):
    for k, m in enumerate(mf):
        a(m)
        for x in fill.get(k, []): a(x)

class Rec:
    def __init__(self): self.L = []
    def __call__(self, text):
        self.L += [l.strip() for l in text.strip().split("\n") if l.strip() and not l.strip().startswith(";")]
    def atom(self, text): self.L.append(text)
Asm.atom = lambda self, text: self(text)

def xs_reads(g, dst, i):
    sl = (i >> 1) % 3
    return [f"ds_read_b128 {vr(dst+4*q,4)}, v{(g.x2 if sl == 2 else g.xb)+(i&1)} offset:{(sl&1)*32768*(sl < 2) + (q&1)*8192 + (q>>1)*1024}" for q in range(4)]
def ws_reads(g, dst, i, u): return w_reads(g, dst, u, g.wb, LW + (i % 5) * 12288)

def g1_start(a, g):
    for x in dma_ops(g, 1): a(x)
    a("s_barrier")
    for x in dma_ops(g, 2): a(x)
    if "pst" in XF: stamp(a)
    a("s_waitcnt vmcnt(12)")
    stats(a, g)
    for x in dma_ops(g, 3): a(x)
    a(g.st_store)
    stamp(a)
    a("s_waitcnt vmcnt(9)\ns_barrier")
    stamp(a)
    for r in xs_reads(g, g.Xf[0], 0): a(r)
    for u in range(3):
        for r in ws_reads(g, g.Wf[0] + 8 * u, 0, u): a(r)

def g1_main(a, g):
    def rec(f, *args):
        r = Rec(); f(r, *args); return r.L
    def burst(n, name):
        return ("cs", name, n, "\n".join([f"s_cmp_ge_u32 s{sWAVE}, 3", f"s_cbranch_scc1 L_{name}"] + [cs_load(g, k) for k in range(n)] + [f"L_{name}:"]))
    side = rec(cs_acc, g, BURST[0], True)
    side += [("at", BSTAGE[1]), ("k", 7), burst(BURST[1], "c1")]
    side += [("at", BSTAGE[2]), ("wait", "c1")] + rec(cs_acc, g, BURST[1], False) + [("k", 7), burst(BURST[2], "c2")]
    side += [("at", BSTAGE[2] + 3), ("wait", "c2")] + rec(cs_acc, g, BURST[2], False) + rec(cs_publish, g)
    g.spins = []
    g.l0 = [x + y for x, y in zip(st_loads(g), cs_loads(g, 0))]
    side += [("at", 15)] + sum(([("k", 3 + 6 * j), ("vm", "gr", l)] for j, l in enumerate(g.l0[0])), [])
    if "noside" in XF:
        for x in side:
            if isinstance(x, tuple):
                if x[0] == "wait": a("s_waitcnt vmcnt(0)")
                if x[0] == "vm": a(x[2])
            else: a(x)
        side = []
    out = ["r2"] * 4 + ["r3"] * 4 + ["st"]
    def wait(need):
        idx = max([j for j, x in enumerate(out) if x in need], default=-1)
        if idx >= 0:
            a(f"s_waitcnt vmcnt({sum(1 for x in out[idx+1:] if x[0] != 'c')})"); del out[:idx + 1]
    GP = [int(x) for x in os.environ.get("GP", "1,9,16,21").split(",") if x]
    PER = int(os.environ.get("SIDE", "1"))
    for i in range(16):
        b = i & 1; n = b ^ 1
        mf = sum((mm(g, u, g.Wf[b] + 8 * u, g.Xf[b]) for u in range(3)), [])
        if i == 0: mf = [m[:m.rindex(",")] + ", 0" for m in mf]
        xr = xs_reads(g, g.Xf[n], i + 1); wr = [ws_reads(g, g.Wf[n] + 8 * u, i + 1, u) for u in range(3)]
        rd = [xr[0]] + wr[0][:2] + xr[1:] + wr[0][2:] + wr[1] + wr[2]
        vm = {}
        if i == 0:
            for k, x in enumerate(dma_ops(g, 4) + dma_ops(g, 5)): vm[2 + 3 * k] = (f"r{4 + k // 4}", x)
        elif i + 5 < 20:
            for pos, x in zip((4, 10, 16, 22), dma_ops(g, i + 5)): vm[pos] = (f"r{i+5}", x)
        a("s_waitcnt lgkmcnt(0)")
        if "sst" in XF: stamp(a)
        if "nodma" in XF: vm = {}
        for k, m in enumerate(mf):
            a(m)
            if k == 1:
                wait([f"r{i+1}"] + ([f"r{i+2}"] if b else []))
                a("s_barrier")
            if GP and k in GP: a(f"s_setprio {len(GP) - 1 - GP.index(k)}")
            if k >= 2 and rd: a(rd.pop(0))
            if k in vm: a(vm[k][1]); out.append(vm[k][0])
            if k == 1: continue
            left = PER
            while left and side:
                x = side[0]
                if isinstance(x, tuple):
                    if x[0] == "at" and i < x[1]: break
                    if x[0] == "k" and k < x[1]: break
                    side.pop(0)
                    if x[0] == "per": PER = x[1]
                    if x[0] == "wait": wait([x[1]])
                    if x[0] == "vm": a(x[2]); out.append(x[1]); left = 0
                    if x[0] == "cs": a(x[3]); out.extend([x[1]] * x[2]); left = 0
                    continue
                side.pop(0); a(x); left -= 1
                if "buffer_store" in x: out.append("st")
                while side and isinstance(side[0], str) and ((x.startswith("s_cmp") and "\n" not in x) or side[0].startswith("s_cselect")):
                    x = side.pop(0); a(x)
        if os.environ.get("NOPS"): print("stage", i, "side left", len(side), file=sys.stderr)
    assert not side
    return out

def gran_setup(a, g):
    t = T; vst = g.xa; vcs = g.xa + 1; sTG = g.sRound
    a(f"""s_lshr_b32 s{sTG}, s2, 6
    s_xor_b32 s{sTG}, s{sTG}, s{sQ4}
    s_lshl2_add_u32 s{sTG}, s{g.sRB}, s{sTG}
    s_bfe_u32 s{g.sGP}, s2, 0x10005
    s_lshl1_add_u32 s{g.sGP}, s{sTG}, s{g.sGP}
    s_lshl_b32 s{g.sG0}, s{sTG}, 9
    s_add_u32 s{g.sG0}, s{g.sG0}, {OFF_ST}
    s_lshl_b32 s{g.sC0}, s{g.sC}, 3
    s_add_u32 s{g.sC0}, s{g.sC0}, s{sHI}
    s_lshl_b32 s{g.sC0}, s{g.sC0}, 9
    s_add_u32 s{g.sC0}, s{g.sC0}, {OFF_CS}
    s_add_u32 s{g.sC1}, s{g.sC0}, {30*4096}
    s_add_u32 s{g.sC2}, s{g.sC0}, {60*4096}
    v_and_b32 v{vst}, 15, v{vLANE}
    v_lshrrev_b32 v{vcs}, 4, v{vLANE}
    v_lshlrev_b32 v{vcs}, 6, v{vcs}
    v_add_lshl_u32 v{vcs}, v{vcs}, v{vst}, 4
    v_lshlrev_b32 v{vst}, 3, v{vst}
    v_bfe_u32 v{vSO}, v{vLANE}, 4, 1
    v_lshlrev_b32 v{vSO}, 10, v{vSO}
    v_lshrrev_b32 v{t}, 5, v{vLANE}
    v_lshl_add_u32 v{vSO}, v{t}, 9, v{vSO}
    v_lshl_add_u32 v{vSO}, v{vst}, 1, v{vSO}
    s_and_b32 s{sT}, s2, 32
    v_xor_b32 v{vst}, s{sT}, v{vLANE}
    v_lshlrev_b32 v{vst}, 3, v{vst}
    s_lshl_b32 s{sT}, s{g.sC}, 12
    s_lshl_b32 s{sU}, s{sHI}, 11
    s_add_u32 s{sT}, s{sT}, s{sU}
    s_xor_b32 s{sU}, s{g.sGP}, 1
    s_mul_i32 s{g.sQ0}, s{g.sGP}, {P_QKV}
    s_mul_i32 s{g.sQ1}, s{sU}, {P_QKV}
    s_add_u32 s{g.sQ0}, s{g.sQ0}, s{sT}
    s_add_u32 s{g.sQ1}, s{g.sQ1}, s{sT}
    s_mul_i32 s{sHS}, s{g.sGP}, {P_H}
    s_mul_i32 s{g.sXr}, s{sU}, {P_H}
    s_add_u32 s{sU}, s{sT}, {OFF_H}
    s_add_u32 s{sHS}, s{sHS}, s{sU}
    s_add_u32 s{g.sXr}, s{g.sXr}, s{sU}
    s_lshr_b32 s{sT}, s{sT}, 4
    s_lshl2_add_u32 s{g.sFQ}, s{sTG}, s{sT}
    s_add_u32 s{g.sFQ}, s{g.sFQ}, {OFF_FQ}
    s_cmp_lt_u32 s{g.sC}, 10
    s_cselect_b32 s{g.sQS}, {f32(QSCALE)}, 1.0""")
def st_loads(g): return [f"buffer_load_dwordx2 {vr(g.gr,2)}, v{g.xa}, {WS}, s{g.sG0} offen sc1"], [g.gr + 1]
def cs_loads(g, u):
    return ([f"buffer_load_dwordx4 {vr(g.gr+8+4*p,4)}, v{g.xa+1}, {WS}, s{(g.sC0, g.sC1, g.sC2)[u]} offen offset:{256*p} sc1" for p in range(2)],
            [g.gr + 9 + 2 * k for k in range(4)])
def gate(a, g, name, loads, tags):
    check_ne(a, tags)
    a.atom(f"s_cbranch_vccnz {name}\n{name}_done:")
    g.spins.append((name, loads, tags))
    for p in range(2): a(f"v_mov_b32 v{g.gr+9+4*p}, v{g.gr+10+4*p}")

def gran_use(a, g):
    t = T
    a(f"""v_mov_b32 v{g.gr+4}, v{g.gr}
    s_mov_b32 s{sT}, 0x01000100
    v_permlane32_swap_b32 v{g.gr}, v{g.gr+4}
    v_mov_b32 v{g.gr+2}, v{g.gr}
    v_mov_b32 v{g.gr+6}, v{g.gr+4}
    v_permlane16_swap_b32 v{g.gr}, v{g.gr+2}
    v_permlane16_swap_b32 v{g.gr+4}, v{g.gr+6}""")
    for q in range(4):
        a(f"""v_and_b32 v{t+q}, 0xffff0000, v{g.gr+2*q}
        v_perm_b32 v{g.gr+2*q}, v{g.gr+2*q}, v{g.gr+2*q}, s{sT}
        v_rcp_f32 v{t+4+q}, v{t+q}
        v_xor_b32 v{g.gr+2*q+1}, 0x80008000, v{g.gr+2*q}
        v_xor_b32 v{g.gr+2*q}, 0x80008000, v{g.gr+2*q}
        v_mul_f32 v{g.gr+16+q}, s{g.sQS}, v{t+4+q}""")
def corr(g, u):
    return [f"v_mfma_f32_16x16x16_bf16 {vr(g.acc[u]+8*q+4*p,4)}, {vr(g.gr+8+4*p,2)}, {vr(g.gr+2*q,2)}, {vr(g.acc[u]+8*q+4*p,4)}" for q in range(4) for p in range(2)]
def pack(A):
    return [f"v_cvt_pk_bf16_f32 v{A+r}, v{A+2*r}, v{A+2*r+1}" for r in range(4)]
def swaps(A): return [f"v_permlane16_swap_b32 v{A}, v{A+2}", f"v_permlane16_swap_b32 v{A+1}, v{A+3}"]
def epi_q(g):
    out = []
    for q in range(4):
        A = g.acc[0] + 8 * q; rq = g.gr + 16 + q
        L = [f"v_mul_f32 v{A+r}, v{rq}, v{A+r}" for r in range(8)] + pack(A)
        out.append((L, swaps(A), f"buffer_store_dwordx4 {vr(A,4)}, v{vSO}, {WS}, s{g.sQ1 if q >= 2 else g.sQ0} offen offset:{256*(q&1)} sc1"))
    return out

def gemm1(a, g, w):
    t = T
    out = g1_main(a, g)
    stamp(a)
    X = [g.Xf[0], g.Xf[1], g.Wf[1] + 8, g.X19]; Wa, Wb = g.Wf[0], g.Wf[1]
    def xr(i): return xs_reads(g, X[i - 16], i)
    def wr(i, u, dst): return ws_reads(g, dst, i, u)
    def both(i, dst):
        x, v = xr(i), wr(i, 0, dst)
        return v[:2] + x + v[2:]
    def step(u, W, i, rd, pre=None, extra=None, byq=False):
        fill = {}
        if pre: fill[0] = [pre]
        for k, r in enumerate(rd): fill.setdefault(k // 2, []).append(r)
        for k, x in enumerate(extra or []): fill.setdefault(k * 8 // len(extra), []).append(x)
        mf = mm(g, u, W, X[i - 16])
        if byq: mf = [mf[p * 4 + q] for q in range(4) for p in range(2)]
        weave(a, mf, fill)
    PRIO = "noprio" not in XF
    TP = "tp" in XF
    if PRIO: a("s_setprio 3")
    l1, t1 = cs_loads(g, 1); l2, t2 = cs_loads(g, 2)
    r = Rec(); gate(r, g, "L_sp_st", *g.l0); gran_use(r, g); gu = r.L; h1 = len(gu) // 2
    for x in both(17, Wb)[:4]: a(x)
    a("s_waitcnt lgkmcnt(4)"); step(0, Wa, 16, both(17, Wb)[4:])
    if "qold" in XF:
        a("s_waitcnt lgkmcnt(0)"); step(0, Wb, 17, both(18, Wa), pre="s_waitcnt vmcnt(0)\ns_barrier", extra=gu[:h1])
        a("s_waitcnt lgkmcnt(0)"); step(0, Wa, 18, both(19, Wb), extra=gu[h1:])
        weave(a, corr(g, 0), {0: wr(17, 1, Wa)})
        a("s_waitcnt lgkmcnt(4)"); step(0, Wb, 19, [], extra=["", l1[0], "", l1[1]], byq=True)
        eq = epi_q(g)
        ep = eq[0][0] + eq[1][0][:2] + eq[0][1] + [eq[0][2]] + eq[1][0][2:] + eq[2][0][:2] + eq[1][1] + [eq[1][2]] + eq[2][0][2:] + eq[3][0][:2] + eq[2][1] + [eq[2][2]] + eq[3][0][2:]
        step(1, g.Wf[0] + 8, 16, wr(18, 1, Wb), extra=ep)
    else:
        a("s_waitcnt lgkmcnt(0)"); step(0, Wb, 17, both(18, Wa) + xr(19), pre="s_waitcnt vmcnt(0)\ns_barrier", extra=gu[:h1])
        for x in wr(19, 0, Wb) + gu[h1:]: a(x)
        for m in corr(g, 0): a(m)
        for x in l1: a(x)
        a("s_waitcnt lgkmcnt(0)")
        eq = epi_q(g)
        qq = lambda q: mm(g, 0, Wa, X[2], [q]) + mm(g, 0, Wb, X[3], [q])
        g16 = mm(g, 1, g.Wf[0] + 8, X[0])
        for m in qq(0) + qq(1): a(m)
        def mix(V_, mf, every):
            for k, x in enumerate(V_):
                a(x)
                if k % every == every - 1 and mf: a(mf.pop(0))
            for m in mf: a(m)
        mix(eq[0][0], qq(2), 3)
        mix(eq[1][0][:2] + eq[0][1] + [eq[0][2]] + eq[1][0][2:], qq(3), 3)
        for x in wr(17, 1, Wa) + wr(18, 1, Wb): a(x)
        mix(eq[2][0][:2] + eq[1][1] + [eq[1][2]] + eq[2][0][2:] + eq[3][0][:2] + eq[2][1] + [eq[2][2]] + eq[3][0][2:], g16, 4)
    tmp = g.acc[0]; Z0, Z1, Z2 = tmp + 8, tmp + 16, tmp + 24; G = g.acc[1]; U = g.acc[2]; vc1 = g.xb
    for x in wr(19, 1, Z0)[:2] + eq[3][1] + wr(19, 1, Z0)[2:] + [eq[3][2]]: a(x)
    if "qst" in XF: stamp(a)
    a("s_setprio 2")
    params_a(a, g)
    a("s_waitcnt vmcnt(4)")
    gate(a, g, "L_sp_g", l1, t1)
    a(f"s_mov_b32 s{g.sD0}, {f32(-GC3)}\nv_mov_b32 v{vc1}, {f32(-GC1)}")
    weave(a, corr(g, 1), {0: wr(17, 2, Z1), 2: wr(18, 2, Z2), 7: l2})
    def gq(q): return [m for W, i in ((Wa, 17), (Wb, 18), (Z0, 19)) for m in mm(g, 1, W, X[i - 16], [q])]
    def uk(W, i): return mm(g, 2, W, X[i - 16])
    a("s_waitcnt lgkmcnt(8)")
    for m in gq(0): a(m)
    stamp(a)
    FQ = int(os.environ.get("FQ", "1"))
    u16 = uk(g.Wf[0] + 16, 16)
    for m in u16[:4]: a(m)
    plan = [gq(1) + u16[4:], gq(2) + uk(Z1, 17), gq(3) + corr(g, 2), uk(Z2, 18) + [uk(Z1, 19)[p * 4 + q] for q in range(4) for p in range(2)]]
    for h in range(4):
        if h == FQ:
            a("s_waitcnt vmcnt(0)"); flag(a, g.sFQ)
        if h == 1: a("s_waitcnt lgkmcnt(0)\ns_setprio 1")
        if h == 2:
            assert FQ <= 2
            gate(a, g, "L_sp_u", l2, t2)
            for x in wr(19, 2, Z1): a(x)
            attn_poll(a, w)
            a("s_setprio 0")
        if h == 3:
            attn_open(a, w, early=True)
            a("s_waitcnt lgkmcnt(0)\ns_setprio 1")
        R = range(8)
        Gh = G + 8 * h
        V_ = [f"v_mul_f32 v{Gh+r}, v{t+4+h}, v{Gh+r}" for r in R] + [f"v_mul_f32 v{tmp+r}, v{Gh+r}, v{Gh+r}" for r in R]
        V_ += [f"v_fma_f32 v{tmp+r}, v{tmp+r}, s{g.sD0}, v{vc1}" for r in R] + [f"v_mul_f32 v{tmp+r}, v{tmp+r}, v{Gh+r}" for r in R]
        V_ += [f"v_exp_f32 v{tmp+r}, v{tmp+r}" for r in R] + [f"v_fma_f32 v{tmp+r}, v{tmp+r}, v{t+h}, v{t+h}" for r in R]
        V_ += [f"v_rcp_f32 v{tmp+r}, v{tmp+r}" for r in R] + [f"v_mul_f32 v{Gh+r}, v{Gh+r}, v{tmp+r}" for r in R]
        mf = plan[h]
        if "gtr" in XF:
            pos = ([32 + k for k in range(8)] + [48 + k for k in range(8)])[:len(mf)]
        else:
            cost = [8 if ("exp" in x or "rcp" in x) else 4 for x in V_]; tot = sum(cost); acc_ = 0; pos = []
            for k, c in enumerate(cost):
                while len(pos) < len(mf) and acc_ >= len(pos) * (tot - 40) / len(mf): pos.append(k)
                acc_ += c
        for k, x in enumerate(V_):
            a(x)
            for j, pp in enumerate(pos):
                if pp == k: a(mf[j])
    a("s_setprio 0")
    r = Rec()
    for k in range(32): r(f"v_mul_f32 v{U+k}, v{U+k}, v{G+k}")
    for q in range(4):
        for x in pack(U + 8 * q): r(x)
    for q in range(4):
        for x in swaps(U + 8 * q): r(x)
    w.fin = r.L
    w.hst = [f"buffer_store_dwordx4 {vr(U+8*q,4)}, v{vSO}, {sr(SRD_B,4)}, s{g.sXr if q >= 2 else sHS} offen offset:{256*(q&1)} sc1" for q in range(4)]

def role_r(a, g, w):
    a.label("L_role_r")
    a("s_waitcnt vmcnt(0)")
    stats(a, g)
    a(g.st_store)
    sg = Regs('s', S0 + 17, 96); t = T
    sKS, sOff, sDst, sM, sN, sK2 = (sg.one() for _ in range(6)); sFl = sg.many(5, 1)
    V = Regs('v', 24 + 48 + 8, 252)
    vo = V.many(5, 1); va = V.many(5, 1); fr = V.many(20, 4)
    a(f"s_lshl_b32 s{sT}, s{sWAVE}, 2")
    for i in range(5):
        a(f"""v_add_u32 v{t}, {64*i}, v{vLANE}
        v_mul_u32_u24 v{t+1}, 820, v{t}
        v_lshrrev_b32 v{t+1}, 16, v{t+1}
        v_mul_u32_u24 v{t+2}, 80, v{t+1}
        v_sub_u32 v{t+2}, v{t}, v{t+2}
        v_add_u32 v{t+3}, s{sT}, v{t+1}
        v_lshrrev_b32 v{t+4}, 1, v{t+3}
        v_and_b32 v{t+4}, 4, v{t+4}
        v_or_b32 v{t+4}, v{t+4}, v{t+1}
        v_lshlrev_b32 v{t+4}, 1, v{t+4}
        v_xor_b32 v{t+2}, v{t+2}, v{t+4}
        v_mul_u32_u24 v{t+3}, 1280, v{t+3}
        v_lshl_add_u32 v{vo+i}, v{t+2}, 4, v{t+3}""")
    a(f"""v_lshrrev_b32 v{t}, 4, v{vLANE}
    v_bfe_u32 v{t+1}, v{vLANE}, 2, 2
    v_lshl_add_u32 v{t+2}, v{t}, 3, v{t+1}
    v_mul_u32_u24 v{t+2}, 1280, v{t+2}
    v_and_b32 v{t+3}, 1, v{vLANE}
    v_lshl_add_u32 v{t+2}, v{t+3}, 3, v{t+2}
    v_and_b32 v{t}, 1, v{t}
    v_lshl_add_u32 v{t}, v{t}, 2, v{t+1}
    v_lshlrev_b32 v{t}, 1, v{t}
    v_bfe_u32 v{t+1}, v{vLANE}, 1, 1
    s_mul_i32 s{sT}, s{sWAVE}, 10
    v_add_u32 v{t+1}, s{sT}, v{t+1}""")
    for ct in range(5):
        a(f"v_add_u32 v{t+3}, {2*ct}, v{t+1}\nv_xor_b32 v{t+3}, v{t+3}, v{t}\nv_lshl_add_u32 v{va+ct}, v{t+3}, 4, v{t+2}")
    a(f"""s_sub_u32 s{sKS}, s{g.sC}, 30
    s_lshl_b32 s{sKS}, s{sKS}, 3
    s_add_u32 s{sKS}, s{sKS}, s{g.sRB}
    s_mul_i32 s{sM}, s{sWAVE}, 5120
    s_waitcnt vmcnt(0)
    s_barrier""")
    def fetch(st):
        if st < 3:
            a(f"s_mov_b32 s{SRD_A}, s{pWD}\ns_mov_b32 s{SRD_A+1}, s{pWD+1}\ns_mov_b32 s{SRD_A+2}, {F*D*2}\ns_add_u32 s{sT}, s{sKS}, {16*st}")
        else:
            a(f"""s_mov_b32 s{sT}, {D*D*2}
            s_add_u32 s{sU}, s{sKS}, {16*st}
            s_cmp_lt_u32 s{sU}, 54
            s_cselect_b32 s{SRD_A}, s{pWD}, s{pWO}
            s_cselect_b32 s{SRD_A+1}, s{pWD+1}, s{pWO+1}
            s_cselect_b32 s{SRD_A+2}, {F*D*2}, s{sT}
            s_cselect_b32 s{sT}, 0, 54
            s_sub_u32 s{sT}, s{sU}, s{sT}""")
        a(f"s_mul_i32 s{sOff}, s{sT}, 40960")
        for i in range(5):
            a(f"s_add_u32 m0, s{sM}, {(st%4)*40960 + 1024*i}\nbuffer_load_dwordx4 v{vo+i}, {sr(SRD_A,4)}, s{sOff} offen lds")
    for st in range(4): fetch(st)
    stamp(a, idx=2); stamp(a, idx=3)
    for st in range(5):
        a(f"""s_add_u32 s{sK2}, s{sKS}, {16*st}
        s_cmp_lt_u32 s{sK2}, 54
        s_cselect_b32 s{sT}, 0, 54
        s_cselect_b32 s{sU}, 27, 10
        s_cselect_b32 s{sN}, 0, 27
        s_sub_u32 s{sK2}, s{sK2}, s{sT}
        s_cmp_ge_u32 s{sK2}, s{sU}
        s_cselect_b32 s{sT}, s{sU}, 0
        s_cselect_b32 s{sU}, 1, 0
        s_sub_u32 s{sK2}, s{sK2}, s{sT}
        s_add_u32 s{sK2}, s{sK2}, s{sN}
        s_lshl_b32 s{sT}, s{sWAVE}, 1
        s_add_u32 s{sU}, s{sU}, s{sT}
        s_mul_i32 s{sT}, s{sU}, 37
        s_add_u32 s{sT}, s{sT}, s{sK2}
        s_mul_i32 s{sDst}, s{sT}, 5120
        s_add_u32 s{sDst}, s{sDst}, {OFF_WP}
        s_lshl_b32 s{sU}, s{sU}, 6
        s_add_u32 s{sK2}, s{sK2}, s{sU}
        s_lshl_b32 s{sK2}, s{sK2}, 2
        s_add_u32 s{sFl+st}, s{sK2}, {OFF_FW}""")
        if st == 4:
            a(f"s_cmp_lt_u32 s{sKS}, 10\ns_cselect_b32 s{sDst}, s{sDst}, 0x7ff00000\ns_cselect_b32 s{sFl+st}, s{sFl+st}, 0x7ff00000")
        a(f"s_waitcnt vmcnt({(15, 20, 20, 20, 20)[st]})\ns_barrier")
        for ct in range(5):
            a(f"ds_read_b64_tr_b16 {vr(fr+4*ct,2)}, v{va+ct}\nds_read_b64_tr_b16 {vr(fr+4*ct+2,2)}, v{va+ct} offset:5120")
        for ct in range(5):
            if st < 4: a(f"v_add_u32 v{va+ct}, {40960 if st < 3 else (-3*40960) & 0xffffffff}, v{va+ct}")
        a("s_waitcnt lgkmcnt(0)")
        if st == 0:
            a("s_barrier"); fetch(4)
        for ct in range(4):
            a(f"buffer_store_dwordx4 {vr(fr+4*ct,4)}, v{vL16}, {WS}, s{sDst} offen offset:{1024*ct} sc1")
        a(f"""s_add_u32 s{sDst}, s{sDst}, 4096
        buffer_store_dwordx4 {vr(fr+16,4)}, v{vL16}, {WS}, s{sDst} offen sc1""")
    stamp(a, idx=4)
    params_a(a, g)
    a(f"v_mov_b32 v{vSO}, 0\ns_mov_b32 s{sHS}, 0\ns_waitcnt vmcnt(0)")
    for st in range(5): flag(a, sFl + st)
    stamp(a, idx=5)
    n0 = Stamper.n; Stamper.n = w.open_stamp
    attn_open(a, w, "_b")
    Stamper.n = n0
    a("s_branch L_attn")

class AT: pass
def alloc_at():
    w = AT(); V = Regs('v', WK, 252)
    w.Sb = [V.many(32, 4) for b in range(2)]; w.O = [V.many(16, 4) for q in range(2)]
    w.Qm = [V.many(4, 4) for q in range(2)]; w.Km = V.many(4, 4); w.V0 = V.many(4, 4); w.V1 = V.many(4, 4)
    w.Qr = V.many(2, 2); w.Kr = V.many(2, 2)
    return w

def w3_dma(c, R=SRD_WS, loose=False):
    L = []
    for i in range(5):
        pre = ""
        if i in (0, 4) or loose:
            k = 4096 if i == 4 else 0
            pre = f"s_add_u32 m0, s{sM3}, {(c%4)*G3_SLOT + k}\ns_add_u32 s{sW3}, s{sWO}, {c*4*5120 + k}\n"
        L.append(pre + f"buffer_load_dwordx4 v{vL16}, {sr(R,4)}, s{sW3} offen offset:{1024*(i&3)} sc1 lds")
    return L
sW3 = S0 + 30
def b_load(dst, base, k):
    s = f"s_add_u32 s{base}, s{base}, 4096\n" if k and k % 2 == 0 else ""
    return s + f"buffer_load_dwordx4 {vr(dst,4)}, v{vBO}, {WS}, s{base} offen offset:{(k&1)*2048} sc1"

def kv_dma(c):
    b = A_BASE + (c % 3) * A_SLOT; inc = 4 * P_QKV if c else 0
    return [f"s_add_u32 m0, s{sDM}, {b}\ns_add_u32 s{sDO}, s{sDO}, {inc}\nbuffer_load_dwordx4 v{vKVO}, {WS}, s{sDO} offen sc1 lds",
            f"s_add_u32 m0, s{sDM}, {b + A_REG - 512}\ns_nop 0\nbuffer_load_dwordx4 v{vKVO}, {WS}, s{sDO} offen offset:512 sc1 lds",
            f"s_add_u32 m0, s{sDM}, {b + 2*A_REG}\ns_add_u32 s{sDO+1}, s{sDO+1}, {inc}\nbuffer_load_dwordx4 v{vKVO}, {WS}, s{sDO+1} offen sc1 lds"]

vPQ = 244
def q_loads():
    t = vPQ
    return [f"buffer_load_dword v{t}, v{vFQO}, {WS}, s{sT} offen sc1",
            f"buffer_load_dword v{t+1}, v{vFQO}, {WS}, s{sU} offen sc1",
            f"buffer_load_dword v{t+2}, v{vFQO}, {WS}, s{sU} offen offset:2560 sc1"]
PW = int(os.environ.get("PW", "4"))
def attn_poll(a, w):
    a(f"""s_cmp_lg_u32 s{sWAVE}, {PW}
    s_cbranch_scc1 L_q_nopoll
    s_mov_b32 s{sT}, {OFF_FQ}
    s_mov_b32 s{sU}, {OFF_FQ + 2560}""")
    for l in q_loads(): a(l)
    a.label("L_q_nopoll")
def attn_open(a, w, sfx="", early=False):
    t = vPQ
    w.open_stamp = Stamper.n
    stamp(a)
    loads = q_loads()
    a(f"""s_cmp_lg_u32 s{sWAVE}, {PW}
    s_cbranch_scc1 L_sp_q_done{sfx}""")
    if early:
        a("s_waitcnt vmcnt(0)"); check_ne(a, [t, t + 1, t + 2]); a(f"s_cbranch_vccz L_sp_q_done{sfx}")
    else:
        a(f"s_mov_b32 s{sT}, {OFF_FQ}\ns_mov_b32 s{sU}, {OFF_FQ + 2560}")
    spin(a, "L_sp_q" + sfx, loads, [t, t + 1, t + 2], "L_sp_q_done" + sfx, int(os.environ.get("QSL", "2")) if early else SLEEP)
    a.label("L_sp_q_done" + sfx)
    a("s_barrier")
    stamp(a)
    for x in kv_dma(0): a(x)
    a(f"""buffer_load_dwordx4 {vr(w.Qm[0],4)}, v{vL16}, {WS}, s{sQB_} offen sc1
    buffer_load_dwordx4 {vr(w.Qm[1],4)}, v{vL16}, {WS}, s{sQA} offen sc1
    buffer_load_dwordx2 {vr(w.Qr,2)}, v{vQRO}, {WS}, s{sQR} offen sc1""")

def attention(a, w, g):
    t = T; Sb, O, Qm, Km, V0, V1, Qr, Kr = w.Sb, w.O, w.Qm, w.Km, w.V0, w.V1, w.Qr, w.Kr
    dma = kv_dma
    a.label("L_attn")
    params_b(a, g)
    a(f"""; token-side fragment offset of phase 3: lane (t16, g): piece g, row t16
    v_and_b32 v{vBO}, 0xf0, v{vL16}
    v_lshrrev_b32 v{t}, 4, v{vLANE}
    v_lshl_add_u32 v{vBO}, v{t}, 9, v{vBO}
    v_and_b32 v{t+4}, 3, v0
    v_cmp_eq_u32 vcc, 0, v{t+4}
    v_mov_b32 v{t+4}, 0x3f80
    v_lshlrev_b32 v{t+5}, 2, v0
    v_cndmask_b32 v{t+4}, 0, v{t+4}, vcc
    v_add_u32 v{t+5}, {A_ONES}, v{t+5}
    ds_write_b32 v{t+5}, v{t+4}
    v_min_u32 v{t+6}, 26, v{vLANE}
    v_min_u32 v{t+7}, 36, v{vLANE}
    v_lshlrev_b32 v{t+6}, 2, v{t+6}
    v_lshlrev_b32 v{t+7}, 2, v{t+7}
    s_mov_b32 s{SRD_B}, s{pWS}
    s_mov_b32 s{SRD_B+1}, s{pWS+1}
    s_cmp_lt_u32 s{g.sC}, 27
    s_cselect_b32 s{SRD_B+2}, {WS_USED}, 0""")
    NF = int(os.environ.get("NFIN", "54"))
    fin = w.fin + [f"v_mov_b32 v{O[q]+r}, 0" for q in range(2) for r in range(16)]
    for x in fin[:NF]: a(x)
    fin = fin[NF:]
    for x in kv_dma(1): a(x)
    a(f"""s_or_b32 s{sT}, s2, s{sWAVE}
    s_cmp_lg_u32 s{sT}, 0
    s_cbranch_scc1 L_noep
    s_mov_b32 s{sT}, {OFF_EP}
    s_waitcnt vmcnt(0)""")
    flag(a, sT)
    a.label("L_noep")
    def rdKr(i): return f"ds_read_b64 {vr(Kr,2)}, v{vKRA} offset:{((i>>2)%3)*A_SLOT + (i&3)*512}"
    def rdKm(i): return f"ds_read_b128 {vr(Km,4)}, v{vKMA} offset:{((i>>2)%3)*A_SLOT + (i&3)*512}"
    def rdV(i, s):
        R = V1 if s else V0
        return "\n".join(f"ds_read_b64_tr_b16 {vr(R+2*rd,2)}, v{vVA+(i>>2)%3} offset:{(i&3)*512 + s*256 + rd*64}" for rd in range(2))
    def m2b(i): return f"v_mfma_f32_32x32x4_2b_bf16 {vr(Sb[i&1],32)}, {vr(Kr,2)}, {vr(Qr,2)}, 0"
    def m16(i, q): return f"v_mfma_f32_32x32x16_bf16 {vr(Sb[i&1]+16*q,16)}, {vr(Km,4)}, {vr(Qm[q],4)}, {vr(Sb[i&1]+16*q,16)}"
    def smf(i, q, s): return f"v_smfmac_f32_32x32x32_bf16 {vr(O[q],16)}, {vr(V1 if s else V0,4)}, {vr(Sb[i&1]+16*q+8*s,8)}, v{vIDX}"
    a("s_waitcnt vmcnt(3) lgkmcnt(0)\ns_barrier")
    stamp(a)
    n1 = max(0, len(fin) - 34)
    a(rdKr(0)); a(rdKm(0)); a(rdV(0, 0))
    for x in fin[:n1]: a(x)
    a("s_waitcnt lgkmcnt(2)")
    a(m2b(0)); a(rdKr(1))
    for x in fin[n1:n1+18]: a(x)
    a(m16(0, 0))
    for x in fin[n1+18:n1+24]: a(x)
    a(m16(0, 1)); a(rdKm(1))
    for x in fin[n1+24:]: a(x)
    a("s_waitcnt lgkmcnt(0)")
    NT = 32
    PS = [int(x) for x in os.environ.get("PS", "1,3,7").split(",") if x]
    if PS: a("s_setprio 3")
    AP = os.environ.get("APRIO")
    if AP:
        a(f"s_cmp_eq_u32 s{sHI}, {AP}\ns_cbranch_scc0 L_noprio\ns_setprio 1")
        a.label("L_noprio")
    floads = [f"buffer_load_dword v{t}, v{t+6}, {WS}, s{sFHc} offen sc1", f"buffer_load_dword v{t+1}, v{t+7}, {WS}, s{sFWc} offen sc1"]
    w.floads = floads
    pre = [b_load(HB + 4 * n, sH, n) for n in range(27)]
    wd = w3_dma(0, loose=True) + w3_dma(1, loose=True)
    queue = []
    for n in range(27):
        queue.append(pre[n])
        if n % 3 == 1 and wd: queue.append(wd.pop(0))
    queue += wd
    if "notouch3" not in XF:
        queue.append(f"""s_bfe_u32 s{sT}, s2, 0x30003
        s_lshl2_add_u32 s{sT}, s{sT}, s{sQ4}
        s_mul_i32 s{sT}, s{sT}, {37*128}
        s_mul_i32 s{sU}, s{sQ4}, 5120
        s_sub_u32 s{sT}, s{sT}, s{sU}
        s_add_u32 s{sT}, s{sT}, s{sWO}
        s_add_u32 s{sT}, s{sT}, {8*5120}
        v_lshlrev_b32 v{t+6}, 5, v{t+7}
        buffer_load_dword v{t}, v{t+6}, {WS}, s{sT} offen sc1""")
    r = Rec(); params_c(r, g); pc = r.L
    young = 0
    a.auto = False
    for i in range(NT):
        def E(lo, hi):
            L = []
            for k in range(lo, hi):
                L.append(f"v_exp_f32 v{Sb[i&1]+k}, v{Sb[i&1]+k}")
                if pc and k % 4 == 3: L.append(pc.pop(0))
            return "\n".join(L)
        last = i == NT - 1
        def prio(pt):
            if not PS: return
            nb = min([b for b in range(2, 27, 4) if b * 4 + 1 > i * 4 + pt] + [NT - 0.25])
            left = int(round(nb * 4 + 1 - (i * 4 + pt)))
            for p, th in enumerate(PS):
                if left == th: a(f"s_setprio {p}")
        prio(0)
        a(E(0, 2))
        if i: a(smf(i - 1, 1, 1))
        a(rdV(i, 1)); a(E(2, 5))
        if not last: a(m2b(i + 1))
        newc = (i + 2) % 4 == 0 and i + 2 < NT
        dm = []
        if newc:
            c = (i + 2) // 4
            a(f"s_waitcnt vmcnt({0 if c == 3 else young})")
            if c == 3:
                a.auto = True
                check_ne(a, [t, t + 1])
                a("s_cbranch_vccnz L_sp_h")
                a.label("L_sp_h_done")
                a.auto = False
            if "anobar" not in XF: a("s_barrier")
            if PS: a("s_setprio 3")
            if c + 1 < 8: dm = dma(c + 1); young = 0
        elif i < 2: dm = [w.hst[2 * i], "", w.hst[2 * i + 1]]; young += 2
        elif i == 4:
            a("s_waitcnt vmcnt(3)"); flag(a, sFHp); young += 1
        elif i == 9:
            assert not pc
            dm = floads + [""]
        elif i > 10:
            dm = [queue.pop(0) if queue else "" for _ in range(3)]
            young += sum(1 for x in dm if x)
        if "anovm" in XF and i >= 2 and i != 9: dm = []
        if "anopre" in XF and i > 10 and not newc: dm = []
        if i + 2 < NT: a(rdKr(i + 2))
        prio(1)
        a(E(5, 9))
        if dm: a(dm[0])
        a(E(9, 13))
        a(f"s_waitcnt lgkmcnt({(4 if i + 2 < NT else 3) if not last else 2})")
        a(smf(i, 0, 0))
        if dm: a(dm[1])
        prio(2)
        a(E(13, 18)); a("s_waitcnt lgkmcnt(0)"); a(smf(i, 0, 1))
        if dm: a(dm[2])
        a(E(18, 21))
        if not last: a(m16(i + 1, 0))
        prio(3)
        a(E(21, 26)); a(smf(i, 1, 0))
        if not last: a(rdV(i + 1, 0))
        a(E(26, 29))
        if last:
            for q in range(3): a(f"ds_write_b128 v{t+1}, {vr(O[0]+4*q,4)} offset:{1024*q}")
        if i == NT - 2:
            a(f"""s_mul_i32 s{sT}, s{sWAVE}, 3200
            s_add_u32 s{sT}, s{sT}, {A_XCH}
            v_add_u32 v{t+1}, s{sT}, v{vL16}
            s_xor_b32 s{sU}, s{sWAVE}, 4
            s_mul_i32 s{sU}, s{sU}, 3200
            s_add_u32 s{sU}, s{sU}, {A_XCH}
            v_add_u32 v{t+2}, s{sU}, v{vL16}""")
        if not last: a(m16(i + 1, 1))
        if i + 2 < NT: a(rdKm(i + 2))
        a(E(29, 32))
    assert not queue
    a.auto = True
    a(smf(NT - 1, 1, 1))
    if AP: a("s_setprio 0")
    stamp(a)
    a("s_waitcnt vmcnt(0) lgkmcnt(0)\ns_barrier")
    X = Sb[0]; w.X = X
    for q in range(3): a(f"ds_read_b128 {vr(X+4*q,4)}, v{t+2} offset:{1024*q}")
    w.npre = int(os.environ.get("NPRE", "2"))
    for x in w3_dma(2)[:w.npre]: a(x)
    a("s_waitcnt lgkmcnt(0)")
    for r in range(12): a(f"v_add_f32 v{X+r}, v{X+r}, v{O[1]+r}")
    a(f"""v_mov_b32 v{X+12}, v{X+8}
    v_mov_b32 v{X+13}, v{X+8}
    v_mul_f32 v{X+14}, 0, v{X}""")
    a(f"v_permlane32_swap_b32 v{X+13}, v{X+12}")
    for r in range(1, 12): a(f"v_fmac_f32 v{X+14}, 0, v{X+r}")
    a(f"""v_add_f32 v{X+14}, v{X+14}, v{X+12}
    v_cmp_nle_f32 vcc, {f32(2.0**-64)}, v{X+14}
    s_mov_b64 s[{S0+26}:{S0+27}], vcc
    v_cmp_nge_f32 vcc, {f32(2.0**64)}, v{X+14}
    s_or_b64 vcc, vcc, s[{S0+26}:{S0+27}]
    s_cbranch_scc1 L_slow""" if "force_slow" not in XF else "s_branch L_slow")
    a.label("L_slow_done")
    a(f"v_rcp_f32 v{X+13}, v{X+12}")
    for r in range(12): a(f"v_mul_f32 v{X+r}, v{X+r}, v{X+13}")
    for r in range(6): a(f"v_cvt_pk_bf16_f32 v{X+16+r}, v{X+2*r}, v{X+2*r+1}")
    a(f"""buffer_store_dwordx4 {vr(X+16,4)}, v{vL16}, {WS}, s{sOA} offen sc1
    s_mov_b32 exec_hi, 0
    buffer_store_dwordx2 {vr(X+20,2)}, v{vL16}, {WS}, s{sOR} offen sc1
    s_mov_b64 exec, -1""")
    stamp(a)

def attn_cold(a, w):
    t = T; Sb, O, Qm, Km, V0, V1, Qr, Kr, X = w.Sb, w.O, w.Qm, w.Km, w.V0, w.V1, w.Qr, w.Kr, w.X
    a.label("L_sp_h")
    spin(a, "L_sp_h_loop", w.floads, [t, t + 1], "L_sp_h_done")
    a("s_branch L_sp_h_done")
    a.label("L_slow")
    Sx = Sb[1]; NM = Sb[1] + 16; Oa = O[1]; vb = O[0]; mx = O[0] + 8; vho = O[0] + 9; vwa = O[0] + 10; vws = O[0] + 11; vra = O[0] + 12
    sKA, sKS_, sN, sSC = S0 + 26, S0 + 27, S0 + 28, S0 + 29
    a(f"""s_xor_b32 s{sSC}, s{sWAVE}, 4
    s_mul_i32 s{sSC}, s{sSC}, 3200
    s_add_u32 s{sSC}, s{sSC}, {A_XCH}
    v_cmp_lt_u32 vcc, 31, v{vLANE}
    v_and_b32 v{vho}, 31, v{vLANE}
    v_lshlrev_b32 v{vho}, 4, v{vho}
    v_cndmask_b32 v{Qr}, 0, v{Qr}, vcc
    v_cndmask_b32 v{Qr+1}, 0, v{Qr+1}, vcc
    v_mov_b32 v{mx}, 0xff800000
    v_add_u32 v{vwa}, s{sSC}, v{vL16}
    v_add_u32 v{vws}, s{sSC}, v{vho}
    s_bfe_u32 s{sT}, s2, 0x30003
    s_lshl_b32 s{sT}, s{sT}, 2
    s_add_u32 s{sT}, s{sT}, s{sQ4}
    s_mul_i32 s{sT}, s{sT}, {2*P_QKV}
    s_sub_u32 s{sKS_}, s{sQR}, s{sT}
    s_mul_i32 s{sU}, s{sHI}, {P_QKV}
    s_add_u32 s{sT}, s{sT}, s{sU}
    s_sub_u32 s{sKA}, s{sQA}, s{sT}
    s_add_u32 s{sKA}, s{sKA}, {80*512}
    s_add_u32 s{sKS_}, s{sKS_}, {80*512}
    ; transposed V reads from the private scratch [A 512][B 512][S 512]
    v_bfe_u32 v{t+1}, v{vLANE}, 2, 2
    v_lshrrev_b32 v{t}, 5, v{vLANE}
    v_lshl_add_u32 v{t+1}, v{t}, 3, v{t+1}
    v_lshlrev_b32 v{t+1}, 4, v{t+1}
    v_and_b32 v{t+2}, 1, v{vLANE}
    v_lshlrev_b32 v{t+2}, 9, v{t+2}
    v_bfe_u32 v{t+3}, v{vLANE}, 1, 1
    v_lshl_add_u32 v{t+2}, v{t+3}, 3, v{t+2}
    v_mov_b32 v{t+5}, 1024
    v_and_b32 v{t+4}, 19, v{vLANE}
    v_cmp_eq_u32 vcc, 16, v{t+4}
    v_lshlrev_b32 v{t+3}, 3, v{t+3}
    v_add_u32 v{t+3}, {A_ONES}, v{t+3}
    v_cndmask_b32 v{t+2}, v{t+2}, v{t+5}, vcc
    v_cmp_lt_u32 vcc, 16, v{t+4}
    v_add_u32 v{t+2}, s{sSC}, v{t+2}
    v_cndmask_b32 v{t+2}, v{t+2}, v{t+3}, vcc
    v_add_u32 v{vra}, v{t+2}, v{t+1}
    s_mov_b32 s{sN}, 0""")
    def kload():
        a(f"""s_add_u32 s{sT}, s{sKA}, s{sN}
        s_add_u32 s{sU}, s{sKS_}, s{sN}
        buffer_load_dwordx4 {vr(Km,4)}, v{vL16}, {WS}, s{sT} offen sc1
        buffer_load_dwordx2 {vr(Kr,2)}, v{vho}, {WS}, s{sU} offen sc1""")
    def qk(c):
        a(f"""v_mfma_f32_32x32x16_bf16 {vr(Sx,16)}, {vr(Km,4)}, {vr(Qm[1],4)}, {c}
        v_mfma_f32_32x32x8_bf16 {vr(Sx,16)}, {vr(Kr,2)}, {vr(Qr,2)}, {vr(Sx,16)}""")
    def nxt(l): a(f"s_add_u32 s{sN}, s{sN}, {P_QKV}\ns_cmp_lt_u32 s{sN}, {64*P_QKV}\ns_cbranch_scc1 {l}")
    a.label("L_slow_a")
    kload(); a("s_waitcnt vmcnt(0)"); qk("0")
    for r in range(0, 16, 2): a(f"v_max3_f32 v{mx}, v{Sx+r}, v{Sx+r+1}, v{mx}")
    nxt("L_slow_a")
    a(f"""v_mov_b32 v{t}, v{mx}
    v_permlane32_swap_b32 v{t}, v{mx}
    v_max_f32 v{mx}, v{mx}, v{t}
    s_mov_b32 s{sN}, 0""")
    for r in range(16): a(f"v_sub_f32 v{NM+r}, 0, v{mx}\nv_mov_b32 v{Oa+r}, 0")
    a.label("L_slow_b")
    kload()
    a(f"""s_add_u32 s{sT}, s{sT}, {80*512}
    s_add_u32 s{sU}, s{sU}, {80*512}
    buffer_load_dwordx4 {vr(vb,4)}, v{vL16}, {WS}, s{sT} offen sc1
    buffer_load_dwordx2 {vr(vb+4,2)}, v{vho}, {WS}, s{sU} offen sc1
    s_waitcnt vmcnt(0)
    ds_write_b128 v{vwa}, {vr(vb,4)}
    ds_write_b64 v{vws}, {vr(vb+4,2)} offset:1024""")
    qk(vr(NM, 16))
    a("s_waitcnt lgkmcnt(0)")
    for s in range(2):
        for rd in range(2): a(f"ds_read_b64_tr_b16 {vr((V1 if s else V0)+2*rd,2)}, v{vra} offset:{s*256+rd*64}")
    for r in range(16): a(f"v_exp_f32 v{Sx+r}, v{Sx+r}")
    a("s_waitcnt lgkmcnt(0)")
    for s in range(2): a(f"v_smfmac_f32_32x32x32_bf16 {vr(Oa,16)}, {vr(V1 if s else V0,4)}, {vr(Sx+8*s,8)}, v{vIDX}")
    nxt("L_slow_b")
    for r in range(12): a(f"v_mov_b32 v{X+r}, v{Oa+r}")
    a(f"""v_mov_b32 v{X+12}, v{Oa+8}
    v_mov_b32 v{X+13}, v{Oa+8}
    v_permlane32_swap_b32 v{X+13}, v{X+12}
    s_nop 1
    s_branch L_slow_done""")

def gemm3(a, w):
    t = T; V = Regs('v', WK, 252)
    OB = V.many(40, 4); accd = V.many(20, 4); accs = V.many(20, 4); Wf = [V.many(20, 4) for b in range(2)]
    wa = vIDX
    RD, RS = 2 * G3_SLOT, 3 * G3_SLOT
    out = ["w2"] * w.npre + ["ost"] * 2
    lq = []
    def vm(tag, txt): a(txt); out.append(tag)
    def lds(tag, txt): a(txt); lq.append(tag)
    def w_vm(tag):
        if tag in out:
            idx = max(i for i, x in enumerate(out) if x == tag)
            a(f"s_waitcnt vmcnt({len(out) - 1 - idx})"); del out[:idx + 1]
    def w_lds(tag):
        if tag in lq:
            idx = max(i for i, x in enumerate(lq) if x == tag)
            a(f"s_waitcnt lgkmcnt({min(15, len(lq) - 1 - idx)})"); del lq[:idx + 1]
    for x in w3_dma(2)[w.npre:]: vm("w2", x)
    a(f"s_mul_i32 s{sT}, s{sHI}, {4*5120}")
    for k in range(4): a(f"s_add_u32 s{sU}, s{sT}, {k*G3_SLOT}\nv_add_u32 v{wa+k}, s{sU}, v{vL16}")
    def rd(n, ct): lds((n, ct), f"ds_read_b128 {vr(Wf[n&1]+4*ct,4)}, v{wa+(n>>2)%4} offset:{(n&3)*5120 + ct*1024}")
    for n in range(2):
        for ct in range(5): rd(n, ct)
    vo = 8
    r = Rec()
    r(f"""v_and_b32 v{t+7}, 15, v{vLANE}
    v_lshlrev_b32 v{t+7}, 2, v{t+7}
    s_mov_b32 s{SRD_A}, s{pWS}
    s_mov_b32 s{SRD_A+1}, s{pWS+1}""")
    r.atom(f"s_cmp_eq_u32 s{sQ4}, 0\ns_cselect_b32 s{SRD_A+2}, {WS_USED}, 0")
    srd(r, SRD_B, pX, S * D * 2)
    for q in range(3):
        r(f"v_add_u32 v{t+2}, {512*q}, v0" if q < 2 else f"v_lshrrev_b32 v{t+2}, 1, v0\nv_add_u32 v{t+2}, 1024, v{t+2}")
        r(f"""v_mul_u32_u24 v{t+3}, 3277, v{t+2}
        v_lshrrev_b32 v{t+3}, 16, v{t+3}
        v_bfe_u32 v{t+4}, v{t+3}, 1, 2
        v_xor_b32 v{t+2}, v{t+2}, v{t+4}
        v_mul_u32_u24 v{t+3}, {1280-160}, v{t+3}
        v_lshl_add_u32 v{vo+q}, v{t+2}, 3, v{t+3}""")
    r(f"""v_and_b32 v{t+2}, 1, v0
    v_lshl_add_u32 v{vo+2}, v{t+2}, 2, v{vo+2}
    v_lshlrev_b32 v11, 4, v0
    v_add_u32 v11, {RD}, v11
    v_lshlrev_b32 v12, 3, v0
    v_add_u32 v12, {RD + 16384}, v12
    v_lshrrev_b32 v{t+2}, 4, v{vLANE}
    v_bfe_u32 v{t+3}, v{vLANE}, 1, 2
    v_xor_b32 v{t+2}, v{t+2}, v{t+3}
    v_mul_u32_u24 v14, 80, v{t+7}
    v_lshl_add_u32 v14, v{t+2}, 4, v14
    s_add_u32 s{sT}, s{sM3}, {RD}
    v_add_u32 v14, s{sT}, v14""")
    side = r.L
    x2 = HB; red = HB + 8; g_ = HB + 32; xs = HB + 44
    oflag = f"buffer_load_dword v{t}, v{t+7}, {WS}, s{sFOc} offen sc1"
    w.oflag = oflag
    N_FLAG, N_POLL, N_CHK = (int(x) for x in os.environ.get("G3N", "6,17,21").split(","))
    WGAP, OGAP = (int(x) for x in os.environ.get("G3G", "3,3").split(","))
    vq = []
    def red_reads(delta):
        for q in range(3):
            for k in range(2):
                lds(("red", q), f"ds_read_b128 {vr(red+8*q+4*k,4)}, v11 offset:{8192*q + 20480*k}" if q < 2 else f"ds_read_b64 {vr(red+16+4*k,2)}, v12 offset:{20480*k}")
    for n in range(37):
        A = accd if n < 27 else accs
        Bn = HB + 4 * n if n < 27 else OB + 4 * (n - 27)
        first = n in (0, 27)
        if "g3st" in XF and n in (0, 2, 4, 5, 8, 12, 16, 17, 20, 24, 27, 28, 29, 31, 33, 35): stamp(a)
        if n == N_FLAG:
            w_vm("ost"); flag(a, sFO); out.append("fl")
        if n == N_CHK:
            w_vm("of")
            check_ne(a, [t])
            a("s_cbranch_vccnz L_sp_o")
            a.label("L_sp_o_done")
            stamp(a)
            if STAMP in (1, 2): lq.clear()
            ol = [(f"o{k}", b_load(OB + 4 * k, sO3, k)) for k in range(10)]
        if n % 4 == 2 and n + 2 < 37:
            c = (n + 2) // 4
            assert not any(x[0] == f"w{c}" for x in vq)
            w_vm(f"w{c}")
            if n == 30: w_lds("dw")
            a("s_barrier")
            if c + 2 < 10: vq += [(f"w{c+2}", x) for x in w3_dma(c + 2, SRD_WS if c + 2 < 9 else SRD_A)]
        if n == 28: a("s_barrier")
        if "nop3" not in XF: a(f"s_setprio {(1 - n) % 4 if n < 34 else 36 - n}")
        if n == N_POLL: vq.insert(0, ("of", oflag))
        if n == 11: vq += [("x", f"buffer_load_dword{'x2' if q < 2 else ''} {vr(x2+2*q,2 if q < 2 else 1)}, v{vo+q}, {sr(SRD_B,4)}, s{sOUT} offen") for q in range(3)]
        if n == 23:
            assert not side and "x" not in out
            r = Rec()
            for k in range(5): r(f"v_lshlrev_b32 v{xs+2*k}, 16, v{x2+k}\nv_and_b32 v{xs+2*k+1}, 0xffff0000, v{x2+k}")
            srd(r, SRD_B, pOUT, S * D * 2)
            side = r.L
        if n >= 27:
            assert not any(x[0] == f"o{n-27}" for x in ol)
            w_vm(f"o{n-27}")
        if n == 30: red_reads(0)
        if n == 31:
            w_lds(("red", 2))
            r = Rec(); r(f"s_mov_b32 s{sT}, {f32(-LOG2E)}")
            for k in range(10): r(f"v_add_f32 v{g_+k}, v{red+8*(k//4)+k%4}, v{red+8*(k//4)+4+k%4}")
            for k in range(10): r(f"v_mul_f32 v{red+k}, s{sT}, v{g_+k}")
            for k in range(10): r(f"v_exp_f32 v{red+k}, v{red+k}")
            for k in range(10): r(f"v_add_f32 v{red+k}, 1.0, v{red+k}")
            for k in range(10): r(f"v_rcp_f32 v{red+k}, v{red+k}")
            for k in range(10): r(f"v_mul_f32 v{g_+k}, v{g_+k}, v{red+k}")
            for k in (11, 12, 14): r(f"v_add_u32 v{k}, {RS-RD}, v{k}")
            assert not side
            side = r.L
        for ct in range(5):
            w_lds((n, ct))
            a(f"v_mfma_f32_16x16x32_bf16 {vr(A+4*ct,4)}, {vr(Wf[n&1]+4*ct,4)}, {vr(Bn,4)}, {'0' if first else vr(A+4*ct,4)}")
            if n + 2 < 37: rd(n + 2, ct)
            if n == 28: lds("dw", f"ds_write_b128 v14, {vr(accd+4*ct,4)} offset:{64*ct}")
            gap = 5 * n + ct
            if n < N_CHK:
                if gap % WGAP == 0 and vq: vm(*vq.pop(0))
            elif gap % OGAP == 0:
                dw = 4 * int(vq[0][0][1:]) - 2 if vq else 99
                do = 27 + int(ol[0][0][1:]) if ol else 99
                if vq and dw <= do: vm(*vq.pop(0))
                elif ol: vm(*ol.pop(0))
            for _ in range(1 if n < 31 else 2):
                if side: a(side.pop(0))
    for x in side: a(x)
    assert not vq and not ol
    stamp(a)
    for ct in range(5): a(f"ds_write_b128 v14, {vr(accs+4*ct,4)} offset:{64*ct}")
    a("s_waitcnt lgkmcnt(0)\ns_barrier")
    red_reads(RS - RD)
    for q in range(3):
        a(f"s_waitcnt lgkmcnt({4-2*q})")
        ne = 4 if q < 2 else 2
        for e in range(ne):
            a(f"v_add_f32 v{red+8*q+e}, v{red+8*q+e}, v{red+8*q+4+e}\nv_fmac_f32 v{xs+4*q+e}, v{red+8*q+e}, v{g_+4*q+e}")
        for k in range(ne // 2): a(f"v_cvt_pk_bf16_f32 v{x2+2*q+k}, v{xs+4*q+2*k}, v{xs+4*q+2*k+1}")
        a(f"buffer_store_dword{'x2' if q < 2 else ''} {vr(x2+2*q,ne//2)}, v{vo+q}, {sr(SRD_B,4)}, s{sOUT} offen")

def build():
    hdr = open("cdna_kernels/%s.s.ref" % NAME).read().split("; Override launch")[0]
    a = Asm(); g = alloc_g1(); w = alloc_at()
    prologue(a, g); g1_setup(a, g)
    a(f"s_cmp_ge_u32 s{g.sC}, 30\ns_cbranch_scc1 L_role_r")
    g1_start(a, g)
    gemm1(a, g, w); attention(a, w, g); gemm3(a, w)
    stamp_flush(a)
    a.label("L_end"); a("s_endpgm")
    a.label("L_sp_o")
    spin(a, "L_sp_o_loop", [w.oflag], [T], "L_sp_o_done"); a("s_branch L_sp_o_done")
    for name, loads, tags in g.spins:
        a.label(name)
        spin(a, name + "_loop", loads, tags, name + "_done"); a(f"s_branch {name}_done")
    role_r(a, g, w)
    a.label("L_code_end")
    attn_cold(a, w)
    out = hdr + "; @launch grid=(256,1,1) block=(512,1,1) lds=163840\n"
    out += '.amdgcn_target "amdgcn-amd-amdhsa--gfx950"\n.text\n' + a.text()
    out += f""".section .rodata,"a"
.p2align 6
.amdhsa_kernel {NAME}_kernel
  .amdhsa_next_free_vgpr 256
  .amdhsa_next_free_sgpr 102
  .amdhsa_accum_offset 256
  .amdhsa_group_segment_fixed_size 0
  .amdhsa_kernarg_size 80
  .amdhsa_user_sgpr_count 2
  .amdhsa_user_sgpr_kernarg_segment_ptr 1
  .amdhsa_system_sgpr_workgroup_id_x 1
.end_amdhsa_kernel
"""
    if os.environ.get("NOPS"): print("auto nops:", *a.nops, sep="\n  ", file=sys.stderr)
    return out

if __name__ == "__main__":
    path = sys.argv[1] if len(sys.argv) > 1 else "cdna_kernels/%s.s" % NAME
    open(path, "w").write(build())
```

```python
import sys, os, math, struct
from asmlib import *

NAME = "recurrent_scan__softmax_full_mha__geglu_ffn__prompt"
S, D, F, NH, DH = 2048, 640, 1728, 32, 20
P_QKV, P_H, P_O = 240 * 512, 216 * 512, 80 * 512
OFF_QKV = 0
OFF_H = OFF_QKV + 64 * P_QKV
OFF_O = OFF_H + 64 * P_H
OFF_WP = OFF_O + 64 * P_O
OFF_ST = OFF_WP + 8 * 74 * 5 * 1024
OFF_CS = OFF_ST + 2048 * 8
OFF_FQ = OFF_CS + 90 * 4096
OFF_FH = OFF_FQ + 8192
OFF_FW = OFF_FH + 8192
OFF_FO = OFF_FW + 4096
OFF_EP = OFF_FO + 8192
WS_USED = OFF_EP + 256
def f32(x): return "0x%08x" % struct.unpack("<I", struct.pack("<f", x))[0]
LOG2E = 1.4426950408889634
QSCALE = DH ** -0.5 * LOG2E
GC1 = 2 * 0.7978845608028654 * LOG2E
GC3 = GC1 * 0.044715
SPIN_MAX = 1 << 16
SLEEP = int(os.environ.get('SLEEP', '8'))
XF = set(os.environ.get("XF", "").split(","))

pX, pWQKV, pWO, pBX, pWG, pWU, pWD, pOUT, pDBG, pWS = 4, 6, 8, 10, 12, 14, 16, 18, 20, 22
sWAVE = 3
SRD_WS, SRD_A, SRD_B = 24, 28, 32
_sp = Regs('s', 36, 64)
sTAG, sT, sU, sQ4, sHI, sSPIN = (_sp.one() for _ in range(6))
sDO, sDM = _sp.many(3, 1), _sp.many(3, 1)
sQA, sQB_, sQR, sOA, sOR, sFO = (_sp.one() for _ in range(6))
sH, sO3, sWO, sOUT, sFHc, sFWc, sFOc, sFHp, sHS, sM3 = (_sp.one() for _ in range(10))
S0 = 64
vLANE, vL16, vTAG, vIDX, vKMA, vKRA, vVA, vKVO, vQRO, vFQO, vBO, vSO = 1, 2, 3, 4, 5, 6, 7, 10, 11, 12, 13, 15
T = 16
HB = 24
WK = 132

STAMP = int(os.environ.get("STAMP", "0"))
REPORT = int(os.environ.get("REPORT", "0")); REPWG = int(os.environ.get("REPWG", "0"))
OFF_STAMP = WS_USED
if STAMP: WS_USED += 2048 * 128
class Stamper: n = 0
NSTAMP = 16
vST = 252
def stamp(a, real=False, idx=None):
    i = Stamper.n if idx is None else idx
    if idx is None: Stamper.n += 1
    if REPORT and i in (0, REPORT):
        au = a.auto; a.auto = True
        k = 96 if i == 0 else 98
        a(f"s_memrealtime s[{k}:{k+1}]\ns_waitcnt lgkmcnt(0)")
        a.auto = au
    if not STAMP: return
    if STAMP == 3:
        if not real: return
        i = 0 if i == 0 else 1
    au = a.auto; a.auto = True
    if STAMP == 2: real = True
    a(f"s_mem{'real' if real else ''}time s[100:101]\ns_waitcnt lgkmcnt(0)\nv_writelane_b32 v{vST}, s100, {i}")
    a.auto = au
def stamp_flush(a):
    if "probe" in XF:
        a(f"""s_waitcnt vmcnt(0) lgkmcnt(0)
        s_or_b32 s{sT}, s2, s{sWAVE}
        s_cmp_lg_u32 s{sT}, 0
        s_cbranch_scc1 L_probe_done""")
        srd(a, SRD_A, pBX, S * D * 2)
        a(f"s_mov_b32 s{sT}, 0")
        a.label("L_probe")
        a(f"""buffer_load_dword v{T}, off, {sr(SRD_A,4)}, s{sT}
        s_add_u32 s{sT}, s{sT}, {16384+128}
        s_waitcnt vmcnt(0)
        s_cmp_lt_u32 s{sT}, {128*(16384+128)}
        s_cbranch_scc1 L_probe""")
        a.label("L_probe_done")
    if REPORT:
        a("s_waitcnt vmcnt(0) lgkmcnt(0)")
        stamp(a)
        a(f"""s_cmp_lg_u32 s2, {REPWG}
        s_cbranch_scc1 L_end
        s_sub_u32 s98, s98, s96
        s_mul_i32 s98, s98, 4
        s_memrealtime s[96:97]
        s_waitcnt lgkmcnt(0)""")
        a.label("L_rep")
        a("""s_memrealtime s[100:101]
        s_waitcnt lgkmcnt(0)
        s_sub_u32 s100, s100, s96
        s_cmp_lt_u32 s100, s98
        s_cbranch_scc1 L_rep""")
        return
    if not STAMP: return
    a("s_waitcnt vmcnt(0) lgkmcnt(0)")
    stamp(a); stamp(a, True)
    print("stamps:", Stamper.n, file=sys.stderr)
    a(f"""s_lshl_b32 s{sT}, s2, 3
    s_add_u32 s{sT}, s{sT}, s{sWAVE}
    s_lshl_b32 s{sT}, s{sT}, 7
    s_add_u32 s{sT}, s{sT}, {OFF_STAMP}
    v_lshlrev_b32 v{T}, 2, v{vLANE}
    s_mov_b32 exec_hi, 0
    buffer_store_dword v{vST}, v{T}, {sr(SRD_WS,4)}, s{sT} offen""")

def srd(a, r, ptr, size):
    a(f"s_mov_b32 s{r}, s{ptr}\ns_mov_b32 s{r+1}, s{ptr+1}\ns_mov_b32 s{r+2}, {size}\ns_mov_b32 s{r+3}, 0x20000")
WS = sr(SRD_WS, 4)

def flag(a, soff, imm=0):
    a(f"s_mov_b64 exec, 1\nbuffer_store_dword v{vTAG}, off, {WS}, s{soff} offset:{imm} sc1\ns_mov_b64 exec, -1")

def check_ne(a, regs):
    a(f"v_xor_b32 v{regs[0]}, s{sTAG}, v{regs[0]}")
    for r in regs[1:]:
        a(f"v_xor_b32 v{r}, s{sTAG}, v{r}\nv_or_b32 v{regs[0]}, v{regs[0]}, v{r}")
    a(f"v_cmp_ne_u32 vcc, 0, v{regs[0]}")

def spin(a, lbl, loads, regs, done, SLEEP=SLEEP):
    a(f"s_mov_b32 s{sSPIN}, {SPIN_MAX}")
    a.label(lbl)
    for l in loads: a(l)
    a("s_waitcnt vmcnt(0)")
    check_ne(a, regs)
    a(f"""s_cbranch_vccz {done}
    s_sleep {SLEEP}
    s_sub_u32 s{sSPIN}, s{sSPIN}, 1
    s_cmp_lg_u32 s{sSPIN}, 0
    s_cbranch_scc1 {lbl}""")

def wave_sum(a, v):
    for m in ("quad_perm:[1,0,3,2]", "quad_perm:[2,3,0,1]", "row_half_mirror", "row_mirror"):
        a(f"v_add_f32_dpp v{v}, v{v}, v{v} {m} row_mask:0xf bank_mask:0xf")
    a(f"v_add_f32_dpp v{v}, v{v}, v{v} row_bcast:15 row_mask:0xa bank_mask:0xf")
    a(f"v_add_f32_dpp v{v}, v{v}, v{v} row_bcast:31 row_mask:0xc bank_mask:0xf")

LW, LDUMMY, LX = 0, 61440, 65536
G3_SLOT = 40960
A_BASE, A_REG, A_HALF, A_SLOT = 2 * G3_SLOT, 2112, 12800, 25600
A_ONES = A_BASE + 3 * A_SLOT + 128
A_XCH = A_BASE + 2 * A_SLOT
G3_RED = 3 * G3_SLOT

class G1: pass
def alloc_g1():
    g = G1(); V = Regs('v', 24, 252); sg = Regs('s', S0, 96)
    g.acc = [V.many(32, 4) for u in range(3)]
    g.Wf = [V.many(24, 4) for b in range(2)]
    g.Xf = [V.many(16, 4) for b in range(2)]
    g.X19 = V.many(16, 4)
    g.gr = V.many(20, 4)
    g.xb = V.many(2, 1); g.xa = V.many(2, 1); g.wb = V.many(2, 1); g.wa = V.many(2, 1); g.voff = V.many(4, 1); g.vtch = V.one(); g.x2 = g.wa
    g.raw = g.gr; g.e = g.gr + 6; g.ep = g.gr + 5
    for n in "sRB sC sOff sStep sD0 sD1 sM0 sMsz sMend sWrapW sWrapX sSize sRound sWr sXr sRow sGP sG0 sG1 sC0 sC1 sC2 sQ0 sQ1 sFQ sQS".split(): setattr(g, n, sg.one())
    g.V, g.sg = V, sg
    return g

def dma_ops(g, j, rolled=False):
    L = [f"buffer_load_dwordx4 v{g.voff+i}, {sr(SRD_A,4)}, s{g.sOff} offen offset:{1024*i} lds" for i in range(4)]
    L[0] = f"s_mov_b32 m0, s{g.sM0}\ns_add_u32 s{g.sM0}, s{g.sM0}, s{g.sMsz}\n" + L[0]
    e = f"s_add_u32 s{g.sOff}, s{g.sOff}, s{g.sD1 if j & 1 else g.sD0}"
    if rolled:
        e += f"""\ns_cmp_ge_u32 s{g.sM0}, s{g.sMend}
        s_cselect_b32 s{sT}, s{g.sWrapW}, 0
        s_sub_u32 s{g.sM0}, s{g.sM0}, s{sT}"""
    else:
        if j % 5 == 4: e += f"\ns_sub_u32 s{g.sM0}, s{g.sM0}, s{g.sWrapW}"
        if j % 6 == 5: e += f"\ns_sub_u32 s{g.sM0}, s{g.sM0}, s{g.sWrapX}"
    L[3] += "\n" + e
    return L

BURST = [int(x) for x in os.environ.get("BURST", "7,3").split(",")]
BSTAGE = [int(x) for x in os.environ.get("BSTAGE", "0,6").split(",")]
def cs_reg(g, k): return g.X19 + 4 * k if k < 4 else g.Wf[1] + 4 * (k - 4)
def cs_load(g, k):
    return f"buffer_load_dwordx4 {vr(cs_reg(g,k),4)}, v{g.vtch}, {sr(SRD_A,4)}, s{g.sRow} offen offset:3072\ns_add_u32 s{g.sRow}, s{g.sRow}, s{g.sStep}"
def cs_setup(a, g):
    sel = g.gr + 16; t = T
    a(f"""v_and_b32 v{t}, 1, v{vLANE}
    v_lshlrev_b32 v{t}, 4, v{t}
    v_mov_b32 v{t+1}, 0x3f80
    v_lshlrev_b32 v{t}, v{t}, v{t+1}
    v_bfe_u32 v{t+1}, v{vLANE}, 1, 2""")
    for r in range(4): a(f"v_cmp_eq_u32 vcc, {r}, v{t+1}\nv_cndmask_b32 v{sel+r}, 0, v{t}, vcc")
_csn = [0]
def cs_acc(a, g, n, first):
    ac = g.gr + 8; sel = g.gr + 16
    _csn[0] += 1
    L = [f"s_cmp_ge_u32 s{sWAVE}, 3", f"s_cbranch_scc1 L_cs{_csn[0]}"]
    L += [f"v_mfma_f32_16x16x32_bf16 {vr(ac,4)}, {vr(sel,4)}, {vr(cs_reg(g,k),4)}, {'0' if first and k == 0 else vr(ac,4)}" for k in range(n)]
    a.atom("\n".join(L + [f"L_cs{_csn[0]}:"]))
def cs_publish(a, g):
    ac = g.gr + 8; t = T
    a(f"""v_bfe_u32 v{t}, v{vLANE}, 3, 1
    v_cmp_eq_u32 vcc, 1, v{t}
    v_and_b32 v{t+1}, 7, v{vLANE}
    v_lshl_add_u32 v{t+1}, v{t+1}, 3, v{t}
    v_bfe_u32 v{t}, v{vLANE}, 4, 1
    v_lshl_add_u32 v{t+1}, v{t}, 2, v{t+1}
    v_lshrrev_b32 v{t}, 5, v{vLANE}
    v_lshlrev_b32 v{t}, 1, v{t}""")
    for r in range(4): a(f"v_add_f32_dpp v{ac+r}, v{ac+r}, v{ac+r} row_ror:8 row_mask:0xf bank_mask:0xf")
    a(f"""v_cndmask_b32 v{ac}, v{ac}, v{ac+1}, vcc
    v_cndmask_b32 v{ac+2}, v{ac+2}, v{ac+3}, vcc
    v_cmp_lt_u32 vcc, 31, v{vLANE}
    s_nop 0
    v_cndmask_b32 v{ac}, v{ac}, v{ac+2}, vcc
    v_cvt_pk_bf16_f32 v{ac+1}, v{ac}, v{ac}
    v_add_lshl_u32 v{t+1}, v{t+1}, v{t}, 4
    v_and_b32 v{ac+1}, 0xffff0000, v{ac+1}
    v_sub_f32 v{ac}, v{ac}, v{ac+1}
    v_mov_b32 v{ac+3}, v{vTAG}
    v_cvt_pk_bf16_f32 v{ac+2}, v{ac+1}, v{ac}
    s_mul_i32 s{sT}, s{sWAVE}, 30
    s_add_u32 s{sT}, s{sT}, s{g.sC}
    s_lshl_b32 s{sT}, s{sT}, 2
    s_lshr_b32 s{sU}, s{g.sRB}, 1
    s_add_u32 s{sT}, s{sT}, s{sU}
    s_lshl_b32 s{sT}, s{sT}, 7
    s_and_b32 s{sU}, s{g.sRB}, 1
    s_add_u32 s{sT}, s{sT}, s{sU}
    s_lshl_b32 s{sT}, s{sT}, 3
    s_add_u32 s{sT}, s{sT}, {OFF_CS}
    s_cmp_lt_u32 s{sWAVE}, 3
    s_cselect_b32 s{sT}, s{sT}, 0x7ff00000
    buffer_store_dwordx2 {vr(ac+2,2)}, v{t+1}, {WS}, s{sT} offen sc1""")

def prologue(a, g):
    t = T
    name = NAME + "_kernel"
    a.raw(f".globl {name}\n.p2align 8\n.type {name},@function")
    a.label(name)
    a(f"""s_cmp_ge_u32 s2, 256
    s_cbranch_scc1 L_end""")
    stamp(a, True); stamp(a)
    a(f"""s_load_dwordx16 s[4:19], s[0:1], 0
    s_load_dwordx4 s[20:23], s[0:1], 64
    v_lshrrev_b32 v{t}, 6, v0
    v_and_b32 v{vLANE}, 63, v0
    v_readfirstlane_b32 s{sWAVE}, v{t}
    v_lshlrev_b32 v{vL16}, 4, v{vLANE}""")
    if "code" in XF:
        NL = int(os.environ.get("CODEL", "18"))
        a(f"""s_cmp_lg_u32 s{sWAVE}, 3
        s_cbranch_scc1 L_nocode
        s_getpc_b64 s[{S0}:{S0+1}]""")
        a.label("L_pc")
        a(f"""s_bfe_u32 s{sT}, s2, 0x40003
        v_lshl_add_u32 v{t+2}, v{vLANE}, 4, s{sT}
        v_lshlrev_b32 v{t+2}, 7, v{t+2}
        v_min_u32 v{t+2}, L_code_end-L_pc-4, v{t+2}
        v_mov_b32 v{t+3}, s{S0+1}
        v_add_co_u32 v{t+2}, vcc, s{S0}, v{t+2}
        v_addc_co_u32 v{t+3}, vcc, 0, v{t+3}, vcc
        s_mov_b64 exec, {hex((1 << NL) - 1)}
        global_load_dword v{g.gr+5}, v[{t+2}:{t+3}], off
        s_mov_b64 exec, -1""")
        a.label("L_nocode")
    a(f"""
    s_and_b32 s{g.sRB}, s2, 1
    s_lshl_b32 s{g.sRB}, s{g.sRB}, 2
    s_bfe_u32 s{sT}, s2, 0x20003
    s_add_u32 s{g.sRB}, s{g.sRB}, s{sT}
    s_lshr_b32 s{g.sC}, s2, 5
    s_lshl_b32 s{g.sC}, s{g.sC}, 2
    s_bfe_u32 s{sT}, s2, 0x20001
    s_add_u32 s{g.sC}, s{g.sC}, s{sT}
    s_and_b32 s{sQ4}, s{sWAVE}, 3
    s_lshr_b32 s{sHI}, s{sWAVE}, 2
    s_lshl_b32 s{g.sRow}, s2, 3
    s_add_u32 s{g.sRow}, s{g.sRow}, s{sWAVE}
    ; DMA role by wave: 0 wqkv, 1 gate, 2 up, 3 none, 4.. x ; groups 27..29 have no gate/up unit (zeros)
    s_cmp_lt_u32 s{g.sC}, 27
    s_cselect_b32 s{g.sSize}, {D*F*2+3072}, 0
    s_movk_i32 s{sU}, {F*2}
    s_cmp_eq_u32 s{sWAVE}, 0
    s_cselect_b32 s{g.sSize}, {D*3*D*2+3072}, s{g.sSize}
    s_cselect_b32 s{sU}, {3*D*2}, s{sU}
    s_lshl_b32 s{g.sOff}, s{g.sC}, 7
    s_lshl_b32 s{g.sM0}, s{sQ4}, 12
    s_add_u32 s{g.sWr}, s{g.sM0}, {LX}
    s_movk_i32 s{g.sMsz}, 12288
    s_mov_b32 s{g.sWrapW}, {5*12288}
    s_cmp_eq_u32 s{sWAVE}, 3
    s_cselect_b32 s{g.sSize}, 0, s{g.sSize}
    s_cselect_b32 s{g.sM0}, {LDUMMY}, s{g.sM0}
    s_cselect_b32 s{g.sMsz}, 0, s{g.sMsz}
    s_cselect_b32 s{g.sWrapW}, 0, s{g.sWrapW}
    s_lshl_b32 s{sT}, s{g.sRB}, 1
    s_lshr_b32 s{g.sGP}, s2, 7
    s_add_u32 s{sT}, s{sT}, s{g.sGP}
    s_lshl_b32 s{sT}, s{sT}, 4
    s_add_u32 s{sT}, s{sT}, s{sQ4}
    s_mul_i32 s{sT}, s{sT}, {8*1280}
    s_mul_i32 s{g.sD1}, s{g.sGP}, {2*128*1280}
    s_sub_u32 s{g.sD0}, {128*1280}, s{g.sD1}
    s_sub_u32 s{g.sD1}, 128, s{g.sD0}
    s_lshl_b32 s{g.sStep}, s{sU}, 3
    s_lshl_b32 s{g.sMend}, s{sU}, 5
    s_bfe_u32 s{g.sGP}, s2, 0x20005
    s_and_b32 s{g.sXr}, s{g.sRB}, 3
    s_cmp_ge_u32 s{sWAVE}, 4
    s_cselect_b32 s{g.sSize}, {S*D*2+3072}, s{g.sSize}
    s_cselect_b32 s{sU}, 1280, s{sU}
    s_cselect_b32 s{g.sOff}, s{sT}, s{g.sOff}
    s_cselect_b32 s{g.sD0}, s{g.sD0}, s{g.sMend}
    s_cselect_b32 s{g.sD1}, s{g.sD1}, s{g.sMend}
    s_cselect_b32 s{g.sM0}, s{g.sWr}, s{g.sM0}
    s_cselect_b32 s{g.sMsz}, 16384, s{g.sMsz}
    s_cselect_b32 s{g.sWrapW}, 0, s{g.sWrapW}
    s_cselect_b32 s{g.sWrapX}, {6*16384}, 0
    s_cselect_b32 s{g.sGP}, s{g.sGP}, s{g.sXr}
    s_cselect_b32 s{g.sMend}, {32*1280}, s{g.sStep}
    s_cselect_b64 vcc, -1, 0
    s_cmp_ge_u32 s{g.sC}, 30
    s_cselect_b32 s{g.sSize}, 0, s{g.sSize}
    ; lane part: row l/8, pos = l%8 ; W: chunk = pos ^ (((row>>1)&1)<<2 | (i&1)<<1) ; x: chunk = pos ^ ((row>>1) + 4*(wave&1))
    v_lshrrev_b32 v{t}, 3, v{vLANE}
    v_mul_lo_u32 v{t}, v{t}, s{sU}
    v_and_b32 v{t+1}, 7, v{vLANE}
    v_lshrrev_b32 v{t+2}, 4, v{vLANE}
    v_and_b32 v{t+3}, 1, v{t+2}
    v_lshlrev_b32 v{t+3}, 2, v{t+3}
    s_and_b32 s{sT}, s{sWAVE}, 1
    v_lshl_or_b32 v{t+2}, s{sT}, 2, v{t+2}
    v_or_b32 v{t+5}, 2, v{t+3}
    v_cndmask_b32 v{t+4}, v{t+5}, v{t+2}, vcc
    v_cndmask_b32 v{t+2}, v{t+3}, v{t+2}, vcc
    v_xor_b32 v{t+2}, v{t+2}, v{t+1}
    v_xor_b32 v{t+4}, v{t+4}, v{t+1}
    v_lshl_add_u32 v{t+2}, v{t+2}, 4, v{t}
    v_lshl_add_u32 v{t+4}, v{t+4}, 4, v{t}""")
    for i in range(4):
        a(f"""s_xor_b32 s{sT}, s{g.sGP}, {i}
        s_mul_i32 s{sT}, s{sT}, s{g.sMend}
        s_add_u32 s{sT}, s{sT}, {3072 - 1024*i}
        v_add_u32 v{g.voff+i}, s{sT}, v{t+2+2*(i&1)}""")
    a(f"""
    v_lshl_add_u32 v{g.vtch}, v{t+1}, 4, v{t}
    v_mov_b32 v{t+1}, 0x7ffffff0
    v_cndmask_b32 v{g.vtch}, v{g.vtch}, v{t+1}, vcc
    v_lshlrev_b32 v{t}, 2, v{vLANE}
    s_mul_i32 s{g.sRound}, s{g.sRow}, 1280
    s_mul_i32 s{g.sRow}, s{g.sRB}, s{g.sStep}
    s_lshl_b32 s{g.sStep}, s{g.sStep}, 3
    s_add_u32 s{g.sRow}, s{g.sRow}, s{g.sOff}
    s_mov_b32 s{sU}, {OFF_EP}
    s_mov_b32 s{SRD_WS+2}, {WS_USED}
    s_mov_b32 s{SRD_WS+3}, 0x20000
    s_mov_b32 s{SRD_B+2}, {S*D*2}
    s_mov_b32 s{SRD_B+3}, 0x20000
    s_mov_b32 s{SRD_A+2}, s{g.sSize}
    s_mov_b32 s{SRD_A+3}, 0x20000
    s_waitcnt lgkmcnt(0)
    s_mov_b32 s{SRD_WS}, s{pWS}
    s_mov_b32 s{SRD_WS+1}, s{pWS+1}
    s_mov_b32 s{SRD_B}, s{pX}
    s_mov_b32 s{SRD_B+1}, s{pX+1}
    buffer_load_dwordx4 {vr(g.raw,4)}, v{vL16}, {sr(SRD_B,4)}, s{g.sRound} offen
    buffer_load_dword v{g.raw+4}, v{t}, {sr(SRD_B,4)}, s{g.sRound} offen offset:1024
    s_load_dword s{sTAG}, s[{pWS}:{pWS+1}], s{sU}
    s_cmp_eq_u32 s{sWAVE}, 1
    s_cselect_b32 s{SRD_A}, s{pWG}, s{pWU}
    s_cselect_b32 s{SRD_A+1}, s{pWG+1}, s{pWU+1}
    s_cmp_eq_u32 s{sWAVE}, 0
    s_cselect_b32 s{SRD_A}, s{pWQKV}, s{SRD_A}
    s_cselect_b32 s{SRD_A+1}, s{pWQKV+1}, s{SRD_A+1}
    s_cmp_ge_u32 s{sWAVE}, 4
    s_cselect_b32 s{SRD_A}, s{pX}, s{SRD_A}
    s_cselect_b32 s{SRD_A+1}, s{pX+1}, s{SRD_A+1}
    s_sub_u32 s{SRD_A}, s{SRD_A}, 3072
    s_subb_u32 s{SRD_A+1}, s{SRD_A+1}, 0""")
    a(f"s_cmp_ge_u32 s{sWAVE}, 3\ns_cbranch_scc1 L_nocs")
    for n in range(BURST[0]): a(cs_load(g, n))
    a.label("L_nocs")
    a("s_barrier")
    for x in dma_ops(g, 0): a(x)

def g1_addr(a, g):
    t = T
    a(f"""; x fragments: (t16>>3)*4096 + (t16&7)*128 + (((g ^ r) ^ (t16>>1))*16) + (tq>>1)*16384 + (tq&1)*2048
    v_and_b32 v{t}, 7, v{vLANE}
    v_lshrrev_b32 v{t+1}, 4, v{vLANE}
    v_bfe_u32 v{t+2}, v{vLANE}, 1, 3
    v_xor_b32 v{t+2}, v{t+2}, v{t+1}
    v_xor_b32 v{t+2}, s{g.sXr}, v{t+2}
    v_lshlrev_b32 v{t+2}, 4, v{t+2}
    v_lshl_add_u32 v{t+2}, v{t}, 7, v{t+2}
    v_bfe_u32 v{t}, v{vLANE}, 3, 1
    v_lshl_add_u32 v{t+2}, v{t}, 12, v{t+2}
    s_lshr_b32 s{sT}, s{sQ4}, 1
    s_mul_i32 s{sT}, s{sT}, 6
    s_add_u32 s{sT}, s{sT}, s{sQ4}
    s_lshl_b32 s{sT}, s{sT}, 11
    s_add_u32 s{sT}, s{sT}, {LX}
    v_add_u32 v{g.xb}, s{sT}, v{t+2}
    v_xor_b32 v{g.xb+1}, 64, v{g.xb}
    v_add_u32 v{g.x2}, 0x10000, v{g.xb}
    v_add_u32 v{g.x2+1}, 0x10000, v{g.xb+1}
    v_bfe_u32 v{t}, v{vLANE}, 2, 2
    v_lshl_add_u32 v{t+2}, v{t+1}, 3, v{t}
    v_lshlrev_b32 v{t+2}, 7, v{t+2}
    v_lshrrev_b32 v{t}, 1, v{t}
    v_xor_b32 v{t}, s{sHI}, v{t}
    v_lshl_add_u32 v{t+2}, v{t}, 6, v{t+2}
    v_and_b32 v{t}, 1, v{t+1}
    v_lshl_add_u32 v{t+2}, v{t}, 5, v{t+2}
    v_and_b32 v{t}, 3, v{vLANE}
    v_lshl_add_u32 v{g.wb}, v{t}, 3, v{t+2}
    v_xor_b32 v{g.wb+1}, 32, v{g.wb}""")

def g1_setup(a, g):
    g1_addr(a, g); cs_setup(a, g); gran_setup(a, g)
    if "pst" in XF: stamp(a)

def _pn(g): return g.sM0, g.sMsz, g.sWrapW, g.sWrapX, g.sOff, g.sD1
def params_a(a, g):
    t = g.voff
    sHD, sPA, sPS, sPAR, sTG, sX = _pn(g)
    a(f"""; attention: hd = xcd*4 + (j>>3) ; qb = j&7
    s_and_b32 s{sHD}, s2, 7
    s_lshr_b32 s{sX}, s2, 6
    s_lshl2_add_u32 s{sHD}, s{sHD}, s{sX}
    s_and_b32 s{sPAR}, s{sHD}, 1
    s_mul_i32 s{sX}, s{sHD}, 5
    s_lshr_b32 s{sX}, s{sX}, 1
    s_add_u32 s{sPA}, s{sX}, s{sPAR}
    s_add_u32 s{sTG}, s{sX}, 2
    s_sub_u32 s{sPS}, s{sTG}, s{sPAR}
    s_sub_u32 s{sPS}, s{sPS}, s{sPAR}
    s_lshl_b32 s{sPA}, s{sPA}, 9
    s_lshl_b32 s{sPS}, s{sPS}, 9
    s_lshl_b32 s{sPAR}, s{sPAR}, 3
    s_lshr_b32 s{sX}, s{sX}, 2
    s_lshr_b32 s{sTG}, s{sTG}, 2
    s_sub_u32 s{sTG}, s{sTG}, s{sX}
    v_lshrrev_b32 v{t}, 5, v{vLANE}
    v_and_b32 v{t+1}, 31, v{vLANE}
    v_and_b32 v{t+2}, s{sTG}, v{t}
    v_add_lshl_u32 v{t+2}, s{sX}, v{t+2}, 7
    v_lshl_add_u32 v{vFQO}, v{t+1}, 2, v{t+2}
    v_lshlrev_b32 v{t+1}, 4, v{t+1}
    s_mov_b32 s{sX}, {P_QKV}
    v_mad_u32_u24 v{vKVO}, v{t}, s{sX}, v{t+1}
    s_xor_b32 s{sTG}, s{sHI}, 1
    v_xor_b32 v{vQRO}, s{sTG}, v{t}
    v_mad_u32_u24 v{vQRO}, v{vQRO}, s{sX}, v{t+1}
    ; staging role: wave&2 -> k or v, wave&1 -> pair of token groups, one instruction per piece
    s_lshr_b32 s{sX}, s{sQ4}, 1
    s_and_b32 s{sTG}, s{sQ4}, 1
    s_mul_i32 s{sDM}, s{sX}, {3*A_REG}
    s_mul_i32 s{sDO}, s{sHI}, {A_HALF}
    s_add_u32 s{sDM}, s{sDM}, s{sDO}
    s_lshl_b32 s{sDO}, s{sTG}, 10
    s_add_u32 s{sDM}, s{sDM}, s{sDO}
    s_lshl4_add_u32 s{sTG}, s{sHI}, s{sTG}
    s_mul_i32 s{sTG}, s{sTG}, 6
    s_add_u32 s{sTG}, s{sTG}, s{sX}
    s_add_u32 s{sTG}, s{sTG}, 1
    s_mul_i32 s{sTG}, s{sTG}, {80*512}
    s_add_u32 s{sDO}, s{sTG}, s{sPA}
    s_add_u32 s{sDO+1}, s{sTG}, s{sPS}
    s_bfe_u32 s{sTG}, s2, 0x30003
    s_lshl2_add_u32 s{sTG}, s{sTG}, s{sQ4}
    s_add_u32 s{sPS}, s{sPS}, s{sPAR}
    s_mul_i32 s{sQR}, s{sTG}, {2*P_QKV}
    s_add_u32 s{sQR}, s{sQR}, s{sPS}
    s_lshl1_add_u32 s{sTG}, s{sTG}, s{sHI}
    s_xor_b32 s{sX}, s{sTG}, 1
    s_mul_i32 s{sQA}, s{sTG}, {P_QKV}
    s_mul_i32 s{sQB_}, s{sX}, {P_QKV}
    s_add_u32 s{sQA}, s{sQA}, s{sPA}
    s_add_u32 s{sQB_}, s{sQB_}, s{sPA}""")
    assert OFF_QKV == 0 and P_QKV == 3 * 80 * 512

def params_b(a, g):
    t = T
    sHD, sPA, sPS, sPAR, sTG, sX = _pn(g)
    a(f"""s_mul_i32 s{sT}, s{sHI}, {A_HALF}
    s_add_u32 s{sT}, s{sT}, {A_BASE}
    v_lshrrev_b32 v{t}, 5, v{vLANE}
    v_and_b32 v{t+1}, 0x1f0, v{vL16}
    v_mul_u32_u24 v{vKMA}, {A_REG}, v{t}
    v_add3_u32 v{vKMA}, v{vKMA}, v{t+1}, s{sT}
    s_add_u32 s{sU}, s{sPAR}, s{sT}
    s_add_u32 s{sU}, s{sU}, {2*A_REG}
    v_add_u32 v{vKRA}, s{sU}, v{t+1}
    v_bfe_u32 v{t+1}, v{vLANE}, 2, 2
    v_lshl_add_u32 v{t+1}, v{t}, 3, v{t+1}
    v_and_b32 v{t+2}, 1, v{vLANE}
    v_mul_u32_u24 v{t+2}, {A_REG}, v{t+2}
    v_bfe_u32 v{t+3}, v{vLANE}, 1, 1
    v_lshlrev_b32 v{t+3}, 3, v{t+3}
    s_add_u32 s{sT}, s{sT}, {3*A_REG}
    v_add3_u32 v{t+2}, v{t+3}, v{t+2}, s{sT}
    s_add_u32 s{sU}, s{sU}, {3*A_REG}
    v_mov_b32 v{t+5}, s{sU}
    v_and_b32 v{t+4}, 19, v{vLANE}
    v_cmp_eq_u32 vcc, 16, v{t+4}
    v_add_u32 v{t+3}, {A_ONES}, v{t+3}
    v_mov_b32 v{vIDX}, 0xdddddddd
    v_cndmask_b32 v{t+2}, v{t+2}, v{t+5}, vcc
    v_cmp_lt_u32 vcc, 16, v{t+4}
    v_mov_b32 v{t+5}, {A_SLOT}
    s_nop 0
    v_cndmask_b32 v{t+2}, v{t+2}, v{t+3}, vcc
    v_cndmask_b32 v{t+5}, v{t+5}, 0, vcc
    v_lshl_add_u32 v{vVA}, v{t+1}, 4, v{t+2}
    v_add_u32 v{vVA+1}, v{vVA}, v{t+5}
    v_add_u32 v{vVA+2}, v{vVA+1}, v{t+5}""")

def params_c(a, g):
    sHD, sPA, sPS, sPAR, sTG, sX = _pn(g)
    a(f"""; H flag of this wave as a producer (dummy word 63 when it produces none)
    s_lshl1_add_u32 s{sFHp}, s{g.sC}, s{sHI}""")
    a.atom(f"s_cmp_lt_u32 s{g.sC}, 27\ns_cselect_b32 s{sFHp}, s{sFHp}, 63")
    sTB, sCB = sPA, sPS
    a(f"""s_lshr_b32 s{sX}, s2, 6
    s_xor_b32 s{sX}, s{sX}, s{sQ4}
    s_lshl2_add_u32 s{sX}, s{g.sRB}, s{sX}
    s_lshl_b32 s{sX}, s{sX}, 8
    s_lshl2_add_u32 s{sFHp}, s{sFHp}, s{sX}
    s_add_u32 s{sFHp}, s{sFHp}, {OFF_FH}
    s_mul_i32 s{sX}, s{sTG}, {P_O}
    s_add_u32 s{sX}, s{sX}, {OFF_O}
    s_add_u32 s{sOR}, s{sX}, s{sPS}
    s_add_u32 s{sOA}, s{sX}, s{sPA}
    s_lshl_b32 s{sFO}, s{sTG}, 7
    s_lshl2_add_u32 s{sFO}, s{sHD}, s{sFO}
    s_add_u32 s{sFO}, s{sFO}, {OFF_FO}
    s_bfe_u32 s{sTB}, s2, 0x20001
    s_bfe_u32 s{sX}, s2, 0x30003
    s_lshl3_add_u32 s{sTB}, s{sTB}, s{sX}
    s_and_b32 s{sCB}, s2, 1
    s_lshr_b32 s{sX}, s2, 6
    s_lshl2_add_u32 s{sCB}, s{sCB}, s{sX}
    s_lshl1_add_u32 s{sX}, s{sCB}, s{sHI}
    s_lshl_b32 s{sFWc}, s{sX}, 8
    s_add_u32 s{sFWc}, s{sFWc}, {OFF_FW}
    s_mul_i32 s{sX}, s{sX}, 37
    s_add_u32 s{sX}, s{sX}, s{sQ4}
    s_mul_i32 s{sWO}, s{sX}, 5120
    s_add_u32 s{sWO}, s{sWO}, {OFF_WP}
    s_lshl_b32 s{sFHc}, s{sTB}, 8
    s_mul_i32 s{sX}, s{sHI}, {27*4}
    s_add_u32 s{sFHc}, s{sFHc}, s{sX}
    s_add_u32 s{sFHc}, s{sFHc}, {OFF_FH}
    s_mul_i32 s{sOUT}, s{sTB}, {64*1280}
    s_mul_i32 s{sX}, s{sCB}, 160
    s_add_u32 s{sOUT}, s{sOUT}, s{sX}
    s_lshr_b32 s{sX}, s{sQ4}, 1
    s_lshl1_add_u32 s{sTB}, s{sTB}, s{sX}
    s_lshl1_add_u32 s{sTB}, s{sTB}, s{sHI}
    s_and_b32 s{sX}, s{sQ4}, 1
    s_lshl_b32 s{sX}, s{sX}, 8
    s_mul_i32 s{sH}, s{sTB}, {P_H//2}
    s_add_u32 s{sH}, s{sH}, s{sX}
    s_add_u32 s{sH}, s{sH}, {OFF_H}
    s_mul_i32 s{sO3}, s{sTB}, {P_O//2}
    s_add_u32 s{sO3}, s{sO3}, s{sX}
    s_add_u32 s{sO3}, s{sO3}, {OFF_O}
    s_lshl_b32 s{sFOc}, s{sTB}, 6
    s_add_u32 s{sFOc}, s{sFOc}, {OFF_FO}
    s_mul_i32 s{sM3}, s{sWAVE}, 5120""")
    assert P_H // 2 == 27 * 2048 and P_O // 2 == 10 * 2048

def stats(a, g):
    raw, e, t = g.raw, g.e, T
    for i in range(5):
        a(f"v_lshlrev_b32 v{e+2*i}, 16, v{raw+i}\nv_and_b32 v{e+2*i+1}, 0xffff0000, v{raw+i}")
    a(f"v_add_f32 v{t}, v{e}, v{e+1}")
    for i in range(2, 10): a(f"v_add_f32 v{t}, v{t}, v{e+i}")
    wave_sum(a, t)
    a(f"v_mul_f32 v{t}, {f32(1.0/D)}, v{t}\nv_readlane_b32 s{sT}, v{t}, 63")
    for i in range(10): a(f"v_subrev_f32 v{e+i}, s{sT}, v{e+i}")
    a(f"v_mul_f32 v{t+1}, v{e}, v{e}")
    for i in range(1, 10): a(f"v_fmac_f32 v{t+1}, v{e+i}, v{e+i}")
    a(f"""s_waitcnt lgkmcnt(0)
    s_mul_i32 s{sTAG}, s{sTAG}, 0x9e3779b1
    s_add_u32 s{sTAG}, s{sTAG}, 0x7f4a7c15
    v_mov_b32 v{vTAG}, s{sTAG}""")
    wave_sum(a, t + 1)
    a(f"""v_mul_f32 v{t+1}, {f32(1.0/D)}, v{t+1}
    v_cvt_pk_bf16_f32 v{t+1}, v{t+1}, v{t+1}
    v_and_b32 v{t+1}, 0xffff0000, v{t+1}
    v_add_f32 v{t+1}, {f32(1e-5)}, v{t+1}
    v_cvt_pk_bf16_f32 v{t+1}, v{t+1}, v{t+1}
    v_and_b32 v{t+1}, 0xffff0000, v{t+1}
    v_sqrt_f32 v{t+1}, v{t+1}
    v_mov_b32 v{t+3}, v{vTAG}
    v_cvt_pk_bf16_f32 v{t+2}, v{t}, v{t+1}
    s_lshl_b32 s{sT}, s2, 3
    s_add_u32 s{sT}, s{sT}, s{sWAVE}
    s_lshl_b32 s{sT}, s{sT}, 3
    s_add_u32 s{sT}, s{sT}, {OFF_ST}""")
    g.st_store = f"""s_mov_b32 exec_lo, 0
    s_brev_b32 exec_hi, 1
    buffer_store_dwordx2 {vr(t+2,2)}, off, {WS}, s{sT} sc1
    s_mov_b64 exec, -1"""

def x_reads(g, dst, ks): return [f"ds_read_b128 {vr(dst+4*q,4)}, v{g.xa+ks} offset:{q*2048}" for q in range(4)]
def w_reads(g, dst, u, base=None, off=0):
    A = g.wa if base is None else base
    return [f"ds_read_b64_tr_b16 {vr(dst+4*p+2*rd,2)}, v{A+p} offset:{off + u*4096 + rd*512}" for p in range(2) for rd in range(2)]
def mm(g, u, W, X, qs=range(4)):
    return [f"v_mfma_f32_16x16x32_bf16 {vr(g.acc[u]+8*q+4*p,4)}, {vr(W+4*p,4)}, {vr(X+4*q,4)}, {vr(g.acc[u]+8*q+4*p,4)}" for p in range(2) for q in qs]
def weave(a, mf, fill):
    for k, m in enumerate(mf):
        a(m)
        for x in fill.get(k, []): a(x)

class Rec:
    def __init__(self): self.L = []
    def __call__(self, text):
        self.L += [l.strip() for l in text.strip().split("\n") if l.strip() and not l.strip().startswith(";")]
    def atom(self, text): self.L.append(text)
Asm.atom = lambda self, text: self(text)

def xs_reads(g, dst, i):
    sl = (i >> 1) % 3
    return [f"ds_read_b128 {vr(dst+4*q,4)}, v{(g.x2 if sl == 2 else g.xb)+(i&1)} offset:{(sl&1)*32768*(sl < 2) + (q&1)*8192 + (q>>1)*1024}" for q in range(4)]
def ws_reads(g, dst, i, u): return w_reads(g, dst, u, g.wb, LW + (i % 5) * 12288)

def g1_start(a, g):
    for x in dma_ops(g, 1): a(x)
    a("s_barrier")
    for x in dma_ops(g, 2): a(x)
    if "pst" in XF: stamp(a)
    a("s_waitcnt vmcnt(12)")
    stats(a, g)
    for x in dma_ops(g, 3): a(x)
    a(g.st_store)
    stamp(a)
    a("s_waitcnt vmcnt(9)\ns_barrier")
    stamp(a)
    for r in xs_reads(g, g.Xf[0], 0): a(r)
    for u in range(3):
        for r in ws_reads(g, g.Wf[0] + 8 * u, 0, u): a(r)

def g1_main(a, g):
    def rec(f, *args):
        r = Rec(); f(r, *args); return r.L
    def burst(n, name):
        return ("cs", name, n, "\n".join([f"s_cmp_ge_u32 s{sWAVE}, 3", f"s_cbranch_scc1 L_{name}"] + [cs_load(g, k) for k in range(n)] + [f"L_{name}:"]))
    side = rec(cs_acc, g, BURST[0], True)
    for j in range(1, len(BURST)):
        nxt = BSTAGE[j + 1] if j + 1 < len(BURST) else BSTAGE[j] + 3
        side += [("at", BSTAGE[j]), ("k", 7), burst(BURST[j], f"c{j}"), ("at", nxt), ("wait", f"c{j}")] + rec(cs_acc, g, BURST[j], False)
    assert sum(BURST) == 10 and max(BURST[1:] + [0]) <= 4
    side += ([("at", 2)] if len(BURST) == 1 else []) + rec(cs_publish, g)
    g.spins = []
    g.l0 = [x + y for x, y in zip(st_loads(g), cs_loads(g, 0))]
    side += [("at", 15)] + sum(([("k", 3 + 6 * j), ("vm", "gr", l)] for j, l in enumerate(g.l0[0])), [])
    if "noside" in XF:
        for x in side:
            if isinstance(x, tuple):
                if x[0] == "wait": a("s_waitcnt vmcnt(0)")
                if x[0] == "vm": a(x[2])
            else: a(x)
        side = []
    out = ["r2"] * 4 + ["r3"] * 4 + ["st"]
    def wait(need):
        idx = max([j for j, x in enumerate(out) if x in need], default=-1)
        if idx >= 0:
            a(f"s_waitcnt vmcnt({sum(1 for x in out[idx+1:] if x[0] != 'c')})"); del out[:idx + 1]
    GP = [int(x) for x in os.environ.get("GP", "1,9,16,21").split(",") if x]
    PER = int(os.environ.get("SIDE", "1"))
    for i in range(16):
        b = i & 1; n = b ^ 1
        mf = sum((mm(g, u, g.Wf[b] + 8 * u, g.Xf[b]) for u in range(3)), [])
        if i == 0: mf = [m[:m.rindex(",")] + ", 0" for m in mf]
        xr = xs_reads(g, g.Xf[n], i + 1); wr = [ws_reads(g, g.Wf[n] + 8 * u, i + 1, u) for u in range(3)]
        rd = [xr[0]] + wr[0][:2] + xr[1:] + wr[0][2:] + wr[1] + wr[2]
        vm = {}
        if i == 0:
            for k, x in enumerate(dma_ops(g, 4) + dma_ops(g, 5)): vm[2 + 3 * k] = (f"r{4 + k // 4}", x)
        elif i + 5 < 20:
            for pos, x in zip((4, 10, 16, 22), dma_ops(g, i + 5)): vm[pos] = (f"r{i+5}", x)
        a("s_waitcnt lgkmcnt(0)")
        if "sst" in XF: stamp(a)
        if "nodma" in XF: vm = {}
        for k, m in enumerate(mf):
            a(m)
            if k == 1:
                wait([f"r{i+1}"] + ([f"r{i+2}"] if b else []))
                a("s_barrier")
            if GP and k in GP: a(f"s_setprio {len(GP) - 1 - GP.index(k)}")
            if k >= 2 and rd: a(rd.pop(0))
            if k in vm: a(vm[k][1]); out.append(vm[k][0])
            if k == 1: continue
            left = PER
            while left and side:
                x = side[0]
                if isinstance(x, tuple):
                    if x[0] == "at" and i < x[1]: break
                    if x[0] == "k" and k < x[1]: break
                    side.pop(0)
                    if x[0] == "per": PER = x[1]
                    if x[0] == "wait": wait([x[1]])
                    if x[0] == "vm": a(x[2]); out.append(x[1]); left = 0
                    if x[0] == "cs": a(x[3]); out.extend([x[1]] * x[2]); left = 0
                    continue
                side.pop(0); a(x); left -= 1
                if "buffer_store" in x: out.append("st")
                while side and isinstance(side[0], str) and ((x.startswith("s_cmp") and "\n" not in x) or side[0].startswith("s_cselect")):
                    x = side.pop(0); a(x)
        if os.environ.get("NOPS"): print("stage", i, "side left", len(side), file=sys.stderr)
    assert not side
    return out

def gran_setup(a, g):
    t = T; vst = g.xa; vcs = g.xa + 1; sTG = g.sRound
    a(f"""s_lshr_b32 s{sTG}, s2, 6
    s_xor_b32 s{sTG}, s{sTG}, s{sQ4}
    s_lshl2_add_u32 s{sTG}, s{g.sRB}, s{sTG}
    s_bfe_u32 s{g.sGP}, s2, 0x10005
    s_lshl1_add_u32 s{g.sGP}, s{sTG}, s{g.sGP}
    s_lshl_b32 s{g.sG0}, s{sTG}, 9
    s_add_u32 s{g.sG0}, s{g.sG0}, {OFF_ST}
    s_lshl_b32 s{g.sC0}, s{g.sC}, 3
    s_add_u32 s{g.sC0}, s{g.sC0}, s{sHI}
    s_lshl_b32 s{g.sC0}, s{g.sC0}, 9
    s_add_u32 s{g.sC0}, s{g.sC0}, {OFF_CS}
    s_add_u32 s{g.sC1}, s{g.sC0}, {30*4096}
    s_add_u32 s{g.sC2}, s{g.sC0}, {60*4096}
    v_and_b32 v{vst}, 15, v{vLANE}
    v_lshrrev_b32 v{vcs}, 4, v{vLANE}
    v_lshlrev_b32 v{vcs}, 6, v{vcs}
    v_add_lshl_u32 v{vcs}, v{vcs}, v{vst}, 4
    v_lshlrev_b32 v{vst}, 3, v{vst}
    v_bfe_u32 v{vSO}, v{vLANE}, 4, 1
    v_lshlrev_b32 v{vSO}, 10, v{vSO}
    v_lshrrev_b32 v{t}, 5, v{vLANE}
    v_lshl_add_u32 v{vSO}, v{t}, 9, v{vSO}
    v_lshl_add_u32 v{vSO}, v{vst}, 1, v{vSO}
    s_and_b32 s{sT}, s2, 32
    v_xor_b32 v{vst}, s{sT}, v{vLANE}
    v_lshlrev_b32 v{vst}, 3, v{vst}
    s_lshl_b32 s{sT}, s{g.sC}, 12
    s_lshl_b32 s{sU}, s{sHI}, 11
    s_add_u32 s{sT}, s{sT}, s{sU}
    s_xor_b32 s{sU}, s{g.sGP}, 1
    s_mul_i32 s{g.sQ0}, s{g.sGP}, {P_QKV}
    s_mul_i32 s{g.sQ1}, s{sU}, {P_QKV}
    s_add_u32 s{g.sQ0}, s{g.sQ0}, s{sT}
    s_add_u32 s{g.sQ1}, s{g.sQ1}, s{sT}
    s_mul_i32 s{sHS}, s{g.sGP}, {P_H}
    s_mul_i32 s{g.sXr}, s{sU}, {P_H}
    s_add_u32 s{sU}, s{sT}, {OFF_H}
    s_add_u32 s{sHS}, s{sHS}, s{sU}
    s_add_u32 s{g.sXr}, s{g.sXr}, s{sU}
    s_lshr_b32 s{sT}, s{sT}, 4
    s_lshl2_add_u32 s{g.sFQ}, s{sTG}, s{sT}
    s_add_u32 s{g.sFQ}, s{g.sFQ}, {OFF_FQ}
    s_cmp_lt_u32 s{g.sC}, 10
    s_cselect_b32 s{g.sQS}, {f32(QSCALE)}, 1.0""")
def st_loads(g): return [f"buffer_load_dwordx2 {vr(g.gr,2)}, v{g.xa}, {WS}, s{g.sG0} offen sc1"], [g.gr + 1]
def cs_loads(g, u):
    return ([f"buffer_load_dwordx4 {vr(g.gr+8+4*p,4)}, v{g.xa+1}, {WS}, s{(g.sC0, g.sC1, g.sC2)[u]} offen offset:{256*p} sc1" for p in range(2)],
            [g.gr + 9 + 2 * k for k in range(4)])
def gate(a, g, name, loads, tags):
    check_ne(a, tags)
    a.atom(f"s_cbranch_vccnz {name}\n{name}_done:")
    g.spins.append((name, loads, tags))
    for p in range(2): a(f"v_mov_b32 v{g.gr+9+4*p}, v{g.gr+10+4*p}")

def gran_use(a, g):
    t = T
    a(f"""v_mov_b32 v{g.gr+4}, v{g.gr}
    s_mov_b32 s{sT}, 0x01000100
    v_permlane32_swap_b32 v{g.gr}, v{g.gr+4}
    v_mov_b32 v{g.gr+2}, v{g.gr}
    v_mov_b32 v{g.gr+6}, v{g.gr+4}
    v_permlane16_swap_b32 v{g.gr}, v{g.gr+2}
    v_permlane16_swap_b32 v{g.gr+4}, v{g.gr+6}""")
    for q in range(4):
        a(f"""v_and_b32 v{t+q}, 0xffff0000, v{g.gr+2*q}
        v_perm_b32 v{g.gr+2*q}, v{g.gr+2*q}, v{g.gr+2*q}, s{sT}
        v_rcp_f32 v{t+4+q}, v{t+q}
        v_xor_b32 v{g.gr+2*q+1}, 0x80008000, v{g.gr+2*q}
        v_xor_b32 v{g.gr+2*q}, 0x80008000, v{g.gr+2*q}
        v_mul_f32 v{g.gr+16+q}, s{g.sQS}, v{t+4+q}""")
def corr(g, u):
    return [f"v_mfma_f32_16x16x16_bf16 {vr(g.acc[u]+8*q+4*p,4)}, {vr(g.gr+8+4*p,2)}, {vr(g.gr+2*q,2)}, {vr(g.acc[u]+8*q+4*p,4)}" for q in range(4) for p in range(2)]
def pack(A):
    return [f"v_cvt_pk_bf16_f32 v{A+r}, v{A+2*r}, v{A+2*r+1}" for r in range(4)]
def swaps(A): return [f"v_permlane16_swap_b32 v{A}, v{A+2}", f"v_permlane16_swap_b32 v{A+1}, v{A+3}"]
def epi_q(g):
    out = []
    for q in range(4):
        A = g.acc[0] + 8 * q; rq = g.gr + 16 + q
        L = [f"v_mul_f32 v{A+r}, v{rq}, v{A+r}" for r in range(8)] + pack(A)
        out.append((L, swaps(A), f"buffer_store_dwordx4 {vr(A,4)}, v{vSO}, {WS}, s{g.sQ1 if q >= 2 else g.sQ0} offen offset:{256*(q&1)} sc1"))
    return out

def gemm1(a, g, w):
    t = T
    out = g1_main(a, g)
    stamp(a)
    X = [g.Xf[0], g.Xf[1], g.Wf[1] + 8, g.X19]; Wa, Wb = g.Wf[0], g.Wf[1]
    def xr(i): return xs_reads(g, X[i - 16], i)
    def wr(i, u, dst): return ws_reads(g, dst, i, u)
    def both(i, dst):
        x, v = xr(i), wr(i, 0, dst)
        return v[:2] + x + v[2:]
    def step(u, W, i, rd, pre=None, extra=None, byq=False):
        fill = {}
        if pre: fill[0] = [pre]
        for k, r in enumerate(rd): fill.setdefault(k // 2, []).append(r)
        for k, x in enumerate(extra or []): fill.setdefault(k * 8 // len(extra), []).append(x)
        mf = mm(g, u, W, X[i - 16])
        if byq: mf = [mf[p * 4 + q] for q in range(4) for p in range(2)]
        weave(a, mf, fill)
    PRIO = "noprio" not in XF
    TP = "tp" in XF
    if PRIO: a("s_setprio 3")
    l1, t1 = cs_loads(g, 1); l2, t2 = cs_loads(g, 2)
    r = Rec(); gate(r, g, "L_sp_st", *g.l0); gran_use(r, g); gu = r.L; h1 = len(gu) // 2
    for x in both(17, Wb)[:4]: a(x)
    a("s_waitcnt lgkmcnt(4)"); step(0, Wa, 16, both(17, Wb)[4:])
    if "qold" in XF:
        a("s_waitcnt lgkmcnt(0)"); step(0, Wb, 17, both(18, Wa), pre="s_waitcnt vmcnt(0)\ns_barrier", extra=gu[:h1])
        a("s_waitcnt lgkmcnt(0)"); step(0, Wa, 18, both(19, Wb), extra=gu[h1:])
        weave(a, corr(g, 0), {0: wr(17, 1, Wa)})
        a("s_waitcnt lgkmcnt(4)"); step(0, Wb, 19, [], extra=["", l1[0], "", l1[1]], byq=True)
        eq = epi_q(g)
        ep = eq[0][0] + eq[1][0][:2] + eq[0][1] + [eq[0][2]] + eq[1][0][2:] + eq[2][0][:2] + eq[1][1] + [eq[1][2]] + eq[2][0][2:] + eq[3][0][:2] + eq[2][1] + [eq[2][2]] + eq[3][0][2:]
        step(1, g.Wf[0] + 8, 16, wr(18, 1, Wb), extra=ep)
    else:
        a("s_waitcnt lgkmcnt(0)"); step(0, Wb, 17, both(18, Wa) + xr(19), pre="s_waitcnt vmcnt(0)\ns_barrier", extra=gu[:h1])
        for x in wr(19, 0, Wb) + gu[h1:]: a(x)
        for m in corr(g, 0): a(m)
        for x in l1: a(x)
        a("s_waitcnt lgkmcnt(0)")
        eq = epi_q(g)
        qq = lambda q: mm(g, 0, Wa, X[2], [q]) + mm(g, 0, Wb, X[3], [q])
        g16 = mm(g, 1, g.Wf[0] + 8, X[0])
        for m in qq(0) + qq(1): a(m)
        def mix(V_, mf, every):
            for k, x in enumerate(V_):
                a(x)
                if k % every == every - 1 and mf: a(mf.pop(0))
            for m in mf: a(m)
        mix(eq[0][0], qq(2), 3)
        mix(eq[1][0][:2] + eq[0][1] + [eq[0][2]] + eq[1][0][2:], qq(3), 3)
        for x in wr(17, 1, Wa) + wr(18, 1, Wb): a(x)
        mix(eq[2][0][:2] + eq[1][1] + [eq[1][2]] + eq[2][0][2:] + eq[3][0][:2] + eq[2][1] + [eq[2][2]] + eq[3][0][2:], g16, 4)
    tmp = g.acc[0]; Z0, Z1, Z2 = tmp + 8, tmp + 16, tmp + 24; G = g.acc[1]; U = g.acc[2]; vc1 = g.xb
    for x in wr(19, 1, Z0)[:2] + eq[3][1] + wr(19, 1, Z0)[2:] + [eq[3][2]]: a(x)
    if "qst" in XF: stamp(a)
    a("s_setprio 2")
    params_a(a, g)
    a("s_waitcnt vmcnt(4)")
    gate(a, g, "L_sp_g", l1, t1)
    a(f"s_mov_b32 s{g.sD0}, {f32(-GC3)}\nv_mov_b32 v{vc1}, {f32(-GC1)}")
    weave(a, corr(g, 1), {0: wr(17, 2, Z1), 2: wr(18, 2, Z2), 7: l2})
    def gq(q): return [m for W, i in ((Wa, 17), (Wb, 18), (Z0, 19)) for m in mm(g, 1, W, X[i - 16], [q])]
    def uk(W, i): return mm(g, 2, W, X[i - 16])
    a("s_waitcnt lgkmcnt(8)")
    for m in gq(0): a(m)
    stamp(a)
    FQ = int(os.environ.get("FQ", "0"))
    u16 = uk(g.Wf[0] + 16, 16)
    for m in u16[:4]: a(m)
    plan = [gq(1) + u16[4:], gq(2) + uk(Z1, 17), gq(3) + corr(g, 2), uk(Z2, 18) + [uk(Z1, 19)[p * 4 + q] for q in range(4) for p in range(2)]]
    for h in range(4):
        if h == FQ:
            a("s_waitcnt vmcnt(0)"); flag(a, g.sFQ)
        if h == 1: a("s_waitcnt lgkmcnt(0)\ns_setprio 1")
        if h == 2:
            assert FQ <= 2
            gate(a, g, "L_sp_u", l2, t2)
            for x in wr(19, 2, Z1): a(x)
            attn_poll(a, w)
            a("s_setprio 0")
        if h == 3:
            attn_open(a, w, early=True)
            a("s_waitcnt lgkmcnt(0)\ns_setprio 1")
        R = range(8)
        Gh = G + 8 * h
        V_ = [f"v_mul_f32 v{Gh+r}, v{t+4+h}, v{Gh+r}" for r in R] + [f"v_mul_f32 v{tmp+r}, v{Gh+r}, v{Gh+r}" for r in R]
        V_ += [f"v_fma_f32 v{tmp+r}, v{tmp+r}, s{g.sD0}, v{vc1}" for r in R] + [f"v_mul_f32 v{tmp+r}, v{tmp+r}, v{Gh+r}" for r in R]
        V_ += [f"v_exp_f32 v{tmp+r}, v{tmp+r}" for r in R] + [f"v_fma_f32 v{tmp+r}, v{tmp+r}, v{t+h}, v{t+h}" for r in R]
        V_ += [f"v_rcp_f32 v{tmp+r}, v{tmp+r}" for r in R] + [f"v_mul_f32 v{Gh+r}, v{Gh+r}, v{tmp+r}" for r in R]
        mf = plan[h]
        if "gtr" in XF:
            pos = ([32 + k for k in range(8)] + [48 + k for k in range(8)])[:len(mf)]
        else:
            cost = [8 if ("exp" in x or "rcp" in x) else 4 for x in V_]; tot = sum(cost); acc_ = 0; pos = []
            for k, c in enumerate(cost):
                while len(pos) < len(mf) and acc_ >= len(pos) * (tot - 40) / len(mf): pos.append(k)
                acc_ += c
        for k, x in enumerate(V_):
            a(x)
            for j, pp in enumerate(pos):
                if pp == k: a(mf[j])
    a("s_setprio 0")
    r = Rec()
    for k in range(32): r(f"v_mul_f32 v{U+k}, v{U+k}, v{G+k}")
    for q in range(4):
        for x in pack(U + 8 * q): r(x)
    for q in range(4):
        for x in swaps(U + 8 * q): r(x)
    w.fin = r.L
    w.hst = [f"buffer_store_dwordx4 {vr(U+8*q,4)}, v{vSO}, {sr(SRD_B,4)}, s{g.sXr if q >= 2 else sHS} offen offset:{256*(q&1)} sc1" for q in range(4)]

def role_r(a, g, w):
    a.label("L_role_r")
    a("s_waitcnt vmcnt(0)")
    stats(a, g)
    a(g.st_store)
    sg = Regs('s', S0 + 17, 96); t = T
    sKS, sOff, sDst, sM, sN, sK2 = (sg.one() for _ in range(6)); sFl = sg.many(5, 1)
    V = Regs('v', 24 + 48 + 8, 252)
    vo = V.many(5, 1); va = V.many(5, 1); fr = V.many(20, 4)
    a(f"s_lshl_b32 s{sT}, s{sWAVE}, 2")
    for i in range(5):
        a(f"""v_add_u32 v{t}, {64*i}, v{vLANE}
        v_mul_u32_u24 v{t+1}, 820, v{t}
        v_lshrrev_b32 v{t+1}, 16, v{t+1}
        v_mul_u32_u24 v{t+2}, 80, v{t+1}
        v_sub_u32 v{t+2}, v{t}, v{t+2}
        v_add_u32 v{t+3}, s{sT}, v{t+1}
        v_lshrrev_b32 v{t+4}, 1, v{t+3}
        v_and_b32 v{t+4}, 4, v{t+4}
        v_or_b32 v{t+4}, v{t+4}, v{t+1}
        v_lshlrev_b32 v{t+4}, 1, v{t+4}
        v_xor_b32 v{t+2}, v{t+2}, v{t+4}
        v_mul_u32_u24 v{t+3}, 1280, v{t+3}
        v_lshl_add_u32 v{vo+i}, v{t+2}, 4, v{t+3}""")
    a(f"""v_lshrrev_b32 v{t}, 4, v{vLANE}
    v_bfe_u32 v{t+1}, v{vLANE}, 2, 2
    v_lshl_add_u32 v{t+2}, v{t}, 3, v{t+1}
    v_mul_u32_u24 v{t+2}, 1280, v{t+2}
    v_and_b32 v{t+3}, 1, v{vLANE}
    v_lshl_add_u32 v{t+2}, v{t+3}, 3, v{t+2}
    v_and_b32 v{t}, 1, v{t}
    v_lshl_add_u32 v{t}, v{t}, 2, v{t+1}
    v_lshlrev_b32 v{t}, 1, v{t}
    v_bfe_u32 v{t+1}, v{vLANE}, 1, 1
    s_mul_i32 s{sT}, s{sWAVE}, 10
    v_add_u32 v{t+1}, s{sT}, v{t+1}""")
    for ct in range(5):
        a(f"v_add_u32 v{t+3}, {2*ct}, v{t+1}\nv_xor_b32 v{t+3}, v{t+3}, v{t}\nv_lshl_add_u32 v{va+ct}, v{t+3}, 4, v{t+2}")
    a(f"""s_sub_u32 s{sKS}, s{g.sC}, 30
    s_lshl_b32 s{sKS}, s{sKS}, 3
    s_add_u32 s{sKS}, s{sKS}, s{g.sRB}
    s_mul_i32 s{sM}, s{sWAVE}, 5120
    s_waitcnt vmcnt(0)
    s_barrier""")
    def fetch(st):
        if st < 3:
            a(f"s_mov_b32 s{SRD_A}, s{pWD}\ns_mov_b32 s{SRD_A+1}, s{pWD+1}\ns_mov_b32 s{SRD_A+2}, {F*D*2}\ns_add_u32 s{sT}, s{sKS}, {16*st}")
        else:
            a(f"""s_mov_b32 s{sT}, {D*D*2}
            s_add_u32 s{sU}, s{sKS}, {16*st}
            s_cmp_lt_u32 s{sU}, 54
            s_cselect_b32 s{SRD_A}, s{pWD}, s{pWO}
            s_cselect_b32 s{SRD_A+1}, s{pWD+1}, s{pWO+1}
            s_cselect_b32 s{SRD_A+2}, {F*D*2}, s{sT}
            s_cselect_b32 s{sT}, 0, 54
            s_sub_u32 s{sT}, s{sU}, s{sT}""")
        a(f"s_mul_i32 s{sOff}, s{sT}, 40960")
        for i in range(5):
            a(f"s_add_u32 m0, s{sM}, {(st%4)*40960 + 1024*i}\nbuffer_load_dwordx4 v{vo+i}, {sr(SRD_A,4)}, s{sOff} offen lds")
    for st in range(4): fetch(st)
    stamp(a, idx=2); stamp(a, idx=3)
    for st in range(5):
        a(f"""s_add_u32 s{sK2}, s{sKS}, {16*st}
        s_cmp_lt_u32 s{sK2}, 54
        s_cselect_b32 s{sT}, 0, 54
        s_cselect_b32 s{sU}, 27, 10
        s_cselect_b32 s{sN}, 0, 27
        s_sub_u32 s{sK2}, s{sK2}, s{sT}
        s_cmp_ge_u32 s{sK2}, s{sU}
        s_cselect_b32 s{sT}, s{sU}, 0
        s_cselect_b32 s{sU}, 1, 0
        s_sub_u32 s{sK2}, s{sK2}, s{sT}
        s_add_u32 s{sK2}, s{sK2}, s{sN}
        s_lshl_b32 s{sT}, s{sWAVE}, 1
        s_add_u32 s{sU}, s{sU}, s{sT}
        s_mul_i32 s{sT}, s{sU}, 37
        s_add_u32 s{sT}, s{sT}, s{sK2}
        s_mul_i32 s{sDst}, s{sT}, 5120
        s_add_u32 s{sDst}, s{sDst}, {OFF_WP}
        s_lshl_b32 s{sU}, s{sU}, 6
        s_add_u32 s{sK2}, s{sK2}, s{sU}
        s_lshl_b32 s{sK2}, s{sK2}, 2
        s_add_u32 s{sFl+st}, s{sK2}, {OFF_FW}""")
        if st == 4:
            a(f"s_cmp_lt_u32 s{sKS}, 10\ns_cselect_b32 s{sDst}, s{sDst}, 0x7ff00000\ns_cselect_b32 s{sFl+st}, s{sFl+st}, 0x7ff00000")
        a(f"s_waitcnt vmcnt({(15, 20, 20, 20, 20)[st]})\ns_barrier")
        for ct in range(5):
            a(f"ds_read_b64_tr_b16 {vr(fr+4*ct,2)}, v{va+ct}\nds_read_b64_tr_b16 {vr(fr+4*ct+2,2)}, v{va+ct} offset:5120")
        for ct in range(5):
            if st < 4: a(f"v_add_u32 v{va+ct}, {40960 if st < 3 else (-3*40960) & 0xffffffff}, v{va+ct}")
        a("s_waitcnt lgkmcnt(0)")
        if st == 0:
            a("s_barrier"); fetch(4)
        for ct in range(4):
            a(f"buffer_store_dwordx4 {vr(fr+4*ct,4)}, v{vL16}, {WS}, s{sDst} offen offset:{1024*ct} sc1")
        a(f"""s_add_u32 s{sDst}, s{sDst}, 4096
        buffer_store_dwordx4 {vr(fr+16,4)}, v{vL16}, {WS}, s{sDst} offen sc1""")
    stamp(a, idx=4)
    params_a(a, g)
    a(f"v_mov_b32 v{vSO}, 0\ns_mov_b32 s{sHS}, 0\ns_waitcnt vmcnt(0)")
    for st in range(5): flag(a, sFl + st)
    stamp(a, idx=5)
    n0 = Stamper.n; Stamper.n = w.open_stamp
    attn_open(a, w, "_b")
    Stamper.n = n0
    a("s_branch L_attn")

class AT: pass
def alloc_at():
    w = AT(); V = Regs('v', WK, 252)
    w.Sb = [V.many(32, 4) for b in range(2)]; w.O = [V.many(16, 4) for q in range(2)]
    w.Qm = [V.many(4, 4) for q in range(2)]; w.Km = V.many(4, 4); w.V0 = V.many(4, 4); w.V1 = V.many(4, 4)
    w.Qr = V.many(2, 2); w.Kr = V.many(2, 2)
    return w

def w3_dma(c, R=SRD_WS, loose=False):
    L = []
    for i in range(5):
        pre = ""
        if i in (0, 4) or loose:
            k = 4096 if i == 4 else 0
            pre = f"s_add_u32 m0, s{sM3}, {(c%4)*G3_SLOT + k}\ns_add_u32 s{sW3}, s{sWO}, {c*4*5120 + k}\n"
        L.append(pre + f"buffer_load_dwordx4 v{vL16}, {sr(R,4)}, s{sW3} offen offset:{1024*(i&3)} sc1 lds")
    return L
sW3 = S0 + 30
def b_load(dst, base, k):
    s = f"s_add_u32 s{base}, s{base}, 4096\n" if k and k % 2 == 0 else ""
    return s + f"buffer_load_dwordx4 {vr(dst,4)}, v{vBO}, {WS}, s{base} offen offset:{(k&1)*2048} sc1"

def kv_dma(c):
    b = A_BASE + (c % 3) * A_SLOT; inc = 4 * P_QKV if c else 0
    return [f"s_add_u32 m0, s{sDM}, {b}\ns_add_u32 s{sDO}, s{sDO}, {inc}\nbuffer_load_dwordx4 v{vKVO}, {WS}, s{sDO} offen sc1 lds",
            f"s_add_u32 m0, s{sDM}, {b + A_REG - 512}\ns_nop 0\nbuffer_load_dwordx4 v{vKVO}, {WS}, s{sDO} offen offset:512 sc1 lds",
            f"s_add_u32 m0, s{sDM}, {b + 2*A_REG}\ns_add_u32 s{sDO+1}, s{sDO+1}, {inc}\nbuffer_load_dwordx4 v{vKVO}, {WS}, s{sDO+1} offen sc1 lds"]

vPQ = 244
def q_loads():
    t = vPQ
    return [f"buffer_load_dword v{t}, v{vFQO}, {WS}, s{sT} offen sc1",
            f"buffer_load_dword v{t+1}, v{vFQO}, {WS}, s{sU} offen sc1",
            f"buffer_load_dword v{t+2}, v{vFQO}, {WS}, s{sU} offen offset:2560 sc1"]
PW = int(os.environ.get("PW", "4"))
def attn_poll(a, w):
    a(f"""s_cmp_lg_u32 s{sWAVE}, {PW}
    s_cbranch_scc1 L_q_nopoll
    s_mov_b32 s{sT}, {OFF_FQ}
    s_mov_b32 s{sU}, {OFF_FQ + 2560}""")
    for l in q_loads(): a(l)
    a.label("L_q_nopoll")
def attn_open(a, w, sfx="", early=False):
    t = vPQ
    w.open_stamp = Stamper.n
    stamp(a)
    loads = q_loads()
    a(f"""s_cmp_lg_u32 s{sWAVE}, {PW}
    s_cbranch_scc1 L_sp_q_done{sfx}""")
    if early:
        a("s_waitcnt vmcnt(0)"); check_ne(a, [t, t + 1, t + 2]); a(f"s_cbranch_vccz L_sp_q_done{sfx}")
    else:
        a(f"s_mov_b32 s{sT}, {OFF_FQ}\ns_mov_b32 s{sU}, {OFF_FQ + 2560}")
    spin(a, "L_sp_q" + sfx, loads, [t, t + 1, t + 2], "L_sp_q_done" + sfx, int(os.environ.get("QSL", "2")) if early else SLEEP)
    a.label("L_sp_q_done" + sfx)
    a("s_barrier")
    stamp(a)
    for x in kv_dma(0): a(x)
    a(f"""buffer_load_dwordx4 {vr(w.Qm[0],4)}, v{vL16}, {WS}, s{sQB_} offen sc1
    buffer_load_dwordx4 {vr(w.Qm[1],4)}, v{vL16}, {WS}, s{sQA} offen sc1
    buffer_load_dwordx2 {vr(w.Qr,2)}, v{vQRO}, {WS}, s{sQR} offen sc1""")

def attention(a, w, g):
    t = T; Sb, O, Qm, Km, V0, V1, Qr, Kr = w.Sb, w.O, w.Qm, w.Km, w.V0, w.V1, w.Qr, w.Kr
    dma = kv_dma
    a.label("L_attn")
    params_b(a, g)
    a(f"""; token-side fragment offset of phase 3: lane (t16, g): piece g, row t16
    v_and_b32 v{vBO}, 0xf0, v{vL16}
    v_lshrrev_b32 v{t}, 4, v{vLANE}
    v_lshl_add_u32 v{vBO}, v{t}, 9, v{vBO}
    v_and_b32 v{t+4}, 3, v0
    v_cmp_eq_u32 vcc, 0, v{t+4}
    v_mov_b32 v{t+4}, 0x3f80
    v_lshlrev_b32 v{t+5}, 2, v0
    v_cndmask_b32 v{t+4}, 0, v{t+4}, vcc
    v_add_u32 v{t+5}, {A_ONES}, v{t+5}
    ds_write_b32 v{t+5}, v{t+4}
    v_min_u32 v{t+6}, 26, v{vLANE}
    v_min_u32 v{t+7}, 36, v{vLANE}
    v_lshlrev_b32 v{t+6}, 2, v{t+6}
    v_lshlrev_b32 v{t+7}, 2, v{t+7}
    s_mov_b32 s{SRD_B}, s{pWS}
    s_mov_b32 s{SRD_B+1}, s{pWS+1}
    s_cmp_lt_u32 s{g.sC}, 27
    s_cselect_b32 s{SRD_B+2}, {WS_USED}, 0""")
    NF = int(os.environ.get("NFIN", "54"))
    fin = w.fin + [f"v_mov_b32 v{O[q]+r}, 0" for q in range(2) for r in range(16)]
    for x in fin[:NF]: a(x)
    fin = fin[NF:]
    for x in kv_dma(1): a(x)
    a(f"""s_or_b32 s{sT}, s2, s{sWAVE}
    s_cmp_lg_u32 s{sT}, 0
    s_cbranch_scc1 L_noep
    s_mov_b32 s{sT}, {OFF_EP}
    s_waitcnt vmcnt(0)""")
    flag(a, sT)
    a.label("L_noep")
    def rdKr(i): return f"ds_read_b64 {vr(Kr,2)}, v{vKRA} offset:{((i>>2)%3)*A_SLOT + (i&3)*512}"
    def rdKm(i): return f"ds_read_b128 {vr(Km,4)}, v{vKMA} offset:{((i>>2)%3)*A_SLOT + (i&3)*512}"
    def rdV(i, s):
        R = V1 if s else V0
        return "\n".join(f"ds_read_b64_tr_b16 {vr(R+2*rd,2)}, v{vVA+(i>>2)%3} offset:{(i&3)*512 + s*256 + rd*64}" for rd in range(2))
    def m2b(i): return f"v_mfma_f32_32x32x4_2b_bf16 {vr(Sb[i&1],32)}, {vr(Kr,2)}, {vr(Qr,2)}, 0"
    def m16(i, q): return f"v_mfma_f32_32x32x16_bf16 {vr(Sb[i&1]+16*q,16)}, {vr(Km,4)}, {vr(Qm[q],4)}, {vr(Sb[i&1]+16*q,16)}"
    def smf(i, q, s): return f"v_smfmac_f32_32x32x32_bf16 {vr(O[q],16)}, {vr(V1 if s else V0,4)}, {vr(Sb[i&1]+16*q+8*s,8)}, v{vIDX}"
    a("s_waitcnt vmcnt(3) lgkmcnt(0)\ns_barrier")
    stamp(a)
    n1 = max(0, len(fin) - 34)
    a(rdKr(0)); a(rdKm(0)); a(rdV(0, 0))
    for x in fin[:n1]: a(x)
    a("s_waitcnt lgkmcnt(2)")
    a(m2b(0)); a(rdKr(1))
    for x in fin[n1:n1+18]: a(x)
    a(m16(0, 0))
    for x in fin[n1+18:n1+24]: a(x)
    a(m16(0, 1)); a(rdKm(1))
    for x in fin[n1+24:]: a(x)
    a("s_waitcnt lgkmcnt(0)")
    NT = 32
    PS = [int(x) for x in os.environ.get("PS", "1,3,7").split(",") if x]
    if PS: a("s_setprio 3")
    AP = os.environ.get("APRIO")
    if AP:
        a(f"s_cmp_eq_u32 s{sHI}, {AP}\ns_cbranch_scc0 L_noprio\ns_setprio 1")
        a.label("L_noprio")
    floads = [f"buffer_load_dword v{t}, v{t+6}, {WS}, s{sFHc} offen sc1", f"buffer_load_dword v{t+1}, v{t+7}, {WS}, s{sFWc} offen sc1"]
    w.floads = floads
    pre = [b_load(HB + 4 * n, sH, n) for n in range(27)]
    wd = w3_dma(0, loose=True) + w3_dma(1, loose=True)
    queue = []
    for n in range(27):
        queue.append(pre[n])
        if n % 3 == 1 and wd: queue.append(wd.pop(0))
    queue += wd
    if "notouch3" not in XF:
        queue.append(f"""s_bfe_u32 s{sT}, s2, 0x30003
        s_lshl2_add_u32 s{sT}, s{sT}, s{sQ4}
        s_mul_i32 s{sT}, s{sT}, {37*128}
        s_mul_i32 s{sU}, s{sQ4}, 5120
        s_sub_u32 s{sT}, s{sT}, s{sU}
        s_add_u32 s{sT}, s{sT}, s{sWO}
        s_add_u32 s{sT}, s{sT}, {8*5120}
        v_lshlrev_b32 v{t+6}, 5, v{t+7}
        buffer_load_dword v{t}, v{t+6}, {WS}, s{sT} offen sc1""")
    r = Rec(); params_c(r, g); pc = r.L
    young = 0
    a.auto = False
    for i in range(NT):
        def E(lo, hi):
            L = []
            for k in range(lo, hi):
                L.append(f"v_exp_f32 v{Sb[i&1]+k}, v{Sb[i&1]+k}")
                if pc and k % 4 == 3: L.append(pc.pop(0))
            return "\n".join(L)
        last = i == NT - 1
        def prio(pt):
            if not PS: return
            nb = min([b for b in range(2, 27, 4) if b * 4 + 1 > i * 4 + pt] + [NT - 0.25])
            left = int(round(nb * 4 + 1 - (i * 4 + pt)))
            for p, th in enumerate(PS):
                if left == th: a(f"s_setprio {p}")
        prio(0)
        a(E(0, 2))
        if i: a(smf(i - 1, 1, 1))
        a(rdV(i, 1)); a(E(2, 5))
        if not last: a(m2b(i + 1))
        newc = (i + 2) % 4 == 0 and i + 2 < NT
        dm = []
        if newc:
            c = (i + 2) // 4
            a(f"s_waitcnt vmcnt({0 if c == 3 else young})")
            if c == 3:
                a.auto = True
                check_ne(a, [t, t + 1])
                a("s_cbranch_vccnz L_sp_h")
                a.label("L_sp_h_done")
                a.auto = False
            if "anobar" not in XF: a("s_barrier")
            if PS: a("s_setprio 3")
            if c + 1 < 8: dm = dma(c + 1); young = 0
        elif i < 2: dm = [w.hst[2 * i], "", w.hst[2 * i + 1]]; young += 2
        elif i == 4:
            a("s_waitcnt vmcnt(3)"); flag(a, sFHp); young += 1
        elif i == 9:
            assert not pc
            dm = floads + [""]
        elif i > 10:
            dm = [queue.pop(0) if queue else "" for _ in range(3)]
            young += sum(1 for x in dm if x)
        if "anovm" in XF and i >= 2 and i != 9: dm = []
        if "anopre" in XF and i > 10 and not newc: dm = []
        if i + 2 < NT: a(rdKr(i + 2))
        prio(1)
        a(E(5, 9))
        if dm: a(dm[0])
        a(E(9, 13))
        a(f"s_waitcnt lgkmcnt({(4 if i + 2 < NT else 3) if not last else 2})")
        a(smf(i, 0, 0))
        if dm: a(dm[1])
        prio(2)
        a(E(13, 18)); a("s_waitcnt lgkmcnt(0)"); a(smf(i, 0, 1))
        if dm: a(dm[2])
        a(E(18, 21))
        if not last: a(m16(i + 1, 0))
        prio(3)
        a(E(21, 26)); a(smf(i, 1, 0))
        if not last: a(rdV(i + 1, 0))
        a(E(26, 29))
        if last:
            for q in range(3): a(f"ds_write_b128 v{t+1}, {vr(O[0]+4*q,4)} offset:{1024*q}")
        if i == NT - 2:
            a(f"""s_mul_i32 s{sT}, s{sWAVE}, 3200
            s_add_u32 s{sT}, s{sT}, {A_XCH}
            v_add_u32 v{t+1}, s{sT}, v{vL16}
            s_xor_b32 s{sU}, s{sWAVE}, 4
            s_mul_i32 s{sU}, s{sU}, 3200
            s_add_u32 s{sU}, s{sU}, {A_XCH}
            v_add_u32 v{t+2}, s{sU}, v{vL16}""")
        if not last: a(m16(i + 1, 1))
        if i + 2 < NT: a(rdKm(i + 2))
        a(E(29, 32))
    assert not queue
    a.auto = True
    a(smf(NT - 1, 1, 1))
    if AP: a("s_setprio 0")
    stamp(a)
    a("s_waitcnt vmcnt(0) lgkmcnt(0)\ns_barrier")
    X = Sb[0]; w.X = X
    for q in range(3): a(f"ds_read_b128 {vr(X+4*q,4)}, v{t+2} offset:{1024*q}")
    w.npre = int(os.environ.get("NPRE", "2"))
    for x in w3_dma(2)[:w.npre]: a(x)
    a("s_waitcnt lgkmcnt(0)")
    for r in range(12): a(f"v_add_f32 v{X+r}, v{X+r}, v{O[1]+r}")
    a(f"""v_mov_b32 v{X+12}, v{X+8}
    v_mov_b32 v{X+13}, v{X+8}
    v_mul_f32 v{X+14}, 0, v{X}""")
    a(f"v_permlane32_swap_b32 v{X+13}, v{X+12}")
    for r in range(1, 12): a(f"v_fmac_f32 v{X+14}, 0, v{X+r}")
    a(f"""v_add_f32 v{X+14}, v{X+14}, v{X+12}
    v_cmp_nle_f32 vcc, {f32(2.0**-64)}, v{X+14}
    s_mov_b64 s[{S0+26}:{S0+27}], vcc
    v_cmp_nge_f32 vcc, {f32(2.0**64)}, v{X+14}
    s_or_b64 vcc, vcc, s[{S0+26}:{S0+27}]
    s_cbranch_scc1 L_slow""" if "force_slow" not in XF else "s_branch L_slow")
    a.label("L_slow_done")
    a(f"v_rcp_f32 v{X+13}, v{X+12}")
    for r in range(12): a(f"v_mul_f32 v{X+r}, v{X+r}, v{X+13}")
    for r in range(6): a(f"v_cvt_pk_bf16_f32 v{X+16+r}, v{X+2*r}, v{X+2*r+1}")
    a(f"""buffer_store_dwordx4 {vr(X+16,4)}, v{vL16}, {WS}, s{sOA} offen sc1
    s_mov_b32 exec_hi, 0
    buffer_store_dwordx2 {vr(X+20,2)}, v{vL16}, {WS}, s{sOR} offen sc1
    s_mov_b64 exec, -1""")
    stamp(a)

def attn_cold(a, w):
    t = T; Sb, O, Qm, Km, V0, V1, Qr, Kr, X = w.Sb, w.O, w.Qm, w.Km, w.V0, w.V1, w.Qr, w.Kr, w.X
    a.label("L_sp_h")
    spin(a, "L_sp_h_loop", w.floads, [t, t + 1], "L_sp_h_done")
    a("s_branch L_sp_h_done")
    a.label("L_slow")
    Sx = Sb[1]; NM = Sb[1] + 16; Oa = O[1]; vb = O[0]; mx = O[0] + 8; vho = O[0] + 9; vwa = O[0] + 10; vws = O[0] + 11; vra = O[0] + 12
    sKA, sKS_, sN, sSC = S0 + 26, S0 + 27, S0 + 28, S0 + 29
    a(f"""s_xor_b32 s{sSC}, s{sWAVE}, 4
    s_mul_i32 s{sSC}, s{sSC}, 3200
    s_add_u32 s{sSC}, s{sSC}, {A_XCH}
    v_cmp_lt_u32 vcc, 31, v{vLANE}
    v_and_b32 v{vho}, 31, v{vLANE}
    v_lshlrev_b32 v{vho}, 4, v{vho}
    v_cndmask_b32 v{Qr}, 0, v{Qr}, vcc
    v_cndmask_b32 v{Qr+1}, 0, v{Qr+1}, vcc
    v_mov_b32 v{mx}, 0xff800000
    v_add_u32 v{vwa}, s{sSC}, v{vL16}
    v_add_u32 v{vws}, s{sSC}, v{vho}
    s_bfe_u32 s{sT}, s2, 0x30003
    s_lshl_b32 s{sT}, s{sT}, 2
    s_add_u32 s{sT}, s{sT}, s{sQ4}
    s_mul_i32 s{sT}, s{sT}, {2*P_QKV}
    s_sub_u32 s{sKS_}, s{sQR}, s{sT}
    s_mul_i32 s{sU}, s{sHI}, {P_QKV}
    s_add_u32 s{sT}, s{sT}, s{sU}
    s_sub_u32 s{sKA}, s{sQA}, s{sT}
    s_add_u32 s{sKA}, s{sKA}, {80*512}
    s_add_u32 s{sKS_}, s{sKS_}, {80*512}
    ; transposed V reads from the private scratch [A 512][B 512][S 512]
    v_bfe_u32 v{t+1}, v{vLANE}, 2, 2
    v_lshrrev_b32 v{t}, 5, v{vLANE}
    v_lshl_add_u32 v{t+1}, v{t}, 3, v{t+1}
    v_lshlrev_b32 v{t+1}, 4, v{t+1}
    v_and_b32 v{t+2}, 1, v{vLANE}
    v_lshlrev_b32 v{t+2}, 9, v{t+2}
    v_bfe_u32 v{t+3}, v{vLANE}, 1, 1
    v_lshl_add_u32 v{t+2}, v{t+3}, 3, v{t+2}
    v_mov_b32 v{t+5}, 1024
    v_and_b32 v{t+4}, 19, v{vLANE}
    v_cmp_eq_u32 vcc, 16, v{t+4}
    v_lshlrev_b32 v{t+3}, 3, v{t+3}
    v_add_u32 v{t+3}, {A_ONES}, v{t+3}
    v_cndmask_b32 v{t+2}, v{t+2}, v{t+5}, vcc
    v_cmp_lt_u32 vcc, 16, v{t+4}
    v_add_u32 v{t+2}, s{sSC}, v{t+2}
    v_cndmask_b32 v{t+2}, v{t+2}, v{t+3}, vcc
    v_add_u32 v{vra}, v{t+2}, v{t+1}
    s_mov_b32 s{sN}, 0""")
    def kload():
        a(f"""s_add_u32 s{sT}, s{sKA}, s{sN}
        s_add_u32 s{sU}, s{sKS_}, s{sN}
        buffer_load_dwordx4 {vr(Km,4)}, v{vL16}, {WS}, s{sT} offen sc1
        buffer_load_dwordx2 {vr(Kr,2)}, v{vho}, {WS}, s{sU} offen sc1""")
    def qk(c):
        a(f"""v_mfma_f32_32x32x16_bf16 {vr(Sx,16)}, {vr(Km,4)}, {vr(Qm[1],4)}, {c}
        v_mfma_f32_32x32x8_bf16 {vr(Sx,16)}, {vr(Kr,2)}, {vr(Qr,2)}, {vr(Sx,16)}""")
    def nxt(l): a(f"s_add_u32 s{sN}, s{sN}, {P_QKV}\ns_cmp_lt_u32 s{sN}, {64*P_QKV}\ns_cbranch_scc1 {l}")
    a.label("L_slow_a")
    kload(); a("s_waitcnt vmcnt(0)"); qk("0")
    for r in range(0, 16, 2): a(f"v_max3_f32 v{mx}, v{Sx+r}, v{Sx+r+1}, v{mx}")
    nxt("L_slow_a")
    a(f"""v_mov_b32 v{t}, v{mx}
    v_permlane32_swap_b32 v{t}, v{mx}
    v_max_f32 v{mx}, v{mx}, v{t}
    s_mov_b32 s{sN}, 0""")
    for r in range(16): a(f"v_sub_f32 v{NM+r}, 0, v{mx}\nv_mov_b32 v{Oa+r}, 0")
    a.label("L_slow_b")
    kload()
    a(f"""s_add_u32 s{sT}, s{sT}, {80*512}
    s_add_u32 s{sU}, s{sU}, {80*512}
    buffer_load_dwordx4 {vr(vb,4)}, v{vL16}, {WS}, s{sT} offen sc1
    buffer_load_dwordx2 {vr(vb+4,2)}, v{vho}, {WS}, s{sU} offen sc1
    s_waitcnt vmcnt(0)
    ds_write_b128 v{vwa}, {vr(vb,4)}
    ds_write_b64 v{vws}, {vr(vb+4,2)} offset:1024""")
    qk(vr(NM, 16))
    a("s_waitcnt lgkmcnt(0)")
    for s in range(2):
        for rd in range(2): a(f"ds_read_b64_tr_b16 {vr((V1 if s else V0)+2*rd,2)}, v{vra} offset:{s*256+rd*64}")
    for r in range(16): a(f"v_exp_f32 v{Sx+r}, v{Sx+r}")
    a("s_waitcnt lgkmcnt(0)")
    for s in range(2): a(f"v_smfmac_f32_32x32x32_bf16 {vr(Oa,16)}, {vr(V1 if s else V0,4)}, {vr(Sx+8*s,8)}, v{vIDX}")
    nxt("L_slow_b")
    for r in range(12): a(f"v_mov_b32 v{X+r}, v{Oa+r}")
    a(f"""v_mov_b32 v{X+12}, v{Oa+8}
    v_mov_b32 v{X+13}, v{Oa+8}
    v_permlane32_swap_b32 v{X+13}, v{X+12}
    s_nop 1
    s_branch L_slow_done""")

def gemm3(a, w):
    t = T; V = Regs('v', WK, 252)
    OB = V.many(40, 4); accd = V.many(20, 4); accs = V.many(20, 4); Wf = [V.many(20, 4) for b in range(2)]
    wa = vIDX
    RD, RS = 2 * G3_SLOT, 3 * G3_SLOT
    out = ["w2"] * w.npre + ["ost"] * 2
    lq = []
    def vm(tag, txt): a(txt); out.append(tag)
    def lds(tag, txt): a(txt); lq.append(tag)
    def w_vm(tag):
        if tag in out:
            idx = max(i for i, x in enumerate(out) if x == tag)
            a(f"s_waitcnt vmcnt({len(out) - 1 - idx})"); del out[:idx + 1]
    def w_lds(tag):
        if tag in lq:
            idx = max(i for i, x in enumerate(lq) if x == tag)
            a(f"s_waitcnt lgkmcnt({min(15, len(lq) - 1 - idx)})"); del lq[:idx + 1]
    for x in w3_dma(2)[w.npre:]: vm("w2", x)
    a(f"s_mul_i32 s{sT}, s{sHI}, {4*5120}")
    for k in range(4): a(f"s_add_u32 s{sU}, s{sT}, {k*G3_SLOT}\nv_add_u32 v{wa+k}, s{sU}, v{vL16}")
    def rd(n, ct): lds((n, ct), f"ds_read_b128 {vr(Wf[n&1]+4*ct,4)}, v{wa+(n>>2)%4} offset:{(n&3)*5120 + ct*1024}")
    for n in range(2):
        for ct in range(5): rd(n, ct)
    vo = 8
    r = Rec()
    r(f"""v_and_b32 v{t+7}, 15, v{vLANE}
    v_lshlrev_b32 v{t+7}, 2, v{t+7}
    s_mov_b32 s{SRD_A}, s{pWS}
    s_mov_b32 s{SRD_A+1}, s{pWS+1}""")
    r.atom(f"s_cmp_eq_u32 s{sQ4}, 0\ns_cselect_b32 s{SRD_A+2}, {WS_USED}, 0")
    srd(r, SRD_B, pX, S * D * 2)
    for q in range(3):
        r(f"v_add_u32 v{t+2}, {512*q}, v0" if q < 2 else f"v_lshrrev_b32 v{t+2}, 1, v0\nv_add_u32 v{t+2}, 1024, v{t+2}")
        r(f"""v_mul_u32_u24 v{t+3}, 3277, v{t+2}
        v_lshrrev_b32 v{t+3}, 16, v{t+3}
        v_bfe_u32 v{t+4}, v{t+3}, 1, 2
        v_xor_b32 v{t+2}, v{t+2}, v{t+4}
        v_mul_u32_u24 v{t+3}, {1280-160}, v{t+3}
        v_lshl_add_u32 v{vo+q}, v{t+2}, 3, v{t+3}""")
    r(f"""v_and_b32 v{t+2}, 1, v0
    v_lshl_add_u32 v{vo+2}, v{t+2}, 2, v{vo+2}
    v_lshlrev_b32 v11, 4, v0
    v_add_u32 v11, {RD}, v11
    v_lshlrev_b32 v12, 3, v0
    v_add_u32 v12, {RD + 16384}, v12
    v_lshrrev_b32 v{t+2}, 4, v{vLANE}
    v_bfe_u32 v{t+3}, v{vLANE}, 1, 2
    v_xor_b32 v{t+2}, v{t+2}, v{t+3}
    v_mul_u32_u24 v14, 80, v{t+7}
    v_lshl_add_u32 v14, v{t+2}, 4, v14
    s_add_u32 s{sT}, s{sM3}, {RD}
    v_add_u32 v14, s{sT}, v14""")
    side = r.L
    x2 = HB; red = HB + 8; g_ = HB + 32; xs = HB + 44
    oflag = f"buffer_load_dword v{t}, v{t+7}, {WS}, s{sFOc} offen sc1"
    w.oflag = oflag
    N_FLAG, N_POLL, N_CHK = (int(x) for x in os.environ.get("G3N", "6,17,21").split(","))
    WGAP, OGAP = (int(x) for x in os.environ.get("G3G", "3,3").split(","))
    vq = []
    def red_reads(delta):
        for q in range(3):
            for k in range(2):
                lds(("red", q), f"ds_read_b128 {vr(red+8*q+4*k,4)}, v11 offset:{8192*q + 20480*k}" if q < 2 else f"ds_read_b64 {vr(red+16+4*k,2)}, v12 offset:{20480*k}")
    for n in range(37):
        A = accd if n < 27 else accs
        Bn = HB + 4 * n if n < 27 else OB + 4 * (n - 27)
        first = n in (0, 27)
        if "g3st" in XF and n in (0, 2, 4, 5, 8, 12, 16, 17, 20, 24, 27, 28, 29, 31, 33, 35): stamp(a)
        if n == N_FLAG:
            w_vm("ost"); flag(a, sFO); out.append("fl")
        if n == N_CHK:
            w_vm("of")
            check_ne(a, [t])
            a("s_cbranch_vccnz L_sp_o")
            a.label("L_sp_o_done")
            stamp(a)
            if STAMP in (1, 2): lq.clear()
            ol = [(f"o{k}", b_load(OB + 4 * k, sO3, k)) for k in range(10)]
        if n % 4 == 2 and n + 2 < 37:
            c = (n + 2) // 4
            assert not any(x[0] == f"w{c}" for x in vq)
            w_vm(f"w{c}")
            if n == 30: w_lds("dw")
            a("s_barrier")
            if c + 2 < 10: vq += [(f"w{c+2}", x) for x in w3_dma(c + 2, SRD_WS if c + 2 < 9 else SRD_A)]
        if n == 28: a("s_barrier")
        if "nop3" not in XF: a(f"s_setprio {(1 - n) % 4 if n < 34 else 36 - n}")
        if n == N_POLL: vq.insert(0, ("of", oflag))
        if n == 11: vq += [("x", f"buffer_load_dword{'x2' if q < 2 else ''} {vr(x2+2*q,2 if q < 2 else 1)}, v{vo+q}, {sr(SRD_B,4)}, s{sOUT} offen") for q in range(3)]
        if n == 23:
            assert not side and "x" not in out
            r = Rec()
            for k in range(5): r(f"v_lshlrev_b32 v{xs+2*k}, 16, v{x2+k}\nv_and_b32 v{xs+2*k+1}, 0xffff0000, v{x2+k}")
            srd(r, SRD_B, pOUT, S * D * 2)
            side = r.L
        if n >= 27:
            assert not any(x[0] == f"o{n-27}" for x in ol)
            w_vm(f"o{n-27}")
        if n == 30: red_reads(0)
        if n == 31:
            w_lds(("red", 2))
            r = Rec(); r(f"s_mov_b32 s{sT}, {f32(-LOG2E)}")
            for k in range(10): r(f"v_add_f32 v{g_+k}, v{red+8*(k//4)+k%4}, v{red+8*(k//4)+4+k%4}")
            for k in range(10): r(f"v_mul_f32 v{red+k}, s{sT}, v{g_+k}")
            for k in range(10): r(f"v_exp_f32 v{red+k}, v{red+k}")
            for k in range(10): r(f"v_add_f32 v{red+k}, 1.0, v{red+k}")
            for k in range(10): r(f"v_rcp_f32 v{red+k}, v{red+k}")
            for k in range(10): r(f"v_mul_f32 v{g_+k}, v{g_+k}, v{red+k}")
            for k in (11, 12, 14): r(f"v_add_u32 v{k}, {RS-RD}, v{k}")
            assert not side
            side = r.L
        for ct in range(5):
            w_lds((n, ct))
            a(f"v_mfma_f32_16x16x32_bf16 {vr(A+4*ct,4)}, {vr(Wf[n&1]+4*ct,4)}, {vr(Bn,4)}, {'0' if first else vr(A+4*ct,4)}")
            if n + 2 < 37: rd(n + 2, ct)
            if n == 28: lds("dw", f"ds_write_b128 v14, {vr(accd+4*ct,4)} offset:{64*ct}")
            gap = 5 * n + ct
            if n < N_CHK:
                if gap % WGAP == 0 and vq: vm(*vq.pop(0))
            elif gap % OGAP == 0:
                dw = 4 * int(vq[0][0][1:]) - 2 if vq else 99
                do = 27 + int(ol[0][0][1:]) if ol else 99
                if vq and dw <= do: vm(*vq.pop(0))
                elif ol: vm(*ol.pop(0))
            for _ in range(1 if n < 31 else 2):
                if side: a(side.pop(0))
    for x in side: a(x)
    assert not vq and not ol
    stamp(a)
    for ct in range(5): a(f"ds_write_b128 v14, {vr(accs+4*ct,4)} offset:{64*ct}")
    a("s_waitcnt lgkmcnt(0)\ns_barrier")
    red_reads(RS - RD)
    for q in range(3):
        a(f"s_waitcnt lgkmcnt({4-2*q})")
        ne = 4 if q < 2 else 2
        for e in range(ne):
            a(f"v_add_f32 v{red+8*q+e}, v{red+8*q+e}, v{red+8*q+4+e}\nv_fmac_f32 v{xs+4*q+e}, v{red+8*q+e}, v{g_+4*q+e}")
        for k in range(ne // 2): a(f"v_cvt_pk_bf16_f32 v{x2+2*q+k}, v{xs+4*q+2*k}, v{xs+4*q+2*k+1}")
        a(f"buffer_store_dword{'x2' if q < 2 else ''} {vr(x2+2*q,ne//2)}, v{vo+q}, {sr(SRD_B,4)}, s{sOUT} offen {os.environ.get('OUTF', '')}")

def build():
    hdr = open("cdna_kernels/%s.s.ref" % NAME).read().split("; Override launch")[0]
    a = Asm(); g = alloc_g1(); w = alloc_at()
    prologue(a, g); g1_setup(a, g)
    a(f"s_cmp_ge_u32 s{g.sC}, 30\ns_cbranch_scc1 L_role_r")
    g1_start(a, g)
    gemm1(a, g, w); attention(a, w, g); gemm3(a, w)
    stamp_flush(a)
    a.label("L_end"); a("s_endpgm")
    a.label("L_sp_o")
    spin(a, "L_sp_o_loop", [w.oflag], [T], "L_sp_o_done"); a("s_branch L_sp_o_done")
    for name, loads, tags in g.spins:
        a.label(name)
        spin(a, name + "_loop", loads, tags, name + "_done"); a(f"s_branch {name}_done")
    role_r(a, g, w)
    a.label("L_code_end")
    attn_cold(a, w)
    out = hdr + "; @launch grid=(256,1,1) block=(512,1,1) lds=163840\n"
    out += '.amdgcn_target "amdgcn-amd-amdhsa--gfx950"\n.text\n' + a.text()
    out += f""".section .rodata,"a"
.p2align 6
.amdhsa_kernel {NAME}_kernel
  .amdhsa_next_free_vgpr 256
  .amdhsa_next_free_sgpr 102
  .amdhsa_accum_offset 256
  .amdhsa_group_segment_fixed_size 0
  .amdhsa_kernarg_size 80
  .amdhsa_user_sgpr_count 2
  .amdhsa_user_sgpr_kernarg_segment_ptr 1
  .amdhsa_system_sgpr_workgroup_id_x 1
.end_amdhsa_kernel
"""
    if os.environ.get("NOPS"): print("auto nops:", *a.nops, sep="\n  ", file=sys.stderr)
    return out

if __name__ == "__main__":
    path = sys.argv[1] if len(sys.argv) > 1 else "cdna_kernels/%s.s" % NAME
    open(path, "w").write(build())
```

```python
import sys, os, math, struct
from asmlib import *

NAME = "recurrent_scan__softmax_full_mha__geglu_ffn__prompt"
S, D, F, NH, DH = 2048, 640, 1728, 32, 20
P_QKV, P_H, P_O = 240 * 512, 216 * 512, 80 * 512
OFF_QKV = 0
OFF_H = OFF_QKV + 64 * P_QKV
OFF_O = OFF_H + 64 * P_H
OFF_WP = OFF_O + 64 * P_O
OFF_ST = OFF_WP + 8 * 74 * 5 * 1024
OFF_CS = OFF_ST + 2048 * 8
OFF_FQ = OFF_CS + 90 * 4096
OFF_FH = OFF_FQ + 8192
OFF_FW = OFF_FH + 8192
OFF_FO = OFF_FW + 4096
OFF_EP = OFF_FO + 8192
WS_USED = OFF_EP + 256
def f32(x): return "0x%08x" % struct.unpack("<I", struct.pack("<f", x))[0]
LOG2E = 1.4426950408889634
QSCALE = DH ** -0.5 * LOG2E
GC1 = 2 * 0.7978845608028654 * LOG2E
GC3 = GC1 * 0.044715
SPIN_MAX = 1 << 16
SLEEP = int(os.environ.get('SLEEP', '8'))
XF = set(os.environ.get("XF", "").split(","))

pX, pWQKV, pWO, pBX, pWG, pWU, pWD, pOUT, pDBG, pWS = 4, 6, 8, 10, 12, 14, 16, 18, 20, 22
sWAVE = 3
SRD_WS, SRD_A, SRD_B = 24, 28, 32
_sp = Regs('s', 36, 64)
sTAG, sT, sU, sQ4, sHI, sSPIN = (_sp.one() for _ in range(6))
sDO, sDM = _sp.many(3, 1), _sp.many(3, 1)
sQA, sQB_, sQR, sOA, sOR, sFO = (_sp.one() for _ in range(6))
sH, sO3, sWO, sOUT, sFHc, sFWc, sFOc, sFHp, sHS, sM3 = (_sp.one() for _ in range(10))
S0 = 64
vLANE, vL16, vTAG, vIDX, vKMA, vKRA, vVA, vKVO, vQRO, vFQO, vBO, vSO = 1, 2, 3, 4, 5, 6, 7, 10, 11, 12, 13, 15
T = 16
HB = 24
WK = 132

STAMP = int(os.environ.get("STAMP", "0"))
REPORT = int(os.environ.get("REPORT", "0")); REPWG = int(os.environ.get("REPWG", "0"))
OFF_STAMP = WS_USED
if STAMP: WS_USED += 2048 * 128
class Stamper: n = 0
NSTAMP = 16
vST = 252
def stamp(a, real=False, idx=None):
    i = Stamper.n if idx is None else idx
    if idx is None: Stamper.n += 1
    if REPORT and i in (0, REPORT):
        au = a.auto; a.auto = True
        k = 96 if i == 0 else 98
        a(f"s_memrealtime s[{k}:{k+1}]\ns_waitcnt lgkmcnt(0)")
        a.auto = au
    if not STAMP: return
    if STAMP == 3:
        if not real: return
        i = 0 if i == 0 else 1
    au = a.auto; a.auto = True
    if STAMP == 2: real = True
    a(f"s_mem{'real' if real else ''}time s[100:101]\ns_waitcnt lgkmcnt(0)\nv_writelane_b32 v{vST}, s100, {i}")
    a.auto = au
def stamp_flush(a):
    if "probe" in XF:
        a(f"""s_waitcnt vmcnt(0) lgkmcnt(0)
        s_or_b32 s{sT}, s2, s{sWAVE}
        s_cmp_lg_u32 s{sT}, 0
        s_cbranch_scc1 L_probe_done""")
        srd(a, SRD_A, pBX, S * D * 2)
        a(f"s_mov_b32 s{sT}, 0")
        a.label("L_probe")
        a(f"""buffer_load_dword v{T}, off, {sr(SRD_A,4)}, s{sT}
        s_add_u32 s{sT}, s{sT}, {16384+128}
        s_waitcnt vmcnt(0)
        s_cmp_lt_u32 s{sT}, {128*(16384+128)}
        s_cbranch_scc1 L_probe""")
        a.label("L_probe_done")
    if REPORT:
        a("s_waitcnt vmcnt(0) lgkmcnt(0)")
        stamp(a)
        a(f"""s_cmp_lg_u32 s2, {REPWG}
        s_cbranch_scc1 L_end
        s_sub_u32 s98, s98, s96
        s_mul_i32 s98, s98, 4
        s_memrealtime s[96:97]
        s_waitcnt lgkmcnt(0)""")
        a.label("L_rep")
        a("""s_memrealtime s[100:101]
        s_waitcnt lgkmcnt(0)
        s_sub_u32 s100, s100, s96
        s_cmp_lt_u32 s100, s98
        s_cbranch_scc1 L_rep""")
        return
    if not STAMP: return
    a("s_waitcnt vmcnt(0) lgkmcnt(0)")
    stamp(a); stamp(a, True)
    print("stamps:", Stamper.n, file=sys.stderr)
    a(f"""s_lshl_b32 s{sT}, s2, 3
    s_add_u32 s{sT}, s{sT}, s{sWAVE}
    s_lshl_b32 s{sT}, s{sT}, 7
    s_add_u32 s{sT}, s{sT}, {OFF_STAMP}
    v_lshlrev_b32 v{T}, 2, v{vLANE}
    s_mov_b32 exec_hi, 0
    buffer_store_dword v{vST}, v{T}, {sr(SRD_WS,4)}, s{sT} offen""")

def srd(a, r, ptr, size):
    a(f"s_mov_b32 s{r}, s{ptr}\ns_mov_b32 s{r+1}, s{ptr+1}\ns_mov_b32 s{r+2}, {size}\ns_mov_b32 s{r+3}, 0x20000")
WS = sr(SRD_WS, 4)

def flag(a, soff, imm=0):
    a(f"s_mov_b64 exec, 1\nbuffer_store_dword v{vTAG}, off, {WS}, s{soff} offset:{imm} sc1\ns_mov_b64 exec, -1")

def check_ne(a, regs):
    a(f"v_xor_b32 v{regs[0]}, s{sTAG}, v{regs[0]}")
    for r in regs[1:]:
        a(f"v_xor_b32 v{r}, s{sTAG}, v{r}\nv_or_b32 v{regs[0]}, v{regs[0]}, v{r}")
    a(f"v_cmp_ne_u32 vcc, 0, v{regs[0]}")

def spin(a, lbl, loads, regs, done, SLEEP=SLEEP):
    a(f"s_mov_b32 s{sSPIN}, {SPIN_MAX}")
    a.label(lbl)
    for l in loads: a(l)
    a("s_waitcnt vmcnt(0)")
    check_ne(a, regs)
    a(f"""s_cbranch_vccz {done}
    s_sleep {SLEEP}
    s_sub_u32 s{sSPIN}, s{sSPIN}, 1
    s_cmp_lg_u32 s{sSPIN}, 0
    s_cbranch_scc1 {lbl}""")

def wave_sum(a, v):
    for m in ("quad_perm:[1,0,3,2]", "quad_perm:[2,3,0,1]", "row_half_mirror", "row_mirror"):
        a(f"v_add_f32_dpp v{v}, v{v}, v{v} {m} row_mask:0xf bank_mask:0xf")
    a(f"v_add_f32_dpp v{v}, v{v}, v{v} row_bcast:15 row_mask:0xa bank_mask:0xf")
    a(f"v_add_f32_dpp v{v}, v{v}, v{v} row_bcast:31 row_mask:0xc bank_mask:0xf")

LW, LDUMMY, LX = 0, 61440, 65536
G3_SLOT = 40960
A_BASE, A_REG, A_HALF, A_SLOT = 2 * G3_SLOT, 2112, 12800, 25600
A_ONES = A_BASE + 3 * A_SLOT + 128
A_XCH = A_BASE + 2 * A_SLOT
G3_RED = 3 * G3_SLOT

class G1: pass
def alloc_g1():
    g = G1(); V = Regs('v', 24, 252); sg = Regs('s', S0, 96)
    g.acc = [V.many(32, 4) for u in range(3)]
    g.Wf = [V.many(24, 4) for b in range(2)]
    g.Xf = [V.many(16, 4) for b in range(2)]
    g.X19 = V.many(16, 4)
    g.gr = V.many(20, 4)
    g.xb = V.many(2, 1); g.xa = V.many(2, 1); g.wb = V.many(2, 1); g.wa = V.many(2, 1); g.voff = V.many(4, 1); g.vtch = V.one(); g.x2 = g.wa
    g.raw = g.gr; g.e = g.gr + 6; g.ep = g.gr + 5
    for n in "sRB sC sOff sStep sD0 sD1 sM0 sMsz sMend sWrapW sWrapX sSize sRound sWr sXr sRow sGP sG0 sG1 sC0 sC1 sC2 sQ0 sQ1 sFQ sQS".split(): setattr(g, n, sg.one())
    g.V, g.sg = V, sg
    return g

def dma_ops(g, j, rolled=False):
    L = [f"buffer_load_dwordx4 v{g.voff+i}, {sr(SRD_A,4)}, s{g.sOff} offen offset:{1024*i} lds" for i in range(4)]
    L[0] = f"s_mov_b32 m0, s{g.sM0}\ns_add_u32 s{g.sM0}, s{g.sM0}, s{g.sMsz}\n" + L[0]
    e = f"s_add_u32 s{g.sOff}, s{g.sOff}, s{g.sD1 if j & 1 else g.sD0}"
    if rolled:
        e += f"""\ns_cmp_ge_u32 s{g.sM0}, s{g.sMend}
        s_cselect_b32 s{sT}, s{g.sWrapW}, 0
        s_sub_u32 s{g.sM0}, s{g.sM0}, s{sT}"""
    else:
        if j % 5 == 4: e += f"\ns_sub_u32 s{g.sM0}, s{g.sM0}, s{g.sWrapW}"
        if j % 6 == 5: e += f"\ns_sub_u32 s{g.sM0}, s{g.sM0}, s{g.sWrapX}"
    L[3] += "\n" + e
    return L

BURST = [int(x) for x in os.environ.get("BURST", "7,3").split(",")]
BSTAGE = [int(x) for x in os.environ.get("BSTAGE", "0,6").split(",")]
def cs_reg(g, k): return g.X19 + 4 * k if k < 4 else g.Wf[1] + 4 * (k - 4)
def cs_load(g, k):
    return f"buffer_load_dwordx4 {vr(cs_reg(g,k),4)}, v{g.vtch}, {sr(SRD_A,4)}, s{g.sRow} offen offset:3072\ns_add_u32 s{g.sRow}, s{g.sRow}, s{g.sStep}"
def cs_setup(a, g):
    sel = g.gr + 16; t = T
    a(f"""v_and_b32 v{t}, 1, v{vLANE}
    v_lshlrev_b32 v{t}, 4, v{t}
    v_mov_b32 v{t+1}, 0x3f80
    v_lshlrev_b32 v{t}, v{t}, v{t+1}
    v_bfe_u32 v{t+1}, v{vLANE}, 1, 2""")
    for r in range(4): a(f"v_cmp_eq_u32 vcc, {r}, v{t+1}\nv_cndmask_b32 v{sel+r}, 0, v{t}, vcc")
_csn = [0]
def cs_acc(a, g, n, first):
    ac = g.gr + 8; sel = g.gr + 16
    _csn[0] += 1
    L = [f"s_cmp_ge_u32 s{sWAVE}, 3", f"s_cbranch_scc1 L_cs{_csn[0]}"]
    L += [f"v_mfma_f32_16x16x32_bf16 {vr(ac,4)}, {vr(sel,4)}, {vr(cs_reg(g,k),4)}, {'0' if first and k == 0 else vr(ac,4)}" for k in range(n)]
    a.atom("\n".join(L + [f"L_cs{_csn[0]}:"]))
def cs_publish(a, g):
    ac = g.gr + 8; t = T
    a(f"""v_bfe_u32 v{t}, v{vLANE}, 3, 1
    v_cmp_eq_u32 vcc, 1, v{t}
    v_and_b32 v{t+1}, 7, v{vLANE}
    v_lshl_add_u32 v{t+1}, v{t+1}, 3, v{t}
    v_bfe_u32 v{t}, v{vLANE}, 4, 1
    v_lshl_add_u32 v{t+1}, v{t}, 2, v{t+1}
    v_lshrrev_b32 v{t}, 5, v{vLANE}
    v_lshlrev_b32 v{t}, 1, v{t}""")
    for r in range(4): a(f"v_add_f32_dpp v{ac+r}, v{ac+r}, v{ac+r} row_ror:8 row_mask:0xf bank_mask:0xf")
    a(f"""v_cndmask_b32 v{ac}, v{ac}, v{ac+1}, vcc
    v_cndmask_b32 v{ac+2}, v{ac+2}, v{ac+3}, vcc
    v_cmp_lt_u32 vcc, 31, v{vLANE}
    s_nop 0
    v_cndmask_b32 v{ac}, v{ac}, v{ac+2}, vcc
    v_cvt_pk_bf16_f32 v{ac+1}, v{ac}, v{ac}
    v_add_lshl_u32 v{t+1}, v{t+1}, v{t}, 4
    v_and_b32 v{ac+1}, 0xffff0000, v{ac+1}
    v_sub_f32 v{ac}, v{ac}, v{ac+1}
    v_mov_b32 v{ac+3}, v{vTAG}
    v_cvt_pk_bf16_f32 v{ac+2}, v{ac+1}, v{ac}
    s_mul_i32 s{sT}, s{sWAVE}, 30
    s_add_u32 s{sT}, s{sT}, s{g.sC}
    s_lshl_b32 s{sT}, s{sT}, 2
    s_lshr_b32 s{sU}, s{g.sRB}, 1
    s_add_u32 s{sT}, s{sT}, s{sU}
    s_lshl_b32 s{sT}, s{sT}, 7
    s_and_b32 s{sU}, s{g.sRB}, 1
    s_add_u32 s{sT}, s{sT}, s{sU}
    s_lshl_b32 s{sT}, s{sT}, 3
    s_add_u32 s{sT}, s{sT}, {OFF_CS}
    s_cmp_lt_u32 s{sWAVE}, 3
    s_cselect_b32 s{sT}, s{sT}, 0x7ff00000
    buffer_store_dwordx2 {vr(ac+2,2)}, v{t+1}, {WS}, s{sT} offen sc1""")

def prologue(a, g):
    t = T
    name = NAME + "_kernel"
    a.raw(f".globl {name}\n.p2align 8\n.type {name},@function")
    a.label(name)
    a(f"""s_cmp_ge_u32 s2, 256
    s_cbranch_scc1 L_end""")
    stamp(a, True); stamp(a)
    a(f"""s_load_dwordx16 s[4:19], s[0:1], 0
    s_load_dwordx4 s[20:23], s[0:1], 64
    v_lshrrev_b32 v{t}, 6, v0
    v_and_b32 v{vLANE}, 63, v0
    v_readfirstlane_b32 s{sWAVE}, v{t}
    v_lshlrev_b32 v{vL16}, 4, v{vLANE}""")
    a(f"""; rb = (xcd&1)*4 + (j&3) ; c = (j>>2)*4 + (xcd>>1)
    s_and_b32 s{g.sRB}, s2, 1
    s_bfe_u32 s{g.sXr}, s2, 0x20003
    s_lshl2_add_u32 s{g.sRB}, s{g.sRB}, s{g.sXr}
    s_lshr_b32 s{g.sC}, s2, 5
    s_bfe_u32 s{sT}, s2, 0x20001
    s_lshl2_add_u32 s{g.sC}, s{g.sC}, s{sT}
    ; LN statistics row of this wave: rb*256 + c*8 + wave
    s_lshl_b32 s{g.sG1}, s{g.sRB}, 5
    s_add_u32 s{g.sG1}, s{g.sG1}, s{g.sC}
    s_lshl3_add_u32 s{g.sG1}, s{g.sG1}, s{sWAVE}
    s_mul_i32 s{g.sRound}, s{g.sG1}, 1280
    ; staging role by wave: 0 wqkv, 1 gate, 2 up, 3 none, 4.. x ; groups 27..29 have no gate/up unit (zeros)
    s_cmp_lt_u32 s{g.sC}, 27
    s_cselect_b32 s{SRD_A+2}, {D*F*2+3072}, 0
    s_movk_i32 s{sU}, {F*2}
    s_cmp_eq_u32 s{sWAVE}, 0
    s_cselect_b32 s{SRD_A+2}, {D*3*D*2+3072}, s{SRD_A+2}
    s_cselect_b32 s{sU}, {3*D*2}, s{sU}
    s_cmp_ge_u32 s{sWAVE}, 4
    s_cselect_b32 s{SRD_A+2}, {S*D*2+3072}, s{SRD_A+2}
    s_cselect_b32 s{sU}, 1280, s{sU}
    s_cmp_ge_u32 s{g.sC}, 30
    s_cselect_b32 s{SRD_A+2}, 0, s{SRD_A+2}
    s_lshl_b32 s{g.sOff}, s{g.sC}, 7
    s_lshl_b32 s{g.sMend}, s{sU}, 3
    v_lshrrev_b32 v{t}, 3, v{vLANE}
    v_mul_lo_u32 v{t}, v{t}, s{sU}
    v_and_b32 v{t+1}, 7, v{vLANE}
    v_lshl_add_u32 v{g.vtch}, v{t+1}, 4, v{t}
    v_lshlrev_b32 v{t+2}, 2, v{vLANE}
    s_mul_i32 s{g.sRow}, s{g.sRB}, s{g.sMend}
    s_lshl_b32 s{g.sStep}, s{sU}, 6
    s_add_u32 s{g.sRow}, s{g.sRow}, s{g.sOff}
    s_mov_b32 s{SRD_B+2}, {S*D*2}
    s_mov_b32 s{SRD_B+3}, 0x20000
    s_mov_b32 s{SRD_A+3}, 0x20000
    s_cmp_eq_u32 s{sWAVE}, 1
    s_waitcnt lgkmcnt(0)
    s_mov_b64 s[{SRD_B}:{SRD_B+1}], s[{pX}:{pX+1}]
    s_cselect_b64 s[{SRD_A}:{SRD_A+1}], s[{pWG}:{pWG+1}], s[{pWU}:{pWU+1}]
    buffer_load_dwordx4 {vr(g.raw,4)}, v{vL16}, {sr(SRD_B,4)}, s{g.sRound} offen
    buffer_load_dword v{g.raw+4}, v{t+2}, {sr(SRD_B,4)}, s{g.sRound} offen offset:1024
    s_cmp_eq_u32 s{sWAVE}, 0
    s_cselect_b64 s[{SRD_A}:{SRD_A+1}], s[{pWQKV}:{pWQKV+1}], s[{SRD_A}:{SRD_A+1}]
    s_cmp_ge_u32 s{sWAVE}, 4
    s_cselect_b64 s[{SRD_A}:{SRD_A+1}], s[{pX}:{pX+1}], s[{SRD_A}:{SRD_A+1}]
    s_sub_u32 s{SRD_A}, s{SRD_A}, 3072
    s_subb_u32 s{SRD_A+1}, s{SRD_A+1}, 0""")
    if "rowbar" in XF: a("s_barrier")
    a(f"s_cmp_ge_u32 s{sWAVE}, 3\ns_cbranch_scc1 L_nocs")
    for n in range(BURST[0]): a(cs_load(g, n))
    a.label("L_nocs")
    a(f"""s_mov_b32 s{sT}, {OFF_EP}
    s_load_dword s{sTAG}, s[{pWS}:{pWS+1}], s{sT}
    s_mov_b64 s[{SRD_WS}:{SRD_WS+1}], s[{pWS}:{pWS+1}]
    s_mov_b32 s{SRD_WS+2}, {WS_USED}
    s_mov_b32 s{SRD_WS+3}, 0x20000
    s_and_b32 s{sQ4}, s{sWAVE}, 3
    s_lshr_b32 s{sHI}, s{sWAVE}, 2
    s_lshl_b32 s{g.sM0}, s{sQ4}, 12
    s_add_u32 s{g.sWr}, s{g.sM0}, {LX}
    s_movk_i32 s{g.sMsz}, 12288
    s_mov_b32 s{g.sWrapW}, {5*12288}
    s_cmp_eq_u32 s{sWAVE}, 3
    s_cselect_b32 s{SRD_A+2}, 0, s{SRD_A+2}
    s_cselect_b32 s{g.sM0}, {LDUMMY}, s{g.sM0}
    s_cselect_b32 s{g.sMsz}, 0, s{g.sMsz}
    s_cselect_b32 s{g.sWrapW}, 0, s{g.sWrapW}
    s_lshr_b32 s{g.sGP}, s2, 7
    s_lshl1_add_u32 s{sT}, s{g.sRB}, s{g.sGP}
    s_lshl4_add_u32 s{sT}, s{sT}, s{sQ4}
    s_mul_i32 s{sT}, s{sT}, {8*1280}
    s_mul_i32 s{g.sD1}, s{g.sGP}, {2*128*1280}
    s_sub_u32 s{g.sD0}, {128*1280}, s{g.sD1}
    s_sub_u32 s{g.sD1}, 128, s{g.sD0}
    s_lshl_b32 s{sU}, s{sU}, 5
    s_bfe_u32 s{g.sGP}, s2, 0x20005
    s_cmp_ge_u32 s{sWAVE}, 4
    s_cselect_b32 s{g.sOff}, s{sT}, s{g.sOff}
    s_cselect_b32 s{g.sD0}, s{g.sD0}, s{sU}
    s_cselect_b32 s{g.sD1}, s{g.sD1}, s{sU}
    s_cselect_b32 s{g.sM0}, s{g.sWr}, s{g.sM0}
    s_cselect_b32 s{g.sMsz}, 16384, s{g.sMsz}
    s_cselect_b32 s{g.sWrapW}, 0, s{g.sWrapW}
    s_cselect_b32 s{g.sWrapX}, {6*16384}, 0
    s_cselect_b32 s{g.sGP}, s{g.sGP}, s{g.sXr}
    s_cselect_b32 s{g.sMend}, s{sU}, s{g.sMend}
    s_cselect_b64 vcc, -1, 0
    ; lane part: row l/8, pos = l%8 ; W: chunk = pos ^ (((row>>1)&1)<<2 | (i&1)<<1) ; x: chunk = pos ^ ((row>>1) + 4*(wave&1))
    v_lshrrev_b32 v{t+2}, 4, v{vLANE}
    v_and_b32 v{t+3}, 1, v{t+2}
    v_lshlrev_b32 v{t+3}, 2, v{t+3}
    s_and_b32 s{sT}, s{sWAVE}, 1
    v_lshl_or_b32 v{t+2}, s{sT}, 2, v{t+2}
    v_or_b32 v{t+5}, 2, v{t+3}
    v_cndmask_b32 v{t+4}, v{t+5}, v{t+2}, vcc
    v_cndmask_b32 v{t+2}, v{t+3}, v{t+2}, vcc
    v_xor_b32 v{t+2}, v{t+2}, v{t+1}
    v_xor_b32 v{t+4}, v{t+4}, v{t+1}
    v_lshl_add_u32 v{t+2}, v{t+2}, 4, v{t}
    v_lshl_add_u32 v{t+4}, v{t+4}, 4, v{t}""")
    for i in range(4):
        a(f"""s_xor_b32 s{sT}, s{g.sGP}, {i}
        s_mul_i32 s{sT}, s{sT}, s{g.sMend}
        s_add_u32 s{sT}, s{sT}, {3072 - 1024*i}
        v_add_u32 v{g.voff+i}, s{sT}, v{t+2+2*(i&1)}""")
    a("s_barrier")
    for x in dma_ops(g, 0): a(x)

def g1_addr(a, g):
    t = T
    a(f"""; x fragments: (t16>>3)*4096 + (t16&7)*128 + (((g ^ r) ^ (t16>>1))*16) + (tq>>1)*16384 + (tq&1)*2048
    v_and_b32 v{t}, 7, v{vLANE}
    v_lshrrev_b32 v{t+1}, 4, v{vLANE}
    v_bfe_u32 v{t+2}, v{vLANE}, 1, 3
    v_xor_b32 v{t+2}, v{t+2}, v{t+1}
    v_xor_b32 v{t+2}, s{g.sXr}, v{t+2}
    v_lshlrev_b32 v{t+2}, 4, v{t+2}
    v_lshl_add_u32 v{t+2}, v{t}, 7, v{t+2}
    v_bfe_u32 v{t}, v{vLANE}, 3, 1
    v_lshl_add_u32 v{t+2}, v{t}, 12, v{t+2}
    s_lshr_b32 s{sT}, s{sQ4}, 1
    s_mul_i32 s{sT}, s{sT}, 6
    s_add_u32 s{sT}, s{sT}, s{sQ4}
    s_lshl_b32 s{sT}, s{sT}, 11
    s_add_u32 s{sT}, s{sT}, {LX}
    v_add_u32 v{g.xb}, s{sT}, v{t+2}
    v_xor_b32 v{g.xb+1}, 64, v{g.xb}
    v_add_u32 v{g.x2}, 0x10000, v{g.xb}
    v_add_u32 v{g.x2+1}, 0x10000, v{g.xb+1}
    v_bfe_u32 v{t}, v{vLANE}, 2, 2
    v_lshl_add_u32 v{t+2}, v{t+1}, 3, v{t}
    v_lshlrev_b32 v{t+2}, 7, v{t+2}
    v_lshrrev_b32 v{t}, 1, v{t}
    v_xor_b32 v{t}, s{sHI}, v{t}
    v_lshl_add_u32 v{t+2}, v{t}, 6, v{t+2}
    v_and_b32 v{t}, 1, v{t+1}
    v_lshl_add_u32 v{t+2}, v{t}, 5, v{t+2}
    v_and_b32 v{t}, 3, v{vLANE}
    v_lshl_add_u32 v{g.wb}, v{t}, 3, v{t+2}
    v_xor_b32 v{g.wb+1}, 32, v{g.wb}""")

def g1_setup(a, g):
    g1_addr(a, g); cs_setup(a, g); gran_setup(a, g)
    if "pst" in XF: stamp(a)

def _pn(g): return g.sM0, g.sMsz, g.sWrapW, g.sWrapX, g.sOff, g.sD1
def params_a(a, g):
    t = g.voff
    sHD, sPA, sPS, sPAR, sTG, sX = _pn(g)
    a(f"""; attention: hd = xcd*4 + (j>>3) ; qb = j&7
    s_and_b32 s{sHD}, s2, 7
    s_lshr_b32 s{sX}, s2, 6
    s_lshl2_add_u32 s{sHD}, s{sHD}, s{sX}
    s_and_b32 s{sPAR}, s{sHD}, 1
    s_mul_i32 s{sX}, s{sHD}, 5
    s_lshr_b32 s{sX}, s{sX}, 1
    s_add_u32 s{sPA}, s{sX}, s{sPAR}
    s_add_u32 s{sTG}, s{sX}, 2
    s_sub_u32 s{sPS}, s{sTG}, s{sPAR}
    s_sub_u32 s{sPS}, s{sPS}, s{sPAR}
    s_lshl_b32 s{sPA}, s{sPA}, 9
    s_lshl_b32 s{sPS}, s{sPS}, 9
    s_lshl_b32 s{sPAR}, s{sPAR}, 3
    s_lshr_b32 s{sX}, s{sX}, 2
    s_lshr_b32 s{sTG}, s{sTG}, 2
    s_sub_u32 s{sTG}, s{sTG}, s{sX}
    v_lshrrev_b32 v{t}, 5, v{vLANE}
    v_and_b32 v{t+1}, 31, v{vLANE}
    v_and_b32 v{t+2}, s{sTG}, v{t}
    v_add_lshl_u32 v{t+2}, s{sX}, v{t+2}, 7
    v_lshl_add_u32 v{vFQO}, v{t+1}, 2, v{t+2}
    v_lshlrev_b32 v{t+1}, 4, v{t+1}
    s_mov_b32 s{sX}, {P_QKV}
    v_mad_u32_u24 v{vKVO}, v{t}, s{sX}, v{t+1}
    s_xor_b32 s{sTG}, s{sHI}, 1
    v_xor_b32 v{vQRO}, s{sTG}, v{t}
    v_mad_u32_u24 v{vQRO}, v{vQRO}, s{sX}, v{t+1}
    ; staging role: wave&2 -> k or v, wave&1 -> pair of token groups, one instruction per piece
    s_lshr_b32 s{sX}, s{sQ4}, 1
    s_and_b32 s{sTG}, s{sQ4}, 1
    s_mul_i32 s{sDM}, s{sX}, {3*A_REG}
    s_mul_i32 s{sDO}, s{sHI}, {A_HALF}
    s_add_u32 s{sDM}, s{sDM}, s{sDO}
    s_lshl_b32 s{sDO}, s{sTG}, 10
    s_add_u32 s{sDM}, s{sDM}, s{sDO}
    s_lshl4_add_u32 s{sTG}, s{sHI}, s{sTG}
    s_mul_i32 s{sTG}, s{sTG}, 6
    s_add_u32 s{sTG}, s{sTG}, s{sX}
    s_add_u32 s{sTG}, s{sTG}, 1
    s_mul_i32 s{sTG}, s{sTG}, {80*512}
    s_add_u32 s{sDO}, s{sTG}, s{sPA}
    s_add_u32 s{sDO+1}, s{sTG}, s{sPS}
    s_bfe_u32 s{sTG}, s2, 0x30003
    s_lshl2_add_u32 s{sTG}, s{sTG}, s{sQ4}
    s_add_u32 s{sPS}, s{sPS}, s{sPAR}
    s_mul_i32 s{sQR}, s{sTG}, {2*P_QKV}
    s_add_u32 s{sQR}, s{sQR}, s{sPS}
    s_lshl1_add_u32 s{sTG}, s{sTG}, s{sHI}
    s_xor_b32 s{sX}, s{sTG}, 1
    s_mul_i32 s{sQA}, s{sTG}, {P_QKV}
    s_mul_i32 s{sQB_}, s{sX}, {P_QKV}
    s_add_u32 s{sQA}, s{sQA}, s{sPA}
    s_add_u32 s{sQB_}, s{sQB_}, s{sPA}""")
    assert OFF_QKV == 0 and P_QKV == 3 * 80 * 512

def params_b(a, g):
    t = T
    sHD, sPA, sPS, sPAR, sTG, sX = _pn(g)
    a(f"""s_mul_i32 s{sT}, s{sHI}, {A_HALF}
    s_add_u32 s{sT}, s{sT}, {A_BASE}
    v_lshrrev_b32 v{t}, 5, v{vLANE}
    v_and_b32 v{t+1}, 0x1f0, v{vL16}
    v_mul_u32_u24 v{vKMA}, {A_REG}, v{t}
    v_add3_u32 v{vKMA}, v{vKMA}, v{t+1}, s{sT}
    s_add_u32 s{sU}, s{sPAR}, s{sT}
    s_add_u32 s{sU}, s{sU}, {2*A_REG}
    v_add_u32 v{vKRA}, s{sU}, v{t+1}
    v_bfe_u32 v{t+1}, v{vLANE}, 2, 2
    v_lshl_add_u32 v{t+1}, v{t}, 3, v{t+1}
    v_and_b32 v{t+2}, 1, v{vLANE}
    v_mul_u32_u24 v{t+2}, {A_REG}, v{t+2}
    v_bfe_u32 v{t+3}, v{vLANE}, 1, 1
    v_lshlrev_b32 v{t+3}, 3, v{t+3}
    s_add_u32 s{sT}, s{sT}, {3*A_REG}
    v_add3_u32 v{t+2}, v{t+3}, v{t+2}, s{sT}
    s_add_u32 s{sU}, s{sU}, {3*A_REG}
    v_mov_b32 v{t+5}, s{sU}
    v_and_b32 v{t+4}, 19, v{vLANE}
    v_cmp_eq_u32 vcc, 16, v{t+4}
    v_add_u32 v{t+3}, {A_ONES}, v{t+3}
    v_mov_b32 v{vIDX}, 0xdddddddd
    v_cndmask_b32 v{t+2}, v{t+2}, v{t+5}, vcc
    v_cmp_lt_u32 vcc, 16, v{t+4}
    v_mov_b32 v{t+5}, {A_SLOT}
    s_nop 0
    v_cndmask_b32 v{t+2}, v{t+2}, v{t+3}, vcc
    v_cndmask_b32 v{t+5}, v{t+5}, 0, vcc
    v_lshl_add_u32 v{vVA}, v{t+1}, 4, v{t+2}
    v_add_u32 v{vVA+1}, v{vVA}, v{t+5}
    v_add_u32 v{vVA+2}, v{vVA+1}, v{t+5}""")

def params_c(a, g):
    sHD, sPA, sPS, sPAR, sTG, sX = _pn(g)
    a(f"""; H flag of this wave as a producer (dummy word 63 when it produces none)
    s_lshl1_add_u32 s{sFHp}, s{g.sC}, s{sHI}""")
    a.atom(f"s_cmp_lt_u32 s{g.sC}, 27\ns_cselect_b32 s{sFHp}, s{sFHp}, 63")
    sTB, sCB = sPA, sPS
    a(f"""s_lshr_b32 s{sX}, s2, 6
    s_xor_b32 s{sX}, s{sX}, s{sQ4}
    s_lshl2_add_u32 s{sX}, s{g.sRB}, s{sX}
    s_lshl_b32 s{sX}, s{sX}, 8
    s_lshl2_add_u32 s{sFHp}, s{sFHp}, s{sX}
    s_add_u32 s{sFHp}, s{sFHp}, {OFF_FH}
    s_mul_i32 s{sX}, s{sTG}, {P_O}
    s_add_u32 s{sX}, s{sX}, {OFF_O}
    s_add_u32 s{sOR}, s{sX}, s{sPS}
    s_add_u32 s{sOA}, s{sX}, s{sPA}
    s_lshl_b32 s{sFO}, s{sTG}, 7
    s_lshl2_add_u32 s{sFO}, s{sHD}, s{sFO}
    s_add_u32 s{sFO}, s{sFO}, {OFF_FO}
    s_bfe_u32 s{sTB}, s2, 0x20001
    s_bfe_u32 s{sX}, s2, 0x30003
    s_lshl3_add_u32 s{sTB}, s{sTB}, s{sX}
    s_and_b32 s{sCB}, s2, 1
    s_lshr_b32 s{sX}, s2, 6
    s_lshl2_add_u32 s{sCB}, s{sCB}, s{sX}
    s_lshl1_add_u32 s{sX}, s{sCB}, s{sHI}
    s_lshl_b32 s{sFWc}, s{sX}, 8
    s_add_u32 s{sFWc}, s{sFWc}, {OFF_FW}
    s_mul_i32 s{sX}, s{sX}, 37
    s_add_u32 s{sX}, s{sX}, s{sQ4}
    s_mul_i32 s{sWO}, s{sX}, 5120
    s_add_u32 s{sWO}, s{sWO}, {OFF_WP}
    s_lshl_b32 s{sFHc}, s{sTB}, 8
    s_mul_i32 s{sX}, s{sHI}, {27*4}
    s_add_u32 s{sFHc}, s{sFHc}, s{sX}
    s_add_u32 s{sFHc}, s{sFHc}, {OFF_FH}
    s_mul_i32 s{sOUT}, s{sTB}, {64*1280}
    s_mul_i32 s{sX}, s{sCB}, 160
    s_add_u32 s{sOUT}, s{sOUT}, s{sX}
    s_lshr_b32 s{sX}, s{sQ4}, 1
    s_lshl1_add_u32 s{sTB}, s{sTB}, s{sX}
    s_lshl1_add_u32 s{sTB}, s{sTB}, s{sHI}
    s_and_b32 s{sX}, s{sQ4}, 1
    s_lshl_b32 s{sX}, s{sX}, 8
    s_mul_i32 s{sH}, s{sTB}, {P_H//2}
    s_add_u32 s{sH}, s{sH}, s{sX}
    s_add_u32 s{sH}, s{sH}, {OFF_H}
    s_mul_i32 s{sO3}, s{sTB}, {P_O//2}
    s_add_u32 s{sO3}, s{sO3}, s{sX}
    s_add_u32 s{sO3}, s{sO3}, {OFF_O}
    s_lshl_b32 s{sFOc}, s{sTB}, 6
    s_add_u32 s{sFOc}, s{sFOc}, {OFF_FO}
    s_mul_i32 s{sM3}, s{sWAVE}, 5120""")
    assert P_H // 2 == 27 * 2048 and P_O // 2 == 10 * 2048

def stats(a, g):
    raw, e, t = g.raw, g.e, T
    for i in range(5):
        a(f"v_lshlrev_b32 v{e+2*i}, 16, v{raw+i}\nv_and_b32 v{e+2*i+1}, 0xffff0000, v{raw+i}")
    a(f"v_add_f32 v{t}, v{e}, v{e+1}")
    for i in range(2, 10): a(f"v_add_f32 v{t}, v{t}, v{e+i}")
    wave_sum(a, t)
    a(f"v_mul_f32 v{t}, {f32(1.0/D)}, v{t}\nv_readlane_b32 s{sT}, v{t}, 63")
    for i in range(10): a(f"v_subrev_f32 v{e+i}, s{sT}, v{e+i}")
    a(f"v_mul_f32 v{t+1}, v{e}, v{e}")
    for i in range(1, 10): a(f"v_fmac_f32 v{t+1}, v{e+i}, v{e+i}")
    a(f"""s_waitcnt lgkmcnt(0)
    s_mul_i32 s{sTAG}, s{sTAG}, 0x9e3779b1
    s_add_u32 s{sTAG}, s{sTAG}, 0x7f4a7c15
    v_mov_b32 v{vTAG}, s{sTAG}""")
    wave_sum(a, t + 1)
    a(f"""v_mul_f32 v{t+1}, {f32(1.0/D)}, v{t+1}
    v_cvt_pk_bf16_f32 v{t+1}, v{t+1}, v{t+1}
    v_and_b32 v{t+1}, 0xffff0000, v{t+1}
    v_add_f32 v{t+1}, {f32(1e-5)}, v{t+1}
    v_cvt_pk_bf16_f32 v{t+1}, v{t+1}, v{t+1}
    v_and_b32 v{t+1}, 0xffff0000, v{t+1}
    v_sqrt_f32 v{t+1}, v{t+1}
    v_mov_b32 v{t+3}, v{vTAG}
    v_cvt_pk_bf16_f32 v{t+2}, v{t}, v{t+1}
    s_lshl_b32 s{sT}, s{g.sG1}, 3
    s_add_u32 s{sT}, s{sT}, {OFF_ST}""")
    g.st_store = f"""s_mov_b32 exec_lo, 0
    s_brev_b32 exec_hi, 1
    buffer_store_dwordx2 {vr(t+2,2)}, off, {WS}, s{sT} sc1
    s_mov_b64 exec, -1"""

def x_reads(g, dst, ks): return [f"ds_read_b128 {vr(dst+4*q,4)}, v{g.xa+ks} offset:{q*2048}" for q in range(4)]
def w_reads(g, dst, u, base=None, off=0):
    A = g.wa if base is None else base
    return [f"ds_read_b64_tr_b16 {vr(dst+4*p+2*rd,2)}, v{A+p} offset:{off + u*4096 + rd*512}" for p in range(2) for rd in range(2)]
def mm(g, u, W, X, qs=range(4)):
    return [f"v_mfma_f32_16x16x32_bf16 {vr(g.acc[u]+8*q+4*p,4)}, {vr(W+4*p,4)}, {vr(X+4*q,4)}, {vr(g.acc[u]+8*q+4*p,4)}" for p in range(2) for q in qs]
def weave(a, mf, fill):
    for k, m in enumerate(mf):
        a(m)
        for x in fill.get(k, []): a(x)

class Rec:
    def __init__(self): self.L = []
    def __call__(self, text):
        self.L += [l.strip() for l in text.strip().split("\n") if l.strip() and not l.strip().startswith(";")]
    def atom(self, text): self.L.append(text)
Asm.atom = lambda self, text: self(text)

def xs_reads(g, dst, i):
    sl = (i >> 1) % 3
    return [f"ds_read_b128 {vr(dst+4*q,4)}, v{(g.x2 if sl == 2 else g.xb)+(i&1)} offset:{(sl&1)*32768*(sl < 2) + (q&1)*8192 + (q>>1)*1024}" for q in range(4)]
def ws_reads(g, dst, i, u): return w_reads(g, dst, u, g.wb, LW + (i % 5) * 12288)

def g1_start(a, g):
    for x in dma_ops(g, 1): a(x)
    a("s_barrier")
    for x in dma_ops(g, 2): a(x)
    if "pst" in XF: stamp(a)
    a("s_waitcnt vmcnt(12)")
    stats(a, g)
    for x in dma_ops(g, 3): a(x)
    a(g.st_store)
    stamp(a)
    a("s_waitcnt vmcnt(9)\ns_barrier")
    stamp(a)
    for r in xs_reads(g, g.Xf[0], 0): a(r)
    for u in range(3):
        for r in ws_reads(g, g.Wf[0] + 8 * u, 0, u): a(r)

def g1_main(a, g):
    def rec(f, *args):
        r = Rec(); f(r, *args); return r.L
    def burst(n, name):
        return ("cs", name, n, "\n".join([f"s_cmp_ge_u32 s{sWAVE}, 3", f"s_cbranch_scc1 L_{name}"] + [cs_load(g, k) for k in range(n)] + [f"L_{name}:"]))
    side = rec(cs_acc, g, BURST[0], True)
    for j in range(1, len(BURST)):
        nxt = BSTAGE[j + 1] if j + 1 < len(BURST) else BSTAGE[j] + 3
        side += [("at", BSTAGE[j]), ("k", 7), burst(BURST[j], f"c{j}"), ("at", nxt), ("wait", f"c{j}")] + rec(cs_acc, g, BURST[j], False)
    assert sum(BURST) == 10 and max(BURST[1:] + [0]) <= 4
    side += ([("at", 2)] if len(BURST) == 1 else []) + rec(cs_publish, g)
    g.spins = []
    g.l0 = [x + y for x, y in zip(st_loads(g), cs_loads(g, 0))]
    side += [("at", 15)] + sum(([("k", 3 + 6 * j), ("vm", "gr", l)] for j, l in enumerate(g.l0[0])), [])
    if "noside" in XF:
        for x in side:
            if isinstance(x, tuple):
                if x[0] == "wait": a("s_waitcnt vmcnt(0)")
                if x[0] == "vm": a(x[2])
            else: a(x)
        side = []
    out = ["r2"] * 4 + ["r3"] * 4 + ["st"]
    def wait(need):
        idx = max([j for j, x in enumerate(out) if x in need], default=-1)
        if idx >= 0:
            a(f"s_waitcnt vmcnt({sum(1 for x in out[idx+1:] if x[0] != 'c')})"); del out[:idx + 1]
    GP = [int(x) for x in os.environ.get("GP", "1,9,16,21").split(",") if x]
    PER = int(os.environ.get("SIDE", "1"))
    for i in range(16):
        b = i & 1; n = b ^ 1
        mf = sum((mm(g, u, g.Wf[b] + 8 * u, g.Xf[b]) for u in range(3)), [])
        if i == 0: mf = [m[:m.rindex(",")] + ", 0" for m in mf]
        xr = xs_reads(g, g.Xf[n], i + 1); wr = [ws_reads(g, g.Wf[n] + 8 * u, i + 1, u) for u in range(3)]
        rd = [xr[0]] + wr[0][:2] + xr[1:] + wr[0][2:] + wr[1] + wr[2]
        vm = {}
        if i == 0:
            for k, x in enumerate(dma_ops(g, 4) + dma_ops(g, 5)): vm[2 + 3 * k] = (f"r{4 + k // 4}", x)
        elif i + 5 < 20:
            for pos, x in zip((4, 10, 16, 22), dma_ops(g, i + 5)): vm[pos] = (f"r{i+5}", x)
        a("s_waitcnt lgkmcnt(0)")
        if "sst" in XF: stamp(a)
        if "nodma" in XF: vm = {}
        for k, m in enumerate(mf):
            a(m)
            if k == 1:
                wait([f"r{i+1}"] + ([f"r{i+2}"] if b else []))
                a("s_barrier")
            if GP and k in GP: a(f"s_setprio {len(GP) - 1 - GP.index(k)}")
            if k >= 2 and rd: a(rd.pop(0))
            if k in vm: a(vm[k][1]); out.append(vm[k][0])
            if k == 1: continue
            left = PER
            while left and side:
                x = side[0]
                if isinstance(x, tuple):
                    if x[0] == "at" and i < x[1]: break
                    if x[0] == "k" and k < x[1]: break
                    side.pop(0)
                    if x[0] == "per": PER = x[1]
                    if x[0] == "wait": wait([x[1]])
                    if x[0] == "vm": a(x[2]); out.append(x[1]); left = 0
                    if x[0] == "cs": a(x[3]); out.extend([x[1]] * x[2]); left = 0
                    continue
                side.pop(0); a(x); left -= 1
                if "buffer_store" in x: out.append("st")
                while side and isinstance(side[0], str) and ((x.startswith("s_cmp") and "\n" not in x) or side[0].startswith("s_cselect")):
                    x = side.pop(0); a(x)
        if os.environ.get("NOPS"): print("stage", i, "side left", len(side), file=sys.stderr)
    assert not side
    return out

def gran_setup(a, g):
    t = T; vst = g.xa; vcs = g.xa + 1; sTG = g.sRound
    a(f"""s_lshr_b32 s{sTG}, s2, 6
    s_xor_b32 s{sTG}, s{sTG}, s{sQ4}
    s_lshl2_add_u32 s{sTG}, s{g.sRB}, s{sTG}
    s_bfe_u32 s{g.sGP}, s2, 0x10005
    s_lshl1_add_u32 s{g.sGP}, s{sTG}, s{g.sGP}
    s_lshl_b32 s{g.sG0}, s{sTG}, 9
    s_add_u32 s{g.sG0}, s{g.sG0}, {OFF_ST}
    s_lshl_b32 s{g.sC0}, s{g.sC}, 3
    s_add_u32 s{g.sC0}, s{g.sC0}, s{sHI}
    s_lshl_b32 s{g.sC0}, s{g.sC0}, 9
    s_add_u32 s{g.sC0}, s{g.sC0}, {OFF_CS}
    s_add_u32 s{g.sC1}, s{g.sC0}, {30*4096}
    s_add_u32 s{g.sC2}, s{g.sC0}, {60*4096}
    v_and_b32 v{vst}, 15, v{vLANE}
    v_lshrrev_b32 v{vcs}, 4, v{vLANE}
    v_lshlrev_b32 v{vcs}, 6, v{vcs}
    v_add_lshl_u32 v{vcs}, v{vcs}, v{vst}, 4
    v_lshlrev_b32 v{vst}, 3, v{vst}
    v_bfe_u32 v{vSO}, v{vLANE}, 4, 1
    v_lshlrev_b32 v{vSO}, 10, v{vSO}
    v_lshrrev_b32 v{t}, 5, v{vLANE}
    v_lshl_add_u32 v{vSO}, v{t}, 9, v{vSO}
    v_lshl_add_u32 v{vSO}, v{vst}, 1, v{vSO}
    s_and_b32 s{sT}, s2, 32
    v_xor_b32 v{vst}, s{sT}, v{vLANE}
    v_lshlrev_b32 v{vst}, 3, v{vst}
    s_lshl_b32 s{sT}, s{g.sC}, 12
    s_lshl_b32 s{sU}, s{sHI}, 11
    s_add_u32 s{sT}, s{sT}, s{sU}
    s_xor_b32 s{sU}, s{g.sGP}, 1
    s_mul_i32 s{g.sQ0}, s{g.sGP}, {P_QKV}
    s_mul_i32 s{g.sQ1}, s{sU}, {P_QKV}
    s_add_u32 s{g.sQ0}, s{g.sQ0}, s{sT}
    s_add_u32 s{g.sQ1}, s{g.sQ1}, s{sT}
    s_mul_i32 s{sHS}, s{g.sGP}, {P_H}
    s_mul_i32 s{g.sXr}, s{sU}, {P_H}
    s_add_u32 s{sU}, s{sT}, {OFF_H}
    s_add_u32 s{sHS}, s{sHS}, s{sU}
    s_add_u32 s{g.sXr}, s{g.sXr}, s{sU}
    s_lshr_b32 s{sT}, s{sT}, 4
    s_lshl2_add_u32 s{g.sFQ}, s{sTG}, s{sT}
    s_add_u32 s{g.sFQ}, s{g.sFQ}, {OFF_FQ}
    s_cmp_lt_u32 s{g.sC}, 10
    s_cselect_b32 s{g.sQS}, {f32(QSCALE)}, 1.0""")
def st_loads(g): return [f"buffer_load_dwordx2 {vr(g.gr,2)}, v{g.xa}, {WS}, s{g.sG0} offen sc1"], [g.gr + 1]
def cs_loads(g, u):
    return ([f"buffer_load_dwordx4 {vr(g.gr+8+4*p,4)}, v{g.xa+1}, {WS}, s{(g.sC0, g.sC1, g.sC2)[u]} offen offset:{256*p} sc1" for p in range(2)],
            [g.gr + 9 + 2 * k for k in range(4)])
def gate(a, g, name, loads, tags):
    check_ne(a, tags)
    a.atom(f"s_cbranch_vccnz {name}\n{name}_done:")
    g.spins.append((name, loads, tags))
    for p in range(2): a(f"v_mov_b32 v{g.gr+9+4*p}, v{g.gr+10+4*p}")

def gran_use(a, g):
    t = T
    a(f"""v_mov_b32 v{g.gr+4}, v{g.gr}
    s_mov_b32 s{sT}, 0x01000100
    v_permlane32_swap_b32 v{g.gr}, v{g.gr+4}
    v_mov_b32 v{g.gr+2}, v{g.gr}
    v_mov_b32 v{g.gr+6}, v{g.gr+4}
    v_permlane16_swap_b32 v{g.gr}, v{g.gr+2}
    v_permlane16_swap_b32 v{g.gr+4}, v{g.gr+6}""")
    for q in range(4):
        a(f"""v_and_b32 v{t+q}, 0xffff0000, v{g.gr+2*q}
        v_perm_b32 v{g.gr+2*q}, v{g.gr+2*q}, v{g.gr+2*q}, s{sT}
        v_rcp_f32 v{t+4+q}, v{t+q}
        v_xor_b32 v{g.gr+2*q+1}, 0x80008000, v{g.gr+2*q}
        v_xor_b32 v{g.gr+2*q}, 0x80008000, v{g.gr+2*q}
        v_mul_f32 v{g.gr+16+q}, s{g.sQS}, v{t+4+q}""")
def corr(g, u):
    return [f"v_mfma_f32_16x16x16_bf16 {vr(g.acc[u]+8*q+4*p,4)}, {vr(g.gr+8+4*p,2)}, {vr(g.gr+2*q,2)}, {vr(g.acc[u]+8*q+4*p,4)}" for q in range(4) for p in range(2)]
def pack(A):
    return [f"v_cvt_pk_bf16_f32 v{A+r}, v{A+2*r}, v{A+2*r+1}" for r in range(4)]
def swaps(A): return [f"v_permlane16_swap_b32 v{A}, v{A+2}", f"v_permlane16_swap_b32 v{A+1}, v{A+3}"]
def epi_q(g):
    out = []
    for q in range(4):
        A = g.acc[0] + 8 * q; rq = g.gr + 16 + q
        L = [f"v_mul_f32 v{A+r}, v{rq}, v{A+r}" for r in range(8)] + pack(A)
        out.append((L, swaps(A), f"buffer_store_dwordx4 {vr(A,4)}, v{vSO}, {WS}, s{g.sQ1 if q >= 2 else g.sQ0} offen offset:{256*(q&1)} sc1"))
    return out

def gemm1(a, g, w):
    t = T
    out = g1_main(a, g)
    stamp(a)
    X = [g.Xf[0], g.Xf[1], g.Wf[1] + 8, g.X19]; Wa, Wb = g.Wf[0], g.Wf[1]
    def xr(i): return xs_reads(g, X[i - 16], i)
    def wr(i, u, dst): return ws_reads(g, dst, i, u)
    def both(i, dst):
        x, v = xr(i), wr(i, 0, dst)
        return v[:2] + x + v[2:]
    def step(u, W, i, rd, pre=None, extra=None, byq=False):
        fill = {}
        if pre: fill[0] = [pre]
        for k, r in enumerate(rd): fill.setdefault(k // 2, []).append(r)
        for k, x in enumerate(extra or []): fill.setdefault(k * 8 // len(extra), []).append(x)
        mf = mm(g, u, W, X[i - 16])
        if byq: mf = [mf[p * 4 + q] for q in range(4) for p in range(2)]
        weave(a, mf, fill)
    PRIO = "noprio" not in XF
    TP = "tp" in XF
    if PRIO: a("s_setprio 3")
    l1, t1 = cs_loads(g, 1); l2, t2 = cs_loads(g, 2)
    r = Rec(); gate(r, g, "L_sp_st", *g.l0); gran_use(r, g); gu = r.L; h1 = len(gu) // 2
    for x in both(17, Wb)[:4]: a(x)
    a("s_waitcnt lgkmcnt(4)"); step(0, Wa, 16, both(17, Wb)[4:])
    if "qold" in XF:
        a("s_waitcnt lgkmcnt(0)"); step(0, Wb, 17, both(18, Wa), pre="s_waitcnt vmcnt(0)\ns_barrier", extra=gu[:h1])
        a("s_waitcnt lgkmcnt(0)"); step(0, Wa, 18, both(19, Wb), extra=gu[h1:])
        weave(a, corr(g, 0), {0: wr(17, 1, Wa)})
        a("s_waitcnt lgkmcnt(4)"); step(0, Wb, 19, [], extra=["", l1[0], "", l1[1]], byq=True)
        eq = epi_q(g)
        ep = eq[0][0] + eq[1][0][:2] + eq[0][1] + [eq[0][2]] + eq[1][0][2:] + eq[2][0][:2] + eq[1][1] + [eq[1][2]] + eq[2][0][2:] + eq[3][0][:2] + eq[2][1] + [eq[2][2]] + eq[3][0][2:]
        step(1, g.Wf[0] + 8, 16, wr(18, 1, Wb), extra=ep)
    else:
        a("s_waitcnt lgkmcnt(0)"); step(0, Wb, 17, both(18, Wa) + xr(19), pre="s_waitcnt vmcnt(0)\ns_barrier", extra=gu[:h1])
        for x in wr(19, 0, Wb) + gu[h1:]: a(x)
        for m in corr(g, 0): a(m)
        for x in l1: a(x)
        a("s_waitcnt lgkmcnt(0)")
        eq = epi_q(g)
        qq = lambda q: mm(g, 0, Wa, X[2], [q]) + mm(g, 0, Wb, X[3], [q])
        g16 = mm(g, 1, g.Wf[0] + 8, X[0])
        for m in qq(0) + qq(1): a(m)
        def mix(V_, mf, every):
            for k, x in enumerate(V_):
                a(x)
                if k % every == every - 1 and mf: a(mf.pop(0))
            for m in mf: a(m)
        mix(eq[0][0], qq(2), 3)
        mix(eq[1][0][:2] + eq[0][1] + [eq[0][2]] + eq[1][0][2:], qq(3), 3)
        for x in wr(17, 1, Wa) + wr(18, 1, Wb): a(x)
        mix(eq[2][0][:2] + eq[1][1] + [eq[1][2]] + eq[2][0][2:] + eq[3][0][:2] + eq[2][1] + [eq[2][2]] + eq[3][0][2:], g16, 4)
    tmp = g.acc[0]; Z0, Z1, Z2 = tmp + 8, tmp + 16, tmp + 24; G = g.acc[1]; U = g.acc[2]; vc1 = g.xb
    for x in wr(19, 1, Z0)[:2] + eq[3][1] + wr(19, 1, Z0)[2:] + [eq[3][2]]: a(x)
    if "qst" in XF: stamp(a)
    a("s_setprio 2")
    params_a(a, g)
    a("s_waitcnt vmcnt(4)")
    gate(a, g, "L_sp_g", l1, t1)
    a(f"s_mov_b32 s{g.sD0}, {f32(-GC3)}\nv_mov_b32 v{vc1}, {f32(-GC1)}")
    weave(a, corr(g, 1), {0: wr(17, 2, Z1), 2: wr(18, 2, Z2), 7: l2})
    def gq(q): return [m for W, i in ((Wa, 17), (Wb, 18), (Z0, 19)) for m in mm(g, 1, W, X[i - 16], [q])]
    def uk(W, i): return mm(g, 2, W, X[i - 16])
    a("s_waitcnt lgkmcnt(8)")
    for m in gq(0): a(m)
    stamp(a)
    FQ = int(os.environ.get("FQ", "0"))
    u16 = uk(g.Wf[0] + 16, 16)
    for m in u16[:4]: a(m)
    plan = [gq(1) + u16[4:], gq(2) + uk(Z1, 17), gq(3) + corr(g, 2), uk(Z2, 18) + [uk(Z1, 19)[p * 4 + q] for q in range(4) for p in range(2)]]
    for h in range(4):
        if h == FQ:
            a("s_waitcnt vmcnt(0)"); flag(a, g.sFQ)
        if h == 1: a("s_waitcnt lgkmcnt(0)\ns_setprio 1")
        if h == 2:
            assert FQ <= 2
            gate(a, g, "L_sp_u", l2, t2)
            for x in wr(19, 2, Z1): a(x)
            attn_poll(a, w)
            a("s_setprio 0")
        if h == 3:
            attn_open(a, w, early=True)
            a("s_waitcnt lgkmcnt(0)\ns_setprio 1")
        R = range(8)
        Gh = G + 8 * h
        V_ = [f"v_mul_f32 v{Gh+r}, v{t+4+h}, v{Gh+r}" for r in R] + [f"v_mul_f32 v{tmp+r}, v{Gh+r}, v{Gh+r}" for r in R]
        V_ += [f"v_fma_f32 v{tmp+r}, v{tmp+r}, s{g.sD0}, v{vc1}" for r in R] + [f"v_mul_f32 v{tmp+r}, v{tmp+r}, v{Gh+r}" for r in R]
        V_ += [f"v_exp_f32 v{tmp+r}, v{tmp+r}" for r in R] + [f"v_fma_f32 v{tmp+r}, v{tmp+r}, v{t+h}, v{t+h}" for r in R]
        V_ += [f"v_rcp_f32 v{tmp+r}, v{tmp+r}" for r in R] + [f"v_mul_f32 v{Gh+r}, v{Gh+r}, v{tmp+r}" for r in R]
        mf = plan[h]
        if "gtr" in XF:
            pos = ([32 + k for k in range(8)] + [48 + k for k in range(8)])[:len(mf)]
        else:
            cost = [8 if ("exp" in x or "rcp" in x) else 4 for x in V_]; tot = sum(cost); acc_ = 0; pos = []
            for k, c in enumerate(cost):
                while len(pos) < len(mf) and acc_ >= len(pos) * (tot - 40) / len(mf): pos.append(k)
                acc_ += c
        for k, x in enumerate(V_):
            a(x)
            for j, pp in enumerate(pos):
                if pp == k: a(mf[j])
    a("s_setprio 0")
    r = Rec()
    for k in range(32): r(f"v_mul_f32 v{U+k}, v{U+k}, v{G+k}")
    for q in range(4):
        for x in pack(U + 8 * q): r(x)
    for q in range(4):
        for x in swaps(U + 8 * q): r(x)
    w.fin = r.L
    w.hst = [f"buffer_store_dwordx4 {vr(U+8*q,4)}, v{vSO}, {sr(SRD_B,4)}, s{g.sXr if q >= 2 else sHS} offen offset:{256*(q&1)} sc1" for q in range(4)]

def role_r(a, g, w):
    a.label("L_role_r")
    a("s_waitcnt vmcnt(0)")
    stats(a, g)
    a(g.st_store)
    sg = Regs('s', S0 + 17, 96); t = T
    sKS, sOff, sDst, sM, sN, sK2 = (sg.one() for _ in range(6)); sFl = sg.many(5, 1)
    V = Regs('v', 24 + 48 + 8, 252)
    vo = V.many(5, 1); va = V.many(5, 1); fr = V.many(20, 4)
    a(f"s_lshl_b32 s{sT}, s{sWAVE}, 2")
    for i in range(5):
        a(f"""v_add_u32 v{t}, {64*i}, v{vLANE}
        v_mul_u32_u24 v{t+1}, 820, v{t}
        v_lshrrev_b32 v{t+1}, 16, v{t+1}
        v_mul_u32_u24 v{t+2}, 80, v{t+1}
        v_sub_u32 v{t+2}, v{t}, v{t+2}
        v_add_u32 v{t+3}, s{sT}, v{t+1}
        v_lshrrev_b32 v{t+4}, 1, v{t+3}
        v_and_b32 v{t+4}, 4, v{t+4}
        v_or_b32 v{t+4}, v{t+4}, v{t+1}
        v_lshlrev_b32 v{t+4}, 1, v{t+4}
        v_xor_b32 v{t+2}, v{t+2}, v{t+4}
        v_mul_u32_u24 v{t+3}, 1280, v{t+3}
        v_lshl_add_u32 v{vo+i}, v{t+2}, 4, v{t+3}""")
    a(f"""v_lshrrev_b32 v{t}, 4, v{vLANE}
    v_bfe_u32 v{t+1}, v{vLANE}, 2, 2
    v_lshl_add_u32 v{t+2}, v{t}, 3, v{t+1}
    v_mul_u32_u24 v{t+2}, 1280, v{t+2}
    v_and_b32 v{t+3}, 1, v{vLANE}
    v_lshl_add_u32 v{t+2}, v{t+3}, 3, v{t+2}
    v_and_b32 v{t}, 1, v{t}
    v_lshl_add_u32 v{t}, v{t}, 2, v{t+1}
    v_lshlrev_b32 v{t}, 1, v{t}
    v_bfe_u32 v{t+1}, v{vLANE}, 1, 1
    s_mul_i32 s{sT}, s{sWAVE}, 10
    v_add_u32 v{t+1}, s{sT}, v{t+1}""")
    for ct in range(5):
        a(f"v_add_u32 v{t+3}, {2*ct}, v{t+1}\nv_xor_b32 v{t+3}, v{t+3}, v{t}\nv_lshl_add_u32 v{va+ct}, v{t+3}, 4, v{t+2}")
    a(f"""s_sub_u32 s{sKS}, s{g.sC}, 30
    s_lshl_b32 s{sKS}, s{sKS}, 3
    s_add_u32 s{sKS}, s{sKS}, s{g.sRB}
    s_mul_i32 s{sM}, s{sWAVE}, 5120
    s_waitcnt vmcnt(0)
    s_barrier""")
    def fetch(st):
        if st < 3:
            a(f"s_mov_b32 s{SRD_A}, s{pWD}\ns_mov_b32 s{SRD_A+1}, s{pWD+1}\ns_mov_b32 s{SRD_A+2}, {F*D*2}\ns_add_u32 s{sT}, s{sKS}, {16*st}")
        else:
            a(f"""s_mov_b32 s{sT}, {D*D*2}
            s_add_u32 s{sU}, s{sKS}, {16*st}
            s_cmp_lt_u32 s{sU}, 54
            s_cselect_b32 s{SRD_A}, s{pWD}, s{pWO}
            s_cselect_b32 s{SRD_A+1}, s{pWD+1}, s{pWO+1}
            s_cselect_b32 s{SRD_A+2}, {F*D*2}, s{sT}
            s_cselect_b32 s{sT}, 0, 54
            s_sub_u32 s{sT}, s{sU}, s{sT}""")
        a(f"s_mul_i32 s{sOff}, s{sT}, 40960")
        for i in range(5):
            a(f"s_add_u32 m0, s{sM}, {(st%4)*40960 + 1024*i}\nbuffer_load_dwordx4 v{vo+i}, {sr(SRD_A,4)}, s{sOff} offen lds")
    for st in range(4): fetch(st)
    stamp(a, idx=2); stamp(a, idx=3)
    for st in range(5):
        a(f"""s_add_u32 s{sK2}, s{sKS}, {16*st}
        s_cmp_lt_u32 s{sK2}, 54
        s_cselect_b32 s{sT}, 0, 54
        s_cselect_b32 s{sU}, 27, 10
        s_cselect_b32 s{sN}, 0, 27
        s_sub_u32 s{sK2}, s{sK2}, s{sT}
        s_cmp_ge_u32 s{sK2}, s{sU}
        s_cselect_b32 s{sT}, s{sU}, 0
        s_cselect_b32 s{sU}, 1, 0
        s_sub_u32 s{sK2}, s{sK2}, s{sT}
        s_add_u32 s{sK2}, s{sK2}, s{sN}
        s_lshl_b32 s{sT}, s{sWAVE}, 1
        s_add_u32 s{sU}, s{sU}, s{sT}
        s_mul_i32 s{sT}, s{sU}, 37
        s_add_u32 s{sT}, s{sT}, s{sK2}
        s_mul_i32 s{sDst}, s{sT}, 5120
        s_add_u32 s{sDst}, s{sDst}, {OFF_WP}
        s_lshl_b32 s{sU}, s{sU}, 6
        s_add_u32 s{sK2}, s{sK2}, s{sU}
        s_lshl_b32 s{sK2}, s{sK2}, 2
        s_add_u32 s{sFl+st}, s{sK2}, {OFF_FW}""")
        if st == 4:
            a(f"s_cmp_lt_u32 s{sKS}, 10\ns_cselect_b32 s{sDst}, s{sDst}, 0x7ff00000\ns_cselect_b32 s{sFl+st}, s{sFl+st}, 0x7ff00000")
        a(f"s_waitcnt vmcnt({(15, 20, 20, 20, 20)[st]})\ns_barrier")
        for ct in range(5):
            a(f"ds_read_b64_tr_b16 {vr(fr+4*ct,2)}, v{va+ct}\nds_read_b64_tr_b16 {vr(fr+4*ct+2,2)}, v{va+ct} offset:5120")
        for ct in range(5):
            if st < 4: a(f"v_add_u32 v{va+ct}, {40960 if st < 3 else (-3*40960) & 0xffffffff}, v{va+ct}")
        a("s_waitcnt lgkmcnt(0)")
        if st == 0:
            a("s_barrier"); fetch(4)
        for ct in range(4):
            a(f"buffer_store_dwordx4 {vr(fr+4*ct,4)}, v{vL16}, {WS}, s{sDst} offen offset:{1024*ct} sc1")
        a(f"""s_add_u32 s{sDst}, s{sDst}, 4096
        buffer_store_dwordx4 {vr(fr+16,4)}, v{vL16}, {WS}, s{sDst} offen sc1""")
    stamp(a, idx=4)
    params_a(a, g)
    a(f"v_mov_b32 v{vSO}, 0\ns_mov_b32 s{sHS}, 0\ns_waitcnt vmcnt(0)")
    for st in range(5): flag(a, sFl + st)
    stamp(a, idx=5)
    n0 = Stamper.n; Stamper.n = w.open_stamp
    attn_open(a, w, "_b")
    Stamper.n = n0
    a("s_branch L_attn")

class AT: pass
def alloc_at():
    w = AT(); V = Regs('v', WK, 252)
    w.Sb = [V.many(32, 4) for b in range(2)]; w.O = [V.many(16, 4) for q in range(2)]
    w.Qm = [V.many(4, 4) for q in range(2)]; w.Km = V.many(4, 4); w.V0 = V.many(4, 4); w.V1 = V.many(4, 4)
    w.Qr = V.many(2, 2); w.Kr = V.many(2, 2)
    return w

MC = int(os.environ.get("MC", "0"))
def phys(c):
    if c == 9: return phys(6)
    if c < MC + 2: return c % 2
    return c - MC if c < MC + 4 else phys(c - 4)
ACCD, WT = HB + 80, HB + 100
NHS = 20 if MC else 27
def hreg(n): return HB + 4 * (n if n < NHS else n - NHS)
class Cnt:
    def __init__(self, a, name, cap): self.a, self.name, self.cap, self.q = a, name, cap, []
    def issue(self, tag, txt, n=1): self.a(txt); self.q += [tag] * n
    def wait(self, *tags):
        idx = max([i for i, x in enumerate(self.q) if x in tags], default=-1)
        if idx >= 0:
            self.a(f"s_waitcnt {self.name}({min(self.cap, len(self.q) - 1 - idx)})"); del self.q[:idx + 1]
def w3_dma(c, R=SRD_WS, loose=False):
    L = []
    for i in range(5):
        pre = ""
        if i in (0, 4) or loose:
            k = 4096 if i == 4 else 0
            pre = f"s_add_u32 m0, s{sM3}, {phys(c)*G3_SLOT + k}\ns_add_u32 s{sW3}, s{sWO}, {c*4*5120 + k}\n"
        L.append(pre + f"buffer_load_dwordx4 v{vL16}, {sr(R,4)}, s{sW3} offen offset:{1024*(i&3)} sc1 lds")
    return L
sW3 = S0 + 30
def b_load(dst, base, k):
    s = f"s_add_u32 s{base}, s{base}, 4096\n" if k and k % 2 == 0 else ""
    return s + f"buffer_load_dwordx4 {vr(dst,4)}, v{vBO}, {WS}, s{base} offen offset:{(k&1)*2048} sc1"

def kv_dma(c):
    b = A_BASE + (c % 3) * A_SLOT; inc = 4 * P_QKV if c else 0
    return [f"s_add_u32 m0, s{sDM}, {b}\ns_add_u32 s{sDO}, s{sDO}, {inc}\nbuffer_load_dwordx4 v{vKVO}, {WS}, s{sDO} offen sc1 lds",
            f"s_add_u32 m0, s{sDM}, {b + A_REG - 512}\ns_nop 0\nbuffer_load_dwordx4 v{vKVO}, {WS}, s{sDO} offen offset:512 sc1 lds",
            f"s_add_u32 m0, s{sDM}, {b + 2*A_REG}\ns_add_u32 s{sDO+1}, s{sDO+1}, {inc}\nbuffer_load_dwordx4 v{vKVO}, {WS}, s{sDO+1} offen sc1 lds"]

vPQ = 244
def q_loads():
    t = vPQ
    return [f"buffer_load_dword v{t}, v{vFQO}, {WS}, s{sT} offen sc1",
            f"buffer_load_dword v{t+1}, v{vFQO}, {WS}, s{sU} offen sc1",
            f"buffer_load_dword v{t+2}, v{vFQO}, {WS}, s{sU} offen offset:2560 sc1"]
PW = int(os.environ.get("PW", "4"))
def attn_poll(a, w):
    a(f"""s_cmp_lg_u32 s{sWAVE}, {PW}
    s_cbranch_scc1 L_q_nopoll
    s_mov_b32 s{sT}, {OFF_FQ}
    s_mov_b32 s{sU}, {OFF_FQ + 2560}""")
    for l in q_loads(): a(l)
    a.label("L_q_nopoll")
def attn_open(a, w, sfx="", early=False):
    t = vPQ
    w.open_stamp = Stamper.n
    stamp(a)
    loads = q_loads()
    a(f"""s_cmp_lg_u32 s{sWAVE}, {PW}
    s_cbranch_scc1 L_sp_q_done{sfx}""")
    if early:
        a("s_waitcnt vmcnt(0)"); check_ne(a, [t, t + 1, t + 2]); a(f"s_cbranch_vccz L_sp_q_done{sfx}")
    else:
        a(f"s_mov_b32 s{sT}, {OFF_FQ}\ns_mov_b32 s{sU}, {OFF_FQ + 2560}")
    spin(a, "L_sp_q" + sfx, loads, [t, t + 1, t + 2], "L_sp_q_done" + sfx, int(os.environ.get("QSL", "2")) if early else SLEEP)
    a.label("L_sp_q_done" + sfx)
    a("s_barrier")
    stamp(a)
    for x in kv_dma(0): a(x)
    a(f"""buffer_load_dwordx4 {vr(w.Qm[0],4)}, v{vL16}, {WS}, s{sQB_} offen sc1
    buffer_load_dwordx4 {vr(w.Qm[1],4)}, v{vL16}, {WS}, s{sQA} offen sc1
    buffer_load_dwordx2 {vr(w.Qr,2)}, v{vQRO}, {WS}, s{sQR} offen sc1""")

def attention(a, w, g):
    t = T; Sb, O, Qm, Km, V0, V1, Qr, Kr = w.Sb, w.O, w.Qm, w.Km, w.V0, w.V1, w.Qr, w.Kr
    dma = kv_dma
    a.label("L_attn")
    params_b(a, g)
    a(f"""; token-side fragment offset of phase 3: lane (t16, g): piece g, row t16
    v_and_b32 v{vBO}, 0xf0, v{vL16}
    v_lshrrev_b32 v{t}, 4, v{vLANE}
    v_lshl_add_u32 v{vBO}, v{t}, 9, v{vBO}
    v_and_b32 v{t+4}, 3, v0
    v_cmp_eq_u32 vcc, 0, v{t+4}
    v_mov_b32 v{t+4}, 0x3f80
    v_lshlrev_b32 v{t+5}, 2, v0
    v_cndmask_b32 v{t+4}, 0, v{t+4}, vcc
    v_add_u32 v{t+5}, {A_ONES}, v{t+5}
    ds_write_b32 v{t+5}, v{t+4}
    v_min_u32 v{t+6}, 26, v{vLANE}
    v_min_u32 v{t+7}, 36, v{vLANE}
    v_lshlrev_b32 v{t+6}, 2, v{t+6}
    v_lshlrev_b32 v{t+7}, 2, v{t+7}
    s_mov_b32 s{SRD_B}, s{pWS}
    s_mov_b32 s{SRD_B+1}, s{pWS+1}
    s_cmp_lt_u32 s{g.sC}, 27
    s_cselect_b32 s{SRD_B+2}, {WS_USED}, 0""")
    NF = int(os.environ.get("NFIN", "54"))
    fin = w.fin + [f"v_mov_b32 v{O[q]+r}, 0" for q in range(2) for r in range(16)]
    for x in fin[:NF]: a(x)
    fin = fin[NF:]
    for x in kv_dma(1): a(x)
    a(f"""s_or_b32 s{sT}, s2, s{sWAVE}
    s_cmp_lg_u32 s{sT}, 0
    s_cbranch_scc1 L_noep
    s_mov_b32 s{sT}, {OFF_EP}
    s_waitcnt vmcnt(0)""")
    flag(a, sT)
    a.label("L_noep")
    def rdKr(i): return f"ds_read_b64 {vr(Kr,2)}, v{vKRA} offset:{((i>>2)%3)*A_SLOT + (i&3)*512}"
    def rdKm(i): return f"ds_read_b128 {vr(Km,4)}, v{vKMA} offset:{((i>>2)%3)*A_SLOT + (i&3)*512}"
    def rdV(i, s):
        R = V1 if s else V0
        return "\n".join(f"ds_read_b64_tr_b16 {vr(R+2*rd,2)}, v{vVA+(i>>2)%3} offset:{(i&3)*512 + s*256 + rd*64}" for rd in range(2))
    def m2b(i): return f"v_mfma_f32_32x32x4_2b_bf16 {vr(Sb[i&1],32)}, {vr(Kr,2)}, {vr(Qr,2)}, 0"
    def m16(i, q): return f"v_mfma_f32_32x32x16_bf16 {vr(Sb[i&1]+16*q,16)}, {vr(Km,4)}, {vr(Qm[q],4)}, {vr(Sb[i&1]+16*q,16)}"
    def smf(i, q, s): return f"v_smfmac_f32_32x32x32_bf16 {vr(O[q],16)}, {vr(V1 if s else V0,4)}, {vr(Sb[i&1]+16*q+8*s,8)}, v{vIDX}"
    a("s_waitcnt vmcnt(3) lgkmcnt(0)\ns_barrier")
    stamp(a)
    n1 = max(0, len(fin) - 34)
    a(rdKr(0)); a(rdKm(0)); a(rdV(0, 0))
    for x in fin[:n1]: a(x)
    a("s_waitcnt lgkmcnt(2)")
    a(m2b(0)); a(rdKr(1))
    for x in fin[n1:n1+18]: a(x)
    a(m16(0, 0))
    for x in fin[n1+18:n1+24]: a(x)
    a(m16(0, 1)); a(rdKm(1))
    for x in fin[n1+24:]: a(x)
    a("s_waitcnt lgkmcnt(0)")
    NT = 32
    PS = [int(x) for x in os.environ.get("PS", "1,3,7").split(",") if x]
    if PS: a("s_setprio 3")
    floads = [f"buffer_load_dword v{t}, v{t+6}, {WS}, s{sFHc} offen sc1", f"buffer_load_dword v{t+1}, v{t+7}, {WS}, s{sFWc} offen sc1"]
    w.floads = floads
    vm = Cnt(a, "vmcnt", 63); lq = Cnt(a, "lgkmcnt", 15); w.vm = vm
    vm.q = ["kv1"] * 3
    hl = lambda n: (f"h{n}", b_load(hreg(n), sH, n))
    wl = lambda c: [(f"w{c}", x) for x in w3_dma(c, loose=True)]
    I0 = 7 - MC
    plan = {c: [] for c in range(3, 8)}; hn = 0
    for k in range(MC + 2):
        c = min(7, max(3 + min(k, 1), I0 + k - 1)); plan[c] += wl(k)
    for c in range(3, 8):
        lim = 27 if c == 7 else min(NHS + 4 * max(0, c - I0), 27, hn + (12 if MC else 9) - len(plan[c]))
        plan[c] += [hl(n) for n in range(hn, lim)]; hn = lim
    nrem = (37 - 4 * (MC + 2)) * 40; per = -(-nrem // 32)
    plan[6].append(("t", f"""s_bfe_u32 s{sT}, s2, 0x30003
    s_lshl2_add_u32 s{sT}, s{sT}, s{sQ4}
    s_mul_i32 s{sT}, s{sT}, {per*128}
    s_mul_i32 s{sU}, s{sQ4}, 5120
    s_sub_u32 s{sT}, s{sT}, s{sU}
    s_add_u32 s{sT}, s{sT}, s{sWO}
    s_add_u32 s{sT}, s{sT}, {4*(MC+2)*5120}
    v_min_u32 v{t+6}, {per-1}, v{vLANE}
    v_lshlrev_b32 v{t+6}, 7, v{t+6}
    buffer_load_dword v{t}, v{t+6}, {WS}, s{sT} offen sc1"""))
    if "noorem" not in XF:
        plan[7].insert(5, ("t", f"s_mov_b32 exec_hi, 0\nbuffer_load_dword v{t}, v{vL16}, {WS}, s{sOR} offen sc1\ns_mov_b64 exec, -1"))
    r = Rec(); params_c(r, g); pc = r.L
    queue = []; dq = []; dn = [0]
    def d_read(j):
        n, ct = divmod(j, 5)
        lq.issue(("d", j), f"ds_read_b128 {vr(WT+4*(j&1),4)}, v14 offset:{phys(n>>2)*G3_SLOT + (n&3)*5120 + ct*1024}")
    def D():
        if not dq: return
        j = dq.pop(0); n, ct = divmod(j, 5)
        vm.wait(f"h{n}"); lq.wait(("d", j))
        a(f"v_mfma_f32_16x16x32_bf16 {vr(ACCD+4*ct,4)}, {vr(WT+4*(j&1),4)}, {vr(hreg(n),4)}, {'0' if n == 0 else vr(ACCD+4*ct,4)}")
        if len(dq) >= 2: d_read(j + 2)
    def Q():
        if queue: vm.issue(*queue.pop(0))
    a.auto = False
    for i in range(NT):
        def E(lo, hi):
            for k in range(lo, hi):
                a(f"v_exp_f32 v{Sb[i&1]+k}, v{Sb[i&1]+k}")
                if pc and k % 4 == 3: a(pc.pop(0))
        last = i == NT - 1
        def prio(pt):
            if not PS: return
            nb = min([b for b in range(2, 27, 4) if b * 4 + 1 > i * 4 + pt] + [NT - 0.25])
            left = int(round(nb * 4 + 1 - (i * 4 + pt)))
            for p, th in enumerate(PS):
                if left == th: a(f"s_setprio {p}")
        prio(0)
        D(); E(0, 2)
        if i: a(smf(i - 1, 1, 1))
        lq.issue(("V1", i), rdV(i, 1), 2); E(2, 5)
        if not last: lq.wait(("Kr", i + 1)); a(m2b(i + 1))
        if (i + 2) % 4 == 0 and i + 2 < NT:
            c = (i + 2) // 4
            assert not queue and not dq, (i, queue, dq)
            vm.wait(f"kv{c}", "fl", f"w{c-I0}")
            if c == 3:
                a.auto = True
                check_ne(a, [t, t + 1])
                a("s_cbranch_vccnz L_sp_h")
                a.label("L_sp_h_done")
                a.auto = False
            a("s_barrier")
            if PS: a("s_setprio 3")
            if c + 1 < 8: queue += [(f"kv{c+1}", x) for x in dma(c + 1)]
            queue += plan.get(c, [])
            if 0 <= c - I0 < MC:
                dq += list(range(20 * (c - I0), 20 * (c - I0) + 20)); d_read(dq[0]); d_read(dq[1])
        if i == 0: queue += [("hs", x) for x in w.hst]
        if i == 4:
            vm.wait("hs"); flag(a, sFHp); vm.q.append("x")
        if i == 8 and MC:
            a(f"s_mul_i32 s{sT}, s{sHI}, {4*5120}\nv_add_u32 v14, s{sT}, v{vL16}")
        if i == 9:
            assert not pc
            queue += [("fl", x) for x in floads]
        if i + 2 < NT: lq.issue(("Kr", i + 2), rdKr(i + 2))
        prio(1)
        E(5, 9); Q(); E(9, 13)
        lq.wait(("V0", i)); a(smf(i, 0, 0))
        if i >= 2: Q()
        prio(2)
        E(13, 16); D(); E(16, 17); D(); E(17, 18)
        lq.wait(("V1", i), ("Km", i + 1), ("Kr", i + 2)); a(smf(i, 0, 1))
        Q(); E(18, 21)
        if not last: a(m16(i + 1, 0))
        prio(3)
        E(21, 24); D(); E(24, 25); D(); E(25, 26)
        a(smf(i, 1, 0))
        if not last: lq.issue(("V0", i + 1), rdV(i + 1, 0), 2)
        E(26, 29)
        if last:
            for q in range(3): a(f"ds_write_b128 v{t+1}, {vr(O[0]+4*q,4)} offset:{1024*q}")
        if i == NT - 2:
            a(f"""s_mul_i32 s{sT}, s{sWAVE}, 3200
            s_add_u32 s{sT}, s{sT}, {A_XCH}
            v_add_u32 v{t+1}, s{sT}, v{vL16}
            s_xor_b32 s{sU}, s{sWAVE}, 4
            s_mul_i32 s{sU}, s{sU}, 3200
            s_add_u32 s{sU}, s{sU}, {A_XCH}
            v_add_u32 v{t+2}, s{sU}, v{vL16}""")
        if not last: a(m16(i + 1, 1))
        if i + 2 < NT: lq.issue(("Km", i + 2), rdKm(i + 2))
        if i >= 10 and (MC or i == 25): Q()
        E(29, 32)
    assert not queue and not dq
    a.auto = True
    a(smf(NT - 1, 1, 1))
    stamp(a)
    vm.wait(f"w{MC}", f"w{MC+1}", "t")
    a("s_waitcnt lgkmcnt(0)\ns_barrier")
    X = Sb[0]; w.X = X
    for q in range(3): a(f"ds_read_b128 {vr(X+4*q,4)}, v{t+2} offset:{1024*q}")
    w.npre = int(os.environ.get("NPRE", "2"))
    for x in w3_dma(MC + 2)[:w.npre]: vm.issue(f"w{MC+2}", x)
    a("s_waitcnt lgkmcnt(0)")
    for r in range(12): a(f"v_add_f32 v{X+r}, v{X+r}, v{O[1]+r}")
    a(f"""v_mov_b32 v{X+12}, v{X+8}
    v_mov_b32 v{X+13}, v{X+8}
    v_mul_f32 v{X+14}, 0, v{X}""")
    a(f"v_permlane32_swap_b32 v{X+13}, v{X+12}")
    for r in range(1, 12): a(f"v_fmac_f32 v{X+14}, 0, v{X+r}")
    a(f"""v_add_f32 v{X+14}, v{X+14}, v{X+12}
    v_cmp_nle_f32 vcc, {f32(2.0**-64)}, v{X+14}
    s_mov_b64 s[{S0+26}:{S0+27}], vcc
    v_cmp_nge_f32 vcc, {f32(2.0**64)}, v{X+14}
    s_or_b64 vcc, vcc, s[{S0+26}:{S0+27}]
    s_cbranch_scc1 L_slow""" if "force_slow" not in XF else "s_branch L_slow")
    a.label("L_slow_done")
    a(f"v_rcp_f32 v{X+13}, v{X+12}")
    for r in range(12): a(f"v_mul_f32 v{X+r}, v{X+r}, v{X+13}")
    for r in range(6): a(f"v_cvt_pk_bf16_f32 v{X+16+r}, v{X+2*r}, v{X+2*r+1}")
    a(f"""buffer_store_dwordx4 {vr(X+16,4)}, v{vL16}, {WS}, s{sOA} offen sc1
    s_mov_b32 exec_hi, 0
    buffer_store_dwordx2 {vr(X+20,2)}, v{vL16}, {WS}, s{sOR} offen sc1
    s_mov_b64 exec, -1""")
    stamp(a)

def attn_cold(a, w):
    t = T; Sb, O, Qm, Km, V0, V1, Qr, Kr, X = w.Sb, w.O, w.Qm, w.Km, w.V0, w.V1, w.Qr, w.Kr, w.X
    a.label("L_sp_h")
    spin(a, "L_sp_h_loop", w.floads, [t, t + 1], "L_sp_h_done")
    a("s_branch L_sp_h_done")
    a.label("L_slow")
    Sx = Sb[1]; NM = Sb[1] + 16; Oa = O[1]; vb = O[0]; mx = O[0] + 8; vho = O[0] + 9; vwa = O[0] + 10; vws = O[0] + 11; vra = O[0] + 12
    sKA, sKS_, sN, sSC = S0 + 26, S0 + 27, S0 + 28, S0 + 29
    a(f"""s_xor_b32 s{sSC}, s{sWAVE}, 4
    s_mul_i32 s{sSC}, s{sSC}, 3200
    s_add_u32 s{sSC}, s{sSC}, {A_XCH}
    v_cmp_lt_u32 vcc, 31, v{vLANE}
    v_and_b32 v{vho}, 31, v{vLANE}
    v_lshlrev_b32 v{vho}, 4, v{vho}
    v_cndmask_b32 v{Qr}, 0, v{Qr}, vcc
    v_cndmask_b32 v{Qr+1}, 0, v{Qr+1}, vcc
    v_mov_b32 v{mx}, 0xff800000
    v_add_u32 v{vwa}, s{sSC}, v{vL16}
    v_add_u32 v{vws}, s{sSC}, v{vho}
    s_bfe_u32 s{sT}, s2, 0x30003
    s_lshl_b32 s{sT}, s{sT}, 2
    s_add_u32 s{sT}, s{sT}, s{sQ4}
    s_mul_i32 s{sT}, s{sT}, {2*P_QKV}
    s_sub_u32 s{sKS_}, s{sQR}, s{sT}
    s_mul_i32 s{sU}, s{sHI}, {P_QKV}
    s_add_u32 s{sT}, s{sT}, s{sU}
    s_sub_u32 s{sKA}, s{sQA}, s{sT}
    s_add_u32 s{sKA}, s{sKA}, {80*512}
    s_add_u32 s{sKS_}, s{sKS_}, {80*512}
    ; transposed V reads from the private scratch [A 512][B 512][S 512]
    v_bfe_u32 v{t+1}, v{vLANE}, 2, 2
    v_lshrrev_b32 v{t}, 5, v{vLANE}
    v_lshl_add_u32 v{t+1}, v{t}, 3, v{t+1}
    v_lshlrev_b32 v{t+1}, 4, v{t+1}
    v_and_b32 v{t+2}, 1, v{vLANE}
    v_lshlrev_b32 v{t+2}, 9, v{t+2}
    v_bfe_u32 v{t+3}, v{vLANE}, 1, 1
    v_lshl_add_u32 v{t+2}, v{t+3}, 3, v{t+2}
    v_mov_b32 v{t+5}, 1024
    v_and_b32 v{t+4}, 19, v{vLANE}
    v_cmp_eq_u32 vcc, 16, v{t+4}
    v_lshlrev_b32 v{t+3}, 3, v{t+3}
    v_add_u32 v{t+3}, {A_ONES}, v{t+3}
    v_cndmask_b32 v{t+2}, v{t+2}, v{t+5}, vcc
    v_cmp_lt_u32 vcc, 16, v{t+4}
    v_add_u32 v{t+2}, s{sSC}, v{t+2}
    v_cndmask_b32 v{t+2}, v{t+2}, v{t+3}, vcc
    v_add_u32 v{vra}, v{t+2}, v{t+1}
    s_mov_b32 s{sN}, 0""")
    def kload():
        a(f"""s_add_u32 s{sT}, s{sKA}, s{sN}
        s_add_u32 s{sU}, s{sKS_}, s{sN}
        buffer_load_dwordx4 {vr(Km,4)}, v{vL16}, {WS}, s{sT} offen sc1
        buffer_load_dwordx2 {vr(Kr,2)}, v{vho}, {WS}, s{sU} offen sc1""")
    def qk(c):
        a(f"""v_mfma_f32_32x32x16_bf16 {vr(Sx,16)}, {vr(Km,4)}, {vr(Qm[1],4)}, {c}
        v_mfma_f32_32x32x8_bf16 {vr(Sx,16)}, {vr(Kr,2)}, {vr(Qr,2)}, {vr(Sx,16)}""")
    def nxt(l): a(f"s_add_u32 s{sN}, s{sN}, {P_QKV}\ns_cmp_lt_u32 s{sN}, {64*P_QKV}\ns_cbranch_scc1 {l}")
    a.label("L_slow_a")
    kload(); a("s_waitcnt vmcnt(0)"); qk("0")
    for r in range(0, 16, 2): a(f"v_max3_f32 v{mx}, v{Sx+r}, v{Sx+r+1}, v{mx}")
    nxt("L_slow_a")
    a(f"""v_mov_b32 v{t}, v{mx}
    v_permlane32_swap_b32 v{t}, v{mx}
    v_max_f32 v{mx}, v{mx}, v{t}
    s_mov_b32 s{sN}, 0""")
    for r in range(16): a(f"v_sub_f32 v{NM+r}, 0, v{mx}\nv_mov_b32 v{Oa+r}, 0")
    a.label("L_slow_b")
    kload()
    a(f"""s_add_u32 s{sT}, s{sT}, {80*512}
    s_add_u32 s{sU}, s{sU}, {80*512}
    buffer_load_dwordx4 {vr(vb,4)}, v{vL16}, {WS}, s{sT} offen sc1
    buffer_load_dwordx2 {vr(vb+4,2)}, v{vho}, {WS}, s{sU} offen sc1
    s_waitcnt vmcnt(0)
    ds_write_b128 v{vwa}, {vr(vb,4)}
    ds_write_b64 v{vws}, {vr(vb+4,2)} offset:1024""")
    qk(vr(NM, 16))
    a("s_waitcnt lgkmcnt(0)")
    for s in range(2):
        for rd in range(2): a(f"ds_read_b64_tr_b16 {vr((V1 if s else V0)+2*rd,2)}, v{vra} offset:{s*256+rd*64}")
    for r in range(16): a(f"v_exp_f32 v{Sx+r}, v{Sx+r}")
    a("s_waitcnt lgkmcnt(0)")
    for s in range(2): a(f"v_smfmac_f32_32x32x32_bf16 {vr(Oa,16)}, {vr(V1 if s else V0,4)}, {vr(Sx+8*s,8)}, v{vIDX}")
    nxt("L_slow_b")
    for r in range(12): a(f"v_mov_b32 v{X+r}, v{Oa+r}")
    a(f"""v_mov_b32 v{X+12}, v{Oa+8}
    v_mov_b32 v{X+13}, v{Oa+8}
    v_permlane32_swap_b32 v{X+13}, v{X+12}
    s_nop 1
    s_branch L_slow_done""")

def gemm3(a, w):
    t = T; V = Regs('v', WK, 252)
    OB = V.many(40, 4); xx = V.many(20, 4); accs = V.many(20, 4); Wf = [V.many(20, 4) for b in range(2)]; accd = ACCD if MC else xx
    N0 = 4 * MC
    wa = vIDX
    RD, RS = phys(5) * G3_SLOT, phys(7) * G3_SLOT
    out = w.vm.q + ["ost"] * 2
    lq = []
    def vm(tag, txt): a(txt); out.append(tag)
    def lds(tag, txt): a(txt); lq.append(tag)
    def w_vm(tag):
        if tag in out:
            idx = max(i for i, x in enumerate(out) if x == tag)
            a(f"s_waitcnt vmcnt({len(out) - 1 - idx})"); del out[:idx + 1]
    def w_lds(tag):
        if tag in lq:
            idx = max(i for i, x in enumerate(lq) if x == tag)
            a(f"s_waitcnt lgkmcnt({min(15, len(lq) - 1 - idx)})"); del lq[:idx + 1]
    for x in w3_dma(MC + 2)[w.npre:]: vm(f"w{MC+2}", x)
    a(f"s_mul_i32 s{sT}, s{sHI}, {4*5120}")
    for k in range(4): a(f"s_add_u32 s{sU}, s{sT}, {k*G3_SLOT}\nv_add_u32 v{wa+k}, s{sU}, v{vL16}")
    def rd(n, ct): lds((n, ct), f"ds_read_b128 {vr(Wf[n&1]+4*ct,4)}, v{wa+phys(n>>2)} offset:{(n&3)*5120 + ct*1024}")
    for n in (N0, N0 + 1):
        for ct in range(5): rd(n, ct)
    vo = 8
    r = Rec()
    r(f"""v_and_b32 v{t+7}, 15, v{vLANE}
    v_lshlrev_b32 v{t+7}, 2, v{t+7}
""")
    srd(r, SRD_B, pX, S * D * 2)
    for q in range(3):
        r(f"v_add_u32 v{t+2}, {512*q}, v0" if q < 2 else f"v_lshrrev_b32 v{t+2}, 1, v0\nv_add_u32 v{t+2}, 1024, v{t+2}")
        r(f"""v_mul_u32_u24 v{t+3}, 3277, v{t+2}
        v_lshrrev_b32 v{t+3}, 16, v{t+3}
        v_bfe_u32 v{t+4}, v{t+3}, 1, 2
        v_xor_b32 v{t+2}, v{t+2}, v{t+4}
        v_mul_u32_u24 v{t+3}, {1280-160}, v{t+3}
        v_lshl_add_u32 v{vo+q}, v{t+2}, 3, v{t+3}""")
    r(f"""v_and_b32 v{t+2}, 1, v0
    v_lshl_add_u32 v{vo+2}, v{t+2}, 2, v{vo+2}
    v_lshlrev_b32 v11, 4, v0
    v_add_u32 v11, {RD}, v11
    v_lshlrev_b32 v12, 3, v0
    v_add_u32 v12, {RD + 16384}, v12
    v_lshrrev_b32 v{t+2}, 4, v{vLANE}
    v_bfe_u32 v{t+3}, v{vLANE}, 1, 2
    v_xor_b32 v{t+2}, v{t+2}, v{t+3}
    v_mul_u32_u24 v14, 80, v{t+7}
    v_lshl_add_u32 v14, v{t+2}, 4, v14
    s_add_u32 s{sT}, s{sM3}, {RD}
    v_add_u32 v14, s{sT}, v14""")
    side = r.L
    x2 = xx if MC else HB; xs = x2 + 8; red = HB + 28; g_ = HB + 52
    oflag = f"buffer_load_dword v{t}, v{t+7}, {WS}, s{sFOc} offen sc1"
    w.oflag = oflag
    N_FLAG, N_POLL, N_CHK = (int(x) for x in os.environ.get("G3N", "5,23,0").split(","))
    WGAP, OGAP = (int(x) for x in os.environ.get("G3G", "3,3").split(","))
    vq = []
    def red_reads(delta):
        for q in range(3):
            for k in range(2):
                lds(("red", q), f"ds_read_b128 {vr(red+8*q+4*k,4)}, v11 offset:{8192*q + 20480*k}" if q < 2 else f"ds_read_b64 {vr(red+16+4*k,2)}, v12 offset:{20480*k}")
    NX = N0 + (5 if MC else 10); CHK = os.environ.get("CHK", "pre"); NOF = int(os.environ.get("NOF", "4"))
    ol = [(f"o{k}", b_load(OB + 4 * k, sO3, k)) for k in range(10)]
    def o_gate():
        w_vm("of")
        check_ne(a, [t])
        a("s_cbranch_vccnz L_sp_o")
        a.label("L_sp_o_done")
        stamp(a)
        if STAMP in (1, 2): lq.clear()
        for _ in range(NOF): vm(*ol.pop(0))
    for n in range(N0, 37):
        A = accd if n < 27 else accs
        Bn = hreg(n) if n < 27 else OB + 4 * (n - 27)
        w_vm(f"h{n}")
        first = n in (0, 27)
        if "g3t" in XF and n in (N_FLAG, N_FLAG + 1, 27, 28): stamp(a)
        if "g3st" in XF and n in (12, 14, 16, 18, 20, 22, 24, 26, 27, 28, 29, 31, 33, 35): stamp(a)
        if n == N_FLAG:
            w_vm("ost"); flag(a, sFO); out.append("fl")
        if n % 4 == 2 and n + 2 < 37:
            c = (n + 2) // 4
            assert not any(x[0] == f"w{c}" for x in vq)
            w_vm(f"w{c}")
            a("s_barrier")
            if c + 2 < 9: vq += [(f"w{c+2}", x) for x in w3_dma(c + 2)]
            if c == 8:
                vq += [("w9", f"""s_mul_i32 s{sT}, s{sQ4}, {5120 - 1024}
                s_sub_u32 s{sW3}, s{sWO}, s{sT}
                s_add_u32 s{sW3}, s{sW3}, {36*5120}
                s_sub_u32 s{sT}, s{sM3}, s{sT}
                s_add_u32 m0, s{sT}, {phys(9)*G3_SLOT}
                s_lshl_b32 s{sU}, s{sQ4}, 10
                buffer_load_dwordx4 v{vL16}, {WS}, s{sW3} offen sc1 lds"""),
                       ("w9", f"""s_sub_u32 s{sU}, 4096, s{sU}
                s_add_u32 m0, m0, s{sU}
                s_add_u32 s{sW3}, s{sW3}, s{sU}
                buffer_load_dwordx4 v{vL16}, {WS}, s{sW3} offen sc1 lds""")]
        if "nop3" not in XF: a(f"s_setprio {(1 - n) % 4 if n < 34 else 36 - n}")
        if n == N_POLL: vq.insert(0, ("of", oflag))
        if n == NX:
            assert not side
            vq += [("x", f"buffer_load_dword{'x2' if q < 2 else ''} {vr(x2+2*q,2 if q < 2 else 1)}, v{vo+q}, {sr(SRD_B,4)}, s{sOUT} offen") for q in range(3)]
        if N_CHK and n == N_CHK: o_gate()
        if n == 23:
            assert not side; w_vm("x")
            r = Rec()
            for k in range(5): r(f"v_lshlrev_b32 v{xs+2*k}, 16, v{x2+k}\nv_and_b32 v{xs+2*k+1}, 0xffff0000, v{x2+k}")
            srd(r, SRD_B, pOUT, S * D * 2)
            side = r.L
        if n == 27:
            assert not side and not vq
            if CHK == "pre" and not N_CHK: o_gate()
            for ct in range(5): lds("dw", f"ds_write_b128 v14, {vr(accd+4*ct,4)} offset:{64*ct}")
            if CHK == "mid": o_gate()
            a("s_waitcnt lgkmcnt(0)\ns_barrier"); lq.clear()
            red_reads(0)
            if CHK == "post": o_gate()
            r = Rec(); r(f"s_mov_b32 s{sT}, {f32(-LOG2E)}")
            for k in range(10): r(f"v_add_f32 v{g_+k}, v{red+8*(k//4)+k%4}, v{red+8*(k//4)+4+k%4}")
            for k in range(10): r(f"v_mul_f32 v{red+k}, s{sT}, v{g_+k}")
            for k in range(10): r(f"v_exp_f32 v{red+k}, v{red+k}")
            for k in range(10): r(f"v_add_f32 v{red+k}, 1.0, v{red+k}")
            for k in range(10): r(f"v_rcp_f32 v{red+k}, v{red+k}")
            for k in range(10): r(f"v_mul_f32 v{g_+k}, v{g_+k}, v{red+k}")
            for k in (11, 12, 14): r(f"v_add_u32 v{k}, {(RS-RD) & 0xffffffff}, v{k}")
            NSI = int(os.environ.get("NSI", "64"))
            a("s_waitcnt lgkmcnt(0)"); lq.clear()
            for k, x in enumerate(r.L[:NSI]):
                a(x)
                if k % 10 == 0 and ol and CHK != "end": vm(*ol.pop(0))
            side = r.L[NSI:]
            if CHK == "end": o_gate()
        if n >= 27:
            assert not any(x[0] == f"o{n-27}" for x in ol)
            w_vm(f"o{n-27}")
        for ct in range(5):
            w_lds((n, ct))
            a(f"v_mfma_f32_16x16x32_bf16 {vr(A+4*ct,4)}, {vr(Wf[n&1]+4*ct,4)}, {vr(Bn,4)}, {'0' if first else vr(A+4*ct,4)}")
            if n + 2 < 37: rd(n + 2, ct)
            gap = 5 * n + ct
            if n >= 27 and ol and gap % 2 == 0: vm(*ol.pop(0))
            elif gap % WGAP == 0 and vq: vm(*vq.pop(0))
            elif gap % WGAP == 0 and N_CHK and n >= N_CHK and ol: vm(*ol.pop(0))
            for _ in range(2 if n < NX and MC else 1):
                if side: a(side.pop(0))
    for x in side: a(x)
    assert not vq and not ol
    stamp(a)
    for ct in range(5): a(f"ds_write_b128 v14, {vr(accs+4*ct,4)} offset:{64*ct}")
    a("s_waitcnt lgkmcnt(0)\ns_barrier")
    red_reads(RS - RD)
    for q in range(3):
        a(f"s_waitcnt lgkmcnt({4-2*q})")
        ne = 4 if q < 2 else 2
        for e in range(ne):
            a(f"v_add_f32 v{red+8*q+e}, v{red+8*q+e}, v{red+8*q+4+e}\nv_fmac_f32 v{xs+4*q+e}, v{red+8*q+e}, v{g_+4*q+e}")
        for k in range(ne // 2): a(f"v_cvt_pk_bf16_f32 v{x2+2*q+k}, v{xs+4*q+2*k}, v{xs+4*q+2*k+1}")
        a(f"buffer_store_dword{'x2' if q < 2 else ''} {vr(x2+2*q,ne//2)}, v{vo+q}, {sr(SRD_B,4)}, s{sOUT} offen {os.environ.get('OUTF', '')}")

def build():
    hdr = open("cdna_kernels/%s.s.ref" % NAME).read().split("; Override launch")[0]
    a = Asm(); g = alloc_g1(); w = alloc_at()
    prologue(a, g); g1_setup(a, g)
    a(f"s_cmp_ge_u32 s{g.sC}, 30\ns_cbranch_scc1 L_role_r")
    g1_start(a, g)
    gemm1(a, g, w); attention(a, w, g); gemm3(a, w)
    stamp_flush(a)
    a.label("L_end"); a("s_endpgm")
    a.label("L_sp_o")
    spin(a, "L_sp_o_loop", [w.oflag], [T], "L_sp_o_done", int(os.environ.get("OSL", "4"))); a("s_branch L_sp_o_done")
    for name, loads, tags in g.spins:
        a.label(name)
        spin(a, name + "_loop", loads, tags, name + "_done"); a(f"s_branch {name}_done")
    role_r(a, g, w)
    attn_cold(a, w)
    out = hdr + "; @launch grid=(256,1,1) block=(512,1,1) lds=163840\n"
    out += '.amdgcn_target "amdgcn-amd-amdhsa--gfx950"\n.text\n' + a.text()
    out += f""".section .rodata,"a"
.p2align 6
.amdhsa_kernel {NAME}_kernel
  .amdhsa_next_free_vgpr 256
  .amdhsa_next_free_sgpr 102
  .amdhsa_accum_offset 256
  .amdhsa_group_segment_fixed_size 0
  .amdhsa_kernarg_size 80
  .amdhsa_user_sgpr_count 2
  .amdhsa_user_sgpr_kernarg_segment_ptr 1
  .amdhsa_system_sgpr_workgroup_id_x 1
.end_amdhsa_kernel
"""
    if os.environ.get("NOPS"): print("auto nops:", *a.nops, sep="\n  ", file=sys.stderr)
    return out

if __name__ == "__main__":
    path = sys.argv[1] if len(sys.argv) > 1 else "cdna_kernels/%s.s" % NAME
    open(path, "w").write(build())
```

```python
import sys, os, math, struct
from asmlib import *

NAME = "recurrent_scan__softmax_full_mha__geglu_ffn__prompt"
S, D, F, NH, DH = 2048, 640, 1728, 32, 20
P_QKV, P_H, P_O = 240 * 512, 216 * 512, 80 * 512
OFF_QKV = 0
OFF_H = OFF_QKV + 64 * P_QKV
OFF_O = OFF_H + 64 * P_H
OFF_WP = OFF_O + 64 * P_O
OFF_ST = OFF_WP + 8 * 74 * 5 * 1024
OFF_CS = OFF_ST + 2048 * 8
OFF_FQ = OFF_CS + 90 * 4096
OFF_FH = OFF_FQ + 8192
OFF_FW = OFF_FH + 8192
OFF_FO = OFF_FW + 4096
OFF_EP = OFF_FO + 8192
WS_USED = OFF_EP + 256
def f32(x): return "0x%08x" % struct.unpack("<I", struct.pack("<f", x))[0]
LOG2E = 1.4426950408889634
QSCALE = DH ** -0.5 * LOG2E
GC1 = 2 * 0.7978845608028654 * LOG2E
GC3 = GC1 * 0.044715
SPIN_MAX = 1 << 16
SLEEP = int(os.environ.get('SLEEP', '8'))
XF = set(os.environ.get("XF", "").split(","))

pX, pWQKV, pWO, pBX, pWG, pWU, pWD, pOUT, pDBG, pWS = 4, 6, 8, 10, 12, 14, 16, 18, 20, 22
sWAVE = 3
SRD_WS, SRD_A, SRD_B = 24, 28, 32
_sp = Regs('s', 36, 64)
sTAG, sT, sU, sQ4, sHI, sSPIN = (_sp.one() for _ in range(6))
sDO, sDM = _sp.many(3, 1), _sp.many(3, 1)
sQA, sQB_, sQR, sOA, sOR, sFO = (_sp.one() for _ in range(6))
sH, sO3, sWO, sOUT, sFHc, sFWc, sFOc, sFHp, sHS, sM3 = (_sp.one() for _ in range(10))
S0 = 64
vLANE, vL16, vTAG, vIDX, vKMA, vKRA, vVA, vKVO, vQRO, vFQO, vBO, vSO = 1, 2, 3, 4, 5, 6, 7, 10, 11, 12, 13, 15
T = 16
HB = 24
WK = 132

STAMP = int(os.environ.get("STAMP", "0"))
REPORT = int(os.environ.get("REPORT", "0")); REPWG = int(os.environ.get("REPWG", "-1")); REP0 = int(os.environ.get("REP0", "0")); REPNEG = int(os.environ.get("REPNEG", "0"))
OFF_STAMP = WS_USED
if STAMP: WS_USED += 2048 * 128
class Stamper: n = 0
NSTAMP = 16
vST = 252
def stamp(a, real=False, idx=None):
    i = Stamper.n if idx is None else idx
    if idx is None: Stamper.n += 1
    if REPORT and i in (REP0, REPORT):
        au = a.auto; a.auto = True
        k = 96 if i == REP0 else 98
        a(f"s_memrealtime s[{k}:{k+1}]\ns_waitcnt lgkmcnt(0)")
        a.auto = au
    if not STAMP: return
    if STAMP == 3:
        if not real: return
        i = 0 if i == 0 else 1
    au = a.auto; a.auto = True
    if STAMP == 2: real = True
    a(f"s_mem{'real' if real else ''}time s[100:101]\ns_waitcnt lgkmcnt(0)\nv_writelane_b32 v{vST}, s100, {i}")
    a.auto = au
def stamp_flush(a):
    if "probe" in XF:
        a(f"""s_waitcnt vmcnt(0) lgkmcnt(0)
        s_or_b32 s{sT}, s2, s{sWAVE}
        s_cmp_lg_u32 s{sT}, 0
        s_cbranch_scc1 L_probe_done""")
        srd(a, SRD_A, pBX, S * D * 2)
        a(f"s_mov_b32 s{sT}, 0")
        a.label("L_probe")
        a(f"""buffer_load_dword v{T}, off, {sr(SRD_A,4)}, s{sT}
        s_add_u32 s{sT}, s{sT}, {16384+128}
        s_waitcnt vmcnt(0)
        s_cmp_lt_u32 s{sT}, {128*(16384+128)}
        s_cbranch_scc1 L_probe""")
        a.label("L_probe_done")
    if REPORT:
        a("s_waitcnt vmcnt(0) lgkmcnt(0)")
        stamp(a)
        a(f"s_cmp_lg_u32 s2, {REPWG}" if REPWG >= 0 else f"s_cmp_ge_u32 s2, 192")
        a(f"""s_cbranch_scc1 L_end
        s_sub_u32 s98, s98, s96
        {f's_sub_u32 s98, {REPNEG}, s98' if REPNEG else ''}
        s_mul_i32 s98, s98, 4
        s_memrealtime s[96:97]
        s_waitcnt lgkmcnt(0)""")
        a.label("L_rep")
        a("""s_memrealtime s[100:101]
        s_waitcnt lgkmcnt(0)
        s_sub_u32 s100, s100, s96
        s_cmp_lt_u32 s100, s98
        s_cbranch_scc1 L_rep""")
        return
    if not STAMP: return
    a("s_waitcnt vmcnt(0) lgkmcnt(0)")
    stamp(a); stamp(a, True)
    print("stamps:", Stamper.n, file=sys.stderr)
    a(f"""s_lshl_b32 s{sT}, s2, 3
    s_add_u32 s{sT}, s{sT}, s{sWAVE}
    s_lshl_b32 s{sT}, s{sT}, 7
    s_add_u32 s{sT}, s{sT}, {OFF_STAMP}
    v_lshlrev_b32 v{T}, 2, v{vLANE}
    s_mov_b32 exec_hi, 0
    buffer_store_dword v{vST}, v{T}, {sr(SRD_WS,4)}, s{sT} offen""")

def srd(a, r, ptr, size):
    a(f"s_mov_b32 s{r}, s{ptr}\ns_mov_b32 s{r+1}, s{ptr+1}\ns_mov_b32 s{r+2}, {size}\ns_mov_b32 s{r+3}, 0x20000")
WS = sr(SRD_WS, 4)

def flag(a, soff, imm=0):
    a(f"s_mov_b64 exec, 1\nbuffer_store_dword v{vTAG}, off, {WS}, s{soff} offset:{imm} sc1\ns_mov_b64 exec, -1")

def check_ne(a, regs):
    a(f"v_xor_b32 v{regs[0]}, s{sTAG}, v{regs[0]}")
    for r in regs[1:]:
        a(f"v_xor_b32 v{r}, s{sTAG}, v{r}\nv_or_b32 v{regs[0]}, v{regs[0]}, v{r}")
    a(f"v_cmp_ne_u32 vcc, 0, v{regs[0]}")

def spin(a, lbl, loads, regs, done, SLEEP=SLEEP):
    a(f"s_mov_b32 s{sSPIN}, {SPIN_MAX}")
    a.label(lbl)
    for l in loads: a(l)
    a("s_waitcnt vmcnt(0)")
    check_ne(a, regs)
    a(f"""s_cbranch_vccz {done}
    s_sleep {SLEEP}
    s_sub_u32 s{sSPIN}, s{sSPIN}, 1
    s_cmp_lg_u32 s{sSPIN}, 0
    s_cbranch_scc1 {lbl}""")

def wave_sum(a, v):
    for m in ("quad_perm:[1,0,3,2]", "quad_perm:[2,3,0,1]", "row_half_mirror", "row_mirror"):
        a(f"v_add_f32_dpp v{v}, v{v}, v{v} {m} row_mask:0xf bank_mask:0xf")
    a(f"v_add_f32_dpp v{v}, v{v}, v{v} row_bcast:15 row_mask:0xa bank_mask:0xf")
    a(f"v_add_f32_dpp v{v}, v{v}, v{v} row_bcast:31 row_mask:0xc bank_mask:0xf")

LW, LDUMMY, LX = 0, 61440, 65536
G3_SLOT = 40960
A_BASE, A_REG, A_HALF, A_SLOT = 2 * G3_SLOT, 2112, 12800, 25600
A_ONES = A_BASE + 3 * A_SLOT + 128
A_XCH = A_BASE + 2 * A_SLOT
G3_RED = 3 * G3_SLOT

class G1: pass
def alloc_g1():
    g = G1(); V = Regs('v', 24, 252); sg = Regs('s', S0, 96)
    g.acc = [V.many(32, 4) for u in range(3)]
    g.Wf = [V.many(24, 4) for b in range(2)]
    g.Xf = [V.many(16, 4) for b in range(2)]
    g.X19 = V.many(16, 4)
    g.gr = V.many(20, 4)
    g.xb = V.many(2, 1); g.xa = V.many(2, 1); g.wb = V.many(2, 1); g.wa = V.many(2, 1); g.voff = V.many(4, 1); g.vtch = V.one(); g.x2 = g.wa
    g.raw = g.gr; g.e = g.gr + 6; g.ep = g.gr + 5
    for n in "sRB sC sOff sStep sD0 sD1 sM0 sMsz sMend sWrapW sWrapX sSize sRound sWr sXr sRow sGP sG0 sG1 sC0 sC1 sC2 sQ0 sQ1 sFQ sQS".split(): setattr(g, n, sg.one())
    g.V, g.sg = V, sg
    return g

def dma_ops(g, j, rolled=False):
    L = [f"buffer_load_dwordx4 v{g.voff+i}, {sr(SRD_A,4)}, s{g.sOff} offen offset:{1024*i} lds" for i in range(4)]
    L[0] = f"s_mov_b32 m0, s{g.sM0}\ns_add_u32 s{g.sM0}, s{g.sM0}, s{g.sMsz}\n" + L[0]
    e = f"s_add_u32 s{g.sOff}, s{g.sOff}, s{g.sD1 if j & 1 else g.sD0}"
    if rolled:
        e += f"""\ns_cmp_ge_u32 s{g.sM0}, s{g.sMend}
        s_cselect_b32 s{sT}, s{g.sWrapW}, 0
        s_sub_u32 s{g.sM0}, s{g.sM0}, s{sT}"""
    else:
        if j % 5 == 4: e += f"\ns_sub_u32 s{g.sM0}, s{g.sM0}, s{g.sWrapW}"
        if j % 6 == 5: e += f"\ns_sub_u32 s{g.sM0}, s{g.sM0}, s{g.sWrapX}"
    L[3] += "\n" + e
    return L

BURST = [int(x) for x in os.environ.get("BURST", "4,3,3").split(",")]
BSTAGE = [int(x) for x in os.environ.get("BSTAGE", "0,3,7").split(",")]
def cs_reg(g, k): return g.X19 + 4 * k if k < 4 else g.Wf[1] + 4 * (k - 4)
def cs_load(g, k):
    return f"buffer_load_dwordx4 {vr(cs_reg(g,k),4)}, v{g.vtch}, {sr(SRD_A,4)}, s{g.sRow} offen offset:3072\ns_add_u32 s{g.sRow}, s{g.sRow}, s{g.sStep}"
def cs_setup(a, g):
    sel = g.gr + 16; t = T
    a(f"""v_and_b32 v{t}, 1, v{vLANE}
    v_lshlrev_b32 v{t}, 4, v{t}
    v_mov_b32 v{t+1}, 0x3f80
    v_lshlrev_b32 v{t}, v{t}, v{t+1}
    v_bfe_u32 v{t+1}, v{vLANE}, 1, 2""")
    for r in range(4): a(f"v_cmp_eq_u32 vcc, {r}, v{t+1}\nv_cndmask_b32 v{sel+r}, 0, v{t}, vcc")
_csn = [0]
def cs_acc(a, g, n, first):
    ac = g.gr + 8; sel = g.gr + 16
    _csn[0] += 1
    L = [f"s_cmp_ge_u32 s{sWAVE}, 3", f"s_cbranch_scc1 L_cs{_csn[0]}"]
    L += [f"v_mfma_f32_16x16x32_bf16 {vr(ac,4)}, {vr(sel,4)}, {vr(cs_reg(g,k),4)}, {'0' if first and k == 0 else vr(ac,4)}" for k in range(n)]
    a.atom("\n".join(L + [f"L_cs{_csn[0]}:"]))
def cs_publish(a, g):
    ac = g.gr + 8; t = T
    a(f"""v_bfe_u32 v{t}, v{vLANE}, 3, 1
    v_cmp_eq_u32 vcc, 1, v{t}
    v_and_b32 v{t+1}, 7, v{vLANE}
    v_lshl_add_u32 v{t+1}, v{t+1}, 3, v{t}
    v_bfe_u32 v{t}, v{vLANE}, 4, 1
    v_lshl_add_u32 v{t+1}, v{t}, 2, v{t+1}
    v_lshrrev_b32 v{t}, 5, v{vLANE}
    v_lshlrev_b32 v{t}, 1, v{t}""")
    for r in range(4): a(f"v_add_f32_dpp v{ac+r}, v{ac+r}, v{ac+r} row_ror:8 row_mask:0xf bank_mask:0xf")
    a(f"""v_cndmask_b32 v{ac}, v{ac}, v{ac+1}, vcc
    v_cndmask_b32 v{ac+2}, v{ac+2}, v{ac+3}, vcc
    v_cmp_lt_u32 vcc, 31, v{vLANE}
    s_nop 0
    v_cndmask_b32 v{ac}, v{ac}, v{ac+2}, vcc
    v_cvt_pk_bf16_f32 v{ac+1}, v{ac}, v{ac}
    v_add_lshl_u32 v{t+1}, v{t+1}, v{t}, 4
    v_and_b32 v{ac+1}, 0xffff0000, v{ac+1}
    v_sub_f32 v{ac}, v{ac}, v{ac+1}
    v_mov_b32 v{ac+3}, v{vTAG}
    v_cvt_pk_bf16_f32 v{ac+2}, v{ac+1}, v{ac}
    s_mul_i32 s{sT}, s{sWAVE}, 30
    s_add_u32 s{sT}, s{sT}, s{g.sC}
    s_lshl_b32 s{sT}, s{sT}, 2
    s_lshr_b32 s{sU}, s{g.sRB}, 1
    s_add_u32 s{sT}, s{sT}, s{sU}
    s_lshl_b32 s{sT}, s{sT}, 7
    s_and_b32 s{sU}, s{g.sRB}, 1
    s_add_u32 s{sT}, s{sT}, s{sU}
    s_lshl_b32 s{sT}, s{sT}, 3
    s_add_u32 s{sT}, s{sT}, {OFF_CS}
    s_cmp_lt_u32 s{sWAVE}, 3
    s_cselect_b32 s{sT}, s{sT}, 0x7ff00000
    buffer_store_dwordx2 {vr(ac+2,2)}, v{t+1}, {WS}, s{sT} offen sc1""")

def prologue(a, g):
    t = T
    name = NAME + "_kernel"
    a.raw(f".globl {name}\n.p2align 8\n.type {name},@function")
    a.label(name)
    a(f"""s_cmp_ge_u32 s2, 256
    s_cbranch_scc1 L_end""")
    stamp(a, True); stamp(a)
    a(f"""s_load_dwordx16 s[4:19], s[0:1], 0
    s_load_dwordx4 s[20:23], s[0:1], 64
    v_lshrrev_b32 v{t}, 6, v0
    v_and_b32 v{vLANE}, 63, v0
    v_readfirstlane_b32 s{sWAVE}, v{t}
    v_lshlrev_b32 v{vL16}, 4, v{vLANE}""")
    a(f"""; rb = (xcd&1)*4 + (j&3) ; c = (j>>2)*4 + (xcd>>1)
    s_and_b32 s{g.sRB}, s2, 1
    s_bfe_u32 s{g.sXr}, s2, 0x20003
    s_lshl2_add_u32 s{g.sRB}, s{g.sRB}, s{g.sXr}
    s_lshr_b32 s{g.sC}, s2, 5
    s_bfe_u32 s{sT}, s2, 0x20001
    s_lshl2_add_u32 s{g.sC}, s{g.sC}, s{sT}
    ; LN statistics row of this wave: rb*256 + c*8 + wave
    s_lshl_b32 s{g.sG1}, s{g.sRB}, 5
    s_add_u32 s{g.sG1}, s{g.sG1}, s{g.sC}
    s_lshl3_add_u32 s{g.sG1}, s{g.sG1}, s{sWAVE}
    s_mul_i32 s{g.sRound}, s{g.sG1}, 1280
    ; staging role by wave: 0 wqkv, 1 gate, 2 up, 3 none, 4.. x ; groups 27..29 have no gate/up unit (zeros)
    s_cmp_lt_u32 s{g.sC}, 27
    s_cselect_b32 s{SRD_A+2}, {D*F*2+3072}, 0
    s_movk_i32 s{sU}, {F*2}
    s_cmp_eq_u32 s{sWAVE}, 0
    s_cselect_b32 s{SRD_A+2}, {D*3*D*2+3072}, s{SRD_A+2}
    s_cselect_b32 s{sU}, {3*D*2}, s{sU}
    s_cmp_ge_u32 s{sWAVE}, 4
    s_cselect_b32 s{SRD_A+2}, {S*D*2+3072}, s{SRD_A+2}
    s_cselect_b32 s{sU}, 1280, s{sU}
    s_cmp_ge_u32 s{g.sC}, 30
    s_cselect_b32 s{SRD_A+2}, 0, s{SRD_A+2}
    s_lshl_b32 s{g.sOff}, s{g.sC}, 7
    s_lshl_b32 s{g.sMend}, s{sU}, 3
    v_lshrrev_b32 v{t}, 3, v{vLANE}
    v_mul_lo_u32 v{t}, v{t}, s{sU}
    v_and_b32 v{t+1}, 7, v{vLANE}
    v_lshl_add_u32 v{g.vtch}, v{t+1}, 4, v{t}
    v_lshlrev_b32 v{t+2}, 2, v{vLANE}
    s_mul_i32 s{g.sRow}, s{g.sRB}, s{g.sMend}
    s_lshl_b32 s{g.sStep}, s{sU}, 6
    s_add_u32 s{g.sRow}, s{g.sRow}, s{g.sOff}
    s_mov_b32 s{SRD_B+2}, {S*D*2}
    s_mov_b32 s{SRD_B+3}, 0x20000
    s_mov_b32 s{SRD_A+3}, 0x20000
    s_cmp_eq_u32 s{sWAVE}, 1
    s_waitcnt lgkmcnt(0)
    s_mov_b64 s[{SRD_B}:{SRD_B+1}], s[{pX}:{pX+1}]
    s_cselect_b64 s[{SRD_A}:{SRD_A+1}], s[{pWG}:{pWG+1}], s[{pWU}:{pWU+1}]
    buffer_load_dwordx4 {vr(g.raw,4)}, v{vL16}, {sr(SRD_B,4)}, s{g.sRound} offen
    buffer_load_dword v{g.raw+4}, v{t+2}, {sr(SRD_B,4)}, s{g.sRound} offen offset:1024
    s_cmp_eq_u32 s{sWAVE}, 0
    s_cselect_b64 s[{SRD_A}:{SRD_A+1}], s[{pWQKV}:{pWQKV+1}], s[{SRD_A}:{SRD_A+1}]
    s_cmp_ge_u32 s{sWAVE}, 4
    s_cselect_b64 s[{SRD_A}:{SRD_A+1}], s[{pX}:{pX+1}], s[{SRD_A}:{SRD_A+1}]
    s_sub_u32 s{SRD_A}, s{SRD_A}, 3072
    s_subb_u32 s{SRD_A+1}, s{SRD_A+1}, 0""")
    if "rowbar" in XF: a("s_barrier")
    a(f"s_cmp_ge_u32 s{sWAVE}, 3\ns_cbranch_scc1 L_nocs")
    for n in range(BURST[0]): a(cs_load(g, n))
    a.label("L_nocs")
    a(f"""s_mov_b32 s{sT}, {OFF_EP}
    s_load_dword s{sTAG}, s[{pWS}:{pWS+1}], s{sT}
    s_mov_b64 s[{SRD_WS}:{SRD_WS+1}], s[{pWS}:{pWS+1}]
    s_mov_b32 s{SRD_WS+2}, {WS_USED}
    s_mov_b32 s{SRD_WS+3}, 0x20000
    s_and_b32 s{sQ4}, s{sWAVE}, 3
    s_lshr_b32 s{sHI}, s{sWAVE}, 2
    s_lshl_b32 s{g.sM0}, s{sQ4}, 12
    s_add_u32 s{g.sWr}, s{g.sM0}, {LX}
    s_movk_i32 s{g.sMsz}, 12288
    s_mov_b32 s{g.sWrapW}, {5*12288}
    s_cmp_eq_u32 s{sWAVE}, 3
    s_cselect_b32 s{SRD_A+2}, 0, s{SRD_A+2}
    s_cselect_b32 s{g.sM0}, {LDUMMY}, s{g.sM0}
    s_cselect_b32 s{g.sMsz}, 0, s{g.sMsz}
    s_cselect_b32 s{g.sWrapW}, 0, s{g.sWrapW}
    s_lshr_b32 s{g.sGP}, s2, 7
    s_lshl1_add_u32 s{sT}, s{g.sRB}, s{g.sGP}
    s_lshl4_add_u32 s{sT}, s{sT}, s{sQ4}
    s_mul_i32 s{sT}, s{sT}, {8*1280}
    s_mul_i32 s{g.sD1}, s{g.sGP}, {2*128*1280}
    s_sub_u32 s{g.sD0}, {128*1280}, s{g.sD1}
    s_sub_u32 s{g.sD1}, 128, s{g.sD0}
    s_lshl_b32 s{sU}, s{sU}, 5
    s_bfe_u32 s{g.sGP}, s2, 0x20005
    s_cmp_ge_u32 s{sWAVE}, 4
    s_cselect_b32 s{g.sOff}, s{sT}, s{g.sOff}
    s_cselect_b32 s{g.sD0}, s{g.sD0}, s{sU}
    s_cselect_b32 s{g.sD1}, s{g.sD1}, s{sU}
    s_cselect_b32 s{g.sM0}, s{g.sWr}, s{g.sM0}
    s_cselect_b32 s{g.sMsz}, 16384, s{g.sMsz}
    s_cselect_b32 s{g.sWrapW}, 0, s{g.sWrapW}
    s_cselect_b32 s{g.sWrapX}, {6*16384}, 0
    s_cselect_b32 s{g.sGP}, s{g.sGP}, s{g.sXr}
    s_cselect_b32 s{g.sMend}, s{sU}, s{g.sMend}
    s_cselect_b64 vcc, -1, 0
    ; lane part: row l/8, pos = l%8 ; W: chunk = pos ^ (((row>>1)&1)<<2 | (i&1)<<1) ; x: chunk = pos ^ ((row>>1) + 4*(wave&1))
    v_lshrrev_b32 v{t+2}, 4, v{vLANE}
    v_and_b32 v{t+3}, 1, v{t+2}
    v_lshlrev_b32 v{t+3}, 2, v{t+3}
    s_and_b32 s{sT}, s{sWAVE}, 1
    v_lshl_or_b32 v{t+2}, s{sT}, 2, v{t+2}
    v_or_b32 v{t+5}, 2, v{t+3}
    v_cndmask_b32 v{t+4}, v{t+5}, v{t+2}, vcc
    v_cndmask_b32 v{t+2}, v{t+3}, v{t+2}, vcc
    v_xor_b32 v{t+2}, v{t+2}, v{t+1}
    v_xor_b32 v{t+4}, v{t+4}, v{t+1}
    v_lshl_add_u32 v{t+2}, v{t+2}, 4, v{t}
    v_lshl_add_u32 v{t+4}, v{t+4}, 4, v{t}""")
    for i in range(4):
        a(f"""s_xor_b32 s{sT}, s{g.sGP}, {i}
        s_mul_i32 s{sT}, s{sT}, s{g.sMend}
        s_add_u32 s{sT}, s{sT}, {3072 - 1024*i}
        v_add_u32 v{g.voff+i}, s{sT}, v{t+2+2*(i&1)}""")
    a("s_barrier")
    for x in dma_ops(g, 0): a(x)

def g1_addr(a, g):
    t = T
    a(f"""; x fragments: (t16>>3)*4096 + (t16&7)*128 + (((g ^ r) ^ (t16>>1))*16) + (tq>>1)*16384 + (tq&1)*2048
    v_and_b32 v{t}, 7, v{vLANE}
    v_lshrrev_b32 v{t+1}, 4, v{vLANE}
    v_bfe_u32 v{t+2}, v{vLANE}, 1, 3
    v_xor_b32 v{t+2}, v{t+2}, v{t+1}
    v_xor_b32 v{t+2}, s{g.sXr}, v{t+2}
    v_lshlrev_b32 v{t+2}, 4, v{t+2}
    v_lshl_add_u32 v{t+2}, v{t}, 7, v{t+2}
    v_bfe_u32 v{t}, v{vLANE}, 3, 1
    v_lshl_add_u32 v{t+2}, v{t}, 12, v{t+2}
    s_lshr_b32 s{sT}, s{sQ4}, 1
    s_mul_i32 s{sT}, s{sT}, 6
    s_add_u32 s{sT}, s{sT}, s{sQ4}
    s_lshl_b32 s{sT}, s{sT}, 11
    s_add_u32 s{sT}, s{sT}, {LX}
    v_add_u32 v{g.xb}, s{sT}, v{t+2}
    v_xor_b32 v{g.xb+1}, 64, v{g.xb}
    v_add_u32 v{g.x2}, 0x10000, v{g.xb}
    v_add_u32 v{g.x2+1}, 0x10000, v{g.xb+1}
    v_bfe_u32 v{t}, v{vLANE}, 2, 2
    v_lshl_add_u32 v{t+2}, v{t+1}, 3, v{t}
    v_lshlrev_b32 v{t+2}, 7, v{t+2}
    v_lshrrev_b32 v{t}, 1, v{t}
    v_xor_b32 v{t}, s{sHI}, v{t}
    v_lshl_add_u32 v{t+2}, v{t}, 6, v{t+2}
    v_and_b32 v{t}, 1, v{t+1}
    v_lshl_add_u32 v{t+2}, v{t}, 5, v{t+2}
    v_and_b32 v{t}, 3, v{vLANE}
    v_lshl_add_u32 v{g.wb}, v{t}, 3, v{t+2}
    v_xor_b32 v{g.wb+1}, 32, v{g.wb}""")

def g1_setup(a, g):
    g1_addr(a, g); cs_setup(a, g); gran_setup(a, g)
    if "pst" in XF: stamp(a)

def _pn(g): return g.sM0, g.sMsz, g.sWrapW, g.sWrapX, g.sOff, g.sD1
def params_a(a, g):
    t = g.voff
    sHD, sPA, sPS, sPAR, sTG, sX = _pn(g)
    a(f"""; attention: hd = xcd*4 + (j>>3) ; qb = j&7
    s_and_b32 s{sHD}, s2, 7
    s_lshr_b32 s{sX}, s2, 6
    s_lshl2_add_u32 s{sHD}, s{sHD}, s{sX}
    s_and_b32 s{sPAR}, s{sHD}, 1
    s_mul_i32 s{sX}, s{sHD}, 5
    s_lshr_b32 s{sX}, s{sX}, 1
    s_add_u32 s{sPA}, s{sX}, s{sPAR}
    s_add_u32 s{sTG}, s{sX}, 2
    s_sub_u32 s{sPS}, s{sTG}, s{sPAR}
    s_sub_u32 s{sPS}, s{sPS}, s{sPAR}
    s_lshl_b32 s{sPA}, s{sPA}, 9
    s_lshl_b32 s{sPS}, s{sPS}, 9
    s_lshl_b32 s{sPAR}, s{sPAR}, 3
    s_lshr_b32 s{sX}, s{sX}, 2
    s_lshr_b32 s{sTG}, s{sTG}, 2
    s_sub_u32 s{sTG}, s{sTG}, s{sX}
    v_lshrrev_b32 v{t}, 5, v{vLANE}
    v_and_b32 v{t+1}, 31, v{vLANE}
    v_and_b32 v{t+2}, s{sTG}, v{t}
    v_add_lshl_u32 v{t+2}, s{sX}, v{t+2}, 7
    v_lshl_add_u32 v{vFQO}, v{t+1}, 2, v{t+2}
    v_lshlrev_b32 v{t+1}, 4, v{t+1}
    s_mov_b32 s{sX}, {P_QKV}
    v_mad_u32_u24 v{vKVO}, v{t}, s{sX}, v{t+1}
    s_xor_b32 s{sTG}, s{sHI}, 1
    v_xor_b32 v{vQRO}, s{sTG}, v{t}
    v_mad_u32_u24 v{vQRO}, v{vQRO}, s{sX}, v{t+1}
    ; staging role: wave&2 -> k or v, wave&1 -> pair of token groups, one instruction per piece
    s_lshr_b32 s{sX}, s{sQ4}, 1
    s_and_b32 s{sTG}, s{sQ4}, 1
    s_mul_i32 s{sDM}, s{sX}, {3*A_REG}
    s_mul_i32 s{sDO}, s{sHI}, {A_HALF}
    s_add_u32 s{sDM}, s{sDM}, s{sDO}
    s_lshl_b32 s{sDO}, s{sTG}, 10
    s_add_u32 s{sDM}, s{sDM}, s{sDO}
    s_lshl4_add_u32 s{sTG}, s{sHI}, s{sTG}
    s_mul_i32 s{sTG}, s{sTG}, 6
    s_add_u32 s{sTG}, s{sTG}, s{sX}
    s_add_u32 s{sTG}, s{sTG}, 1
    s_mul_i32 s{sTG}, s{sTG}, {80*512}
    s_add_u32 s{sDO}, s{sTG}, s{sPA}
    s_add_u32 s{sDO+1}, s{sTG}, s{sPS}
    s_bfe_u32 s{sTG}, s2, 0x30003
    s_lshl2_add_u32 s{sTG}, s{sTG}, s{sQ4}
    s_add_u32 s{sPS}, s{sPS}, s{sPAR}
    s_mul_i32 s{sQR}, s{sTG}, {2*P_QKV}
    s_add_u32 s{sQR}, s{sQR}, s{sPS}
    s_lshl1_add_u32 s{sTG}, s{sTG}, s{sHI}
    s_xor_b32 s{sX}, s{sTG}, 1
    s_mul_i32 s{sQA}, s{sTG}, {P_QKV}
    s_mul_i32 s{sQB_}, s{sX}, {P_QKV}
    s_add_u32 s{sQA}, s{sQA}, s{sPA}
    s_add_u32 s{sQB_}, s{sQB_}, s{sPA}""")
    assert OFF_QKV == 0 and P_QKV == 3 * 80 * 512

def params_b(a, g):
    t = T
    sHD, sPA, sPS, sPAR, sTG, sX = _pn(g)
    a(f"""s_mul_i32 s{sT}, s{sHI}, {A_HALF}
    s_add_u32 s{sT}, s{sT}, {A_BASE}
    v_lshrrev_b32 v{t}, 5, v{vLANE}
    v_and_b32 v{t+1}, 0x1f0, v{vL16}
    v_mul_u32_u24 v{vKMA}, {A_REG}, v{t}
    v_add3_u32 v{vKMA}, v{vKMA}, v{t+1}, s{sT}
    s_add_u32 s{sU}, s{sPAR}, s{sT}
    s_add_u32 s{sU}, s{sU}, {2*A_REG}
    v_add_u32 v{vKRA}, s{sU}, v{t+1}
    v_bfe_u32 v{t+1}, v{vLANE}, 2, 2
    v_lshl_add_u32 v{t+1}, v{t}, 3, v{t+1}
    v_and_b32 v{t+2}, 1, v{vLANE}
    v_mul_u32_u24 v{t+2}, {A_REG}, v{t+2}
    v_bfe_u32 v{t+3}, v{vLANE}, 1, 1
    v_lshlrev_b32 v{t+3}, 3, v{t+3}
    s_add_u32 s{sT}, s{sT}, {3*A_REG}
    v_add3_u32 v{t+2}, v{t+3}, v{t+2}, s{sT}
    s_add_u32 s{sU}, s{sU}, {3*A_REG}
    v_mov_b32 v{t+5}, s{sU}
    v_and_b32 v{t+4}, 19, v{vLANE}
    v_cmp_eq_u32 vcc, 16, v{t+4}
    v_add_u32 v{t+3}, {A_ONES}, v{t+3}
    v_mov_b32 v{vIDX}, 0xdddddddd
    v_cndmask_b32 v{t+2}, v{t+2}, v{t+5}, vcc
    v_cmp_lt_u32 vcc, 16, v{t+4}
    v_mov_b32 v{t+5}, {A_SLOT}
    s_nop 0
    v_cndmask_b32 v{t+2}, v{t+2}, v{t+3}, vcc
    v_cndmask_b32 v{t+5}, v{t+5}, 0, vcc
    v_lshl_add_u32 v{vVA}, v{t+1}, 4, v{t+2}
    v_add_u32 v{vVA+1}, v{vVA}, v{t+5}
    v_add_u32 v{vVA+2}, v{vVA+1}, v{t+5}""")

def params_c(a, g):
    sHD, sPA, sPS, sPAR, sTG, sX = _pn(g)
    a(f"""; H flag of this wave as a producer (dummy word 63 when it produces none)
    s_lshl1_add_u32 s{sFHp}, s{g.sC}, s{sHI}""")
    a.atom(f"s_cmp_lt_u32 s{g.sC}, 27\ns_cselect_b32 s{sFHp}, s{sFHp}, 63")
    sTB, sCB = sPA, sPS
    a(f"""s_lshr_b32 s{sX}, s2, 6
    s_xor_b32 s{sX}, s{sX}, s{sQ4}
    s_lshl2_add_u32 s{sX}, s{g.sRB}, s{sX}
    s_lshl_b32 s{sX}, s{sX}, 8
    s_lshl2_add_u32 s{sFHp}, s{sFHp}, s{sX}
    s_add_u32 s{sFHp}, s{sFHp}, {OFF_FH}
    s_mul_i32 s{sX}, s{sTG}, {P_O}
    s_add_u32 s{sX}, s{sX}, {OFF_O}
    s_add_u32 s{sOR}, s{sX}, s{sPS}
    s_add_u32 s{sOA}, s{sX}, s{sPA}
    s_lshl_b32 s{sFO}, s{sTG}, 7
    s_lshl2_add_u32 s{sFO}, s{sHD}, s{sFO}
    s_add_u32 s{sFO}, s{sFO}, {OFF_FO}
    s_bfe_u32 s{sTB}, s2, 0x20001
    s_bfe_u32 s{sX}, s2, 0x30003
    s_lshl3_add_u32 s{sTB}, s{sTB}, s{sX}
    s_and_b32 s{sCB}, s2, 1
    s_lshr_b32 s{sX}, s2, 6
    s_lshl2_add_u32 s{sCB}, s{sCB}, s{sX}
    s_lshl1_add_u32 s{sX}, s{sCB}, s{sHI}
    s_lshl_b32 s{sFWc}, s{sX}, 8
    s_add_u32 s{sFWc}, s{sFWc}, {OFF_FW}
    s_mul_i32 s{sX}, s{sX}, 37
    s_add_u32 s{sX}, s{sX}, s{sQ4}
    s_mul_i32 s{sWO}, s{sX}, 5120
    s_add_u32 s{sWO}, s{sWO}, {OFF_WP}
    s_lshl_b32 s{sFHc}, s{sTB}, 8
    s_mul_i32 s{sX}, s{sHI}, {27*4}
    s_add_u32 s{sFHc}, s{sFHc}, s{sX}
    s_add_u32 s{sFHc}, s{sFHc}, {OFF_FH}
    s_mul_i32 s{sOUT}, s{sTB}, {64*1280}
    s_mul_i32 s{sX}, s{sCB}, 160
    s_add_u32 s{sOUT}, s{sOUT}, s{sX}
    s_lshr_b32 s{sX}, s{sQ4}, 1
    s_lshl1_add_u32 s{sTB}, s{sTB}, s{sX}
    s_lshl1_add_u32 s{sTB}, s{sTB}, s{sHI}
    s_and_b32 s{sX}, s{sQ4}, 1
    s_lshl_b32 s{sX}, s{sX}, 8
    s_mul_i32 s{sH}, s{sTB}, {P_H//2}
    s_add_u32 s{sH}, s{sH}, s{sX}
    s_add_u32 s{sH}, s{sH}, {OFF_H}
    s_mul_i32 s{sO3}, s{sTB}, {P_O//2}
    s_add_u32 s{sO3}, s{sO3}, s{sX}
    s_add_u32 s{sO3}, s{sO3}, {OFF_O}
    s_lshl_b32 s{sFOc}, s{sTB}, 6
    s_add_u32 s{sFOc}, s{sFOc}, {OFF_FO}
    s_mul_i32 s{sM3}, s{sWAVE}, 5120""")
    assert P_H // 2 == 27 * 2048 and P_O // 2 == 10 * 2048

def stats(a, g):
    raw, e, t = g.raw, g.e, T
    for i in range(5):
        a(f"v_lshlrev_b32 v{e+2*i}, 16, v{raw+i}\nv_and_b32 v{e+2*i+1}, 0xffff0000, v{raw+i}")
    a(f"v_add_f32 v{t}, v{e}, v{e+1}")
    for i in range(2, 10): a(f"v_add_f32 v{t}, v{t}, v{e+i}")
    wave_sum(a, t)
    a(f"v_mul_f32 v{t}, {f32(1.0/D)}, v{t}\nv_readlane_b32 s{sT}, v{t}, 63")
    for i in range(10): a(f"v_subrev_f32 v{e+i}, s{sT}, v{e+i}")
    a(f"v_mul_f32 v{t+1}, v{e}, v{e}")
    for i in range(1, 10): a(f"v_fmac_f32 v{t+1}, v{e+i}, v{e+i}")
    a(f"""s_waitcnt lgkmcnt(0)
    s_mul_i32 s{sTAG}, s{sTAG}, 0x9e3779b1
    s_add_u32 s{sTAG}, s{sTAG}, 0x7f4a7c15
    v_mov_b32 v{vTAG}, s{sTAG}""")
    wave_sum(a, t + 1)
    a(f"""v_mul_f32 v{t+1}, {f32(1.0/D)}, v{t+1}
    v_cvt_pk_bf16_f32 v{t+1}, v{t+1}, v{t+1}
    v_and_b32 v{t+1}, 0xffff0000, v{t+1}
    v_add_f32 v{t+1}, {f32(1e-5)}, v{t+1}
    v_cvt_pk_bf16_f32 v{t+1}, v{t+1}, v{t+1}
    v_and_b32 v{t+1}, 0xffff0000, v{t+1}
    v_sqrt_f32 v{t+1}, v{t+1}
    v_mov_b32 v{t+3}, v{vTAG}
    v_cvt_pk_bf16_f32 v{t+2}, v{t}, v{t+1}
    s_lshl_b32 s{sT}, s{g.sG1}, 3
    s_add_u32 s{sT}, s{sT}, {OFF_ST}""")
    g.st_store = f"""s_mov_b32 exec_lo, 0
    s_brev_b32 exec_hi, 1
    buffer_store_dwordx2 {vr(t+2,2)}, off, {WS}, s{sT} sc1
    s_mov_b64 exec, -1"""

def x_reads(g, dst, ks): return [f"ds_read_b128 {vr(dst+4*q,4)}, v{g.xa+ks} offset:{q*2048}" for q in range(4)]
def w_reads(g, dst, u, base=None, off=0):
    A = g.wa if base is None else base
    return [f"ds_read_b64_tr_b16 {vr(dst+4*p+2*rd,2)}, v{A+p} offset:{off + u*4096 + rd*512}" for p in range(2) for rd in range(2)]
def mm(g, u, W, X, qs=range(4)):
    return [f"v_mfma_f32_16x16x32_bf16 {vr(g.acc[u]+8*q+4*p,4)}, {vr(W+4*p,4)}, {vr(X+4*q,4)}, {vr(g.acc[u]+8*q+4*p,4)}" for p in range(2) for q in qs]
def weave(a, mf, fill):
    for k, m in enumerate(mf):
        a(m)
        for x in fill.get(k, []): a(x)

class Rec:
    def __init__(self): self.L = []
    def __call__(self, text):
        self.L += [l.strip() for l in text.strip().split("\n") if l.strip() and not l.strip().startswith(";")]
    def atom(self, text): self.L.append(text)
Asm.atom = lambda self, text: self(text)

def xs_reads(g, dst, i):
    sl = (i >> 1) % 3
    return [f"ds_read_b128 {vr(dst+4*q,4)}, v{(g.x2 if sl == 2 else g.xb)+(i&1)} offset:{(sl&1)*32768*(sl < 2) + (q&1)*8192 + (q>>1)*1024}" for q in range(4)]
def ws_reads(g, dst, i, u): return w_reads(g, dst, u, g.wb, LW + (i % 5) * 12288)

def g1_start(a, g):
    for x in dma_ops(g, 1): a(x)
    a("s_barrier")
    for x in dma_ops(g, 2): a(x)
    if "pst" in XF: stamp(a)
    a("s_waitcnt vmcnt(12)")
    stats(a, g)
    for x in dma_ops(g, 3): a(x)
    a(g.st_store)
    stamp(a)
    a("s_waitcnt vmcnt(9)\ns_barrier")
    stamp(a)
    for r in xs_reads(g, g.Xf[0], 0): a(r)
    for u in range(3):
        for r in ws_reads(g, g.Wf[0] + 8 * u, 0, u): a(r)

def g1_main(a, g):
    def rec(f, *args):
        r = Rec(); f(r, *args); return r.L
    def burst(n, name):
        return ("cs", name, n, "\n".join([f"s_cmp_ge_u32 s{sWAVE}, 3", f"s_cbranch_scc1 L_{name}"] + [cs_load(g, k) for k in range(n)] + [f"L_{name}:"]))
    side = rec(cs_acc, g, BURST[0], True)
    for j in range(1, len(BURST)):
        nxt = BSTAGE[j + 1] if j + 1 < len(BURST) else BSTAGE[j] + 3
        side += [("at", BSTAGE[j]), ("k", 7), burst(BURST[j], f"c{j}"), ("at", nxt), ("wait", f"c{j}")] + rec(cs_acc, g, BURST[j], False)
    assert sum(BURST) == 10 and max(BURST[1:] + [0]) <= 4
    side += ([("at", 2)] if len(BURST) == 1 else []) + rec(cs_publish, g)
    g.spins = []
    g.l0 = [x + y for x, y in zip(st_loads(g), cs_loads(g, 0))]
    side += [("at", 15)] + sum(([("k", 3 + 6 * j), ("vm", "gr", l)] for j, l in enumerate(g.l0[0])), [])
    if "noside" in XF:
        for x in side:
            if isinstance(x, tuple):
                if x[0] == "wait": a("s_waitcnt vmcnt(0)")
                if x[0] == "vm": a(x[2])
            else: a(x)
        side = []
    out = ["r2"] * 4 + ["r3"] * 4 + ["st"]
    def wait(need):
        idx = max([j for j, x in enumerate(out) if x in need], default=-1)
        if idx >= 0:
            a(f"s_waitcnt vmcnt({sum(1 for x in out[idx+1:] if x[0] != 'c')})"); del out[:idx + 1]
    GP = [int(x) for x in os.environ.get("GP", "1,9,16,21").split(",") if x]
    PER = int(os.environ.get("SIDE", "1"))
    for i in range(16):
        b = i & 1; n = b ^ 1
        mf = sum((mm(g, u, g.Wf[b] + 8 * u, g.Xf[b]) for u in range(3)), [])
        if i == 0: mf = [m[:m.rindex(",")] + ", 0" for m in mf]
        xr = xs_reads(g, g.Xf[n], i + 1); wr = [ws_reads(g, g.Wf[n] + 8 * u, i + 1, u) for u in range(3)]
        rd = [xr[0]] + wr[0][:2] + xr[1:] + wr[0][2:] + wr[1] + wr[2]
        vm = {}
        if i == 0:
            for k, x in enumerate(dma_ops(g, 4) + dma_ops(g, 5)): vm[2 + 3 * k] = (f"r{4 + k // 4}", x)
        elif i + 5 < 20:
            for pos, x in zip((4, 10, 16, 22), dma_ops(g, i + 5)): vm[pos] = (f"r{i+5}", x)
        a("s_waitcnt lgkmcnt(0)")
        if "sst" in XF: stamp(a)
        if "nodma" in XF: vm = {}
        for k, m in enumerate(mf):
            a(m)
            if k == 1:
                wait([f"r{i+1}"] + ([f"r{i+2}"] if b else []))
                a("s_barrier")
            if GP and k in GP: a(f"s_setprio {len(GP) - 1 - GP.index(k)}")
            if k >= 2 and rd: a(rd.pop(0))
            if k in vm: a(vm[k][1]); out.append(vm[k][0])
            if k == 1: continue
            left = PER
            while left and side:
                x = side[0]
                if isinstance(x, tuple):
                    if x[0] == "at" and i < x[1]: break
                    if x[0] == "k" and k < x[1]: break
                    side.pop(0)
                    if x[0] == "per": PER = x[1]
                    if x[0] == "wait": wait([x[1]])
                    if x[0] == "vm": a(x[2]); out.append(x[1]); left = 0
                    if x[0] == "cs": a(x[3]); out.extend([x[1]] * x[2]); left = 0
                    continue
                side.pop(0); a(x); left -= 1
                if "buffer_store" in x: out.append("st")
                while side and isinstance(side[0], str) and ((x.startswith("s_cmp") and "\n" not in x) or side[0].startswith("s_cselect")):
                    x = side.pop(0); a(x)
        if os.environ.get("NOPS"): print("stage", i, "side left", len(side), file=sys.stderr)
    assert not side
    return out

def gran_setup(a, g):
    t = T; vst = g.xa; vcs = g.xa + 1; sTG = g.sRound
    a(f"""s_lshr_b32 s{sTG}, s2, 6
    s_xor_b32 s{sTG}, s{sTG}, s{sQ4}
    s_lshl2_add_u32 s{sTG}, s{g.sRB}, s{sTG}
    s_bfe_u32 s{g.sGP}, s2, 0x10005
    s_lshl1_add_u32 s{g.sGP}, s{sTG}, s{g.sGP}
    s_lshl_b32 s{g.sG0}, s{sTG}, 9
    s_add_u32 s{g.sG0}, s{g.sG0}, {OFF_ST}
    s_lshl_b32 s{g.sC0}, s{g.sC}, 3
    s_add_u32 s{g.sC0}, s{g.sC0}, s{sHI}
    s_lshl_b32 s{g.sC0}, s{g.sC0}, 9
    s_add_u32 s{g.sC0}, s{g.sC0}, {OFF_CS}
    s_add_u32 s{g.sC1}, s{g.sC0}, {30*4096}
    s_add_u32 s{g.sC2}, s{g.sC0}, {60*4096}
    v_and_b32 v{vst}, 15, v{vLANE}
    v_lshrrev_b32 v{vcs}, 4, v{vLANE}
    v_lshlrev_b32 v{vcs}, 6, v{vcs}
    v_add_lshl_u32 v{vcs}, v{vcs}, v{vst}, 4
    v_lshlrev_b32 v{vst}, 3, v{vst}
    v_bfe_u32 v{vSO}, v{vLANE}, 4, 1
    v_lshlrev_b32 v{vSO}, 10, v{vSO}
    v_lshrrev_b32 v{t}, 5, v{vLANE}
    v_lshl_add_u32 v{vSO}, v{t}, 9, v{vSO}
    v_lshl_add_u32 v{vSO}, v{vst}, 1, v{vSO}
    s_and_b32 s{sT}, s2, 32
    v_xor_b32 v{vst}, s{sT}, v{vLANE}
    v_lshlrev_b32 v{vst}, 3, v{vst}
    s_lshl_b32 s{sT}, s{g.sC}, 12
    s_lshl_b32 s{sU}, s{sHI}, 11
    s_add_u32 s{sT}, s{sT}, s{sU}
    s_xor_b32 s{sU}, s{g.sGP}, 1
    s_mul_i32 s{g.sQ0}, s{g.sGP}, {P_QKV}
    s_mul_i32 s{g.sQ1}, s{sU}, {P_QKV}
    s_add_u32 s{g.sQ0}, s{g.sQ0}, s{sT}
    s_add_u32 s{g.sQ1}, s{g.sQ1}, s{sT}
    s_mul_i32 s{sHS}, s{g.sGP}, {P_H}
    s_mul_i32 s{g.sXr}, s{sU}, {P_H}
    s_add_u32 s{sU}, s{sT}, {OFF_H}
    s_add_u32 s{sHS}, s{sHS}, s{sU}
    s_add_u32 s{g.sXr}, s{g.sXr}, s{sU}
    s_lshr_b32 s{sT}, s{sT}, 4
    s_lshl2_add_u32 s{g.sFQ}, s{sTG}, s{sT}
    s_add_u32 s{g.sFQ}, s{g.sFQ}, {OFF_FQ}
    s_cmp_lt_u32 s{g.sC}, 10
    s_cselect_b32 s{g.sQS}, {f32(QSCALE)}, 1.0""")
def st_loads(g): return [f"buffer_load_dwordx2 {vr(g.gr,2)}, v{g.xa}, {WS}, s{g.sG0} offen sc1"], [g.gr + 1]
def cs_loads(g, u):
    return ([f"buffer_load_dwordx4 {vr(g.gr+8+4*p,4)}, v{g.xa+1}, {WS}, s{(g.sC0, g.sC1, g.sC2)[u]} offen offset:{256*p} sc1" for p in range(2)],
            [g.gr + 9 + 2 * k for k in range(4)])
def gate(a, g, name, loads, tags):
    check_ne(a, tags)
    a.atom(f"s_cbranch_vccnz {name}\n{name}_done:")
    g.spins.append((name, loads, tags))
    for p in range(2): a(f"v_mov_b32 v{g.gr+9+4*p}, v{g.gr+10+4*p}")

def gran_use(a, g):
    t = T
    a(f"""v_mov_b32 v{g.gr+4}, v{g.gr}
    s_mov_b32 s{sT}, 0x01000100
    v_permlane32_swap_b32 v{g.gr}, v{g.gr+4}
    v_mov_b32 v{g.gr+2}, v{g.gr}
    v_mov_b32 v{g.gr+6}, v{g.gr+4}
    v_permlane16_swap_b32 v{g.gr}, v{g.gr+2}
    v_permlane16_swap_b32 v{g.gr+4}, v{g.gr+6}""")
    for q in range(4):
        a(f"""v_and_b32 v{t+q}, 0xffff0000, v{g.gr+2*q}
        v_perm_b32 v{g.gr+2*q}, v{g.gr+2*q}, v{g.gr+2*q}, s{sT}
        v_rcp_f32 v{t+4+q}, v{t+q}
        v_xor_b32 v{g.gr+2*q+1}, 0x80008000, v{g.gr+2*q}
        v_xor_b32 v{g.gr+2*q}, 0x80008000, v{g.gr+2*q}
        v_mul_f32 v{g.gr+16+q}, s{g.sQS}, v{t+4+q}""")
def corr(g, u):
    return [f"v_mfma_f32_16x16x16_bf16 {vr(g.acc[u]+8*q+4*p,4)}, {vr(g.gr+8+4*p,2)}, {vr(g.gr+2*q,2)}, {vr(g.acc[u]+8*q+4*p,4)}" for q in range(4) for p in range(2)]
def pack(A):
    return [f"v_cvt_pk_bf16_f32 v{A+r}, v{A+2*r}, v{A+2*r+1}" for r in range(4)]
def swaps(A): return [f"v_permlane16_swap_b32 v{A}, v{A+2}", f"v_permlane16_swap_b32 v{A+1}, v{A+3}"]
def epi_q(g):
    out = []
    for q in range(4):
        A = g.acc[0] + 8 * q; rq = g.gr + 16 + q
        L = [f"v_mul_f32 v{A+r}, v{rq}, v{A+r}" for r in range(8)] + pack(A)
        out.append((L, swaps(A), f"buffer_store_dwordx4 {vr(A,4)}, v{vSO}, {WS}, s{g.sQ1 if q >= 2 else g.sQ0} offen offset:{256*(q&1)} sc1"))
    return out

def gemm1(a, g, w):
    t = T
    out = g1_main(a, g)
    stamp(a)
    X = [g.Xf[0], g.Xf[1], g.Wf[1] + 8, g.X19]; Wa, Wb = g.Wf[0], g.Wf[1]
    def xr(i): return xs_reads(g, X[i - 16], i)
    def wr(i, u, dst): return ws_reads(g, dst, i, u)
    def both(i, dst):
        x, v = xr(i), wr(i, 0, dst)
        return v[:2] + x + v[2:]
    def step(u, W, i, rd, pre=None, extra=None, byq=False):
        fill = {}
        if pre: fill[0] = [pre]
        for k, r in enumerate(rd): fill.setdefault(k // 2, []).append(r)
        for k, x in enumerate(extra or []): fill.setdefault(k * 8 // len(extra), []).append(x)
        mf = mm(g, u, W, X[i - 16])
        if byq: mf = [mf[p * 4 + q] for q in range(4) for p in range(2)]
        weave(a, mf, fill)
    PRIO = "noprio" not in XF
    TP = "tp" in XF
    if PRIO: a("s_setprio 3")
    l1, t1 = cs_loads(g, 1); l2, t2 = cs_loads(g, 2)
    r = Rec(); gate(r, g, "L_sp_st", *g.l0); gran_use(r, g); gu = r.L; h1 = len(gu) // 2
    for x in both(17, Wb)[:4]: a(x)
    a("s_waitcnt lgkmcnt(4)"); step(0, Wa, 16, both(17, Wb)[4:])
    if "qold" in XF:
        a("s_waitcnt lgkmcnt(0)"); step(0, Wb, 17, both(18, Wa), pre="s_waitcnt vmcnt(0)\ns_barrier", extra=gu[:h1])
        a("s_waitcnt lgkmcnt(0)"); step(0, Wa, 18, both(19, Wb), extra=gu[h1:])
        weave(a, corr(g, 0), {0: wr(17, 1, Wa)})
        a("s_waitcnt lgkmcnt(4)"); step(0, Wb, 19, [], extra=["", l1[0], "", l1[1]], byq=True)
        eq = epi_q(g)
        ep = eq[0][0] + eq[1][0][:2] + eq[0][1] + [eq[0][2]] + eq[1][0][2:] + eq[2][0][:2] + eq[1][1] + [eq[1][2]] + eq[2][0][2:] + eq[3][0][:2] + eq[2][1] + [eq[2][2]] + eq[3][0][2:]
        step(1, g.Wf[0] + 8, 16, wr(18, 1, Wb), extra=ep)
    else:
        a("s_waitcnt lgkmcnt(0)"); step(0, Wb, 17, both(18, Wa) + xr(19), pre="s_waitcnt vmcnt(0)\ns_barrier", extra=gu[:h1])
        for x in wr(19, 0, Wb) + gu[h1:]: a(x)
        for m in corr(g, 0): a(m)
        for x in l1: a(x)
        a("s_waitcnt lgkmcnt(0)")
        eq = epi_q(g)
        qq = lambda q: mm(g, 0, Wa, X[2], [q]) + mm(g, 0, Wb, X[3], [q])
        g16 = mm(g, 1, g.Wf[0] + 8, X[0])
        for m in qq(0) + qq(1): a(m)
        def mix(V_, mf, every):
            for k, x in enumerate(V_):
                a(x)
                if k % every == every - 1 and mf: a(mf.pop(0))
            for m in mf: a(m)
        mix(eq[0][0], qq(2), 3)
        mix(eq[1][0][:2] + eq[0][1] + [eq[0][2]] + eq[1][0][2:], qq(3), 3)
        for x in wr(17, 1, Wa) + wr(18, 1, Wb): a(x)
        mix(eq[2][0][:2] + eq[1][1] + [eq[1][2]] + eq[2][0][2:] + eq[3][0][:2] + eq[2][1] + [eq[2][2]] + eq[3][0][2:], g16, 4)
    tmp = g.acc[0]; Z0, Z1, Z2 = tmp + 8, tmp + 16, tmp + 24; G = g.acc[1]; U = g.acc[2]; vc1 = g.xb
    for x in wr(19, 1, Z0)[:2] + eq[3][1] + wr(19, 1, Z0)[2:] + [eq[3][2]]: a(x)
    if "qst" in XF: stamp(a)
    a("s_setprio 2")
    params_a(a, g)
    a("s_waitcnt vmcnt(4)")
    gate(a, g, "L_sp_g", l1, t1)
    a(f"s_mov_b32 s{g.sD0}, {f32(-GC3)}\nv_mov_b32 v{vc1}, {f32(-GC1)}")
    weave(a, corr(g, 1), {0: wr(17, 2, Z1), 2: wr(18, 2, Z2), 7: l2})
    def gq(q): return [m for W, i in ((Wa, 17), (Wb, 18), (Z0, 19)) for m in mm(g, 1, W, X[i - 16], [q])]
    def uk(W, i): return mm(g, 2, W, X[i - 16])
    a("s_waitcnt lgkmcnt(8)")
    for m in gq(0): a(m)
    stamp(a)
    FQ = int(os.environ.get("FQ", "0"))
    u16 = uk(g.Wf[0] + 16, 16)
    for m in u16[:4]: a(m)
    plan = [gq(1) + u16[4:], gq(2) + uk(Z1, 17), gq(3) + corr(g, 2), uk(Z2, 18) + [uk(Z1, 19)[p * 4 + q] for q in range(4) for p in range(2)]]
    for h in range(4):
        if h == FQ:
            a("s_waitcnt vmcnt(0)"); flag(a, g.sFQ)
        if h == 1: a("s_waitcnt lgkmcnt(0)\ns_setprio 1")
        if h == 2:
            assert FQ <= 2
            gate(a, g, "L_sp_u", l2, t2)
            for x in wr(19, 2, Z1): a(x)
            attn_poll(a, w)
            a("s_setprio 0")
        if h == 3:
            attn_open(a, w, early=True)
            a("s_waitcnt lgkmcnt(0)\ns_setprio 1")
        R = range(8)
        Gh = G + 8 * h
        V_ = [f"v_mul_f32 v{Gh+r}, v{t+4+h}, v{Gh+r}" for r in R] + [f"v_mul_f32 v{tmp+r}, v{Gh+r}, v{Gh+r}" for r in R]
        V_ += [f"v_fma_f32 v{tmp+r}, v{tmp+r}, s{g.sD0}, v{vc1}" for r in R] + [f"v_mul_f32 v{tmp+r}, v{tmp+r}, v{Gh+r}" for r in R]
        V_ += [f"v_exp_f32 v{tmp+r}, v{tmp+r}" for r in R] + [f"v_fma_f32 v{tmp+r}, v{tmp+r}, v{t+h}, v{t+h}" for r in R]
        V_ += [f"v_rcp_f32 v{tmp+r}, v{tmp+r}" for r in R] + [f"v_mul_f32 v{Gh+r}, v{Gh+r}, v{tmp+r}" for r in R]
        mf = plan[h]
        if "gtr" in XF:
            pos = ([32 + k for k in range(8)] + [48 + k for k in range(8)])[:len(mf)]
        else:
            cost = [8 if ("exp" in x or "rcp" in x) else 4 for x in V_]; tot = sum(cost); acc_ = 0; pos = []
            for k, c in enumerate(cost):
                while len(pos) < len(mf) and acc_ >= len(pos) * (tot - 40) / len(mf): pos.append(k)
                acc_ += c
        for k, x in enumerate(V_):
            a(x)
            for j, pp in enumerate(pos):
                if pp == k: a(mf[j])
    a("s_setprio 0")
    r = Rec()
    for k in range(32): r(f"v_mul_f32 v{U+k}, v{U+k}, v{G+k}")
    for q in range(4):
        for x in pack(U + 8 * q): r(x)
    for q in range(4):
        for x in swaps(U + 8 * q): r(x)
    w.fin = r.L
    w.hst = [f"buffer_store_dwordx4 {vr(U+8*q,4)}, v{vSO}, {sr(SRD_B,4)}, s{g.sXr if q >= 2 else sHS} offen offset:{256*(q&1)} sc1" for q in range(4)]

def role_r(a, g, w):
    a.label("L_role_r")
    a("s_waitcnt vmcnt(0)")
    stats(a, g)
    a(g.st_store)
    sg = Regs('s', S0 + 17, 96); t = T
    sKS, sOff, sDst, sM, sN, sK2 = (sg.one() for _ in range(6)); sFl = sg.many(5, 1)
    V = Regs('v', 24 + 48 + 8, 252)
    vo = V.many(5, 1); va = V.many(5, 1); fr = V.many(20, 4)
    a(f"s_lshl_b32 s{sT}, s{sWAVE}, 2")
    for i in range(5):
        a(f"""v_add_u32 v{t}, {64*i}, v{vLANE}
        v_mul_u32_u24 v{t+1}, 820, v{t}
        v_lshrrev_b32 v{t+1}, 16, v{t+1}
        v_mul_u32_u24 v{t+2}, 80, v{t+1}
        v_sub_u32 v{t+2}, v{t}, v{t+2}
        v_add_u32 v{t+3}, s{sT}, v{t+1}
        v_lshrrev_b32 v{t+4}, 1, v{t+3}
        v_and_b32 v{t+4}, 4, v{t+4}
        v_or_b32 v{t+4}, v{t+4}, v{t+1}
        v_lshlrev_b32 v{t+4}, 1, v{t+4}
        v_xor_b32 v{t+2}, v{t+2}, v{t+4}
        v_mul_u32_u24 v{t+3}, 1280, v{t+3}
        v_lshl_add_u32 v{vo+i}, v{t+2}, 4, v{t+3}""")
    a(f"""v_lshrrev_b32 v{t}, 4, v{vLANE}
    v_bfe_u32 v{t+1}, v{vLANE}, 2, 2
    v_lshl_add_u32 v{t+2}, v{t}, 3, v{t+1}
    v_mul_u32_u24 v{t+2}, 1280, v{t+2}
    v_and_b32 v{t+3}, 1, v{vLANE}
    v_lshl_add_u32 v{t+2}, v{t+3}, 3, v{t+2}
    v_and_b32 v{t}, 1, v{t}
    v_lshl_add_u32 v{t}, v{t}, 2, v{t+1}
    v_lshlrev_b32 v{t}, 1, v{t}
    v_bfe_u32 v{t+1}, v{vLANE}, 1, 1
    s_mul_i32 s{sT}, s{sWAVE}, 10
    v_add_u32 v{t+1}, s{sT}, v{t+1}""")
    for ct in range(5):
        a(f"v_add_u32 v{t+3}, {2*ct}, v{t+1}\nv_xor_b32 v{t+3}, v{t+3}, v{t}\nv_lshl_add_u32 v{va+ct}, v{t+3}, 4, v{t+2}")
    a(f"""s_sub_u32 s{sKS}, s{g.sC}, 30
    s_lshl_b32 s{sKS}, s{sKS}, 3
    s_add_u32 s{sKS}, s{sKS}, s{g.sRB}
    s_mul_i32 s{sM}, s{sWAVE}, 5120
    s_waitcnt vmcnt(0)
    s_barrier""")
    def fetch(st):
        if st < 3:
            a(f"s_mov_b32 s{SRD_A}, s{pWD}\ns_mov_b32 s{SRD_A+1}, s{pWD+1}\ns_mov_b32 s{SRD_A+2}, {F*D*2}\ns_add_u32 s{sT}, s{sKS}, {16*st}")
        else:
            a(f"""s_mov_b32 s{sT}, {D*D*2}
            s_add_u32 s{sU}, s{sKS}, {16*st}
            s_cmp_lt_u32 s{sU}, 54
            s_cselect_b32 s{SRD_A}, s{pWD}, s{pWO}
            s_cselect_b32 s{SRD_A+1}, s{pWD+1}, s{pWO+1}
            s_cselect_b32 s{SRD_A+2}, {F*D*2}, s{sT}
            s_cselect_b32 s{sT}, 0, 54
            s_sub_u32 s{sT}, s{sU}, s{sT}""")
        a(f"s_mul_i32 s{sOff}, s{sT}, 40960")
        for i in range(5):
            a(f"s_add_u32 m0, s{sM}, {(st%4)*40960 + 1024*i}\nbuffer_load_dwordx4 v{vo+i}, {sr(SRD_A,4)}, s{sOff} offen lds")
    for st in range(4): fetch(st)
    stamp(a, idx=2); stamp(a, idx=3)
    for st in range(5):
        a(f"""s_add_u32 s{sK2}, s{sKS}, {16*st}
        s_cmp_lt_u32 s{sK2}, 54
        s_cselect_b32 s{sT}, 0, 54
        s_cselect_b32 s{sU}, 27, 10
        s_cselect_b32 s{sN}, 0, 27
        s_sub_u32 s{sK2}, s{sK2}, s{sT}
        s_cmp_ge_u32 s{sK2}, s{sU}
        s_cselect_b32 s{sT}, s{sU}, 0
        s_cselect_b32 s{sU}, 1, 0
        s_sub_u32 s{sK2}, s{sK2}, s{sT}
        s_add_u32 s{sK2}, s{sK2}, s{sN}
        s_lshl_b32 s{sT}, s{sWAVE}, 1
        s_add_u32 s{sU}, s{sU}, s{sT}
        s_mul_i32 s{sT}, s{sU}, 37
        s_add_u32 s{sT}, s{sT}, s{sK2}
        s_mul_i32 s{sDst}, s{sT}, 5120
        s_add_u32 s{sDst}, s{sDst}, {OFF_WP}
        s_lshl_b32 s{sU}, s{sU}, 6
        s_add_u32 s{sK2}, s{sK2}, s{sU}
        s_lshl_b32 s{sK2}, s{sK2}, 2
        s_add_u32 s{sFl+st}, s{sK2}, {OFF_FW}""")
        if st == 4:
            a(f"s_cmp_lt_u32 s{sKS}, 10\ns_cselect_b32 s{sDst}, s{sDst}, 0x7ff00000\ns_cselect_b32 s{sFl+st}, s{sFl+st}, 0x7ff00000")
        a(f"s_waitcnt vmcnt({(15, 20, 20, 20, 20)[st]})\ns_barrier")
        for ct in range(5):
            a(f"ds_read_b64_tr_b16 {vr(fr+4*ct,2)}, v{va+ct}\nds_read_b64_tr_b16 {vr(fr+4*ct+2,2)}, v{va+ct} offset:5120")
        for ct in range(5):
            if st < 4: a(f"v_add_u32 v{va+ct}, {40960 if st < 3 else (-3*40960) & 0xffffffff}, v{va+ct}")
        a("s_waitcnt lgkmcnt(0)")
        if st == 0:
            a("s_barrier"); fetch(4)
        for ct in range(4):
            a(f"buffer_store_dwordx4 {vr(fr+4*ct,4)}, v{vL16}, {WS}, s{sDst} offen offset:{1024*ct} sc1")
        a(f"""s_add_u32 s{sDst}, s{sDst}, 4096
        buffer_store_dwordx4 {vr(fr+16,4)}, v{vL16}, {WS}, s{sDst} offen sc1""")
    stamp(a, idx=4)
    params_a(a, g)
    a(f"v_mov_b32 v{vSO}, 0\ns_mov_b32 s{sHS}, 0\ns_waitcnt vmcnt(0)")
    for st in range(5): flag(a, sFl + st)
    stamp(a, idx=5)
    n0 = Stamper.n; Stamper.n = w.open_stamp
    attn_open(a, w, "_b")
    Stamper.n = n0
    a("s_branch L_attn")

class AT: pass
def alloc_at():
    w = AT(); V = Regs('v', WK, 252)
    w.Sb = [V.many(32, 4) for b in range(2)]; w.O = [V.many(16, 4) for q in range(2)]
    w.Qm = [V.many(4, 4) for q in range(2)]; w.Km = V.many(4, 4); w.V0 = V.many(4, 4); w.V1 = V.many(4, 4)
    w.Qr = V.many(2, 2); w.Kr = V.many(2, 2)
    return w

MC = int(os.environ.get("MC", "0"))
def phys(c):
    if c == 9: return phys(6)
    if c < MC + 2: return c % 2
    return c - MC if c < MC + 4 else phys(c - 4)
ACCD, WT = HB + 80, HB + 100
NHS = 20 if MC else 27
def hreg(n): return HB + 4 * (n if n < NHS else n - NHS)
class Cnt:
    def __init__(self, a, name, cap): self.a, self.name, self.cap, self.q = a, name, cap, []
    def issue(self, tag, txt, n=1): self.a(txt); self.q += [tag] * n
    def wait(self, *tags):
        idx = max([i for i, x in enumerate(self.q) if x in tags], default=-1)
        if idx >= 0:
            self.a(f"s_waitcnt {self.name}({min(self.cap, len(self.q) - 1 - idx)})"); del self.q[:idx + 1]
def w3_dma(c, R=SRD_WS, loose=False):
    L = []
    for i in range(5):
        pre = ""
        if i in (0, 4) or loose:
            k = 4096 if i == 4 else 0
            pre = f"s_add_u32 m0, s{sM3}, {phys(c)*G3_SLOT + k}\ns_add_u32 s{sW3}, s{sWO}, {c*4*5120 + k}\n"
        L.append(pre + f"buffer_load_dwordx4 v{vL16}, {sr(R,4)}, s{sW3} offen offset:{1024*(i&3)} sc1 lds")
    return L
sW3 = S0 + 30
def b_load(dst, base, k):
    s = f"s_add_u32 s{base}, s{base}, 4096\n" if k and k % 2 == 0 else ""
    return s + f"buffer_load_dwordx4 {vr(dst,4)}, v{vBO}, {WS}, s{base} offen offset:{(k&1)*2048} sc1"

def kv_dma(c):
    b = A_BASE + (c % 3) * A_SLOT; inc = 4 * P_QKV if c else 0
    return [f"s_add_u32 m0, s{sDM}, {b}\ns_add_u32 s{sDO}, s{sDO}, {inc}\nbuffer_load_dwordx4 v{vKVO}, {WS}, s{sDO} offen sc1 lds",
            f"s_add_u32 m0, s{sDM}, {b + A_REG - 512}\ns_nop 0\nbuffer_load_dwordx4 v{vKVO}, {WS}, s{sDO} offen offset:512 sc1 lds",
            f"s_add_u32 m0, s{sDM}, {b + 2*A_REG}\ns_add_u32 s{sDO+1}, s{sDO+1}, {inc}\nbuffer_load_dwordx4 v{vKVO}, {WS}, s{sDO+1} offen sc1 lds"]

vPQ = 244
def q_loads():
    t = vPQ
    return [f"buffer_load_dword v{t}, v{vFQO}, {WS}, s{sT} offen sc1",
            f"buffer_load_dword v{t+1}, v{vFQO}, {WS}, s{sU} offen sc1",
            f"buffer_load_dword v{t+2}, v{vFQO}, {WS}, s{sU} offen offset:2560 sc1"]
PW = int(os.environ.get("PW", "4"))
def attn_poll(a, w):
    a(f"""s_cmp_lg_u32 s{sWAVE}, {PW}
    s_cbranch_scc1 L_q_nopoll
    s_mov_b32 s{sT}, {OFF_FQ}
    s_mov_b32 s{sU}, {OFF_FQ + 2560}""")
    for l in q_loads(): a(l)
    a.label("L_q_nopoll")
def attn_open(a, w, sfx="", early=False):
    t = vPQ
    w.open_stamp = Stamper.n
    stamp(a)
    loads = q_loads()
    a(f"""s_cmp_lg_u32 s{sWAVE}, {PW}
    s_cbranch_scc1 L_sp_q_done{sfx}""")
    if early:
        a("s_waitcnt vmcnt(0)"); check_ne(a, [t, t + 1, t + 2]); a(f"s_cbranch_vccz L_sp_q_done{sfx}")
    else:
        a(f"s_mov_b32 s{sT}, {OFF_FQ}\ns_mov_b32 s{sU}, {OFF_FQ + 2560}")
    spin(a, "L_sp_q" + sfx, loads, [t, t + 1, t + 2], "L_sp_q_done" + sfx, int(os.environ.get("QSL", "2")) if early else SLEEP)
    a.label("L_sp_q_done" + sfx)
    a("s_barrier")
    stamp(a)
    for x in kv_dma(0): a(x)
    a(f"""buffer_load_dwordx4 {vr(w.Qm[0],4)}, v{vL16}, {WS}, s{sQB_} offen sc1
    buffer_load_dwordx4 {vr(w.Qm[1],4)}, v{vL16}, {WS}, s{sQA} offen sc1
    buffer_load_dwordx2 {vr(w.Qr,2)}, v{vQRO}, {WS}, s{sQR} offen sc1""")

def attention(a, w, g):
    t = T; Sb, O, Qm, Km, V0, V1, Qr, Kr = w.Sb, w.O, w.Qm, w.Km, w.V0, w.V1, w.Qr, w.Kr
    dma = kv_dma
    a.label("L_attn")
    params_b(a, g)
    a(f"""; token-side fragment offset of phase 3: lane (t16, g): piece g, row t16
    v_and_b32 v{vBO}, 0xf0, v{vL16}
    v_lshrrev_b32 v{t}, 4, v{vLANE}
    v_lshl_add_u32 v{vBO}, v{t}, 9, v{vBO}
    v_and_b32 v{t+4}, 3, v0
    v_cmp_eq_u32 vcc, 0, v{t+4}
    v_mov_b32 v{t+4}, 0x3f80
    v_lshlrev_b32 v{t+5}, 2, v0
    v_cndmask_b32 v{t+4}, 0, v{t+4}, vcc
    v_add_u32 v{t+5}, {A_ONES}, v{t+5}
    ds_write_b32 v{t+5}, v{t+4}
    v_min_u32 v{t+6}, 26, v{vLANE}
    v_min_u32 v{t+7}, 36, v{vLANE}
    v_lshlrev_b32 v{t+6}, 2, v{t+6}
    v_lshlrev_b32 v{t+7}, 2, v{t+7}
    s_mov_b32 s{SRD_B}, s{pWS}
    s_mov_b32 s{SRD_B+1}, s{pWS+1}
    s_cmp_lt_u32 s{g.sC}, 27
    s_cselect_b32 s{SRD_B+2}, {WS_USED}, 0""")
    NF = int(os.environ.get("NFIN", "54"))
    fin = w.fin + [f"v_mov_b32 v{O[q]+r}, 0" for q in range(2) for r in range(16)]
    for x in fin[:NF]: a(x)
    fin = fin[NF:]
    for x in kv_dma(1): a(x)
    a(f"""s_or_b32 s{sT}, s2, s{sWAVE}
    s_cmp_lg_u32 s{sT}, 0
    s_cbranch_scc1 L_noep
    s_mov_b32 s{sT}, {OFF_EP}
    s_waitcnt vmcnt(0)""")
    flag(a, sT)
    a.label("L_noep")
    def rdKr(i): return f"ds_read_b64 {vr(Kr,2)}, v{vKRA} offset:{((i>>2)%3)*A_SLOT + (i&3)*512}"
    def rdKm(i): return f"ds_read_b128 {vr(Km,4)}, v{vKMA} offset:{((i>>2)%3)*A_SLOT + (i&3)*512}"
    def rdV(i, s):
        R = V1 if s else V0
        return "\n".join(f"ds_read_b64_tr_b16 {vr(R+2*rd,2)}, v{vVA+(i>>2)%3} offset:{(i&3)*512 + s*256 + rd*64}" for rd in range(2))
    def m2b(i): return f"v_mfma_f32_32x32x4_2b_bf16 {vr(Sb[i&1],32)}, {vr(Kr,2)}, {vr(Qr,2)}, 0"
    def m16(i, q): return f"v_mfma_f32_32x32x16_bf16 {vr(Sb[i&1]+16*q,16)}, {vr(Km,4)}, {vr(Qm[q],4)}, {vr(Sb[i&1]+16*q,16)}"
    def smf(i, q, s): return f"v_smfmac_f32_32x32x32_bf16 {vr(O[q],16)}, {vr(V1 if s else V0,4)}, {vr(Sb[i&1]+16*q+8*s,8)}, v{vIDX}"
    a("s_waitcnt vmcnt(3) lgkmcnt(0)\ns_barrier")
    stamp(a)
    n1 = max(0, len(fin) - 34)
    a(rdKr(0)); a(rdKm(0)); a(rdV(0, 0))
    for x in fin[:n1]: a(x)
    a("s_waitcnt lgkmcnt(2)")
    a(m2b(0)); a(rdKr(1))
    for x in fin[n1:n1+18]: a(x)
    a(m16(0, 0))
    for x in fin[n1+18:n1+24]: a(x)
    a(m16(0, 1)); a(rdKm(1))
    for x in fin[n1+24:]: a(x)
    a("s_waitcnt lgkmcnt(0)")
    NT = 32
    PS = [int(x) for x in os.environ.get("PS", "1,3,7").split(",") if x]
    if PS: a("s_setprio 3")
    floads = [f"buffer_load_dword v{t}, v{t+6}, {WS}, s{sFHc} offen sc1", f"buffer_load_dword v{t+1}, v{t+7}, {WS}, s{sFWc} offen sc1"]
    w.floads = floads
    vm = Cnt(a, "vmcnt", 63); lq = Cnt(a, "lgkmcnt", 15); w.vm = vm
    vm.q = ["kv1"] * 3
    hl = lambda n: (f"h{n}", b_load(hreg(n), sH, n))
    wl = lambda c: [(f"w{c}", x) for x in w3_dma(c, loose=True)]
    I0 = 7 - MC
    plan = {c: [] for c in range(3, 8)}; hn = 0
    for k in range(MC + 2):
        c = min(7, max(3 + min(k, 1), I0 + k - 1)); plan[c] += wl(k)
    for c in range(3, 8):
        lim = 27 if c == 7 else min(NHS + 4 * max(0, c - I0), 27, hn + (12 if MC else 9) - len(plan[c]))
        plan[c] += [hl(n) for n in range(hn, lim)]; hn = lim
    nrem = (37 - 4 * (MC + 2)) * 40; per = -(-nrem // 32)
    plan[6].append(("t", f"""s_bfe_u32 s{sT}, s2, 0x30003
    s_lshl2_add_u32 s{sT}, s{sT}, s{sQ4}
    s_mul_i32 s{sT}, s{sT}, {per*128}
    s_mul_i32 s{sU}, s{sQ4}, 5120
    s_sub_u32 s{sT}, s{sT}, s{sU}
    s_add_u32 s{sT}, s{sT}, s{sWO}
    s_add_u32 s{sT}, s{sT}, {4*(MC+2)*5120}
    v_min_u32 v{t+6}, {per-1}, v{vLANE}
    v_lshlrev_b32 v{t+6}, 7, v{t+6}
    buffer_load_dword v{t}, v{t+6}, {WS}, s{sT} offen sc1"""))
    if "noorem" not in XF:
        plan[7].insert(5, ("t", f"s_mov_b32 exec_hi, 0\nbuffer_load_dword v{t}, v{vL16}, {WS}, s{sOR} offen sc1\ns_mov_b64 exec, -1"))
    r = Rec(); params_c(r, g); pc = r.L
    queue = []; dq = []; dn = [0]
    def d_read(j):
        n, ct = divmod(j, 5)
        lq.issue(("d", j), f"ds_read_b128 {vr(WT+4*(j&1),4)}, v14 offset:{phys(n>>2)*G3_SLOT + (n&3)*5120 + ct*1024}")
    def D():
        if not dq: return
        j = dq.pop(0); n, ct = divmod(j, 5)
        vm.wait(f"h{n}"); lq.wait(("d", j))
        a(f"v_mfma_f32_16x16x32_bf16 {vr(ACCD+4*ct,4)}, {vr(WT+4*(j&1),4)}, {vr(hreg(n),4)}, {'0' if n == 0 else vr(ACCD+4*ct,4)}")
        if len(dq) >= 2: d_read(j + 2)
    def Q():
        if queue: vm.issue(*queue.pop(0))
    a.auto = False
    for i in range(NT):
        def E(lo, hi):
            for k in range(lo, hi):
                a(f"v_exp_f32 v{Sb[i&1]+k}, v{Sb[i&1]+k}")
                if pc and k % 4 == 3: a(pc.pop(0))
        last = i == NT - 1
        def prio(pt):
            if not PS: return
            nb = min([b for b in range(2, 27, 4) if b * 4 + 1 > i * 4 + pt] + [NT - 0.25])
            left = int(round(nb * 4 + 1 - (i * 4 + pt)))
            for p, th in enumerate(PS):
                if left == th: a(f"s_setprio {p}")
        prio(0)
        D(); E(0, 2)
        if i: a(smf(i - 1, 1, 1))
        lq.issue(("V1", i), rdV(i, 1), 2); E(2, 5)
        if not last: lq.wait(("Kr", i + 1)); a(m2b(i + 1))
        if (i + 2) % 4 == 0 and i + 2 < NT:
            c = (i + 2) // 4
            assert not queue and not dq, (i, queue, dq)
            vm.wait(f"kv{c}", "fl", f"w{c-I0}")
            if c == 3:
                a.auto = True
                check_ne(a, [t, t + 1])
                a("s_cbranch_vccnz L_sp_h")
                a.label("L_sp_h_done")
                a.auto = False
            a("s_barrier")
            if PS: a("s_setprio 3")
            if c + 1 < 8: queue += [(f"kv{c+1}", x) for x in dma(c + 1)]
            queue += plan.get(c, [])
            if 0 <= c - I0 < MC:
                dq += list(range(20 * (c - I0), 20 * (c - I0) + 20)); d_read(dq[0]); d_read(dq[1])
        if i == 0: queue += [("hs", x) for x in w.hst]
        if i == 4:
            vm.wait("hs"); flag(a, sFHp); vm.q.append("x")
        if i == 8 and MC:
            a(f"s_mul_i32 s{sT}, s{sHI}, {4*5120}\nv_add_u32 v14, s{sT}, v{vL16}")
        if i == 9:
            assert not pc
            queue += [("fl", x) for x in floads]
        if i + 2 < NT: lq.issue(("Kr", i + 2), rdKr(i + 2))
        prio(1)
        E(5, 9); Q(); E(9, 13)
        lq.wait(("V0", i)); a(smf(i, 0, 0))
        if i >= 2: Q()
        prio(2)
        E(13, 16); D(); E(16, 17); D(); E(17, 18)
        lq.wait(("V1", i), ("Km", i + 1), ("Kr", i + 2)); a(smf(i, 0, 1))
        Q(); E(18, 21)
        if not last: a(m16(i + 1, 0))
        prio(3)
        E(21, 24); D(); E(24, 25); D(); E(25, 26)
        a(smf(i, 1, 0))
        if not last: lq.issue(("V0", i + 1), rdV(i + 1, 0), 2)
        E(26, 29)
        if last:
            for q in range(3): a(f"ds_write_b128 v{t+1}, {vr(O[0]+4*q,4)} offset:{1024*q}")
        if i == NT - 2:
            a(f"""s_mul_i32 s{sT}, s{sWAVE}, 3200
            s_add_u32 s{sT}, s{sT}, {A_XCH}
            v_add_u32 v{t+1}, s{sT}, v{vL16}
            s_xor_b32 s{sU}, s{sWAVE}, 4
            s_mul_i32 s{sU}, s{sU}, 3200
            s_add_u32 s{sU}, s{sU}, {A_XCH}
            v_add_u32 v{t+2}, s{sU}, v{vL16}""")
        if not last: a(m16(i + 1, 1))
        if i + 2 < NT: lq.issue(("Km", i + 2), rdKm(i + 2))
        if i >= 10 and (MC or i == 25): Q()
        E(29, 32)
    assert not queue and not dq
    a.auto = True
    a(smf(NT - 1, 1, 1))
    stamp(a)
    vm.wait(f"w{MC}", f"w{MC+1}", "t")
    a("s_waitcnt lgkmcnt(0)\ns_barrier")
    X = Sb[0]; w.X = X
    for q in range(3): a(f"ds_read_b128 {vr(X+4*q,4)}, v{t+2} offset:{1024*q}")
    w.npre = int(os.environ.get("NPRE", "2"))
    for x in w3_dma(MC + 2)[:w.npre]: vm.issue(f"w{MC+2}", x)
    a("s_waitcnt lgkmcnt(0)")
    for r in range(12): a(f"v_add_f32 v{X+r}, v{X+r}, v{O[1]+r}")
    a(f"""v_mov_b32 v{X+12}, v{X+8}
    v_mov_b32 v{X+13}, v{X+8}
    v_mul_f32 v{X+14}, 0, v{X}""")
    a(f"v_permlane32_swap_b32 v{X+13}, v{X+12}")
    for r in range(1, 12): a(f"v_fmac_f32 v{X+14}, 0, v{X+r}")
    a(f"""v_add_f32 v{X+14}, v{X+14}, v{X+12}
    v_cmp_nle_f32 vcc, {f32(2.0**-64)}, v{X+14}
    s_mov_b64 s[{S0+26}:{S0+27}], vcc
    v_cmp_nge_f32 vcc, {f32(2.0**64)}, v{X+14}
    s_or_b64 vcc, vcc, s[{S0+26}:{S0+27}]
    s_cbranch_scc1 L_slow""" if "force_slow" not in XF else "s_branch L_slow")
    a.label("L_slow_done")
    a(f"v_rcp_f32 v{X+13}, v{X+12}")
    for r in range(12): a(f"v_mul_f32 v{X+r}, v{X+r}, v{X+13}")
    for r in range(6): a(f"v_cvt_pk_bf16_f32 v{X+16+r}, v{X+2*r}, v{X+2*r+1}")
    a(f"""buffer_store_dwordx4 {vr(X+16,4)}, v{vL16}, {WS}, s{sOA} offen sc1
    s_mov_b32 exec_hi, 0
    buffer_store_dwordx2 {vr(X+20,2)}, v{vL16}, {WS}, s{sOR} offen sc1
    s_mov_b64 exec, -1""")
    stamp(a)

def attn_cold(a, w):
    t = T; Sb, O, Qm, Km, V0, V1, Qr, Kr, X = w.Sb, w.O, w.Qm, w.Km, w.V0, w.V1, w.Qr, w.Kr, w.X
    a.label("L_sp_h")
    spin(a, "L_sp_h_loop", w.floads, [t, t + 1], "L_sp_h_done")
    a("s_branch L_sp_h_done")
    a.label("L_slow")
    Sx = Sb[1]; NM = Sb[1] + 16; Oa = O[1]; vb = O[0]; mx = O[0] + 8; vho = O[0] + 9; vwa = O[0] + 10; vws = O[0] + 11; vra = O[0] + 12
    sKA, sKS_, sN, sSC = S0 + 26, S0 + 27, S0 + 28, S0 + 29
    a(f"""s_xor_b32 s{sSC}, s{sWAVE}, 4
    s_mul_i32 s{sSC}, s{sSC}, 3200
    s_add_u32 s{sSC}, s{sSC}, {A_XCH}
    v_cmp_lt_u32 vcc, 31, v{vLANE}
    v_and_b32 v{vho}, 31, v{vLANE}
    v_lshlrev_b32 v{vho}, 4, v{vho}
    v_cndmask_b32 v{Qr}, 0, v{Qr}, vcc
    v_cndmask_b32 v{Qr+1}, 0, v{Qr+1}, vcc
    v_mov_b32 v{mx}, 0xff800000
    v_add_u32 v{vwa}, s{sSC}, v{vL16}
    v_add_u32 v{vws}, s{sSC}, v{vho}
    s_bfe_u32 s{sT}, s2, 0x30003
    s_lshl_b32 s{sT}, s{sT}, 2
    s_add_u32 s{sT}, s{sT}, s{sQ4}
    s_mul_i32 s{sT}, s{sT}, {2*P_QKV}
    s_sub_u32 s{sKS_}, s{sQR}, s{sT}
    s_mul_i32 s{sU}, s{sHI}, {P_QKV}
    s_add_u32 s{sT}, s{sT}, s{sU}
    s_sub_u32 s{sKA}, s{sQA}, s{sT}
    s_add_u32 s{sKA}, s{sKA}, {80*512}
    s_add_u32 s{sKS_}, s{sKS_}, {80*512}
    ; transposed V reads from the private scratch [A 512][B 512][S 512]
    v_bfe_u32 v{t+1}, v{vLANE}, 2, 2
    v_lshrrev_b32 v{t}, 5, v{vLANE}
    v_lshl_add_u32 v{t+1}, v{t}, 3, v{t+1}
    v_lshlrev_b32 v{t+1}, 4, v{t+1}
    v_and_b32 v{t+2}, 1, v{vLANE}
    v_lshlrev_b32 v{t+2}, 9, v{t+2}
    v_bfe_u32 v{t+3}, v{vLANE}, 1, 1
    v_lshl_add_u32 v{t+2}, v{t+3}, 3, v{t+2}
    v_mov_b32 v{t+5}, 1024
    v_and_b32 v{t+4}, 19, v{vLANE}
    v_cmp_eq_u32 vcc, 16, v{t+4}
    v_lshlrev_b32 v{t+3}, 3, v{t+3}
    v_add_u32 v{t+3}, {A_ONES}, v{t+3}
    v_cndmask_b32 v{t+2}, v{t+2}, v{t+5}, vcc
    v_cmp_lt_u32 vcc, 16, v{t+4}
    v_add_u32 v{t+2}, s{sSC}, v{t+2}
    v_cndmask_b32 v{t+2}, v{t+2}, v{t+3}, vcc
    v_add_u32 v{vra}, v{t+2}, v{t+1}
    s_mov_b32 s{sN}, 0""")
    def kload():
        a(f"""s_add_u32 s{sT}, s{sKA}, s{sN}
        s_add_u32 s{sU}, s{sKS_}, s{sN}
        buffer_load_dwordx4 {vr(Km,4)}, v{vL16}, {WS}, s{sT} offen sc1
        buffer_load_dwordx2 {vr(Kr,2)}, v{vho}, {WS}, s{sU} offen sc1""")
    def qk(c):
        a(f"""v_mfma_f32_32x32x16_bf16 {vr(Sx,16)}, {vr(Km,4)}, {vr(Qm[1],4)}, {c}
        v_mfma_f32_32x32x8_bf16 {vr(Sx,16)}, {vr(Kr,2)}, {vr(Qr,2)}, {vr(Sx,16)}""")
    def nxt(l): a(f"s_add_u32 s{sN}, s{sN}, {P_QKV}\ns_cmp_lt_u32 s{sN}, {64*P_QKV}\ns_cbranch_scc1 {l}")
    a.label("L_slow_a")
    kload(); a("s_waitcnt vmcnt(0)"); qk("0")
    for r in range(0, 16, 2): a(f"v_max3_f32 v{mx}, v{Sx+r}, v{Sx+r+1}, v{mx}")
    nxt("L_slow_a")
    a(f"""v_mov_b32 v{t}, v{mx}
    v_permlane32_swap_b32 v{t}, v{mx}
    v_max_f32 v{mx}, v{mx}, v{t}
    s_mov_b32 s{sN}, 0""")
    for r in range(16): a(f"v_sub_f32 v{NM+r}, 0, v{mx}\nv_mov_b32 v{Oa+r}, 0")
    a.label("L_slow_b")
    kload()
    a(f"""s_add_u32 s{sT}, s{sT}, {80*512}
    s_add_u32 s{sU}, s{sU}, {80*512}
    buffer_load_dwordx4 {vr(vb,4)}, v{vL16}, {WS}, s{sT} offen sc1
    buffer_load_dwordx2 {vr(vb+4,2)}, v{vho}, {WS}, s{sU} offen sc1
    s_waitcnt vmcnt(0)
    ds_write_b128 v{vwa}, {vr(vb,4)}
    ds_write_b64 v{vws}, {vr(vb+4,2)} offset:1024""")
    qk(vr(NM, 16))
    a("s_waitcnt lgkmcnt(0)")
    for s in range(2):
        for rd in range(2): a(f"ds_read_b64_tr_b16 {vr((V1 if s else V0)+2*rd,2)}, v{vra} offset:{s*256+rd*64}")
    for r in range(16): a(f"v_exp_f32 v{Sx+r}, v{Sx+r}")
    a("s_waitcnt lgkmcnt(0)")
    for s in range(2): a(f"v_smfmac_f32_32x32x32_bf16 {vr(Oa,16)}, {vr(V1 if s else V0,4)}, {vr(Sx+8*s,8)}, v{vIDX}")
    nxt("L_slow_b")
    for r in range(12): a(f"v_mov_b32 v{X+r}, v{Oa+r}")
    a(f"""v_mov_b32 v{X+12}, v{Oa+8}
    v_mov_b32 v{X+13}, v{Oa+8}
    v_permlane32_swap_b32 v{X+13}, v{X+12}
    s_nop 1
    s_branch L_slow_done""")

def gemm3(a, w):
    t = T; V = Regs('v', WK, 252)
    OB = V.many(40, 4); xx = V.many(20, 4); accs = V.many(20, 4); Wf = [V.many(20, 4) for b in range(2)]; accd = ACCD if MC else xx
    N0 = 4 * MC
    wa = vIDX
    RD, RS = phys(5) * G3_SLOT, phys(7) * G3_SLOT
    out = w.vm.q + ["ost"] * 2
    lq = []
    def vm(tag, txt): a(txt); out.append(tag)
    def lds(tag, txt): a(txt); lq.append(tag)
    def w_vm(tag):
        if tag in out:
            idx = max(i for i, x in enumerate(out) if x == tag)
            a(f"s_waitcnt vmcnt({len(out) - 1 - idx})"); del out[:idx + 1]
    def w_lds(tag):
        if tag in lq:
            idx = max(i for i, x in enumerate(lq) if x == tag)
            a(f"s_waitcnt lgkmcnt({min(15, len(lq) - 1 - idx)})"); del lq[:idx + 1]
    for x in w3_dma(MC + 2)[w.npre:]: vm(f"w{MC+2}", x)
    a(f"s_mul_i32 s{sT}, s{sHI}, {4*5120}")
    for k in range(4): a(f"s_add_u32 s{sU}, s{sT}, {k*G3_SLOT}\nv_add_u32 v{wa+k}, s{sU}, v{vL16}")
    def rd(n, ct): lds((n, ct), f"ds_read_b128 {vr(Wf[n&1]+4*ct,4)}, v{wa+phys(n>>2)} offset:{(n&3)*5120 + ct*1024}")
    for n in (N0, N0 + 1):
        for ct in range(5): rd(n, ct)
    vo = 8
    r = Rec()
    r(f"""v_and_b32 v{t+7}, 15, v{vLANE}
    v_lshlrev_b32 v{t+7}, 2, v{t+7}
""")
    srd(r, SRD_B, pX, S * D * 2)
    for q in range(3):
        r(f"v_add_u32 v{t+2}, {512*q}, v0" if q < 2 else f"v_lshrrev_b32 v{t+2}, 1, v0\nv_add_u32 v{t+2}, 1024, v{t+2}")
        r(f"""v_mul_u32_u24 v{t+3}, 3277, v{t+2}
        v_lshrrev_b32 v{t+3}, 16, v{t+3}
        v_bfe_u32 v{t+4}, v{t+3}, 1, 2
        v_xor_b32 v{t+2}, v{t+2}, v{t+4}
        v_mul_u32_u24 v{t+3}, {1280-160}, v{t+3}
        v_lshl_add_u32 v{vo+q}, v{t+2}, 3, v{t+3}""")
    r(f"""v_and_b32 v{t+2}, 1, v0
    v_lshl_add_u32 v{vo+2}, v{t+2}, 2, v{vo+2}
    v_lshlrev_b32 v11, 4, v0
    v_add_u32 v11, {RD}, v11
    v_lshlrev_b32 v12, 3, v0
    v_add_u32 v12, {RD + 16384}, v12
    v_lshrrev_b32 v{t+2}, 4, v{vLANE}
    v_bfe_u32 v{t+3}, v{vLANE}, 1, 2
    v_xor_b32 v{t+2}, v{t+2}, v{t+3}
    v_mul_u32_u24 v14, 80, v{t+7}
    v_lshl_add_u32 v14, v{t+2}, 4, v14
    s_add_u32 s{sT}, s{sM3}, {RD}
    v_add_u32 v14, s{sT}, v14""")
    side = r.L
    x2 = xx if MC else HB; xs = x2 + 8; red = HB + 28; g_ = HB + 52
    oflag = f"buffer_load_dword v{t}, v{t+7}, {WS}, s{sFOc} offen sc1"
    w.oflag = oflag
    N_FLAG, N_POLL, N_CHK = (int(x) for x in os.environ.get("G3N", "5,23,0").split(","))
    WGAP, OGAP = (int(x) for x in os.environ.get("G3G", "3,3").split(","))
    vq = []
    def red_reads(delta):
        for q in range(3):
            for k in range(2):
                lds(("red", q), f"ds_read_b128 {vr(red+8*q+4*k,4)}, v11 offset:{8192*q + 20480*k}" if q < 2 else f"ds_read_b64 {vr(red+16+4*k,2)}, v12 offset:{20480*k}")
    NX = N0 + (5 if MC else 10); CHK = os.environ.get("CHK", "pre"); NOF = int(os.environ.get("NOF", "4"))
    ol = [(f"o{k}", b_load(OB + 4 * k, sO3, k)) for k in range(10)]
    def o_gate():
        w_vm("of")
        check_ne(a, [t])
        a("s_cbranch_vccnz L_sp_o")
        a.label("L_sp_o_done")
        stamp(a)
        pass
        for _ in range(NOF): vm(*ol.pop(0))
    for n in range(N0, 37):
        A = accd if n < 27 else accs
        Bn = hreg(n) if n < 27 else OB + 4 * (n - 27)
        w_vm(f"h{n}")
        first = n in (0, 27)
        if "g3t" in XF and n in (N_FLAG, N_FLAG + 1, 27, 28): stamp(a)
        if "g3st" in XF and n in (12, 14, 16, 18, 20, 22, 24, 26, 27, 28, 29, 31, 33, 35): stamp(a)
        if n == N_FLAG:
            w_vm("ost"); flag(a, sFO); out.append("fl")
        if n % 4 == 2 and n + 2 < 37:
            c = (n + 2) // 4
            assert not any(x[0] == f"w{c}" for x in vq)
            w_vm(f"w{c}")
            a("s_barrier")
            if c + 2 < 9: vq += [(f"w{c+2}", x) for x in w3_dma(c + 2)]
            if c == 8:
                vq += [("w9", f"""s_mul_i32 s{sT}, s{sQ4}, {5120 - 1024}
                s_sub_u32 s{sW3}, s{sWO}, s{sT}
                s_add_u32 s{sW3}, s{sW3}, {36*5120}
                s_sub_u32 s{sT}, s{sM3}, s{sT}
                s_add_u32 m0, s{sT}, {phys(9)*G3_SLOT}
                s_lshl_b32 s{sU}, s{sQ4}, 10
                buffer_load_dwordx4 v{vL16}, {WS}, s{sW3} offen sc1 lds"""),
                       ("w9", f"""s_sub_u32 s{sU}, 4096, s{sU}
                s_add_u32 m0, m0, s{sU}
                s_add_u32 s{sW3}, s{sW3}, s{sU}
                buffer_load_dwordx4 v{vL16}, {WS}, s{sW3} offen sc1 lds""")]
        if "nop3" not in XF: a(f"s_setprio {(1 - n) % 4 if n < 34 else 36 - n}")
        if n == N_POLL: vq.insert(0, ("of", oflag))
        if n == NX:
            assert not side
            vq += [("x", f"buffer_load_dword{'x2' if q < 2 else ''} {vr(x2+2*q,2 if q < 2 else 1)}, v{vo+q}, {sr(SRD_B,4)}, s{sOUT} offen") for q in range(3)]
        if N_CHK and n == N_CHK: o_gate()
        if n == 23:
            assert not side; w_vm("x")
            r = Rec()
            for k in range(5): r(f"v_lshlrev_b32 v{xs+2*k}, 16, v{x2+k}\nv_and_b32 v{xs+2*k+1}, 0xffff0000, v{x2+k}")
            srd(r, SRD_B, pOUT, S * D * 2)
            side = r.L
        if n == 27:
            assert not side and not vq
            if CHK == "pre" and not N_CHK: o_gate()
            for ct in range(5): lds("dw", f"ds_write_b128 v14, {vr(accd+4*ct,4)} offset:{64*ct}")
            if CHK == "mid": o_gate()
            a("s_waitcnt lgkmcnt(0)\ns_barrier"); lq.clear()
            red_reads(0)
            if CHK == "post": o_gate()
            r = Rec(); r(f"s_mov_b32 s{sT}, {f32(-LOG2E)}")
            for k in range(10): r(f"v_add_f32 v{g_+k}, v{red+8*(k//4)+k%4}, v{red+8*(k//4)+4+k%4}")
            for k in range(10): r(f"v_mul_f32 v{red+k}, s{sT}, v{g_+k}")
            for k in range(10): r(f"v_exp_f32 v{red+k}, v{red+k}")
            for k in range(10): r(f"v_add_f32 v{red+k}, 1.0, v{red+k}")
            for k in range(10): r(f"v_rcp_f32 v{red+k}, v{red+k}")
            for k in range(10): r(f"v_mul_f32 v{g_+k}, v{g_+k}, v{red+k}")
            for k in (11, 12, 14): r(f"v_add_u32 v{k}, {(RS-RD) & 0xffffffff}, v{k}")
            NSI = int(os.environ.get("NSI", "64"))
            a("s_waitcnt lgkmcnt(0)"); lq.clear()
            for k, x in enumerate(r.L[:NSI]):
                a(x)
                if k % 10 == 0 and ol and CHK != "end": vm(*ol.pop(0))
            side = r.L[NSI:]
            if CHK == "end": o_gate()
        if n >= 27:
            assert not any(x[0] == f"o{n-27}" for x in ol)
            w_vm(f"o{n-27}")
        for ct in range(5):
            w_lds((n, ct))
            a(f"v_mfma_f32_16x16x32_bf16 {vr(A+4*ct,4)}, {vr(Wf[n&1]+4*ct,4)}, {vr(Bn,4)}, {'0' if first else vr(A+4*ct,4)}")
            if n + 2 < 37: rd(n + 2, ct)
            gap = 5 * n + ct
            if n >= 27 and ol and gap % 2 == 0: vm(*ol.pop(0))
            elif gap % WGAP == 0 and vq: vm(*vq.pop(0))
            elif gap % WGAP == 0 and N_CHK and n >= N_CHK and ol: vm(*ol.pop(0))
            for _ in range(2 if n < NX and MC else 1):
                if side: a(side.pop(0))
    for x in side: a(x)
    assert not vq and not ol
    stamp(a)
    for ct in range(5): a(f"ds_write_b128 v14, {vr(accs+4*ct,4)} offset:{64*ct}")
    a("s_waitcnt lgkmcnt(0)\ns_barrier")
    red_reads(RS - RD)
    for q in range(3):
        a(f"s_waitcnt lgkmcnt({4-2*q})")
        ne = 4 if q < 2 else 2
        for e in range(ne):
            a(f"v_add_f32 v{red+8*q+e}, v{red+8*q+e}, v{red+8*q+4+e}\nv_fmac_f32 v{xs+4*q+e}, v{red+8*q+e}, v{g_+4*q+e}")
        for k in range(ne // 2): a(f"v_cvt_pk_bf16_f32 v{x2+2*q+k}, v{xs+4*q+2*k}, v{xs+4*q+2*k+1}")
        a(f"buffer_store_dword{'x2' if q < 2 else ''} {vr(x2+2*q,ne//2)}, v{vo+q}, {sr(SRD_B,4)}, s{sOUT} offen {os.environ.get('OUTF', '')}")

def build():
    hdr = open("cdna_kernels/%s.s.ref" % NAME).read().split("; Override launch")[0]
    a = Asm(); g = alloc_g1(); w = alloc_at()
    prologue(a, g); g1_setup(a, g)
    a(f"s_cmp_ge_u32 s{g.sC}, 30\ns_cbranch_scc1 L_role_r")
    g1_start(a, g)
    gemm1(a, g, w); attention(a, w, g); gemm3(a, w)
    stamp_flush(a)
    a.label("L_end"); a("s_endpgm")
    a.label("L_sp_o")
    spin(a, "L_sp_o_loop", [w.oflag], [T], "L_sp_o_done", int(os.environ.get("OSL", "4"))); a("s_branch L_sp_o_done")
    for name, loads, tags in g.spins:
        a.label(name)
        spin(a, name + "_loop", loads, tags, name + "_done"); a(f"s_branch {name}_done")
    role_r(a, g, w)
    attn_cold(a, w)
    out = hdr + "; @launch grid=(256,1,1) block=(512,1,1) lds=163840\n"
    out += '.amdgcn_target "amdgcn-amd-amdhsa--gfx950"\n.text\n' + a.text()
    out += f""".section .rodata,"a"
.p2align 6
.amdhsa_kernel {NAME}_kernel
  .amdhsa_next_free_vgpr 256
  .amdhsa_next_free_sgpr 102
  .amdhsa_accum_offset 256
  .amdhsa_group_segment_fixed_size 0
  .amdhsa_kernarg_size 80
  .amdhsa_user_sgpr_count 2
  .amdhsa_user_sgpr_kernarg_segment_ptr 1
  .amdhsa_system_sgpr_workgroup_id_x 1
.end_amdhsa_kernel
"""
    if os.environ.get("NOPS"): print("auto nops:", *a.nops, sep="\n  ", file=sys.stderr)
    return out

if __name__ == "__main__":
    path = sys.argv[1] if len(sys.argv) > 1 else "cdna_kernels/%s.s" % NAME
    open(path, "w").write(build())
```

```python
import sys, os, math, struct
from asmlib import *

NAME = "recurrent_scan__softmax_full_mha__geglu_ffn__prompt"
S, D, F, NH, DH = 2048, 640, 1728, 32, 20
P_QKV, P_H, P_O = 240 * 512, 216 * 512, 80 * 512
OFF_QKV = 0
OFF_H = OFF_QKV + 64 * P_QKV
OFF_O = OFF_H + 64 * P_H
OFF_WP = OFF_O + 64 * P_O
OFF_ST = OFF_WP + 8 * 74 * 5 * 1024
OFF_CS = OFF_ST + 2048 * 8
OFF_FQ = OFF_CS + 90 * 4096
OFF_FH = OFF_FQ + 8192
OFF_FW = OFF_FH + 8192
OFF_FO = OFF_FW + 4096
OFF_EP = OFF_FO + 8192
WS_USED = OFF_EP + 256
def f32(x): return "0x%08x" % struct.unpack("<I", struct.pack("<f", x))[0]
LOG2E = 1.4426950408889634
QSCALE = DH ** -0.5 * LOG2E
GC1 = 2 * 0.7978845608028654 * LOG2E
GC3 = GC1 * 0.044715
SPIN_MAX = 1 << 16
SLEEP = int(os.environ.get('SLEEP', '8'))
XF = set(os.environ.get("XF", "").split(","))

pX, pWQKV, pWO, pBX, pWG, pWU, pWD, pOUT, pDBG, pWS = 4, 6, 8, 10, 12, 14, 16, 18, 20, 22
sWAVE = 3
SRD_WS, SRD_A, SRD_B = 24, 28, 32
_sp = Regs('s', 36, 64)
sTAG, sT, sU, sQ4, sHI, sSPIN = (_sp.one() for _ in range(6))
sDO, sDM = _sp.many(3, 1), _sp.many(3, 1)
sQA, sQB_, sQR, sOA, sOR, sFO = (_sp.one() for _ in range(6))
sH, sO3, sWO, sOUT, sFHc, sFWc, sFOc, sFHp, sHS, sM3 = (_sp.one() for _ in range(10))
S0 = 64
vLANE, vL16, vTAG, vIDX, vKMA, vKRA, vVA, vKVO, vQRO, vFQO, vBO, vSO = 1, 2, 3, 4, 5, 6, 7, 10, 11, 12, 13, 15
T = 16
HB = 24
WK = 132

STAMP = int(os.environ.get("STAMP", "0"))
REPORT = int(os.environ.get("REPORT", "0")); REPWG = int(os.environ.get("REPWG", "-1")); REP0 = int(os.environ.get("REP0", "0")); REPNEG = int(os.environ.get("REPNEG", "0"))
OFF_STAMP = WS_USED
if STAMP: WS_USED += 2048 * 128
class Stamper: n = 0
NSTAMP = 16
vST = 252
def stamp(a, real=False, idx=None):
    i = Stamper.n if idx is None else idx
    if idx is None: Stamper.n += 1
    if REPORT and i in (REP0, REPORT):
        au = a.auto; a.auto = True
        k = 96 if i == REP0 else 98
        a(f"s_memrealtime s[{k}:{k+1}]\ns_waitcnt lgkmcnt(0)")
        a.auto = au
    if not STAMP: return
    if STAMP == 3:
        if not real: return
        i = 0 if i == 0 else 1
    au = a.auto; a.auto = True
    if STAMP == 2: real = True
    a(f"s_mem{'real' if real else ''}time s[100:101]\ns_waitcnt lgkmcnt(0)\nv_writelane_b32 v{vST}, s100, {i}")
    a.auto = au
def stamp_flush(a):
    if "probe" in XF:
        a(f"""s_waitcnt vmcnt(0) lgkmcnt(0)
        s_or_b32 s{sT}, s2, s{sWAVE}
        s_cmp_lg_u32 s{sT}, 0
        s_cbranch_scc1 L_probe_done""")
        srd(a, SRD_A, pBX, S * D * 2)
        a(f"s_mov_b32 s{sT}, 0")
        a.label("L_probe")
        a(f"""buffer_load_dword v{T}, off, {sr(SRD_A,4)}, s{sT}
        s_add_u32 s{sT}, s{sT}, {16384+128}
        s_waitcnt vmcnt(0)
        s_cmp_lt_u32 s{sT}, {128*(16384+128)}
        s_cbranch_scc1 L_probe""")
        a.label("L_probe_done")
    if REPORT:
        a("s_waitcnt vmcnt(0) lgkmcnt(0)")
        stamp(a)
        a(f"s_cmp_lg_u32 s2, {REPWG}" if REPWG >= 0 else f"s_cmp_ge_u32 s2, 192")
        a(f"""s_cbranch_scc1 L_end
        s_sub_u32 s98, s98, s96
        s_min_u32 s98, s98, {REPNEG or 20000}
        {f's_sub_u32 s98, {REPNEG}, s98' if REPNEG else ''}
        s_mul_i32 s98, s98, 4
        s_memrealtime s[96:97]
        s_waitcnt lgkmcnt(0)""")
        a.label("L_rep")
        a("""s_memrealtime s[100:101]
        s_waitcnt lgkmcnt(0)
        s_sub_u32 s100, s100, s96
        s_cmp_lt_u32 s100, s98
        s_cbranch_scc1 L_rep""")
        return
    if not STAMP: return
    a("s_waitcnt vmcnt(0) lgkmcnt(0)")
    stamp(a); stamp(a, True)
    print("stamps:", Stamper.n, file=sys.stderr)
    a(f"""s_lshl_b32 s{sT}, s2, 3
    s_add_u32 s{sT}, s{sT}, s{sWAVE}
    s_lshl_b32 s{sT}, s{sT}, 7
    s_add_u32 s{sT}, s{sT}, {OFF_STAMP}
    v_lshlrev_b32 v{T}, 2, v{vLANE}
    s_mov_b32 exec_hi, 0
    buffer_store_dword v{vST}, v{T}, {sr(SRD_WS,4)}, s{sT} offen""")

def srd(a, r, ptr, size):
    a(f"s_mov_b32 s{r}, s{ptr}\ns_mov_b32 s{r+1}, s{ptr+1}\ns_mov_b32 s{r+2}, {size}\ns_mov_b32 s{r+3}, 0x20000")
WS = sr(SRD_WS, 4)

def flag(a, soff, imm=0):
    a(f"s_mov_b64 exec, 1\nbuffer_store_dword v{vTAG}, off, {WS}, s{soff} offset:{imm} sc1\ns_mov_b64 exec, -1")

def check_ne(a, regs):
    a(f"v_xor_b32 v{regs[0]}, s{sTAG}, v{regs[0]}")
    for r in regs[1:]:
        a(f"v_xor_b32 v{r}, s{sTAG}, v{r}\nv_or_b32 v{regs[0]}, v{regs[0]}, v{r}")
    a(f"v_cmp_ne_u32 vcc, 0, v{regs[0]}")

def spin(a, lbl, loads, regs, done, SLEEP=SLEEP):
    a(f"s_mov_b32 s{sSPIN}, {SPIN_MAX}")
    a.label(lbl)
    for l in loads: a(l)
    a("s_waitcnt vmcnt(0)")
    check_ne(a, regs)
    a(f"""s_cbranch_vccz {done}
    s_sleep {SLEEP}
    s_sub_u32 s{sSPIN}, s{sSPIN}, 1
    s_cmp_lg_u32 s{sSPIN}, 0
    s_cbranch_scc1 {lbl}""")

def wave_sum(a, v):
    for m in ("quad_perm:[1,0,3,2]", "quad_perm:[2,3,0,1]", "row_half_mirror", "row_mirror"):
        a(f"v_add_f32_dpp v{v}, v{v}, v{v} {m} row_mask:0xf bank_mask:0xf")
    a(f"v_add_f32_dpp v{v}, v{v}, v{v} row_bcast:15 row_mask:0xa bank_mask:0xf")
    a(f"v_add_f32_dpp v{v}, v{v}, v{v} row_bcast:31 row_mask:0xc bank_mask:0xf")

LW, LDUMMY, LX = 0, 61440, 65536
G3_SLOT = 40960
A_BASE, A_REG, A_HALF, A_SLOT = 2 * G3_SLOT, 2112, 12800, 25600
A_ONES = A_BASE + 3 * A_SLOT + 128
A_XCH = A_BASE + 2 * A_SLOT
G3_RED = 3 * G3_SLOT

class G1: pass
def alloc_g1():
    g = G1(); V = Regs('v', 24, 252); sg = Regs('s', S0, 96)
    g.acc = [V.many(32, 4) for u in range(3)]
    g.Wf = [V.many(24, 4) for b in range(2)]
    g.Xf = [V.many(16, 4) for b in range(2)]
    g.X19 = V.many(16, 4)
    g.gr = V.many(20, 4)
    g.xb = V.many(2, 1); g.xa = V.many(2, 1); g.wb = V.many(2, 1); g.wa = V.many(2, 1); g.voff = V.many(4, 1); g.vtch = V.one(); g.x2 = g.wa
    g.raw = g.gr; g.e = g.gr + 6; g.ep = g.gr + 5
    for n in "sRB sC sOff sStep sD0 sD1 sM0 sMsz sMend sWrapW sWrapX sSize sRound sWr sXr sRow sGP sG0 sG1 sC0 sC1 sC2 sQ0 sQ1 sFQ sQS".split(): setattr(g, n, sg.one())
    g.V, g.sg = V, sg
    return g

def dma_ops(g, j, rolled=False):
    L = [f"buffer_load_dwordx4 v{g.voff+i}, {sr(SRD_A,4)}, s{g.sOff} offen offset:{1024*i} lds" for i in range(4)]
    L[0] = f"s_mov_b32 m0, s{g.sM0}\ns_add_u32 s{g.sM0}, s{g.sM0}, s{g.sMsz}\n" + L[0]
    e = f"s_add_u32 s{g.sOff}, s{g.sOff}, s{g.sD1 if j & 1 else g.sD0}"
    if rolled:
        e += f"""\ns_cmp_ge_u32 s{g.sM0}, s{g.sMend}
        s_cselect_b32 s{sT}, s{g.sWrapW}, 0
        s_sub_u32 s{g.sM0}, s{g.sM0}, s{sT}"""
    else:
        if j % 5 == 4: e += f"\ns_sub_u32 s{g.sM0}, s{g.sM0}, s{g.sWrapW}"
        if j % 6 == 5: e += f"\ns_sub_u32 s{g.sM0}, s{g.sM0}, s{g.sWrapX}"
    L[3] += "\n" + e
    return L

BURST = [int(x) for x in os.environ.get("BURST", "4,3,3").split(",")]
BSTAGE = [int(x) for x in os.environ.get("BSTAGE", "0,3,7").split(",")]
def cs_reg(g, k): return g.X19 + 4 * k if k < 4 else g.Wf[1] + 4 * (k - 4)
def cs_load(g, k):
    return f"buffer_load_dwordx4 {vr(cs_reg(g,k),4)}, v{g.vtch}, {sr(SRD_A,4)}, s{g.sRow} offen offset:3072\ns_add_u32 s{g.sRow}, s{g.sRow}, s{g.sStep}"
def cs_setup(a, g):
    sel = g.gr + 16; t = T
    a(f"""v_and_b32 v{t}, 1, v{vLANE}
    v_lshlrev_b32 v{t}, 4, v{t}
    v_mov_b32 v{t+1}, 0x3f80
    v_lshlrev_b32 v{t}, v{t}, v{t+1}
    v_bfe_u32 v{t+1}, v{vLANE}, 1, 2""")
    for r in range(4): a(f"v_cmp_eq_u32 vcc, {r}, v{t+1}\nv_cndmask_b32 v{sel+r}, 0, v{t}, vcc")
_csn = [0]
def cs_acc(a, g, n, first):
    ac = g.gr + 8; sel = g.gr + 16
    _csn[0] += 1
    L = [f"s_cmp_ge_u32 s{sWAVE}, 3", f"s_cbranch_scc1 L_cs{_csn[0]}"]
    L += [f"v_mfma_f32_16x16x32_bf16 {vr(ac,4)}, {vr(sel,4)}, {vr(cs_reg(g,k),4)}, {'0' if first and k == 0 else vr(ac,4)}" for k in range(n)]
    a.atom("\n".join(L + [f"L_cs{_csn[0]}:"]))
def cs_publish(a, g):
    ac = g.gr + 8; t = T
    a(f"""v_bfe_u32 v{t}, v{vLANE}, 3, 1
    v_cmp_eq_u32 vcc, 1, v{t}
    v_and_b32 v{t+1}, 7, v{vLANE}
    v_lshl_add_u32 v{t+1}, v{t+1}, 3, v{t}
    v_bfe_u32 v{t}, v{vLANE}, 4, 1
    v_lshl_add_u32 v{t+1}, v{t}, 2, v{t+1}
    v_lshrrev_b32 v{t}, 5, v{vLANE}
    v_lshlrev_b32 v{t}, 1, v{t}""")
    for r in range(4): a(f"v_add_f32_dpp v{ac+r}, v{ac+r}, v{ac+r} row_ror:8 row_mask:0xf bank_mask:0xf")
    a(f"""v_cndmask_b32 v{ac}, v{ac}, v{ac+1}, vcc
    v_cndmask_b32 v{ac+2}, v{ac+2}, v{ac+3}, vcc
    v_cmp_lt_u32 vcc, 31, v{vLANE}
    s_nop 0
    v_cndmask_b32 v{ac}, v{ac}, v{ac+2}, vcc
    v_cvt_pk_bf16_f32 v{ac+1}, v{ac}, v{ac}
    v_add_lshl_u32 v{t+1}, v{t+1}, v{t}, 4
    v_and_b32 v{ac+1}, 0xffff0000, v{ac+1}
    v_sub_f32 v{ac}, v{ac}, v{ac+1}
    v_mov_b32 v{ac+3}, v{vTAG}
    v_cvt_pk_bf16_f32 v{ac+2}, v{ac+1}, v{ac}
    s_mul_i32 s{sT}, s{sWAVE}, 30
    s_add_u32 s{sT}, s{sT}, s{g.sC}
    s_lshl_b32 s{sT}, s{sT}, 2
    s_lshr_b32 s{sU}, s{g.sRB}, 1
    s_add_u32 s{sT}, s{sT}, s{sU}
    s_lshl_b32 s{sT}, s{sT}, 7
    s_and_b32 s{sU}, s{g.sRB}, 1
    s_add_u32 s{sT}, s{sT}, s{sU}
    s_lshl_b32 s{sT}, s{sT}, 3
    s_add_u32 s{sT}, s{sT}, {OFF_CS}
    s_cmp_lt_u32 s{sWAVE}, 3
    s_cselect_b32 s{sT}, s{sT}, 0x7ff00000
    buffer_store_dwordx2 {vr(ac+2,2)}, v{t+1}, {WS}, s{sT} offen sc1""")

def prologue(a, g):
    t = T
    name = NAME + "_kernel"
    a.raw(f".globl {name}\n.p2align 8\n.type {name},@function")
    a.label(name)
    a(f"""s_cmp_ge_u32 s2, 256
    s_cbranch_scc1 L_end""")
    stamp(a, True); stamp(a)
    a(f"""s_load_dwordx16 s[4:19], s[0:1], 0
    s_load_dwordx4 s[20:23], s[0:1], 64
    v_lshrrev_b32 v{t}, 6, v0
    v_and_b32 v{vLANE}, 63, v0
    v_readfirstlane_b32 s{sWAVE}, v{t}
    v_lshlrev_b32 v{vL16}, 4, v{vLANE}""")
    a(f"""; rb = (xcd&1)*4 + (j&3) ; c = (j>>2)*4 + (xcd>>1)
    s_and_b32 s{g.sRB}, s2, 1
    s_bfe_u32 s{g.sXr}, s2, 0x20003
    s_lshl2_add_u32 s{g.sRB}, s{g.sRB}, s{g.sXr}
    s_lshr_b32 s{g.sC}, s2, 5
    s_bfe_u32 s{sT}, s2, 0x20001
    s_lshl2_add_u32 s{g.sC}, s{g.sC}, s{sT}
    ; LN statistics row of this wave: rb*256 + c*8 + wave
    s_lshl_b32 s{g.sG1}, s{g.sRB}, 5
    s_add_u32 s{g.sG1}, s{g.sG1}, s{g.sC}
    s_lshl3_add_u32 s{g.sG1}, s{g.sG1}, s{sWAVE}
    s_mul_i32 s{g.sRound}, s{g.sG1}, 1280
    ; staging role by wave: 0 wqkv, 1 gate, 2 up, 3 none, 4.. x ; groups 27..29 have no gate/up unit (zeros)
    s_cmp_lt_u32 s{g.sC}, 27
    s_cselect_b32 s{SRD_A+2}, {D*F*2+3072}, 0
    s_movk_i32 s{sU}, {F*2}
    s_cmp_eq_u32 s{sWAVE}, 0
    s_cselect_b32 s{SRD_A+2}, {D*3*D*2+3072}, s{SRD_A+2}
    s_cselect_b32 s{sU}, {3*D*2}, s{sU}
    s_cmp_ge_u32 s{sWAVE}, 4
    s_cselect_b32 s{SRD_A+2}, {S*D*2+3072}, s{SRD_A+2}
    s_cselect_b32 s{sU}, 1280, s{sU}
    s_cmp_ge_u32 s{g.sC}, 30
    s_cselect_b32 s{SRD_A+2}, 0, s{SRD_A+2}
    s_lshl_b32 s{g.sOff}, s{g.sC}, 7
    s_lshl_b32 s{g.sMend}, s{sU}, 3
    v_lshrrev_b32 v{t}, 3, v{vLANE}
    v_mul_lo_u32 v{t}, v{t}, s{sU}
    v_and_b32 v{t+1}, 7, v{vLANE}
    v_lshl_add_u32 v{g.vtch}, v{t+1}, 4, v{t}
    v_lshlrev_b32 v{t+2}, 2, v{vLANE}
    s_mul_i32 s{g.sRow}, s{g.sRB}, s{g.sMend}
    s_lshl_b32 s{g.sStep}, s{sU}, 6
    s_add_u32 s{g.sRow}, s{g.sRow}, s{g.sOff}
    s_mov_b32 s{SRD_B+2}, {S*D*2}
    s_mov_b32 s{SRD_B+3}, 0x20000
    s_mov_b32 s{SRD_A+3}, 0x20000
    s_cmp_eq_u32 s{sWAVE}, 1
    s_waitcnt lgkmcnt(0)
    s_mov_b64 s[{SRD_B}:{SRD_B+1}], s[{pX}:{pX+1}]
    s_cselect_b64 s[{SRD_A}:{SRD_A+1}], s[{pWG}:{pWG+1}], s[{pWU}:{pWU+1}]
    buffer_load_dwordx4 {vr(g.raw,4)}, v{vL16}, {sr(SRD_B,4)}, s{g.sRound} offen
    buffer_load_dword v{g.raw+4}, v{t+2}, {sr(SRD_B,4)}, s{g.sRound} offen offset:1024
    s_cmp_eq_u32 s{sWAVE}, 0
    s_cselect_b64 s[{SRD_A}:{SRD_A+1}], s[{pWQKV}:{pWQKV+1}], s[{SRD_A}:{SRD_A+1}]
    s_cmp_ge_u32 s{sWAVE}, 4
    s_cselect_b64 s[{SRD_A}:{SRD_A+1}], s[{pX}:{pX+1}], s[{SRD_A}:{SRD_A+1}]
    s_sub_u32 s{SRD_A}, s{SRD_A}, 3072
    s_subb_u32 s{SRD_A+1}, s{SRD_A+1}, 0""")
    if "rowbar" in XF: a("s_barrier")
    a(f"s_cmp_ge_u32 s{sWAVE}, 3\ns_cbranch_scc1 L_nocs")
    for n in range(BURST[0]): a(cs_load(g, n))
    a.label("L_nocs")
    if "code" in XF:
        a(f"""s_cmp_lg_u32 s{sWAVE}, 3
        s_cbranch_scc1 L_nocode
        s_getpc_b64 s[{S0+26}:{S0+27}]""")
        a.label("L_pc")
        a(f"""s_bfe_u32 s{sT}, s2, 0x40003
        v_lshl_add_u32 v{t+2}, v{vLANE}, 4, s{sT}
        v_lshlrev_b32 v{t+2}, 7, v{t+2}
        v_min_u32 v{t+2}, L_end-L_pc-4, v{t+2}
        v_mov_b32 v{t+3}, s{S0+27}
        v_add_co_u32 v{t+2}, vcc, s{S0+26}, v{t+2}
        v_addc_co_u32 v{t+3}, vcc, 0, v{t+3}, vcc
        s_mov_b64 exec, 0x7fff
        global_load_dword v{g.gr+5}, v[{t+2}:{t+3}], off
        s_mov_b64 exec, -1""")
        a.label("L_nocode")
    a(f"""s_mov_b32 s{sT}, {OFF_EP}
    s_load_dword s{sTAG}, s[{pWS}:{pWS+1}], s{sT}
    s_mov_b64 s[{SRD_WS}:{SRD_WS+1}], s[{pWS}:{pWS+1}]
    s_mov_b32 s{SRD_WS+2}, {WS_USED}
    s_mov_b32 s{SRD_WS+3}, 0x20000
    s_and_b32 s{sQ4}, s{sWAVE}, 3
    s_lshr_b32 s{sHI}, s{sWAVE}, 2
    s_lshl_b32 s{g.sM0}, s{sQ4}, 12
    s_add_u32 s{g.sWr}, s{g.sM0}, {LX}
    s_movk_i32 s{g.sMsz}, 12288
    s_mov_b32 s{g.sWrapW}, {5*12288}
    s_cmp_eq_u32 s{sWAVE}, 3
    s_cselect_b32 s{SRD_A+2}, 0, s{SRD_A+2}
    s_cselect_b32 s{g.sM0}, {LDUMMY}, s{g.sM0}
    s_cselect_b32 s{g.sMsz}, 0, s{g.sMsz}
    s_cselect_b32 s{g.sWrapW}, 0, s{g.sWrapW}
    s_lshr_b32 s{g.sGP}, s2, 7
    s_lshl1_add_u32 s{sT}, s{g.sRB}, s{g.sGP}
    s_lshl4_add_u32 s{sT}, s{sT}, s{sQ4}
    s_mul_i32 s{sT}, s{sT}, {8*1280}
    s_mul_i32 s{g.sD1}, s{g.sGP}, {2*128*1280}
    s_sub_u32 s{g.sD0}, {128*1280}, s{g.sD1}
    s_sub_u32 s{g.sD1}, 128, s{g.sD0}
    s_lshl_b32 s{sU}, s{sU}, 5
    s_bfe_u32 s{g.sGP}, s2, 0x20005
    s_cmp_ge_u32 s{sWAVE}, 4
    s_cselect_b32 s{g.sOff}, s{sT}, s{g.sOff}
    s_cselect_b32 s{g.sD0}, s{g.sD0}, s{sU}
    s_cselect_b32 s{g.sD1}, s{g.sD1}, s{sU}
    s_cselect_b32 s{g.sM0}, s{g.sWr}, s{g.sM0}
    s_cselect_b32 s{g.sMsz}, 16384, s{g.sMsz}
    s_cselect_b32 s{g.sWrapW}, 0, s{g.sWrapW}
    s_cselect_b32 s{g.sWrapX}, {6*16384}, 0
    s_cselect_b32 s{g.sGP}, s{g.sGP}, s{g.sXr}
    s_cselect_b32 s{g.sMend}, s{sU}, s{g.sMend}
    s_cselect_b64 vcc, -1, 0
    ; lane part: row l/8, pos = l%8 ; W: chunk = pos ^ (((row>>1)&1)<<2 | (i&1)<<1) ; x: chunk = pos ^ ((row>>1) + 4*(wave&1))
    v_lshrrev_b32 v{t+2}, 4, v{vLANE}
    v_and_b32 v{t+3}, 1, v{t+2}
    v_lshlrev_b32 v{t+3}, 2, v{t+3}
    s_and_b32 s{sT}, s{sWAVE}, 1
    v_lshl_or_b32 v{t+2}, s{sT}, 2, v{t+2}
    v_or_b32 v{t+5}, 2, v{t+3}
    v_cndmask_b32 v{t+4}, v{t+5}, v{t+2}, vcc
    v_cndmask_b32 v{t+2}, v{t+3}, v{t+2}, vcc
    v_xor_b32 v{t+2}, v{t+2}, v{t+1}
    v_xor_b32 v{t+4}, v{t+4}, v{t+1}
    v_lshl_add_u32 v{t+2}, v{t+2}, 4, v{t}
    v_lshl_add_u32 v{t+4}, v{t+4}, 4, v{t}""")
    for i in range(4):
        a(f"""s_xor_b32 s{sT}, s{g.sGP}, {i}
        s_mul_i32 s{sT}, s{sT}, s{g.sMend}
        s_add_u32 s{sT}, s{sT}, {3072 - 1024*i}
        v_add_u32 v{g.voff+i}, s{sT}, v{t+2+2*(i&1)}""")
    a("s_barrier")
    for x in dma_ops(g, 0): a(x)

def g1_addr(a, g):
    t = T
    a(f"""; x fragments: (t16>>3)*4096 + (t16&7)*128 + (((g ^ r) ^ (t16>>1))*16) + (tq>>1)*16384 + (tq&1)*2048
    v_and_b32 v{t}, 7, v{vLANE}
    v_lshrrev_b32 v{t+1}, 4, v{vLANE}
    v_bfe_u32 v{t+2}, v{vLANE}, 1, 3
    v_xor_b32 v{t+2}, v{t+2}, v{t+1}
    v_xor_b32 v{t+2}, s{g.sXr}, v{t+2}
    v_lshlrev_b32 v{t+2}, 4, v{t+2}
    v_lshl_add_u32 v{t+2}, v{t}, 7, v{t+2}
    v_bfe_u32 v{t}, v{vLANE}, 3, 1
    v_lshl_add_u32 v{t+2}, v{t}, 12, v{t+2}
    s_lshr_b32 s{sT}, s{sQ4}, 1
    s_mul_i32 s{sT}, s{sT}, 6
    s_add_u32 s{sT}, s{sT}, s{sQ4}
    s_lshl_b32 s{sT}, s{sT}, 11
    s_add_u32 s{sT}, s{sT}, {LX}
    v_add_u32 v{g.xb}, s{sT}, v{t+2}
    v_xor_b32 v{g.xb+1}, 64, v{g.xb}
    v_add_u32 v{g.x2}, 0x10000, v{g.xb}
    v_add_u32 v{g.x2+1}, 0x10000, v{g.xb+1}
    v_bfe_u32 v{t}, v{vLANE}, 2, 2
    v_lshl_add_u32 v{t+2}, v{t+1}, 3, v{t}
    v_lshlrev_b32 v{t+2}, 7, v{t+2}
    v_lshrrev_b32 v{t}, 1, v{t}
    v_xor_b32 v{t}, s{sHI}, v{t}
    v_lshl_add_u32 v{t+2}, v{t}, 6, v{t+2}
    v_and_b32 v{t}, 1, v{t+1}
    v_lshl_add_u32 v{t+2}, v{t}, 5, v{t+2}
    v_and_b32 v{t}, 3, v{vLANE}
    v_lshl_add_u32 v{g.wb}, v{t}, 3, v{t+2}
    v_xor_b32 v{g.wb+1}, 32, v{g.wb}""")

def g1_setup(a, g):
    g1_addr(a, g); cs_setup(a, g); gran_setup(a, g)
    if "pst" in XF: stamp(a)

def _pn(g): return g.sM0, g.sMsz, g.sWrapW, g.sWrapX, g.sOff, g.sD1
def params_a(a, g):
    t = g.voff
    sHD, sPA, sPS, sPAR, sTG, sX = _pn(g)
    a(f"""; attention: hd = xcd*4 + (j>>3) ; qb = j&7
    s_and_b32 s{sHD}, s2, 7
    s_lshr_b32 s{sX}, s2, 6
    s_lshl2_add_u32 s{sHD}, s{sHD}, s{sX}
    s_and_b32 s{sPAR}, s{sHD}, 1
    s_mul_i32 s{sX}, s{sHD}, 5
    s_lshr_b32 s{sX}, s{sX}, 1
    s_add_u32 s{sPA}, s{sX}, s{sPAR}
    s_add_u32 s{sTG}, s{sX}, 2
    s_sub_u32 s{sPS}, s{sTG}, s{sPAR}
    s_sub_u32 s{sPS}, s{sPS}, s{sPAR}
    s_lshl_b32 s{sPA}, s{sPA}, 9
    s_lshl_b32 s{sPS}, s{sPS}, 9
    s_lshl_b32 s{sPAR}, s{sPAR}, 3
    s_lshr_b32 s{sX}, s{sX}, 2
    s_lshr_b32 s{sTG}, s{sTG}, 2
    s_sub_u32 s{sTG}, s{sTG}, s{sX}
    v_lshrrev_b32 v{t}, 5, v{vLANE}
    v_and_b32 v{t+1}, 31, v{vLANE}
    v_and_b32 v{t+2}, s{sTG}, v{t}
    v_add_lshl_u32 v{t+2}, s{sX}, v{t+2}, 7
    v_lshl_add_u32 v{vFQO}, v{t+1}, 2, v{t+2}
    v_lshlrev_b32 v{t+1}, 4, v{t+1}
    s_mov_b32 s{sX}, {P_QKV}
    v_mad_u32_u24 v{vKVO}, v{t}, s{sX}, v{t+1}
    s_xor_b32 s{sTG}, s{sHI}, 1
    v_xor_b32 v{vQRO}, s{sTG}, v{t}
    v_mad_u32_u24 v{vQRO}, v{vQRO}, s{sX}, v{t+1}
    ; staging role: wave&2 -> k or v, wave&1 -> pair of token groups, one instruction per piece
    s_lshr_b32 s{sX}, s{sQ4}, 1
    s_and_b32 s{sTG}, s{sQ4}, 1
    s_mul_i32 s{sDM}, s{sX}, {3*A_REG}
    s_mul_i32 s{sDO}, s{sHI}, {A_HALF}
    s_add_u32 s{sDM}, s{sDM}, s{sDO}
    s_lshl_b32 s{sDO}, s{sTG}, 10
    s_add_u32 s{sDM}, s{sDM}, s{sDO}
    s_lshl4_add_u32 s{sTG}, s{sHI}, s{sTG}
    s_mul_i32 s{sTG}, s{sTG}, 6
    s_add_u32 s{sTG}, s{sTG}, s{sX}
    s_add_u32 s{sTG}, s{sTG}, 1
    s_mul_i32 s{sTG}, s{sTG}, {80*512}
    s_add_u32 s{sDO}, s{sTG}, s{sPA}
    s_add_u32 s{sDO+1}, s{sTG}, s{sPS}
    s_bfe_u32 s{sTG}, s2, 0x30003
    s_lshl2_add_u32 s{sTG}, s{sTG}, s{sQ4}
    s_add_u32 s{sPS}, s{sPS}, s{sPAR}
    s_mul_i32 s{sQR}, s{sTG}, {2*P_QKV}
    s_add_u32 s{sQR}, s{sQR}, s{sPS}
    s_lshl1_add_u32 s{sTG}, s{sTG}, s{sHI}
    s_xor_b32 s{sX}, s{sTG}, 1
    s_mul_i32 s{sQA}, s{sTG}, {P_QKV}
    s_mul_i32 s{sQB_}, s{sX}, {P_QKV}
    s_add_u32 s{sQA}, s{sQA}, s{sPA}
    s_add_u32 s{sQB_}, s{sQB_}, s{sPA}""")
    assert OFF_QKV == 0 and P_QKV == 3 * 80 * 512

def params_b(a, g):
    t = T
    sHD, sPA, sPS, sPAR, sTG, sX = _pn(g)
    a(f"""s_mul_i32 s{sT}, s{sHI}, {A_HALF}
    s_add_u32 s{sT}, s{sT}, {A_BASE}
    v_lshrrev_b32 v{t}, 5, v{vLANE}
    v_and_b32 v{t+1}, 0x1f0, v{vL16}
    v_mul_u32_u24 v{vKMA}, {A_REG}, v{t}
    v_add3_u32 v{vKMA}, v{vKMA}, v{t+1}, s{sT}
    s_add_u32 s{sU}, s{sPAR}, s{sT}
    s_add_u32 s{sU}, s{sU}, {2*A_REG}
    v_add_u32 v{vKRA}, s{sU}, v{t+1}
    v_bfe_u32 v{t+1}, v{vLANE}, 2, 2
    v_lshl_add_u32 v{t+1}, v{t}, 3, v{t+1}
    v_and_b32 v{t+2}, 1, v{vLANE}
    v_mul_u32_u24 v{t+2}, {A_REG}, v{t+2}
    v_bfe_u32 v{t+3}, v{vLANE}, 1, 1
    v_lshlrev_b32 v{t+3}, 3, v{t+3}
    s_add_u32 s{sT}, s{sT}, {3*A_REG}
    v_add3_u32 v{t+2}, v{t+3}, v{t+2}, s{sT}
    s_add_u32 s{sU}, s{sU}, {3*A_REG}
    v_mov_b32 v{t+5}, s{sU}
    v_and_b32 v{t+4}, 19, v{vLANE}
    v_cmp_eq_u32 vcc, 16, v{t+4}
    v_add_u32 v{t+3}, {A_ONES}, v{t+3}
    v_mov_b32 v{vIDX}, 0xdddddddd
    v_cndmask_b32 v{t+2}, v{t+2}, v{t+5}, vcc
    v_cmp_lt_u32 vcc, 16, v{t+4}
    v_mov_b32 v{t+5}, {A_SLOT}
    s_nop 0
    v_cndmask_b32 v{t+2}, v{t+2}, v{t+3}, vcc
    v_cndmask_b32 v{t+5}, v{t+5}, 0, vcc
    v_lshl_add_u32 v{vVA}, v{t+1}, 4, v{t+2}
    v_add_u32 v{vVA+1}, v{vVA}, v{t+5}
    v_add_u32 v{vVA+2}, v{vVA+1}, v{t+5}""")

def params_c(a, g):
    sHD, sPA, sPS, sPAR, sTG, sX = _pn(g)
    a(f"""; H flag of this wave as a producer (dummy word 63 when it produces none)
    s_lshl1_add_u32 s{sFHp}, s{g.sC}, s{sHI}""")
    a.atom(f"s_cmp_lt_u32 s{g.sC}, 27\ns_cselect_b32 s{sFHp}, s{sFHp}, 63")
    sTB, sCB = sPA, sPS
    a(f"""s_lshr_b32 s{sX}, s2, 6
    s_xor_b32 s{sX}, s{sX}, s{sQ4}
    s_lshl2_add_u32 s{sX}, s{g.sRB}, s{sX}
    s_lshl_b32 s{sX}, s{sX}, 8
    s_lshl2_add_u32 s{sFHp}, s{sFHp}, s{sX}
    s_add_u32 s{sFHp}, s{sFHp}, {OFF_FH}
    s_mul_i32 s{sX}, s{sTG}, {P_O}
    s_add_u32 s{sX}, s{sX}, {OFF_O}
    s_add_u32 s{sOR}, s{sX}, s{sPS}
    s_add_u32 s{sOA}, s{sX}, s{sPA}
    s_lshl_b32 s{sFO}, s{sTG}, 7
    s_lshl2_add_u32 s{sFO}, s{sHD}, s{sFO}
    s_add_u32 s{sFO}, s{sFO}, {OFF_FO}
    s_bfe_u32 s{sTB}, s2, 0x20001
    s_bfe_u32 s{sX}, s2, 0x30003
    s_lshl3_add_u32 s{sTB}, s{sTB}, s{sX}
    s_and_b32 s{sCB}, s2, 1
    s_lshr_b32 s{sX}, s2, 6
    s_lshl2_add_u32 s{sCB}, s{sCB}, s{sX}
    s_lshl1_add_u32 s{sX}, s{sCB}, s{sHI}
    s_lshl_b32 s{sFWc}, s{sX}, 8
    s_add_u32 s{sFWc}, s{sFWc}, {OFF_FW}
    s_mul_i32 s{sX}, s{sX}, 37
    s_add_u32 s{sX}, s{sX}, s{sQ4}
    s_mul_i32 s{sWO}, s{sX}, 5120
    s_add_u32 s{sWO}, s{sWO}, {OFF_WP}
    s_lshl_b32 s{sFHc}, s{sTB}, 8
    s_mul_i32 s{sX}, s{sHI}, {27*4}
    s_add_u32 s{sFHc}, s{sFHc}, s{sX}
    s_add_u32 s{sFHc}, s{sFHc}, {OFF_FH}
    s_mul_i32 s{sOUT}, s{sTB}, {64*1280}
    s_mul_i32 s{sX}, s{sCB}, 160
    s_add_u32 s{sOUT}, s{sOUT}, s{sX}
    s_lshr_b32 s{sX}, s{sQ4}, 1
    s_lshl1_add_u32 s{sTB}, s{sTB}, s{sX}
    s_lshl1_add_u32 s{sTB}, s{sTB}, s{sHI}
    s_and_b32 s{sX}, s{sQ4}, 1
    s_lshl_b32 s{sX}, s{sX}, 8
    s_mul_i32 s{sH}, s{sTB}, {P_H//2}
    s_add_u32 s{sH}, s{sH}, s{sX}
    s_add_u32 s{sH}, s{sH}, {OFF_H}
    s_mul_i32 s{sO3}, s{sTB}, {P_O//2}
    s_add_u32 s{sO3}, s{sO3}, s{sX}
    s_add_u32 s{sO3}, s{sO3}, {OFF_O}
    s_lshl_b32 s{sFOc}, s{sTB}, 6
    s_add_u32 s{sFOc}, s{sFOc}, {OFF_FO}
    s_mul_i32 s{sM3}, s{sWAVE}, 5120""")
    assert P_H // 2 == 27 * 2048 and P_O // 2 == 10 * 2048

def stats(a, g):
    raw, e, t = g.raw, g.e, T
    for i in range(5):
        a(f"v_lshlrev_b32 v{e+2*i}, 16, v{raw+i}\nv_and_b32 v{e+2*i+1}, 0xffff0000, v{raw+i}")
    a(f"v_add_f32 v{t}, v{e}, v{e+1}")
    for i in range(2, 10): a(f"v_add_f32 v{t}, v{t}, v{e+i}")
    wave_sum(a, t)
    a(f"v_mul_f32 v{t}, {f32(1.0/D)}, v{t}\nv_readlane_b32 s{sT}, v{t}, 63")
    for i in range(10): a(f"v_subrev_f32 v{e+i}, s{sT}, v{e+i}")
    a(f"v_mul_f32 v{t+1}, v{e}, v{e}")
    for i in range(1, 10): a(f"v_fmac_f32 v{t+1}, v{e+i}, v{e+i}")
    a(f"""s_waitcnt lgkmcnt(0)
    s_mul_i32 s{sTAG}, s{sTAG}, 0x9e3779b1
    s_add_u32 s{sTAG}, s{sTAG}, 0x7f4a7c15
    v_mov_b32 v{vTAG}, s{sTAG}""")
    wave_sum(a, t + 1)
    a(f"""v_mul_f32 v{t+1}, {f32(1.0/D)}, v{t+1}
    v_cvt_pk_bf16_f32 v{t+1}, v{t+1}, v{t+1}
    v_and_b32 v{t+1}, 0xffff0000, v{t+1}
    v_add_f32 v{t+1}, {f32(1e-5)}, v{t+1}
    v_cvt_pk_bf16_f32 v{t+1}, v{t+1}, v{t+1}
    v_and_b32 v{t+1}, 0xffff0000, v{t+1}
    v_sqrt_f32 v{t+1}, v{t+1}
    v_mov_b32 v{t+3}, v{vTAG}
    v_cvt_pk_bf16_f32 v{t+2}, v{t}, v{t+1}
    s_lshl_b32 s{sT}, s{g.sG1}, 3
    s_add_u32 s{sT}, s{sT}, {OFF_ST}""")
    g.st_store = f"""s_mov_b32 exec_lo, 0
    s_brev_b32 exec_hi, 1
    buffer_store_dwordx2 {vr(t+2,2)}, off, {WS}, s{sT} sc1
    s_mov_b64 exec, -1"""

def x_reads(g, dst, ks): return [f"ds_read_b128 {vr(dst+4*q,4)}, v{g.xa+ks} offset:{q*2048}" for q in range(4)]
def w_reads(g, dst, u, base=None, off=0):
    A = g.wa if base is None else base
    return [f"ds_read_b64_tr_b16 {vr(dst+4*p+2*rd,2)}, v{A+p} offset:{off + u*4096 + rd*512}" for p in range(2) for rd in range(2)]
def mm(g, u, W, X, qs=range(4)):
    return [f"v_mfma_f32_16x16x32_bf16 {vr(g.acc[u]+8*q+4*p,4)}, {vr(W+4*p,4)}, {vr(X+4*q,4)}, {vr(g.acc[u]+8*q+4*p,4)}" for p in range(2) for q in qs]
def weave(a, mf, fill):
    for k, m in enumerate(mf):
        a(m)
        for x in fill.get(k, []): a(x)

class Rec:
    def __init__(self): self.L = []
    def __call__(self, text):
        self.L += [l.strip() for l in text.strip().split("\n") if l.strip() and not l.strip().startswith(";")]
    def atom(self, text): self.L.append(text)
Asm.atom = lambda self, text: self(text)

def xs_reads(g, dst, i):
    sl = (i >> 1) % 3
    return [f"ds_read_b128 {vr(dst+4*q,4)}, v{(g.x2 if sl == 2 else g.xb)+(i&1)} offset:{(sl&1)*32768*(sl < 2) + (q&1)*8192 + (q>>1)*1024}" for q in range(4)]
def ws_reads(g, dst, i, u): return w_reads(g, dst, u, g.wb, LW + (i % 5) * 12288)

def g1_start(a, g):
    for x in dma_ops(g, 1): a(x)
    a("s_barrier")
    for x in dma_ops(g, 2): a(x)
    if "pst" in XF: stamp(a)
    a("s_waitcnt vmcnt(12)")
    stats(a, g)
    for x in dma_ops(g, 3): a(x)
    a(g.st_store)
    stamp(a)
    a("s_waitcnt vmcnt(9)\ns_barrier")
    stamp(a)
    for r in xs_reads(g, g.Xf[0], 0): a(r)
    for u in range(3):
        for r in ws_reads(g, g.Wf[0] + 8 * u, 0, u): a(r)

def g1_main(a, g):
    def rec(f, *args):
        r = Rec(); f(r, *args); return r.L
    def burst(n, name):
        return ("cs", name, n, "\n".join([f"s_cmp_ge_u32 s{sWAVE}, 3", f"s_cbranch_scc1 L_{name}"] + [cs_load(g, k) for k in range(n)] + [f"L_{name}:"]))
    side = rec(cs_acc, g, BURST[0], True)
    for j in range(1, len(BURST)):
        nxt = BSTAGE[j + 1] if j + 1 < len(BURST) else BSTAGE[j] + 3
        side += [("at", BSTAGE[j]), ("k", 7), burst(BURST[j], f"c{j}"), ("at", nxt), ("wait", f"c{j}")] + rec(cs_acc, g, BURST[j], False)
    assert sum(BURST) == 10 and max(BURST[1:] + [0]) <= 4
    side += ([("at", 2)] if len(BURST) == 1 else []) + rec(cs_publish, g)
    g.spins = []
    g.l0 = [x + y for x, y in zip(st_loads(g), cs_loads(g, 0))]
    side += [("at", 15)] + sum(([("k", 3 + 6 * j), ("vm", "gr", l)] for j, l in enumerate(g.l0[0])), [])
    if "noside" in XF:
        for x in side:
            if isinstance(x, tuple):
                if x[0] == "wait": a("s_waitcnt vmcnt(0)")
                if x[0] == "vm": a(x[2])
            else: a(x)
        side = []
    out = ["r2"] * 4 + ["r3"] * 4 + ["st"]
    def wait(need):
        idx = max([j for j, x in enumerate(out) if x in need], default=-1)
        if idx >= 0:
            a(f"s_waitcnt vmcnt({sum(1 for x in out[idx+1:] if x[0] != 'c')})"); del out[:idx + 1]
    GP = [int(x) for x in os.environ.get("GP", "1,9,16,21").split(",") if x]
    PER = int(os.environ.get("SIDE", "1"))
    for i in range(16):
        b = i & 1; n = b ^ 1
        mf = sum((mm(g, u, g.Wf[b] + 8 * u, g.Xf[b]) for u in range(3)), [])
        if i == 0: mf = [m[:m.rindex(",")] + ", 0" for m in mf]
        xr = xs_reads(g, g.Xf[n], i + 1); wr = [ws_reads(g, g.Wf[n] + 8 * u, i + 1, u) for u in range(3)]
        rd = [xr[0]] + wr[0][:2] + xr[1:] + wr[0][2:] + wr[1] + wr[2]
        vm = {}
        if i == 0:
            for k, x in enumerate(dma_ops(g, 4) + dma_ops(g, 5)): vm[2 + 3 * k] = (f"r{4 + k // 4}", x)
        elif i + 5 < 20:
            for pos, x in zip((4, 10, 16, 22), dma_ops(g, i + 5)): vm[pos] = (f"r{i+5}", x)
        a("s_waitcnt lgkmcnt(0)")
        if "sst" in XF: stamp(a)
        if "nodma" in XF: vm = {}
        for k, m in enumerate(mf):
            a(m)
            if k == 1:
                wait([f"r{i+1}"] + ([f"r{i+2}"] if b else []))
                a("s_barrier")
            if GP and k in GP: a(f"s_setprio {len(GP) - 1 - GP.index(k)}")
            if k >= 2 and rd: a(rd.pop(0))
            if k in vm: a(vm[k][1]); out.append(vm[k][0])
            if k == 1: continue
            left = PER
            while left and side:
                x = side[0]
                if isinstance(x, tuple):
                    if x[0] == "at" and i < x[1]: break
                    if x[0] == "k" and k < x[1]: break
                    side.pop(0)
                    if x[0] == "per": PER = x[1]
                    if x[0] == "wait": wait([x[1]])
                    if x[0] == "vm": a(x[2]); out.append(x[1]); left = 0
                    if x[0] == "cs": a(x[3]); out.extend([x[1]] * x[2]); left = 0
                    continue
                side.pop(0); a(x); left -= 1
                if "buffer_store" in x: out.append("st")
                while side and isinstance(side[0], str) and ((x.startswith("s_cmp") and "\n" not in x) or side[0].startswith("s_cselect")):
                    x = side.pop(0); a(x)
        if os.environ.get("NOPS"): print("stage", i, "side left", len(side), file=sys.stderr)
    assert not side
    return out

def gran_setup(a, g):
    t = T; vst = g.xa; vcs = g.xa + 1; sTG = g.sRound
    a(f"""s_lshr_b32 s{sTG}, s2, 6
    s_xor_b32 s{sTG}, s{sTG}, s{sQ4}
    s_lshl2_add_u32 s{sTG}, s{g.sRB}, s{sTG}
    s_bfe_u32 s{g.sGP}, s2, 0x10005
    s_lshl1_add_u32 s{g.sGP}, s{sTG}, s{g.sGP}
    s_lshl_b32 s{g.sG0}, s{sTG}, 9
    s_add_u32 s{g.sG0}, s{g.sG0}, {OFF_ST}
    s_lshl_b32 s{g.sC0}, s{g.sC}, 3
    s_add_u32 s{g.sC0}, s{g.sC0}, s{sHI}
    s_lshl_b32 s{g.sC0}, s{g.sC0}, 9
    s_add_u32 s{g.sC0}, s{g.sC0}, {OFF_CS}
    s_add_u32 s{g.sC1}, s{g.sC0}, {30*4096}
    s_add_u32 s{g.sC2}, s{g.sC0}, {60*4096}
    v_and_b32 v{vst}, 15, v{vLANE}
    v_lshrrev_b32 v{vcs}, 4, v{vLANE}
    v_lshlrev_b32 v{vcs}, 6, v{vcs}
    v_add_lshl_u32 v{vcs}, v{vcs}, v{vst}, 4
    v_lshlrev_b32 v{vst}, 3, v{vst}
    v_bfe_u32 v{vSO}, v{vLANE}, 4, 1
    v_lshlrev_b32 v{vSO}, 10, v{vSO}
    v_lshrrev_b32 v{t}, 5, v{vLANE}
    v_lshl_add_u32 v{vSO}, v{t}, 9, v{vSO}
    v_lshl_add_u32 v{vSO}, v{vst}, 1, v{vSO}
    s_and_b32 s{sT}, s2, 32
    v_xor_b32 v{vst}, s{sT}, v{vLANE}
    v_lshlrev_b32 v{vst}, 3, v{vst}
    s_lshl_b32 s{sT}, s{g.sC}, 12
    s_lshl_b32 s{sU}, s{sHI}, 11
    s_add_u32 s{sT}, s{sT}, s{sU}
    s_xor_b32 s{sU}, s{g.sGP}, 1
    s_mul_i32 s{g.sQ0}, s{g.sGP}, {P_QKV}
    s_mul_i32 s{g.sQ1}, s{sU}, {P_QKV}
    s_add_u32 s{g.sQ0}, s{g.sQ0}, s{sT}
    s_add_u32 s{g.sQ1}, s{g.sQ1}, s{sT}
    s_mul_i32 s{sHS}, s{g.sGP}, {P_H}
    s_mul_i32 s{g.sXr}, s{sU}, {P_H}
    s_add_u32 s{sU}, s{sT}, {OFF_H}
    s_add_u32 s{sHS}, s{sHS}, s{sU}
    s_add_u32 s{g.sXr}, s{g.sXr}, s{sU}
    s_lshr_b32 s{sT}, s{sT}, 4
    s_lshl2_add_u32 s{g.sFQ}, s{sTG}, s{sT}
    s_add_u32 s{g.sFQ}, s{g.sFQ}, {OFF_FQ}
    s_cmp_lt_u32 s{g.sC}, 10
    s_cselect_b32 s{g.sQS}, {f32(QSCALE)}, 1.0""")
def st_loads(g): return [f"buffer_load_dwordx2 {vr(g.gr,2)}, v{g.xa}, {WS}, s{g.sG0} offen sc1"], [g.gr + 1]
def cs_loads(g, u):
    return ([f"buffer_load_dwordx4 {vr(g.gr+8+4*p,4)}, v{g.xa+1}, {WS}, s{(g.sC0, g.sC1, g.sC2)[u]} offen offset:{256*p} sc1" for p in range(2)],
            [g.gr + 9 + 2 * k for k in range(4)])
def gate(a, g, name, loads, tags):
    check_ne(a, tags)
    a.atom(f"s_cbranch_vccnz {name}\n{name}_done:")
    g.spins.append((name, loads, tags))
    for p in range(2): a(f"v_mov_b32 v{g.gr+9+4*p}, v{g.gr+10+4*p}")

def gran_use(a, g):
    t = T
    a(f"""v_mov_b32 v{g.gr+4}, v{g.gr}
    s_mov_b32 s{sT}, 0x01000100
    v_permlane32_swap_b32 v{g.gr}, v{g.gr+4}
    v_mov_b32 v{g.gr+2}, v{g.gr}
    v_mov_b32 v{g.gr+6}, v{g.gr+4}
    v_permlane16_swap_b32 v{g.gr}, v{g.gr+2}
    v_permlane16_swap_b32 v{g.gr+4}, v{g.gr+6}""")
    for q in range(4):
        a(f"""v_and_b32 v{t+q}, 0xffff0000, v{g.gr+2*q}
        v_perm_b32 v{g.gr+2*q}, v{g.gr+2*q}, v{g.gr+2*q}, s{sT}
        v_rcp_f32 v{t+4+q}, v{t+q}
        v_xor_b32 v{g.gr+2*q+1}, 0x80008000, v{g.gr+2*q}
        v_xor_b32 v{g.gr+2*q}, 0x80008000, v{g.gr+2*q}
        v_mul_f32 v{g.gr+16+q}, s{g.sQS}, v{t+4+q}""")
def corr(g, u):
    return [f"v_mfma_f32_16x16x16_bf16 {vr(g.acc[u]+8*q+4*p,4)}, {vr(g.gr+8+4*p,2)}, {vr(g.gr+2*q,2)}, {vr(g.acc[u]+8*q+4*p,4)}" for q in range(4) for p in range(2)]
def pack(A):
    return [f"v_cvt_pk_bf16_f32 v{A+r}, v{A+2*r}, v{A+2*r+1}" for r in range(4)]
def swaps(A): return [f"v_permlane16_swap_b32 v{A}, v{A+2}", f"v_permlane16_swap_b32 v{A+1}, v{A+3}"]
def epi_q(g):
    out = []
    for q in range(4):
        A = g.acc[0] + 8 * q; rq = g.gr + 16 + q
        L = [f"v_mul_f32 v{A+r}, v{rq}, v{A+r}" for r in range(8)] + pack(A)
        out.append((L, swaps(A), f"buffer_store_dwordx4 {vr(A,4)}, v{vSO}, {WS}, s{g.sQ1 if q >= 2 else g.sQ0} offen offset:{256*(q&1)} sc1"))
    return out

def gemm1(a, g, w):
    t = T
    out = g1_main(a, g)
    stamp(a)
    X = [g.Xf[0], g.Xf[1], g.Wf[1] + 8, g.X19]; Wa, Wb = g.Wf[0], g.Wf[1]
    def xr(i): return xs_reads(g, X[i - 16], i)
    def wr(i, u, dst): return ws_reads(g, dst, i, u)
    def both(i, dst):
        x, v = xr(i), wr(i, 0, dst)
        return v[:2] + x + v[2:]
    def step(u, W, i, rd, pre=None, extra=None, byq=False):
        fill = {}
        if pre: fill[0] = [pre]
        for k, r in enumerate(rd): fill.setdefault(k // 2, []).append(r)
        for k, x in enumerate(extra or []): fill.setdefault(k * 8 // len(extra), []).append(x)
        mf = mm(g, u, W, X[i - 16])
        if byq: mf = [mf[p * 4 + q] for q in range(4) for p in range(2)]
        weave(a, mf, fill)
    PRIO = "noprio" not in XF
    TP = "tp" in XF
    if PRIO: a("s_setprio 3")
    l1, t1 = cs_loads(g, 1); l2, t2 = cs_loads(g, 2)
    r = Rec(); gate(r, g, "L_sp_st", *g.l0); gran_use(r, g); gu = r.L; h1 = len(gu) // 2
    for x in both(17, Wb)[:4]: a(x)
    a("s_waitcnt lgkmcnt(4)"); step(0, Wa, 16, both(17, Wb)[4:])
    if "qold" in XF:
        a("s_waitcnt lgkmcnt(0)"); step(0, Wb, 17, both(18, Wa), pre="s_waitcnt vmcnt(0)\ns_barrier", extra=gu[:h1])
        a("s_waitcnt lgkmcnt(0)"); step(0, Wa, 18, both(19, Wb), extra=gu[h1:])
        weave(a, corr(g, 0), {0: wr(17, 1, Wa)})
        a("s_waitcnt lgkmcnt(4)"); step(0, Wb, 19, [], extra=["", l1[0], "", l1[1]], byq=True)
        eq = epi_q(g)
        ep = eq[0][0] + eq[1][0][:2] + eq[0][1] + [eq[0][2]] + eq[1][0][2:] + eq[2][0][:2] + eq[1][1] + [eq[1][2]] + eq[2][0][2:] + eq[3][0][:2] + eq[2][1] + [eq[2][2]] + eq[3][0][2:]
        step(1, g.Wf[0] + 8, 16, wr(18, 1, Wb), extra=ep)
    else:
        a("s_waitcnt lgkmcnt(0)"); step(0, Wb, 17, both(18, Wa) + xr(19), pre="s_waitcnt vmcnt(0)\ns_barrier", extra=gu[:h1])
        for x in wr(19, 0, Wb) + gu[h1:]: a(x)
        for m in corr(g, 0): a(m)
        for x in l1: a(x)
        a("s_waitcnt lgkmcnt(0)")
        eq = epi_q(g)
        qq = lambda q: mm(g, 0, Wa, X[2], [q]) + mm(g, 0, Wb, X[3], [q])
        g16 = mm(g, 1, g.Wf[0] + 8, X[0])
        for m in qq(0) + qq(1): a(m)
        def mix(V_, mf, every):
            for k, x in enumerate(V_):
                a(x)
                if k % every == every - 1 and mf: a(mf.pop(0))
            for m in mf: a(m)
        mix(eq[0][0], qq(2), 3)
        mix(eq[1][0][:2] + eq[0][1] + [eq[0][2]] + eq[1][0][2:], qq(3), 3)
        for x in wr(17, 1, Wa) + wr(18, 1, Wb): a(x)
        mix(eq[2][0][:2] + eq[1][1] + [eq[1][2]] + eq[2][0][2:] + eq[3][0][:2] + eq[2][1] + [eq[2][2]] + eq[3][0][2:], g16, 4)
    tmp = g.acc[0]; Z0, Z1, Z2 = tmp + 8, tmp + 16, tmp + 24; G = g.acc[1]; U = g.acc[2]; vc1 = g.xb
    for x in wr(19, 1, Z0)[:2] + eq[3][1] + wr(19, 1, Z0)[2:] + [eq[3][2]]: a(x)
    if "qst" in XF: stamp(a)
    a("s_setprio 2")
    params_a(a, g)
    a("s_waitcnt vmcnt(4)")
    gate(a, g, "L_sp_g", l1, t1)
    a(f"s_mov_b32 s{g.sD0}, {f32(-GC3)}\nv_mov_b32 v{vc1}, {f32(-GC1)}")
    weave(a, corr(g, 1), {0: wr(17, 2, Z1), 2: wr(18, 2, Z2), 7: l2})
    def gq(q): return [m for W, i in ((Wa, 17), (Wb, 18), (Z0, 19)) for m in mm(g, 1, W, X[i - 16], [q])]
    def uk(W, i): return mm(g, 2, W, X[i - 16])
    a("s_waitcnt lgkmcnt(8)")
    for m in gq(0): a(m)
    stamp(a)
    FQ = int(os.environ.get("FQ", "0"))
    u16 = uk(g.Wf[0] + 16, 16)
    for m in u16[:4]: a(m)
    plan = [gq(1) + u16[4:], gq(2) + uk(Z1, 17), gq(3) + corr(g, 2), uk(Z2, 18) + [uk(Z1, 19)[p * 4 + q] for q in range(4) for p in range(2)]]
    for h in range(4):
        if h == FQ:
            a("s_waitcnt vmcnt(0)"); flag(a, g.sFQ)
        if h == 1: a("s_waitcnt lgkmcnt(0)\ns_setprio 1")
        if h == 2:
            assert FQ <= 2
            gate(a, g, "L_sp_u", l2, t2)
            for x in wr(19, 2, Z1): a(x)
            attn_poll(a, w)
            a("s_setprio 0")
        if h == 3:
            attn_open(a, w, early=True)
            a("s_waitcnt lgkmcnt(0)\ns_setprio 1")
        R = range(8)
        Gh = G + 8 * h
        V_ = [f"v_mul_f32 v{Gh+r}, v{t+4+h}, v{Gh+r}" for r in R] + [f"v_mul_f32 v{tmp+r}, v{Gh+r}, v{Gh+r}" for r in R]
        V_ += [f"v_fma_f32 v{tmp+r}, v{tmp+r}, s{g.sD0}, v{vc1}" for r in R] + [f"v_mul_f32 v{tmp+r}, v{tmp+r}, v{Gh+r}" for r in R]
        V_ += [f"v_exp_f32 v{tmp+r}, v{tmp+r}" for r in R] + [f"v_fma_f32 v{tmp+r}, v{tmp+r}, v{t+h}, v{t+h}" for r in R]
        V_ += [f"v_rcp_f32 v{tmp+r}, v{tmp+r}" for r in R] + [f"v_mul_f32 v{Gh+r}, v{Gh+r}, v{tmp+r}" for r in R]
        mf = plan[h]
        if "gtr" in XF:
            pos = ([32 + k for k in range(8)] + [48 + k for k in range(8)])[:len(mf)]
        else:
            cost = [8 if ("exp" in x or "rcp" in x) else 4 for x in V_]; tot = sum(cost); acc_ = 0; pos = []
            for k, c in enumerate(cost):
                while len(pos) < len(mf) and acc_ >= len(pos) * (tot - 40) / len(mf): pos.append(k)
                acc_ += c
        for k, x in enumerate(V_):
            a(x)
            for j, pp in enumerate(pos):
                if pp == k: a(mf[j])
    a("s_setprio 0")
    r = Rec()
    for k in range(32): r(f"v_mul_f32 v{U+k}, v{U+k}, v{G+k}")
    for q in range(4):
        for x in pack(U + 8 * q): r(x)
    for q in range(4):
        for x in swaps(U + 8 * q): r(x)
    w.fin = r.L
    w.hst = [f"buffer_store_dwordx4 {vr(U+8*q,4)}, v{vSO}, {sr(SRD_B,4)}, s{g.sXr if q >= 2 else sHS} offen offset:{256*(q&1)} sc1" for q in range(4)]

def role_r(a, g, w):
    a.label("L_role_r")
    a("s_waitcnt vmcnt(0)")
    stats(a, g)
    a(g.st_store)
    sg = Regs('s', S0 + 17, 96); t = T
    sKS, sOff, sDst, sM, sN, sK2 = (sg.one() for _ in range(6)); sFl = sg.many(5, 1)
    V = Regs('v', 24 + 48 + 8, 252)
    vo = V.many(5, 1); va = V.many(5, 1); fr = V.many(20, 4)
    a(f"s_lshl_b32 s{sT}, s{sWAVE}, 2")
    for i in range(5):
        a(f"""v_add_u32 v{t}, {64*i}, v{vLANE}
        v_mul_u32_u24 v{t+1}, 820, v{t}
        v_lshrrev_b32 v{t+1}, 16, v{t+1}
        v_mul_u32_u24 v{t+2}, 80, v{t+1}
        v_sub_u32 v{t+2}, v{t}, v{t+2}
        v_add_u32 v{t+3}, s{sT}, v{t+1}
        v_lshrrev_b32 v{t+4}, 1, v{t+3}
        v_and_b32 v{t+4}, 4, v{t+4}
        v_or_b32 v{t+4}, v{t+4}, v{t+1}
        v_lshlrev_b32 v{t+4}, 1, v{t+4}
        v_xor_b32 v{t+2}, v{t+2}, v{t+4}
        v_mul_u32_u24 v{t+3}, 1280, v{t+3}
        v_lshl_add_u32 v{vo+i}, v{t+2}, 4, v{t+3}""")
    a(f"""v_lshrrev_b32 v{t}, 4, v{vLANE}
    v_bfe_u32 v{t+1}, v{vLANE}, 2, 2
    v_lshl_add_u32 v{t+2}, v{t}, 3, v{t+1}
    v_mul_u32_u24 v{t+2}, 1280, v{t+2}
    v_and_b32 v{t+3}, 1, v{vLANE}
    v_lshl_add_u32 v{t+2}, v{t+3}, 3, v{t+2}
    v_and_b32 v{t}, 1, v{t}
    v_lshl_add_u32 v{t}, v{t}, 2, v{t+1}
    v_lshlrev_b32 v{t}, 1, v{t}
    v_bfe_u32 v{t+1}, v{vLANE}, 1, 1
    s_mul_i32 s{sT}, s{sWAVE}, 10
    v_add_u32 v{t+1}, s{sT}, v{t+1}""")
    for ct in range(5):
        a(f"v_add_u32 v{t+3}, {2*ct}, v{t+1}\nv_xor_b32 v{t+3}, v{t+3}, v{t}\nv_lshl_add_u32 v{va+ct}, v{t+3}, 4, v{t+2}")
    a(f"""s_sub_u32 s{sKS}, s{g.sC}, 30
    s_lshl_b32 s{sKS}, s{sKS}, 3
    s_add_u32 s{sKS}, s{sKS}, s{g.sRB}
    s_mul_i32 s{sM}, s{sWAVE}, 5120
    s_waitcnt vmcnt(0)
    s_barrier""")
    def fetch(st):
        if st < 3:
            a(f"s_mov_b32 s{SRD_A}, s{pWD}\ns_mov_b32 s{SRD_A+1}, s{pWD+1}\ns_mov_b32 s{SRD_A+2}, {F*D*2}\ns_add_u32 s{sT}, s{sKS}, {16*st}")
        else:
            a(f"""s_mov_b32 s{sT}, {D*D*2}
            s_add_u32 s{sU}, s{sKS}, {16*st}
            s_cmp_lt_u32 s{sU}, 54
            s_cselect_b32 s{SRD_A}, s{pWD}, s{pWO}
            s_cselect_b32 s{SRD_A+1}, s{pWD+1}, s{pWO+1}
            s_cselect_b32 s{SRD_A+2}, {F*D*2}, s{sT}
            s_cselect_b32 s{sT}, 0, 54
            s_sub_u32 s{sT}, s{sU}, s{sT}""")
        a(f"s_mul_i32 s{sOff}, s{sT}, 40960")
        for i in range(5):
            a(f"s_add_u32 m0, s{sM}, {(st%4)*40960 + 1024*i}\nbuffer_load_dwordx4 v{vo+i}, {sr(SRD_A,4)}, s{sOff} offen lds")
    for st in range(4): fetch(st)
    stamp(a, idx=2); stamp(a, idx=3)
    for st in range(5):
        a(f"""s_add_u32 s{sK2}, s{sKS}, {16*st}
        s_cmp_lt_u32 s{sK2}, 54
        s_cselect_b32 s{sT}, 0, 54
        s_cselect_b32 s{sU}, 27, 10
        s_cselect_b32 s{sN}, 0, 27
        s_sub_u32 s{sK2}, s{sK2}, s{sT}
        s_cmp_ge_u32 s{sK2}, s{sU}
        s_cselect_b32 s{sT}, s{sU}, 0
        s_cselect_b32 s{sU}, 1, 0
        s_sub_u32 s{sK2}, s{sK2}, s{sT}
        s_add_u32 s{sK2}, s{sK2}, s{sN}
        s_lshl_b32 s{sT}, s{sWAVE}, 1
        s_add_u32 s{sU}, s{sU}, s{sT}
        s_mul_i32 s{sT}, s{sU}, 37
        s_add_u32 s{sT}, s{sT}, s{sK2}
        s_mul_i32 s{sDst}, s{sT}, 5120
        s_add_u32 s{sDst}, s{sDst}, {OFF_WP}
        s_lshl_b32 s{sU}, s{sU}, 6
        s_add_u32 s{sK2}, s{sK2}, s{sU}
        s_lshl_b32 s{sK2}, s{sK2}, 2
        s_add_u32 s{sFl+st}, s{sK2}, {OFF_FW}""")
        if st == 4:
            a(f"s_cmp_lt_u32 s{sKS}, 10\ns_cselect_b32 s{sDst}, s{sDst}, 0x7ff00000\ns_cselect_b32 s{sFl+st}, s{sFl+st}, 0x7ff00000")
        a(f"s_waitcnt vmcnt({(15, 20, 20, 20, 20)[st]})\ns_barrier")
        for ct in range(5):
            a(f"ds_read_b64_tr_b16 {vr(fr+4*ct,2)}, v{va+ct}\nds_read_b64_tr_b16 {vr(fr+4*ct+2,2)}, v{va+ct} offset:5120")
        for ct in range(5):
            if st < 4: a(f"v_add_u32 v{va+ct}, {40960 if st < 3 else (-3*40960) & 0xffffffff}, v{va+ct}")
        a("s_waitcnt lgkmcnt(0)")
        if st == 0:
            a("s_barrier"); fetch(4)
        for ct in range(4):
            a(f"buffer_store_dwordx4 {vr(fr+4*ct,4)}, v{vL16}, {WS}, s{sDst} offen offset:{1024*ct} sc1")
        a(f"""s_add_u32 s{sDst}, s{sDst}, 4096
        buffer_store_dwordx4 {vr(fr+16,4)}, v{vL16}, {WS}, s{sDst} offen sc1""")
    stamp(a, idx=4)
    params_a(a, g)
    a(f"v_mov_b32 v{vSO}, 0\ns_mov_b32 s{sHS}, 0\ns_waitcnt vmcnt(0)")
    for st in range(5): flag(a, sFl + st)
    stamp(a, idx=5)
    n0 = Stamper.n; Stamper.n = w.open_stamp
    attn_open(a, w, "_b")
    Stamper.n = n0
    a("s_branch L_attn")

class AT: pass
def alloc_at():
    w = AT(); V = Regs('v', WK, 252)
    w.Sb = [V.many(32, 4) for b in range(2)]; w.O = [V.many(16, 4) for q in range(2)]
    w.Qm = [V.many(4, 4) for q in range(2)]; w.Km = V.many(4, 4); w.V0 = V.many(4, 4); w.V1 = V.many(4, 4)
    w.Qr = V.many(2, 2); w.Kr = V.many(2, 2)
    return w

MC = int(os.environ.get("MC", "0"))
def phys(c):
    if c == 9: return phys(6)
    if c < MC + 2: return c % 2
    return c - MC if c < MC + 4 else phys(c - 4)
ACCD, WT = HB + 80, HB + 100
NHS = 20 if MC else 27
def hreg(n): return HB + 4 * (n if n < NHS else n - NHS)
class Cnt:
    def __init__(self, a, name, cap): self.a, self.name, self.cap, self.q = a, name, cap, []
    def issue(self, tag, txt, n=1): self.a(txt); self.q += [tag] * n
    def wait(self, *tags):
        idx = max([i for i, x in enumerate(self.q) if x in tags], default=-1)
        if idx >= 0:
            self.a(f"s_waitcnt {self.name}({min(self.cap, len(self.q) - 1 - idx)})"); del self.q[:idx + 1]
def w3_dma(c, R=SRD_WS, loose=False):
    L = []
    for i in range(5):
        pre = ""
        if i in (0, 4) or loose:
            k = 4096 if i == 4 else 0
            pre = f"s_add_u32 m0, s{sM3}, {phys(c)*G3_SLOT + k}\ns_add_u32 s{sW3}, s{sWO}, {c*4*5120 + k}\n"
        L.append(pre + f"buffer_load_dwordx4 v{vL16}, {sr(R,4)}, s{sW3} offen offset:{1024*(i&3)} sc1 lds")
    return L
sW3 = S0 + 30
def b_load(dst, base, k):
    s = f"s_add_u32 s{base}, s{base}, 4096\n" if k and k % 2 == 0 else ""
    return s + f"buffer_load_dwordx4 {vr(dst,4)}, v{vBO}, {WS}, s{base} offen offset:{(k&1)*2048} sc1"

def kv_dma(c):
    b = A_BASE + (c % 3) * A_SLOT; inc = 4 * P_QKV if c else 0
    return [f"s_add_u32 m0, s{sDM}, {b}\ns_add_u32 s{sDO}, s{sDO}, {inc}\nbuffer_load_dwordx4 v{vKVO}, {WS}, s{sDO} offen sc1 lds",
            f"s_add_u32 m0, s{sDM}, {b + A_REG - 512}\ns_nop 0\nbuffer_load_dwordx4 v{vKVO}, {WS}, s{sDO} offen offset:512 sc1 lds",
            f"s_add_u32 m0, s{sDM}, {b + 2*A_REG}\ns_add_u32 s{sDO+1}, s{sDO+1}, {inc}\nbuffer_load_dwordx4 v{vKVO}, {WS}, s{sDO+1} offen sc1 lds"]

vPQ = 244
def q_loads():
    t = vPQ
    return [f"buffer_load_dword v{t}, v{vFQO}, {WS}, s{sT} offen sc1",
            f"buffer_load_dword v{t+1}, v{vFQO}, {WS}, s{sU} offen sc1",
            f"buffer_load_dword v{t+2}, v{vFQO}, {WS}, s{sU} offen offset:2560 sc1"]
PW = int(os.environ.get("PW", "4"))
def attn_poll(a, w):
    a(f"""s_cmp_lg_u32 s{sWAVE}, {PW}
    s_cbranch_scc1 L_q_nopoll
    s_mov_b32 s{sT}, {OFF_FQ}
    s_mov_b32 s{sU}, {OFF_FQ + 2560}""")
    for l in q_loads(): a(l)
    a.label("L_q_nopoll")
def attn_open(a, w, sfx="", early=False):
    t = vPQ
    w.open_stamp = Stamper.n
    stamp(a)
    loads = q_loads()
    a(f"""s_cmp_lg_u32 s{sWAVE}, {PW}
    s_cbranch_scc1 L_sp_q_done{sfx}""")
    if early:
        a("s_waitcnt vmcnt(0)"); check_ne(a, [t, t + 1, t + 2]); a(f"s_cbranch_vccz L_sp_q_done{sfx}")
    else:
        a(f"s_mov_b32 s{sT}, {OFF_FQ}\ns_mov_b32 s{sU}, {OFF_FQ + 2560}")
    spin(a, "L_sp_q" + sfx, loads, [t, t + 1, t + 2], "L_sp_q_done" + sfx, int(os.environ.get("QSL", "2")) if early else SLEEP)
    a.label("L_sp_q_done" + sfx)
    a("s_barrier")
    stamp(a)
    for x in kv_dma(0): a(x)
    a(f"""buffer_load_dwordx4 {vr(w.Qm[0],4)}, v{vL16}, {WS}, s{sQB_} offen sc1
    buffer_load_dwordx4 {vr(w.Qm[1],4)}, v{vL16}, {WS}, s{sQA} offen sc1
    buffer_load_dwordx2 {vr(w.Qr,2)}, v{vQRO}, {WS}, s{sQR} offen sc1""")

def attention(a, w, g):
    t = T; Sb, O, Qm, Km, V0, V1, Qr, Kr = w.Sb, w.O, w.Qm, w.Km, w.V0, w.V1, w.Qr, w.Kr
    dma = kv_dma
    a.label("L_attn")
    params_b(a, g)
    a(f"""; token-side fragment offset of phase 3: lane (t16, g): piece g, row t16
    v_and_b32 v{vBO}, 0xf0, v{vL16}
    v_lshrrev_b32 v{t}, 4, v{vLANE}
    v_lshl_add_u32 v{vBO}, v{t}, 9, v{vBO}
    v_and_b32 v{t+4}, 3, v0
    v_cmp_eq_u32 vcc, 0, v{t+4}
    v_mov_b32 v{t+4}, 0x3f80
    v_lshlrev_b32 v{t+5}, 2, v0
    v_cndmask_b32 v{t+4}, 0, v{t+4}, vcc
    v_add_u32 v{t+5}, {A_ONES}, v{t+5}
    ds_write_b32 v{t+5}, v{t+4}
    v_min_u32 v{t+6}, 26, v{vLANE}
    v_min_u32 v{t+7}, 36, v{vLANE}
    v_lshlrev_b32 v{t+6}, 2, v{t+6}
    v_lshlrev_b32 v{t+7}, 2, v{t+7}
    s_mov_b32 s{SRD_B}, s{pWS}
    s_mov_b32 s{SRD_B+1}, s{pWS+1}
    s_cmp_lt_u32 s{g.sC}, 27
    s_cselect_b32 s{SRD_B+2}, {WS_USED}, 0""")
    NF = int(os.environ.get("NFIN", "54"))
    fin = w.fin + [f"v_mov_b32 v{O[q]+r}, 0" for q in range(2) for r in range(16)]
    for x in fin[:NF]: a(x)
    fin = fin[NF:]
    for x in kv_dma(1): a(x)
    a(f"""s_or_b32 s{sT}, s2, s{sWAVE}
    s_cmp_lg_u32 s{sT}, 0
    s_cbranch_scc1 L_noep
    s_mov_b32 s{sT}, {OFF_EP}
    s_waitcnt vmcnt(0)""")
    flag(a, sT)
    a.label("L_noep")
    def rdKr(i): return f"ds_read_b64 {vr(Kr,2)}, v{vKRA} offset:{((i>>2)%3)*A_SLOT + (i&3)*512}"
    def rdKm(i): return f"ds_read_b128 {vr(Km,4)}, v{vKMA} offset:{((i>>2)%3)*A_SLOT + (i&3)*512}"
    def rdV(i, s):
        R = V1 if s else V0
        return "\n".join(f"ds_read_b64_tr_b16 {vr(R+2*rd,2)}, v{vVA+(i>>2)%3} offset:{(i&3)*512 + s*256 + rd*64}" for rd in range(2))
    def m2b(i): return f"v_mfma_f32_32x32x4_2b_bf16 {vr(Sb[i&1],32)}, {vr(Kr,2)}, {vr(Qr,2)}, 0"
    def m16(i, q): return f"v_mfma_f32_32x32x16_bf16 {vr(Sb[i&1]+16*q,16)}, {vr(Km,4)}, {vr(Qm[q],4)}, {vr(Sb[i&1]+16*q,16)}"
    def smf(i, q, s): return f"v_smfmac_f32_32x32x32_bf16 {vr(O[q],16)}, {vr(V1 if s else V0,4)}, {vr(Sb[i&1]+16*q+8*s,8)}, v{vIDX}"
    a("s_waitcnt vmcnt(3) lgkmcnt(0)\ns_barrier")
    stamp(a)
    n1 = max(0, len(fin) - 34)
    a(rdKr(0)); a(rdKm(0)); a(rdV(0, 0))
    for x in fin[:n1]: a(x)
    a("s_waitcnt lgkmcnt(2)")
    a(m2b(0)); a(rdKr(1))
    for x in fin[n1:n1+18]: a(x)
    a(m16(0, 0))
    for x in fin[n1+18:n1+24]: a(x)
    a(m16(0, 1)); a(rdKm(1))
    for x in fin[n1+24:]: a(x)
    a("s_waitcnt lgkmcnt(0)")
    NT = 32
    PS = [int(x) for x in os.environ.get("PS", "1,3,7").split(",") if x]
    if PS: a("s_setprio 3")
    floads = [f"buffer_load_dword v{t}, v{t+6}, {WS}, s{sFHc} offen sc1", f"buffer_load_dword v{t+1}, v{t+7}, {WS}, s{sFWc} offen sc1"]
    w.floads = floads
    vm = Cnt(a, "vmcnt", 63); lq = Cnt(a, "lgkmcnt", 15); w.vm = vm
    vm.q = ["kv1"] * 3
    hl = lambda n: (f"h{n}", b_load(hreg(n), sH, n))
    wl = lambda c: [(f"w{c}", x) for x in w3_dma(c, loose=True)]
    I0 = 7 - MC
    plan = {c: [] for c in range(3, 8)}; hn = 0
    for k in range(MC + 2):
        c = min(7, max(3 + min(k, 1), I0 + k - 1)); plan[c] += wl(k)
    for c in range(3, 8):
        lim = 27 if c == 7 else min(NHS + 4 * max(0, c - I0), 27, hn + (12 if MC else 9) - len(plan[c]))
        plan[c] += [hl(n) for n in range(hn, lim)]; hn = lim
    nrem = (37 - 4 * (MC + 2)) * 40; per = -(-nrem // 32)
    plan[6].append(("t", f"""s_bfe_u32 s{sT}, s2, 0x30003
    s_lshl2_add_u32 s{sT}, s{sT}, s{sQ4}
    s_mul_i32 s{sT}, s{sT}, {per*128}
    s_mul_i32 s{sU}, s{sQ4}, 5120
    s_sub_u32 s{sT}, s{sT}, s{sU}
    s_add_u32 s{sT}, s{sT}, s{sWO}
    s_add_u32 s{sT}, s{sT}, {4*(MC+2)*5120}
    v_min_u32 v{t+6}, {per-1}, v{vLANE}
    v_lshlrev_b32 v{t+6}, 7, v{t+6}
    buffer_load_dword v{t}, v{t+6}, {WS}, s{sT} offen sc1"""))
    if "noorem" not in XF:
        plan[7].insert(5, ("t", f"s_mov_b32 exec_hi, 0\nbuffer_load_dword v{t}, v{vL16}, {WS}, s{sOR} offen sc1\ns_mov_b64 exec, -1"))
    r = Rec(); params_c(r, g); pc = r.L
    queue = []; dq = []; dn = [0]
    def d_read(j):
        n, ct = divmod(j, 5)
        lq.issue(("d", j), f"ds_read_b128 {vr(WT+4*(j&1),4)}, v14 offset:{phys(n>>2)*G3_SLOT + (n&3)*5120 + ct*1024}")
    def D():
        if not dq: return
        j = dq.pop(0); n, ct = divmod(j, 5)
        vm.wait(f"h{n}"); lq.wait(("d", j))
        a(f"v_mfma_f32_16x16x32_bf16 {vr(ACCD+4*ct,4)}, {vr(WT+4*(j&1),4)}, {vr(hreg(n),4)}, {'0' if n == 0 else vr(ACCD+4*ct,4)}")
        if len(dq) >= 2: d_read(j + 2)
    def Q():
        if queue: vm.issue(*queue.pop(0))
    a.auto = False
    for i in range(NT):
        def E(lo, hi):
            for k in range(lo, hi):
                a(f"v_exp_f32 v{Sb[i&1]+k}, v{Sb[i&1]+k}")
                if pc and k % 4 == 3: a(pc.pop(0))
        last = i == NT - 1
        def prio(pt):
            if not PS: return
            nb = min([b for b in range(2, 27, 4) if b * 4 + 1 > i * 4 + pt] + [NT - 0.25])
            left = int(round(nb * 4 + 1 - (i * 4 + pt)))
            for p, th in enumerate(PS):
                if left == th: a(f"s_setprio {p}")
        prio(0)
        D(); E(0, 2)
        if i: a(smf(i - 1, 1, 1))
        lq.issue(("V1", i), rdV(i, 1), 2); E(2, 5)
        if not last: lq.wait(("Kr", i + 1)); a(m2b(i + 1))
        if (i + 2) % 4 == 0 and i + 2 < NT:
            c = (i + 2) // 4
            assert not queue and not dq, (i, queue, dq)
            vm.wait(f"kv{c}", "fl", f"w{c-I0}")
            if c == 3:
                a.auto = True
                check_ne(a, [t, t + 1])
                a("s_cbranch_vccnz L_sp_h")
                a.label("L_sp_h_done")
                a.auto = False
            a("s_barrier")
            if PS: a("s_setprio 3")
            if c + 1 < 8: queue += [(f"kv{c+1}", x) for x in dma(c + 1)]
            queue += plan.get(c, [])
            if 0 <= c - I0 < MC:
                dq += list(range(20 * (c - I0), 20 * (c - I0) + 20)); d_read(dq[0]); d_read(dq[1])
        if i == 0: queue += [("hs", x) for x in w.hst]
        if i == 4:
            vm.wait("hs"); flag(a, sFHp); vm.q.append("x")
        if i == 8 and MC:
            a(f"s_mul_i32 s{sT}, s{sHI}, {4*5120}\nv_add_u32 v14, s{sT}, v{vL16}")
        if i == 9:
            assert not pc
            queue += [("fl", x) for x in floads]
        if i + 2 < NT: lq.issue(("Kr", i + 2), rdKr(i + 2))
        prio(1)
        E(5, 9); Q(); E(9, 13)
        lq.wait(("V0", i)); a(smf(i, 0, 0))
        if i >= 2: Q()
        prio(2)
        E(13, 16); D(); E(16, 17); D(); E(17, 18)
        lq.wait(("V1", i), ("Km", i + 1), ("Kr", i + 2)); a(smf(i, 0, 1))
        Q(); E(18, 21)
        if not last: a(m16(i + 1, 0))
        prio(3)
        E(21, 24); D(); E(24, 25); D(); E(25, 26)
        a(smf(i, 1, 0))
        if not last: lq.issue(("V0", i + 1), rdV(i + 1, 0), 2)
        E(26, 29)
        if last:
            for q in range(3): a(f"ds_write_b128 v{t+1}, {vr(O[0]+4*q,4)} offset:{1024*q}")
        if i == NT - 2:
            a(f"""s_mul_i32 s{sT}, s{sWAVE}, 3200
            s_add_u32 s{sT}, s{sT}, {A_XCH}
            v_add_u32 v{t+1}, s{sT}, v{vL16}
            s_xor_b32 s{sU}, s{sWAVE}, 4
            s_mul_i32 s{sU}, s{sU}, 3200
            s_add_u32 s{sU}, s{sU}, {A_XCH}
            v_add_u32 v{t+2}, s{sU}, v{vL16}""")
        if not last: a(m16(i + 1, 1))
        if i + 2 < NT: lq.issue(("Km", i + 2), rdKm(i + 2))
        if i >= 10 and (MC or i == 25): Q()
        E(29, 32)
    assert not queue and not dq
    a.auto = True
    a(smf(NT - 1, 1, 1))
    stamp(a)
    vm.wait(f"w{MC}", f"w{MC+1}", "t")
    a("s_waitcnt lgkmcnt(0)\ns_barrier")
    X = Sb[0]; w.X = X
    for q in range(3): a(f"ds_read_b128 {vr(X+4*q,4)}, v{t+2} offset:{1024*q}")
    w.npre = int(os.environ.get("NPRE", "2"))
    for x in w3_dma(MC + 2)[:w.npre]: vm.issue(f"w{MC+2}", x)
    a("s_waitcnt lgkmcnt(0)")
    for r in range(12): a(f"v_add_f32 v{X+r}, v{X+r}, v{O[1]+r}")
    a(f"""v_mov_b32 v{X+12}, v{X+8}
    v_mov_b32 v{X+13}, v{X+8}
    v_mul_f32 v{X+14}, 0, v{X}""")
    a(f"v_permlane32_swap_b32 v{X+13}, v{X+12}")
    for r in range(1, 12): a(f"v_fmac_f32 v{X+14}, 0, v{X+r}")
    a(f"""v_add_f32 v{X+14}, v{X+14}, v{X+12}
    v_cmp_nle_f32 vcc, {f32(2.0**-64)}, v{X+14}
    s_mov_b64 s[{S0+26}:{S0+27}], vcc
    v_cmp_nge_f32 vcc, {f32(2.0**64)}, v{X+14}
    s_or_b64 vcc, vcc, s[{S0+26}:{S0+27}]
    s_cbranch_scc1 L_slow""" if "force_slow" not in XF else "s_branch L_slow")
    a.label("L_slow_done")
    a(f"v_rcp_f32 v{X+13}, v{X+12}")
    for r in range(12): a(f"v_mul_f32 v{X+r}, v{X+r}, v{X+13}")
    for r in range(6): a(f"v_cvt_pk_bf16_f32 v{X+16+r}, v{X+2*r}, v{X+2*r+1}")
    a(f"""buffer_store_dwordx4 {vr(X+16,4)}, v{vL16}, {WS}, s{sOA} offen sc1
    s_mov_b32 exec_hi, 0
    buffer_store_dwordx2 {vr(X+20,2)}, v{vL16}, {WS}, s{sOR} offen sc1
    s_mov_b64 exec, -1""")
    stamp(a)

def attn_cold(a, w):
    t = T; Sb, O, Qm, Km, V0, V1, Qr, Kr, X = w.Sb, w.O, w.Qm, w.Km, w.V0, w.V1, w.Qr, w.Kr, w.X
    a.label("L_sp_h")
    spin(a, "L_sp_h_loop", w.floads, [t, t + 1], "L_sp_h_done")
    a("s_branch L_sp_h_done")
    a.label("L_slow")
    Sx = Sb[1]; NM = Sb[1] + 16; Oa = O[1]; vb = O[0]; mx = O[0] + 8; vho = O[0] + 9; vwa = O[0] + 10; vws = O[0] + 11; vra = O[0] + 12
    sKA, sKS_, sN, sSC = S0 + 26, S0 + 27, S0 + 28, S0 + 29
    a(f"""s_xor_b32 s{sSC}, s{sWAVE}, 4
    s_mul_i32 s{sSC}, s{sSC}, 3200
    s_add_u32 s{sSC}, s{sSC}, {A_XCH}
    v_cmp_lt_u32 vcc, 31, v{vLANE}
    v_and_b32 v{vho}, 31, v{vLANE}
    v_lshlrev_b32 v{vho}, 4, v{vho}
    v_cndmask_b32 v{Qr}, 0, v{Qr}, vcc
    v_cndmask_b32 v{Qr+1}, 0, v{Qr+1}, vcc
    v_mov_b32 v{mx}, 0xff800000
    v_add_u32 v{vwa}, s{sSC}, v{vL16}
    v_add_u32 v{vws}, s{sSC}, v{vho}
    s_bfe_u32 s{sT}, s2, 0x30003
    s_lshl_b32 s{sT}, s{sT}, 2
    s_add_u32 s{sT}, s{sT}, s{sQ4}
    s_mul_i32 s{sT}, s{sT}, {2*P_QKV}
    s_sub_u32 s{sKS_}, s{sQR}, s{sT}
    s_mul_i32 s{sU}, s{sHI}, {P_QKV}
    s_add_u32 s{sT}, s{sT}, s{sU}
    s_sub_u32 s{sKA}, s{sQA}, s{sT}
    s_add_u32 s{sKA}, s{sKA}, {80*512}
    s_add_u32 s{sKS_}, s{sKS_}, {80*512}
    ; transposed V reads from the private scratch [A 512][B 512][S 512]
    v_bfe_u32 v{t+1}, v{vLANE}, 2, 2
    v_lshrrev_b32 v{t}, 5, v{vLANE}
    v_lshl_add_u32 v{t+1}, v{t}, 3, v{t+1}
    v_lshlrev_b32 v{t+1}, 4, v{t+1}
    v_and_b32 v{t+2}, 1, v{vLANE}
    v_lshlrev_b32 v{t+2}, 9, v{t+2}
    v_bfe_u32 v{t+3}, v{vLANE}, 1, 1
    v_lshl_add_u32 v{t+2}, v{t+3}, 3, v{t+2}
    v_mov_b32 v{t+5}, 1024
    v_and_b32 v{t+4}, 19, v{vLANE}
    v_cmp_eq_u32 vcc, 16, v{t+4}
    v_lshlrev_b32 v{t+3}, 3, v{t+3}
    v_add_u32 v{t+3}, {A_ONES}, v{t+3}
    v_cndmask_b32 v{t+2}, v{t+2}, v{t+5}, vcc
    v_cmp_lt_u32 vcc, 16, v{t+4}
    v_add_u32 v{t+2}, s{sSC}, v{t+2}
    v_cndmask_b32 v{t+2}, v{t+2}, v{t+3}, vcc
    v_add_u32 v{vra}, v{t+2}, v{t+1}
    s_mov_b32 s{sN}, 0""")
    def kload():
        a(f"""s_add_u32 s{sT}, s{sKA}, s{sN}
        s_add_u32 s{sU}, s{sKS_}, s{sN}
        buffer_load_dwordx4 {vr(Km,4)}, v{vL16}, {WS}, s{sT} offen sc1
        buffer_load_dwordx2 {vr(Kr,2)}, v{vho}, {WS}, s{sU} offen sc1""")
    def qk(c):
        a(f"""v_mfma_f32_32x32x16_bf16 {vr(Sx,16)}, {vr(Km,4)}, {vr(Qm[1],4)}, {c}
        v_mfma_f32_32x32x8_bf16 {vr(Sx,16)}, {vr(Kr,2)}, {vr(Qr,2)}, {vr(Sx,16)}""")
    def nxt(l): a(f"s_add_u32 s{sN}, s{sN}, {P_QKV}\ns_cmp_lt_u32 s{sN}, {64*P_QKV}\ns_cbranch_scc1 {l}")
    a.label("L_slow_a")
    kload(); a("s_waitcnt vmcnt(0)"); qk("0")
    for r in range(0, 16, 2): a(f"v_max3_f32 v{mx}, v{Sx+r}, v{Sx+r+1}, v{mx}")
    nxt("L_slow_a")
    a(f"""v_mov_b32 v{t}, v{mx}
    v_permlane32_swap_b32 v{t}, v{mx}
    v_max_f32 v{mx}, v{mx}, v{t}
    s_mov_b32 s{sN}, 0""")
    for r in range(16): a(f"v_sub_f32 v{NM+r}, 0, v{mx}\nv_mov_b32 v{Oa+r}, 0")
    a.label("L_slow_b")
    kload()
    a(f"""s_add_u32 s{sT}, s{sT}, {80*512}
    s_add_u32 s{sU}, s{sU}, {80*512}
    buffer_load_dwordx4 {vr(vb,4)}, v{vL16}, {WS}, s{sT} offen sc1
    buffer_load_dwordx2 {vr(vb+4,2)}, v{vho}, {WS}, s{sU} offen sc1
    s_waitcnt vmcnt(0)
    ds_write_b128 v{vwa}, {vr(vb,4)}
    ds_write_b64 v{vws}, {vr(vb+4,2)} offset:1024""")
    qk(vr(NM, 16))
    a("s_waitcnt lgkmcnt(0)")
    for s in range(2):
        for rd in range(2): a(f"ds_read_b64_tr_b16 {vr((V1 if s else V0)+2*rd,2)}, v{vra} offset:{s*256+rd*64}")
    for r in range(16): a(f"v_exp_f32 v{Sx+r}, v{Sx+r}")
    a("s_waitcnt lgkmcnt(0)")
    for s in range(2): a(f"v_smfmac_f32_32x32x32_bf16 {vr(Oa,16)}, {vr(V1 if s else V0,4)}, {vr(Sx+8*s,8)}, v{vIDX}")
    nxt("L_slow_b")
    for r in range(12): a(f"v_mov_b32 v{X+r}, v{Oa+r}")
    a(f"""v_mov_b32 v{X+12}, v{Oa+8}
    v_mov_b32 v{X+13}, v{Oa+8}
    v_permlane32_swap_b32 v{X+13}, v{X+12}
    s_nop 1
    s_branch L_slow_done""")

def gemm3(a, w):
    t = T; V = Regs('v', WK, 252)
    OB = V.many(40, 4); xx = V.many(20, 4); accs = V.many(20, 4); Wf = [V.many(20, 4) for b in range(2)]; accd = ACCD if MC else xx
    N0 = 4 * MC
    wa = vIDX
    RD, RS = phys(5) * G3_SLOT, phys(7) * G3_SLOT
    out = w.vm.q + ["ost"] * 2
    lq = []
    def vm(tag, txt): a(txt); out.append(tag)
    def lds(tag, txt): a(txt); lq.append(tag)
    def w_vm(tag):
        if tag in out:
            idx = max(i for i, x in enumerate(out) if x == tag)
            a(f"s_waitcnt vmcnt({len(out) - 1 - idx})"); del out[:idx + 1]
    def w_lds(tag):
        if tag in lq:
            idx = max(i for i, x in enumerate(lq) if x == tag)
            a(f"s_waitcnt lgkmcnt({min(15, len(lq) - 1 - idx)})"); del lq[:idx + 1]
    for x in w3_dma(MC + 2)[w.npre:]: vm(f"w{MC+2}", x)
    a(f"s_mul_i32 s{sT}, s{sHI}, {4*5120}")
    for k in range(4): a(f"s_add_u32 s{sU}, s{sT}, {k*G3_SLOT}\nv_add_u32 v{wa+k}, s{sU}, v{vL16}")
    def rd(n, ct): lds((n, ct), f"ds_read_b128 {vr(Wf[n&1]+4*ct,4)}, v{wa+phys(n>>2)} offset:{(n&3)*5120 + ct*1024}")
    for n in (N0, N0 + 1):
        for ct in range(5): rd(n, ct)
    vo = 8
    r = Rec()
    r(f"""v_and_b32 v{t+7}, 15, v{vLANE}
    v_lshlrev_b32 v{t+7}, 2, v{t+7}
""")
    srd(r, SRD_B, pX, S * D * 2)
    for q in range(3):
        r(f"v_add_u32 v{t+2}, {512*q}, v0" if q < 2 else f"v_lshrrev_b32 v{t+2}, 1, v0\nv_add_u32 v{t+2}, 1024, v{t+2}")
        r(f"""v_mul_u32_u24 v{t+3}, 3277, v{t+2}
        v_lshrrev_b32 v{t+3}, 16, v{t+3}
        v_bfe_u32 v{t+4}, v{t+3}, 1, 2
        v_xor_b32 v{t+2}, v{t+2}, v{t+4}
        v_mul_u32_u24 v{t+3}, {1280-160}, v{t+3}
        v_lshl_add_u32 v{vo+q}, v{t+2}, 3, v{t+3}""")
    r(f"""v_and_b32 v{t+2}, 1, v0
    v_lshl_add_u32 v{vo+2}, v{t+2}, 2, v{vo+2}
    v_lshlrev_b32 v11, 4, v0
    v_add_u32 v11, {RD}, v11
    v_lshlrev_b32 v12, 3, v0
    v_add_u32 v12, {RD + 16384}, v12
    v_lshrrev_b32 v{t+2}, 4, v{vLANE}
    v_bfe_u32 v{t+3}, v{vLANE}, 1, 2
    v_xor_b32 v{t+2}, v{t+2}, v{t+3}
    v_mul_u32_u24 v14, 80, v{t+7}
    v_lshl_add_u32 v14, v{t+2}, 4, v14
    s_add_u32 s{sT}, s{sM3}, {RD}
    v_add_u32 v14, s{sT}, v14""")
    side = r.L
    x2 = xx if MC else HB; xs = x2 + 8; red = HB + 28; g_ = HB + 52
    oflag = f"buffer_load_dword v{t}, v{t+7}, {WS}, s{sFOc} offen sc1"
    w.oflag = oflag
    N_FLAG, N_POLL, N_CHK = (int(x) for x in os.environ.get("G3N", "5,23,0").split(","))
    WGAP, OGAP = (int(x) for x in os.environ.get("G3G", "3,3").split(","))
    vq = []
    def red_reads(delta):
        for q in range(3):
            for k in range(2):
                lds(("red", q), f"ds_read_b128 {vr(red+8*q+4*k,4)}, v11 offset:{8192*q + 20480*k}" if q < 2 else f"ds_read_b64 {vr(red+16+4*k,2)}, v12 offset:{20480*k}")
    NX = N0 + (5 if MC else 10); CHK = os.environ.get("CHK", "pre"); NOF = int(os.environ.get("NOF", "4"))
    ol = [(f"o{k}", b_load(OB + 4 * k, sO3, k)) for k in range(10)]
    def o_gate():
        w_vm("of")
        check_ne(a, [t])
        a("s_cbranch_vccnz L_sp_o")
        a.label("L_sp_o_done")
        stamp(a)
        pass
        for _ in range(NOF): vm(*ol.pop(0))
    for n in range(N0, 37):
        A = accd if n < 27 else accs
        Bn = hreg(n) if n < 27 else OB + 4 * (n - 27)
        w_vm(f"h{n}")
        first = n in (0, 27)
        if "g3t" in XF and n in (N_FLAG, N_FLAG + 1, 27, 28): stamp(a)
        if "g3st" in XF and n in (12, 14, 16, 18, 20, 22, 24, 26, 27, 28, 29, 31, 33, 35): stamp(a)
        if n == N_FLAG:
            w_vm("ost"); flag(a, sFO); out.append("fl")
        if n % 4 == 2 and n + 2 < 37:
            c = (n + 2) // 4
            assert not any(x[0] == f"w{c}" for x in vq)
            w_vm(f"w{c}")
            a("s_barrier")
            if c + 2 < 9: vq += [(f"w{c+2}", x) for x in w3_dma(c + 2)]
            if c == 8:
                vq += [("w9", f"""s_mul_i32 s{sT}, s{sQ4}, {5120 - 1024}
                s_sub_u32 s{sW3}, s{sWO}, s{sT}
                s_add_u32 s{sW3}, s{sW3}, {36*5120}
                s_sub_u32 s{sT}, s{sM3}, s{sT}
                s_add_u32 m0, s{sT}, {phys(9)*G3_SLOT}
                s_lshl_b32 s{sU}, s{sQ4}, 10
                buffer_load_dwordx4 v{vL16}, {WS}, s{sW3} offen sc1 lds"""),
                       ("w9", f"""s_sub_u32 s{sU}, 4096, s{sU}
                s_add_u32 m0, m0, s{sU}
                s_add_u32 s{sW3}, s{sW3}, s{sU}
                buffer_load_dwordx4 v{vL16}, {WS}, s{sW3} offen sc1 lds""")]
        if "nop3" not in XF: a(f"s_setprio {(1 - n) % 4 if n < 34 else 36 - n}")
        if n == N_POLL: vq.insert(0, ("of", oflag))
        if n == NX:
            assert not side
            vq += [("x", f"buffer_load_dword{'x2' if q < 2 else ''} {vr(x2+2*q,2 if q < 2 else 1)}, v{vo+q}, {sr(SRD_B,4)}, s{sOUT} offen") for q in range(3)]
        if N_CHK and n == N_CHK: o_gate()
        if n == 23:
            assert not side; w_vm("x")
            r = Rec()
            for k in range(5): r(f"v_lshlrev_b32 v{xs+2*k}, 16, v{x2+k}\nv_and_b32 v{xs+2*k+1}, 0xffff0000, v{x2+k}")
            srd(r, SRD_B, pOUT, S * D * 2)
            side = r.L
        if n == 27:
            assert not side and not vq
            if CHK == "pre" and not N_CHK: o_gate()
            for ct in range(5): lds("dw", f"ds_write_b128 v14, {vr(accd+4*ct,4)} offset:{64*ct}")
            if CHK == "mid": o_gate()
            a("s_waitcnt lgkmcnt(0)\ns_barrier"); lq.clear()
            red_reads(0)
            if CHK == "post": o_gate()
            r = Rec(); r(f"s_mov_b32 s{sT}, {f32(-LOG2E)}")
            for k in range(10): r(f"v_add_f32 v{g_+k}, v{red+8*(k//4)+k%4}, v{red+8*(k//4)+4+k%4}")
            for k in range(10): r(f"v_mul_f32 v{red+k}, s{sT}, v{g_+k}")
            for k in range(10): r(f"v_exp_f32 v{red+k}, v{red+k}")
            for k in range(10): r(f"v_add_f32 v{red+k}, 1.0, v{red+k}")
            for k in range(10): r(f"v_rcp_f32 v{red+k}, v{red+k}")
            for k in range(10): r(f"v_mul_f32 v{g_+k}, v{g_+k}, v{red+k}")
            for k in (11, 12, 14): r(f"v_add_u32 v{k}, {(RS-RD) & 0xffffffff}, v{k}")
            NSI = int(os.environ.get("NSI", "64"))
            a("s_waitcnt lgkmcnt(0)"); lq.clear()
            for k, x in enumerate(r.L[:NSI]):
                a(x)
                if k % 10 == 0 and ol and CHK != "end": vm(*ol.pop(0))
            side = r.L[NSI:]
            if CHK == "end": o_gate()
        if n >= 27:
            assert not any(x[0] == f"o{n-27}" for x in ol)
            w_vm(f"o{n-27}")
        for ct in range(5):
            w_lds((n, ct))
            a(f"v_mfma_f32_16x16x32_bf16 {vr(A+4*ct,4)}, {vr(Wf[n&1]+4*ct,4)}, {vr(Bn,4)}, {'0' if first else vr(A+4*ct,4)}")
            if n + 2 < 37: rd(n + 2, ct)
            gap = 5 * n + ct
            if n >= 27 and ol and gap % 2 == 0: vm(*ol.pop(0))
            elif gap % WGAP == 0 and vq: vm(*vq.pop(0))
            elif gap % WGAP == 0 and N_CHK and n >= N_CHK and ol: vm(*ol.pop(0))
            for _ in range(2 if n < NX and MC else 1):
                if side: a(side.pop(0))
    for x in side: a(x)
    assert not vq and not ol
    stamp(a)
    for ct in range(5): a(f"ds_write_b128 v14, {vr(accs+4*ct,4)} offset:{64*ct}")
    a("s_waitcnt lgkmcnt(0)\ns_barrier")
    red_reads(RS - RD)
    for q in range(3):
        a(f"s_waitcnt lgkmcnt({4-2*q})")
        ne = 4 if q < 2 else 2
        for e in range(ne):
            a(f"v_add_f32 v{red+8*q+e}, v{red+8*q+e}, v{red+8*q+4+e}\nv_fmac_f32 v{xs+4*q+e}, v{red+8*q+e}, v{g_+4*q+e}")
        for k in range(ne // 2): a(f"v_cvt_pk_bf16_f32 v{x2+2*q+k}, v{xs+4*q+2*k}, v{xs+4*q+2*k+1}")
        a(f"buffer_store_dword{'x2' if q < 2 else ''} {vr(x2+2*q,ne//2)}, v{vo+q}, {sr(SRD_B,4)}, s{sOUT} offen {os.environ.get('OUTF', '')}")

def build():
    hdr = open("cdna_kernels/%s.s.ref" % NAME).read().split("; Override launch")[0]
    a = Asm(); g = alloc_g1(); w = alloc_at()
    prologue(a, g); g1_setup(a, g)
    a(f"s_cmp_ge_u32 s{g.sC}, 30\ns_cbranch_scc1 L_role_r")
    g1_start(a, g)
    gemm1(a, g, w); attention(a, w, g); gemm3(a, w)
    stamp_flush(a)
    a.label("L_end"); a("s_endpgm")
    a.label("L_sp_o")
    spin(a, "L_sp_o_loop", [w.oflag], [T], "L_sp_o_done", int(os.environ.get("OSL", "4"))); a("s_branch L_sp_o_done")
    for name, loads, tags in g.spins:
        a.label(name)
        spin(a, name + "_loop", loads, tags, name + "_done"); a(f"s_branch {name}_done")
    role_r(a, g, w)
    attn_cold(a, w)
    out = hdr + "; @launch grid=(256,1,1) block=(512,1,1) lds=163840\n"
    out += '.amdgcn_target "amdgcn-amd-amdhsa--gfx950"\n.text\n' + a.text()
    out += f""".section .rodata,"a"
.p2align 6
.amdhsa_kernel {NAME}_kernel
  .amdhsa_next_free_vgpr 256
  .amdhsa_next_free_sgpr 102
  .amdhsa_accum_offset 256
  .amdhsa_group_segment_fixed_size 0
  .amdhsa_kernarg_size 80
  .amdhsa_user_sgpr_count 2
  .amdhsa_user_sgpr_kernarg_segment_ptr 1
  .amdhsa_system_sgpr_workgroup_id_x 1
.end_amdhsa_kernel
"""
    if os.environ.get("NOPS"): print("auto nops:", *a.nops, sep="\n  ", file=sys.stderr)
    return out

if __name__ == "__main__":
    path = sys.argv[1] if len(sys.argv) > 1 else "cdna_kernels/%s.s" % NAME
    open(path, "w").write(build())
```

```python
import sys, os, math, struct
from asmlib import *

NAME = "recurrent_scan__softmax_full_mha__geglu_ffn__prompt"
S, D, F, NH, DH = 2048, 640, 1728, 32, 20
P_QKV, P_H, P_O = 240 * 512, 216 * 512, 80 * 512
OFF_QKV = 0
OFF_H = OFF_QKV + 64 * P_QKV
OFF_O = OFF_H + 64 * P_H
OFF_WP = OFF_O + 64 * P_O
OFF_ST = OFF_WP + 8 * 74 * 5 * 1024
OFF_CS = OFF_ST + 2048 * 8
OFF_FQ = OFF_CS + 90 * 4096
OFF_FH = OFF_FQ + 8192
OFF_FW = OFF_FH + 8192
OFF_FO = OFF_FW + 4096
OFF_EP = OFF_FO + 8192
WS_USED = OFF_EP + 256
def f32(x): return "0x%08x" % struct.unpack("<I", struct.pack("<f", x))[0]
LOG2E = 1.4426950408889634
QSCALE = DH ** -0.5 * LOG2E
GC1 = 2 * 0.7978845608028654 * LOG2E
GC3 = GC1 * 0.044715
SPIN_MAX = 1 << 16
SLEEP = int(os.environ.get('SLEEP', '8'))
XF = set(os.environ.get("XF", "").split(","))

pX, pWQKV, pWO, pBX, pWG, pWU, pWD, pOUT, pDBG, pWS = 4, 6, 8, 10, 12, 14, 16, 18, 20, 22
sWAVE = 3
SRD_WS, SRD_A, SRD_B = 24, 28, 32
_sp = Regs('s', 36, 64)
sTAG, sT, sU, sQ4, sHI, sSPIN = (_sp.one() for _ in range(6))
sDO, sDM = _sp.many(3, 1), _sp.many(3, 1)
sQA, sQB_, sQR, sOA, sOR, sFO = (_sp.one() for _ in range(6))
sH, sO3, sWO, sOUT, sFHc, sFWc, sFOc, sFHp, sHS, sM3 = (_sp.one() for _ in range(10))
S0 = 64
vLANE, vL16, vTAG, vIDX, vKMA, vKRA, vVA, vKVO, vQRO, vFQO, vBO, vSO = 1, 2, 3, 4, 5, 6, 7, 10, 11, 12, 13, 15
T = 16
HB = 24
WK = 132

STAMP = int(os.environ.get("STAMP", "0"))
REPORT = int(os.environ.get("REPORT", "0")); REPWG = int(os.environ.get("REPWG", "-1")); REP0 = int(os.environ.get("REP0", "0")); REPNEG = int(os.environ.get("REPNEG", "0"))
OFF_STAMP = WS_USED
if STAMP: WS_USED += 2048 * 128
class Stamper: n = 0
NSTAMP = 16
vST = 252
def stamp(a, real=False, idx=None):
    i = Stamper.n if idx is None else idx
    if idx is None: Stamper.n += 1
    if REPORT and i in (REP0, REPORT):
        au = a.auto; a.auto = True
        k = 96 if i == REP0 else 98
        a(f"s_memrealtime s[{k}:{k+1}]\ns_waitcnt lgkmcnt(0)")
        a.auto = au
    if not STAMP: return
    if STAMP == 3:
        if not real: return
        i = 0 if i == 0 else 1
    au = a.auto; a.auto = True
    if STAMP == 2: real = True
    a(f"s_mem{'real' if real else ''}time s[100:101]\ns_waitcnt lgkmcnt(0)\nv_writelane_b32 v{vST}, s100, {i}")
    a.auto = au
def stamp_flush(a):
    if "probe" in XF:
        a(f"""s_waitcnt vmcnt(0) lgkmcnt(0)
        s_or_b32 s{sT}, s2, s{sWAVE}
        s_cmp_lg_u32 s{sT}, 0
        s_cbranch_scc1 L_probe_done""")
        srd(a, SRD_A, pBX, S * D * 2)
        a(f"s_mov_b32 s{sT}, 0")
        a.label("L_probe")
        a(f"""buffer_load_dword v{T}, off, {sr(SRD_A,4)}, s{sT}
        s_add_u32 s{sT}, s{sT}, {16384+128}
        s_waitcnt vmcnt(0)
        s_cmp_lt_u32 s{sT}, {128*(16384+128)}
        s_cbranch_scc1 L_probe""")
        a.label("L_probe_done")
    if REPORT:
        a("s_waitcnt vmcnt(0) lgkmcnt(0)")
        stamp(a)
        a(f"s_cmp_lg_u32 s2, {REPWG}" if REPWG >= 0 else f"s_cmp_ge_u32 s2, 192")
        a(f"""s_cbranch_scc1 L_end
        s_sub_u32 s98, s98, s96
        s_min_u32 s98, s98, {REPNEG or 20000}
        {f's_sub_u32 s98, {REPNEG}, s98' if REPNEG else ''}
        s_mul_i32 s98, s98, 4
        s_memrealtime s[96:97]
        s_waitcnt lgkmcnt(0)""")
        a.label("L_rep")
        a("""s_memrealtime s[100:101]
        s_waitcnt lgkmcnt(0)
        s_sub_u32 s100, s100, s96
        s_cmp_lt_u32 s100, s98
        s_cbranch_scc1 L_rep""")
        return
    if not STAMP: return
    a("s_waitcnt vmcnt(0) lgkmcnt(0)")
    stamp(a); stamp(a, True)
    print("stamps:", Stamper.n, file=sys.stderr)
    a(f"""s_lshl_b32 s{sT}, s2, 3
    s_add_u32 s{sT}, s{sT}, s{sWAVE}
    s_lshl_b32 s{sT}, s{sT}, 7
    s_add_u32 s{sT}, s{sT}, {OFF_STAMP}
    v_lshlrev_b32 v{T}, 2, v{vLANE}
    s_mov_b32 exec_hi, 0
    buffer_store_dword v{vST}, v{T}, {sr(SRD_WS,4)}, s{sT} offen""")

def srd(a, r, ptr, size):
    a(f"s_mov_b32 s{r}, s{ptr}\ns_mov_b32 s{r+1}, s{ptr+1}\ns_mov_b32 s{r+2}, {size}\ns_mov_b32 s{r+3}, 0x20000")
WS = sr(SRD_WS, 4)

def flag(a, soff, imm=0):
    a(f"s_mov_b64 exec, 1\nbuffer_store_dword v{vTAG}, off, {WS}, s{soff} offset:{imm} sc1\ns_mov_b64 exec, -1")

def check_ne(a, regs):
    a(f"v_xor_b32 v{regs[0]}, s{sTAG}, v{regs[0]}")
    for r in regs[1:]:
        a(f"v_xor_b32 v{r}, s{sTAG}, v{r}\nv_or_b32 v{regs[0]}, v{regs[0]}, v{r}")
    a(f"v_cmp_ne_u32 vcc, 0, v{regs[0]}")

def spin(a, lbl, loads, regs, done, SLEEP=SLEEP):
    a(f"s_mov_b32 s{sSPIN}, {SPIN_MAX}")
    a.label(lbl)
    for l in loads: a(l)
    a("s_waitcnt vmcnt(0)")
    check_ne(a, regs)
    a(f"""s_cbranch_vccz {done}
    s_sleep {SLEEP}
    s_sub_u32 s{sSPIN}, s{sSPIN}, 1
    s_cmp_lg_u32 s{sSPIN}, 0
    s_cbranch_scc1 {lbl}""")

def wave_sum(a, v):
    for m in ("quad_perm:[1,0,3,2]", "quad_perm:[2,3,0,1]", "row_half_mirror", "row_mirror"):
        a(f"v_add_f32_dpp v{v}, v{v}, v{v} {m} row_mask:0xf bank_mask:0xf")
    a(f"v_add_f32_dpp v{v}, v{v}, v{v} row_bcast:15 row_mask:0xa bank_mask:0xf")
    a(f"v_add_f32_dpp v{v}, v{v}, v{v} row_bcast:31 row_mask:0xc bank_mask:0xf")

LW, LDUMMY, LX = 0, 61440, 65536
G3_SLOT = 40960
A_BASE, A_REG, A_HALF, A_SLOT = 2 * G3_SLOT, 2112, 12800, 25600
A_ONES = A_BASE + 3 * A_SLOT + 128
A_XCH = A_BASE + 2 * A_SLOT
G3_RED = 3 * G3_SLOT

class G1: pass
def alloc_g1():
    g = G1(); V = Regs('v', 24, 252); sg = Regs('s', S0, 96)
    g.acc = [V.many(32, 4) for u in range(3)]
    g.Wf = [V.many(24, 4) for b in range(2)]
    g.Xf = [V.many(16, 4) for b in range(2)]
    g.X19 = V.many(16, 4)
    g.gr = V.many(20, 4)
    g.xb = V.many(2, 1); g.xa = V.many(2, 1); g.wb = V.many(2, 1); g.wa = V.many(2, 1); g.voff = V.many(4, 1); g.vtch = V.one(); g.x2 = g.wa
    g.raw = g.gr; g.e = g.gr + 6; g.ep = g.gr + 5
    for n in "sRB sC sOff sStep sD0 sD1 sM0 sMsz sMend sWrapW sWrapX sSize sRound sWr sXr sRow sGP sG0 sG1 sC0 sC1 sC2 sQ0 sQ1 sFQ sQS".split(): setattr(g, n, sg.one())
    g.V, g.sg = V, sg
    return g

def dma_ops(g, j, rolled=False):
    L = [f"buffer_load_dwordx4 v{g.voff+i}, {sr(SRD_A,4)}, s{g.sOff} offen offset:{1024*i} lds" for i in range(4)]
    L[0] = f"s_mov_b32 m0, s{g.sM0}\ns_add_u32 s{g.sM0}, s{g.sM0}, s{g.sMsz}\n" + L[0]
    e = f"s_add_u32 s{g.sOff}, s{g.sOff}, s{g.sD1 if j & 1 else g.sD0}"
    if rolled:
        e += f"""\ns_cmp_ge_u32 s{g.sM0}, s{g.sMend}
        s_cselect_b32 s{sT}, s{g.sWrapW}, 0
        s_sub_u32 s{g.sM0}, s{g.sM0}, s{sT}"""
    else:
        if j % 5 == 4: e += f"\ns_sub_u32 s{g.sM0}, s{g.sM0}, s{g.sWrapW}"
        if j % 6 == 5: e += f"\ns_sub_u32 s{g.sM0}, s{g.sM0}, s{g.sWrapX}"
    L[3] += "\n" + e
    return L

BURST = [int(x) for x in os.environ.get("BURST", "4,3,3").split(",")]
BSTAGE = [int(x) for x in os.environ.get("BSTAGE", "0,3,7").split(",")]
def cs_reg(g, k): return g.X19 + 4 * k if k < 4 else g.Wf[1] + 4 * (k - 4)
def cs_load(g, k):
    return f"buffer_load_dwordx4 {vr(cs_reg(g,k),4)}, v{g.vtch}, {sr(SRD_A,4)}, s{g.sRow} offen offset:3072\ns_add_u32 s{g.sRow}, s{g.sRow}, s{g.sStep}"
def cs_setup(a, g):
    sel = g.gr + 16; t = T
    a(f"""v_and_b32 v{t}, 1, v{vLANE}
    v_lshlrev_b32 v{t}, 4, v{t}
    v_mov_b32 v{t+1}, 0x3f80
    v_lshlrev_b32 v{t}, v{t}, v{t+1}
    v_bfe_u32 v{t+1}, v{vLANE}, 1, 2""")
    for r in range(4): a(f"v_cmp_eq_u32 vcc, {r}, v{t+1}\nv_cndmask_b32 v{sel+r}, 0, v{t}, vcc")
_csn = [0]
def cs_acc(a, g, n, first):
    ac = g.gr + 8; sel = g.gr + 16
    _csn[0] += 1
    L = [f"s_cmp_ge_u32 s{sWAVE}, 3", f"s_cbranch_scc1 L_cs{_csn[0]}"]
    L += [f"v_mfma_f32_16x16x32_bf16 {vr(ac,4)}, {vr(sel,4)}, {vr(cs_reg(g,k),4)}, {'0' if first and k == 0 else vr(ac,4)}" for k in range(n)]
    a.atom("\n".join(L + [f"L_cs{_csn[0]}:"]))
def cs_publish(a, g):
    ac = g.gr + 8; t = T
    a(f"""v_bfe_u32 v{t}, v{vLANE}, 3, 1
    v_cmp_eq_u32 vcc, 1, v{t}
    v_and_b32 v{t+1}, 7, v{vLANE}
    v_lshl_add_u32 v{t+1}, v{t+1}, 3, v{t}
    v_bfe_u32 v{t}, v{vLANE}, 4, 1
    v_lshl_add_u32 v{t+1}, v{t}, 2, v{t+1}
    v_lshrrev_b32 v{t}, 5, v{vLANE}
    v_lshlrev_b32 v{t}, 1, v{t}""")
    for r in range(4): a(f"v_add_f32_dpp v{ac+r}, v{ac+r}, v{ac+r} row_ror:8 row_mask:0xf bank_mask:0xf")
    a(f"""v_cndmask_b32 v{ac}, v{ac}, v{ac+1}, vcc
    v_cndmask_b32 v{ac+2}, v{ac+2}, v{ac+3}, vcc
    v_cmp_lt_u32 vcc, 31, v{vLANE}
    s_nop 0
    v_cndmask_b32 v{ac}, v{ac}, v{ac+2}, vcc
    v_cvt_pk_bf16_f32 v{ac+1}, v{ac}, v{ac}
    v_add_lshl_u32 v{t+1}, v{t+1}, v{t}, 4
    v_and_b32 v{ac+1}, 0xffff0000, v{ac+1}
    v_sub_f32 v{ac}, v{ac}, v{ac+1}
    v_mov_b32 v{ac+3}, v{vTAG}
    v_cvt_pk_bf16_f32 v{ac+2}, v{ac+1}, v{ac}
    s_mul_i32 s{sT}, s{sWAVE}, 30
    s_add_u32 s{sT}, s{sT}, s{g.sC}
    s_lshl_b32 s{sT}, s{sT}, 2
    s_lshr_b32 s{sU}, s{g.sRB}, 1
    s_add_u32 s{sT}, s{sT}, s{sU}
    s_lshl_b32 s{sT}, s{sT}, 7
    s_and_b32 s{sU}, s{g.sRB}, 1
    s_add_u32 s{sT}, s{sT}, s{sU}
    s_lshl_b32 s{sT}, s{sT}, 3
    s_add_u32 s{sT}, s{sT}, {OFF_CS}
    s_cmp_lt_u32 s{sWAVE}, 3
    s_cselect_b32 s{sT}, s{sT}, 0x7ff00000
    buffer_store_dwordx2 {vr(ac+2,2)}, v{t+1}, {WS}, s{sT} offen sc1""")

def prologue(a, g):
    t = T
    name = NAME + "_kernel"
    a.raw(f".globl {name}\n.p2align 8\n.type {name},@function")
    a.label(name)
    a(f"""s_cmp_ge_u32 s2, 256
    s_cbranch_scc1 L_end""")
    stamp(a, True); stamp(a)
    a(f"""s_load_dwordx16 s[4:19], s[0:1], 0
    s_load_dwordx4 s[20:23], s[0:1], 64
    v_lshrrev_b32 v{t}, 6, v0
    v_and_b32 v{vLANE}, 63, v0
    v_readfirstlane_b32 s{sWAVE}, v{t}
    v_lshlrev_b32 v{vL16}, 4, v{vLANE}""")
    a(f"""; rb = (xcd&1)*4 + (j&3) ; c = (j>>2)*4 + (xcd>>1)
    s_and_b32 s{g.sRB}, s2, 1
    s_bfe_u32 s{g.sXr}, s2, 0x20003
    s_lshl2_add_u32 s{g.sRB}, s{g.sRB}, s{g.sXr}
    s_lshr_b32 s{g.sC}, s2, 5
    s_bfe_u32 s{sT}, s2, 0x20001
    s_lshl2_add_u32 s{g.sC}, s{g.sC}, s{sT}
    ; LN statistics row of this wave: rb*256 + c*8 + wave
    s_lshl_b32 s{g.sG1}, s{g.sRB}, 5
    s_add_u32 s{g.sG1}, s{g.sG1}, s{g.sC}
    s_lshl3_add_u32 s{g.sG1}, s{g.sG1}, s{sWAVE}
    s_mul_i32 s{g.sRound}, s{g.sG1}, 1280
    ; staging role by wave: 0 wqkv, 1 gate, 2 up, 3 none, 4.. x ; groups 27..29 have no gate/up unit (zeros)
    s_cmp_lt_u32 s{g.sC}, 27
    s_cselect_b32 s{SRD_A+2}, {D*F*2+3072}, 0
    s_movk_i32 s{sU}, {F*2}
    s_cmp_eq_u32 s{sWAVE}, 0
    s_cselect_b32 s{SRD_A+2}, {D*3*D*2+3072}, s{SRD_A+2}
    s_cselect_b32 s{sU}, {3*D*2}, s{sU}
    s_cmp_ge_u32 s{sWAVE}, 4
    s_cselect_b32 s{SRD_A+2}, {S*D*2+3072}, s{SRD_A+2}
    s_cselect_b32 s{sU}, 1280, s{sU}
    s_cmp_ge_u32 s{g.sC}, 30
    s_cselect_b32 s{SRD_A+2}, 0, s{SRD_A+2}
    s_lshl_b32 s{g.sOff}, s{g.sC}, 7
    s_lshl_b32 s{g.sMend}, s{sU}, 3
    v_lshrrev_b32 v{t}, 3, v{vLANE}
    v_mul_lo_u32 v{t}, v{t}, s{sU}
    v_and_b32 v{t+1}, 7, v{vLANE}
    v_lshl_add_u32 v{g.vtch}, v{t+1}, 4, v{t}
    v_lshlrev_b32 v{t+2}, 2, v{vLANE}
    s_mul_i32 s{g.sRow}, s{g.sRB}, s{g.sMend}
    s_lshl_b32 s{g.sStep}, s{sU}, 6
    s_add_u32 s{g.sRow}, s{g.sRow}, s{g.sOff}
    s_mov_b32 s{SRD_B+2}, {S*D*2}
    s_mov_b32 s{SRD_B+3}, 0x20000
    s_mov_b32 s{SRD_A+3}, 0x20000
    s_cmp_eq_u32 s{sWAVE}, 1
    s_waitcnt lgkmcnt(0)
    s_mov_b64 s[{SRD_B}:{SRD_B+1}], s[{pX}:{pX+1}]
    s_cselect_b64 s[{SRD_A}:{SRD_A+1}], s[{pWG}:{pWG+1}], s[{pWU}:{pWU+1}]
    buffer_load_dwordx4 {vr(g.raw,4)}, v{vL16}, {sr(SRD_B,4)}, s{g.sRound} offen
    buffer_load_dword v{g.raw+4}, v{t+2}, {sr(SRD_B,4)}, s{g.sRound} offen offset:1024
    s_cmp_eq_u32 s{sWAVE}, 0
    s_cselect_b64 s[{SRD_A}:{SRD_A+1}], s[{pWQKV}:{pWQKV+1}], s[{SRD_A}:{SRD_A+1}]
    s_cmp_ge_u32 s{sWAVE}, 4
    s_cselect_b64 s[{SRD_A}:{SRD_A+1}], s[{pX}:{pX+1}], s[{SRD_A}:{SRD_A+1}]
    s_sub_u32 s{SRD_A}, s{SRD_A}, 3072
    s_subb_u32 s{SRD_A+1}, s{SRD_A+1}, 0""")
    if "rowbar" in XF: a("s_barrier")
    a(f"s_cmp_ge_u32 s{sWAVE}, 3\ns_cbranch_scc1 L_nocs")
    for n in range(BURST[0]): a(cs_load(g, n))
    a.label("L_nocs")
    if "nocode" not in XF:
        a(f"""s_cmp_lg_u32 s{sWAVE}, 3
        s_cbranch_scc1 L_nocode
        s_getpc_b64 s[{S0+26}:{S0+27}]""")
        a.label("L_pc")
        a(f"""s_bfe_u32 s{sT}, s2, 0x40003
        v_lshl_add_u32 v{t+2}, v{vLANE}, 4, s{sT}
        v_lshlrev_b32 v{t+2}, 7, v{t+2}
        v_min_u32 v{t+2}, L_end-L_pc-4, v{t+2}
        v_mov_b32 v{t+3}, s{S0+27}
        v_add_co_u32 v{t+2}, vcc, s{S0+26}, v{t+2}
        v_addc_co_u32 v{t+3}, vcc, 0, v{t+3}, vcc
        s_mov_b64 exec, 0x7fff
        global_load_dword v{g.gr+5}, v[{t+2}:{t+3}], off
        s_mov_b64 exec, -1""")
        a.label("L_nocode")
    a(f"""s_mov_b32 s{sT}, {OFF_EP}
    s_load_dword s{sTAG}, s[{pWS}:{pWS+1}], s{sT}
    s_mov_b64 s[{SRD_WS}:{SRD_WS+1}], s[{pWS}:{pWS+1}]
    s_mov_b32 s{SRD_WS+2}, {WS_USED}
    s_mov_b32 s{SRD_WS+3}, 0x20000
    s_and_b32 s{sQ4}, s{sWAVE}, 3
    s_lshr_b32 s{sHI}, s{sWAVE}, 2
    s_lshl_b32 s{g.sM0}, s{sQ4}, 12
    s_add_u32 s{g.sWr}, s{g.sM0}, {LX}
    s_movk_i32 s{g.sMsz}, 12288
    s_mov_b32 s{g.sWrapW}, {5*12288}
    s_cmp_eq_u32 s{sWAVE}, 3
    s_cselect_b32 s{SRD_A+2}, 0, s{SRD_A+2}
    s_cselect_b32 s{g.sM0}, {LDUMMY}, s{g.sM0}
    s_cselect_b32 s{g.sMsz}, 0, s{g.sMsz}
    s_cselect_b32 s{g.sWrapW}, 0, s{g.sWrapW}
    s_lshr_b32 s{g.sGP}, s2, 7
    s_lshl1_add_u32 s{sT}, s{g.sRB}, s{g.sGP}
    s_lshl4_add_u32 s{sT}, s{sT}, s{sQ4}
    s_mul_i32 s{sT}, s{sT}, {8*1280}
    s_mul_i32 s{g.sD1}, s{g.sGP}, {2*128*1280}
    s_sub_u32 s{g.sD0}, {128*1280}, s{g.sD1}
    s_sub_u32 s{g.sD1}, 128, s{g.sD0}
    s_lshl_b32 s{sU}, s{sU}, 5
    s_bfe_u32 s{g.sGP}, s2, 0x20005
    s_cmp_ge_u32 s{sWAVE}, 4
    s_cselect_b32 s{g.sOff}, s{sT}, s{g.sOff}
    s_cselect_b32 s{g.sD0}, s{g.sD0}, s{sU}
    s_cselect_b32 s{g.sD1}, s{g.sD1}, s{sU}
    s_cselect_b32 s{g.sM0}, s{g.sWr}, s{g.sM0}
    s_cselect_b32 s{g.sMsz}, 16384, s{g.sMsz}
    s_cselect_b32 s{g.sWrapW}, 0, s{g.sWrapW}
    s_cselect_b32 s{g.sWrapX}, {6*16384}, 0
    s_cselect_b32 s{g.sGP}, s{g.sGP}, s{g.sXr}
    s_cselect_b32 s{g.sMend}, s{sU}, s{g.sMend}
    s_cselect_b64 vcc, -1, 0
    ; lane part: row l/8, pos = l%8 ; W: chunk = pos ^ (((row>>1)&1)<<2 | (i&1)<<1) ; x: chunk = pos ^ ((row>>1) + 4*(wave&1))
    v_lshrrev_b32 v{t+2}, 4, v{vLANE}
    v_and_b32 v{t+3}, 1, v{t+2}
    v_lshlrev_b32 v{t+3}, 2, v{t+3}
    s_and_b32 s{sT}, s{sWAVE}, 1
    v_lshl_or_b32 v{t+2}, s{sT}, 2, v{t+2}
    v_or_b32 v{t+5}, 2, v{t+3}
    v_cndmask_b32 v{t+4}, v{t+5}, v{t+2}, vcc
    v_cndmask_b32 v{t+2}, v{t+3}, v{t+2}, vcc
    v_xor_b32 v{t+2}, v{t+2}, v{t+1}
    v_xor_b32 v{t+4}, v{t+4}, v{t+1}
    v_lshl_add_u32 v{t+2}, v{t+2}, 4, v{t}
    v_lshl_add_u32 v{t+4}, v{t+4}, 4, v{t}""")
    for i in range(4):
        a(f"""s_xor_b32 s{sT}, s{g.sGP}, {i}
        s_mul_i32 s{sT}, s{sT}, s{g.sMend}
        s_add_u32 s{sT}, s{sT}, {3072 - 1024*i}
        v_add_u32 v{g.voff+i}, s{sT}, v{t+2+2*(i&1)}""")
    a("s_barrier")
    for x in dma_ops(g, 0): a(x)

def g1_addr(a, g):
    t = T
    a(f"""; x fragments: (t16>>3)*4096 + (t16&7)*128 + (((g ^ r) ^ (t16>>1))*16) + (tq>>1)*16384 + (tq&1)*2048
    v_and_b32 v{t}, 7, v{vLANE}
    v_lshrrev_b32 v{t+1}, 4, v{vLANE}
    v_bfe_u32 v{t+2}, v{vLANE}, 1, 3
    v_xor_b32 v{t+2}, v{t+2}, v{t+1}
    v_xor_b32 v{t+2}, s{g.sXr}, v{t+2}
    v_lshlrev_b32 v{t+2}, 4, v{t+2}
    v_lshl_add_u32 v{t+2}, v{t}, 7, v{t+2}
    v_bfe_u32 v{t}, v{vLANE}, 3, 1
    v_lshl_add_u32 v{t+2}, v{t}, 12, v{t+2}
    s_lshr_b32 s{sT}, s{sQ4}, 1
    s_mul_i32 s{sT}, s{sT}, 6
    s_add_u32 s{sT}, s{sT}, s{sQ4}
    s_lshl_b32 s{sT}, s{sT}, 11
    s_add_u32 s{sT}, s{sT}, {LX}
    v_add_u32 v{g.xb}, s{sT}, v{t+2}
    v_xor_b32 v{g.xb+1}, 64, v{g.xb}
    v_add_u32 v{g.x2}, 0x10000, v{g.xb}
    v_add_u32 v{g.x2+1}, 0x10000, v{g.xb+1}
    v_bfe_u32 v{t}, v{vLANE}, 2, 2
    v_lshl_add_u32 v{t+2}, v{t+1}, 3, v{t}
    v_lshlrev_b32 v{t+2}, 7, v{t+2}
    v_lshrrev_b32 v{t}, 1, v{t}
    v_xor_b32 v{t}, s{sHI}, v{t}
    v_lshl_add_u32 v{t+2}, v{t}, 6, v{t+2}
    v_and_b32 v{t}, 1, v{t+1}
    v_lshl_add_u32 v{t+2}, v{t}, 5, v{t+2}
    v_and_b32 v{t}, 3, v{vLANE}
    v_lshl_add_u32 v{g.wb}, v{t}, 3, v{t+2}
    v_xor_b32 v{g.wb+1}, 32, v{g.wb}""")

def g1_setup(a, g):
    g1_addr(a, g); cs_setup(a, g); gran_setup(a, g)
    if "pst" in XF: stamp(a)

PBC = "nopbc" not in XF
def _pn(g): return g.sM0, g.sMsz, g.sWrapW, g.sWrapX, g.sOff, g.sD1
def params_a(a, g):
    t = g.voff
    sHD, sPA, sPS, sPAR, sTG, sX = _pn(g)
    a(f"""; attention: hd = xcd*4 + (j>>3) ; qb = j&7
    s_and_b32 s{sHD}, s2, 7
    s_lshr_b32 s{sX}, s2, 6
    s_lshl2_add_u32 s{sHD}, s{sHD}, s{sX}
    s_and_b32 s{sPAR}, s{sHD}, 1
    s_mul_i32 s{sX}, s{sHD}, 5
    s_lshr_b32 s{sX}, s{sX}, 1
    s_add_u32 s{sPA}, s{sX}, s{sPAR}
    s_add_u32 s{sTG}, s{sX}, 2
    s_sub_u32 s{sPS}, s{sTG}, s{sPAR}
    s_sub_u32 s{sPS}, s{sPS}, s{sPAR}
    s_lshl_b32 s{sPA}, s{sPA}, 9
    s_lshl_b32 s{sPS}, s{sPS}, 9
    s_lshl_b32 s{sPAR}, s{sPAR}, 3
    s_lshr_b32 s{sX}, s{sX}, 2
    s_lshr_b32 s{sTG}, s{sTG}, 2
    s_sub_u32 s{sTG}, s{sTG}, s{sX}
    v_lshrrev_b32 v{t}, 5, v{vLANE}
    v_and_b32 v{t+1}, 31, v{vLANE}
    v_and_b32 v{t+2}, s{sTG}, v{t}
    v_add_lshl_u32 v{t+2}, s{sX}, v{t+2}, 7
    v_lshl_add_u32 v{vFQO}, v{t+1}, 2, v{t+2}
    v_lshlrev_b32 v{t+1}, 4, v{t+1}
    s_mov_b32 s{sX}, {P_QKV}
    v_mad_u32_u24 v{vKVO}, v{t}, s{sX}, v{t+1}
    s_xor_b32 s{sTG}, s{sHI}, 1
    v_xor_b32 v{vQRO}, s{sTG}, v{t}
    v_mad_u32_u24 v{vQRO}, v{vQRO}, s{sX}, v{t+1}
    ; staging role: wave&2 -> k or v, wave&1 -> pair of token groups, one instruction per piece
    s_lshr_b32 s{sX}, s{sQ4}, 1
    s_and_b32 s{sTG}, s{sQ4}, 1
    s_mul_i32 s{sDM}, s{sX}, {3*A_REG}
    s_mul_i32 s{sDO}, s{sHI}, {A_HALF}
    s_add_u32 s{sDM}, s{sDM}, s{sDO}
    s_lshl_b32 s{sDO}, s{sTG}, 10
    s_add_u32 s{sDM}, s{sDM}, s{sDO}
    s_lshl4_add_u32 s{sTG}, s{sHI}, s{sTG}
    s_mul_i32 s{sTG}, s{sTG}, 6
    s_add_u32 s{sTG}, s{sTG}, s{sX}
    s_add_u32 s{sTG}, s{sTG}, 1
    s_mul_i32 s{sTG}, s{sTG}, {80*512}
    s_add_u32 s{sDO}, s{sTG}, s{sPA}
    s_add_u32 s{sDO+1}, s{sTG}, s{sPS}
    s_bfe_u32 s{sTG}, s2, 0x30003
    s_lshl2_add_u32 s{sTG}, s{sTG}, s{sQ4}
    s_add_u32 s{sPS}, s{sPS}, s{sPAR}
    s_mul_i32 s{sQR}, s{sTG}, {2*P_QKV}
    s_add_u32 s{sQR}, s{sQR}, s{sPS}
    s_lshl1_add_u32 s{sTG}, s{sTG}, s{sHI}
    s_xor_b32 s{sX}, s{sTG}, 1
    s_mul_i32 s{sQA}, s{sTG}, {P_QKV}
    s_mul_i32 s{sQB_}, s{sX}, {P_QKV}
    s_add_u32 s{sQA}, s{sQA}, s{sPA}
    s_add_u32 s{sQB_}, s{sQB_}, s{sPA}""")
    assert OFF_QKV == 0 and P_QKV == 3 * 80 * 512

def params_b(a, g):
    t = g.voff
    sHD, sPA, sPS, sPAR, sTG, sX = _pn(g)
    a(f"""s_mul_i32 s{sT}, s{sHI}, {A_HALF}
    s_add_u32 s{sT}, s{sT}, {A_BASE}
    v_lshrrev_b32 v{t}, 5, v{vLANE}
    v_and_b32 v{t+1}, 0x1f0, v{vL16}
    v_mul_u32_u24 v{vKMA}, {A_REG}, v{t}
    v_add3_u32 v{vKMA}, v{vKMA}, v{t+1}, s{sT}
    s_add_u32 s{sU}, s{sPAR}, s{sT}
    s_add_u32 s{sU}, s{sU}, {2*A_REG}
    v_add_u32 v{vKRA}, s{sU}, v{t+1}
    v_bfe_u32 v{t+1}, v{vLANE}, 2, 2
    v_lshl_add_u32 v{t+1}, v{t}, 3, v{t+1}
    v_and_b32 v{t+2}, 1, v{vLANE}
    v_mul_u32_u24 v{t+2}, {A_REG}, v{t+2}
    v_bfe_u32 v{t+3}, v{vLANE}, 1, 1
    v_lshlrev_b32 v{t+3}, 3, v{t+3}
    s_add_u32 s{sT}, s{sT}, {3*A_REG}
    v_add3_u32 v{t+2}, v{t+3}, v{t+2}, s{sT}
    s_add_u32 s{sU}, s{sU}, {3*A_REG}
    v_mov_b32 v{t+5}, s{sU}
    v_and_b32 v{t+4}, 19, v{vLANE}
    v_cmp_eq_u32 vcc, 16, v{t+4}
    v_add_u32 v{t+3}, {A_ONES}, v{t+3}
    v_mov_b32 v{vIDX}, 0xdddddddd
    v_cndmask_b32 v{t+2}, v{t+2}, v{t+5}, vcc
    v_cmp_lt_u32 vcc, 16, v{t+4}
    v_mov_b32 v{t+5}, {A_SLOT}
    s_nop 0
    v_cndmask_b32 v{t+2}, v{t+2}, v{t+3}, vcc
    v_cndmask_b32 v{t+5}, v{t+5}, 0, vcc
    v_lshl_add_u32 v{vVA}, v{t+1}, 4, v{t+2}
    v_add_u32 v{vVA+1}, v{vVA}, v{t+5}
    v_add_u32 v{vVA+2}, v{vVA+1}, v{t+5}""")

def params_c(a, g):
    sHD, sPA, sPS, sPAR, sTG, sX = _pn(g)
    a(f"""; H flag of this wave as a producer (dummy word 63 when it produces none)
    s_lshl1_add_u32 s{sFHp}, s{g.sC}, s{sHI}""")
    a.atom(f"s_cmp_lt_u32 s{g.sC}, 27\ns_cselect_b32 s{sFHp}, s{sFHp}, 63")
    sTB, sCB = sPA, sPS
    a(f"""s_lshr_b32 s{sX}, s2, 6
    s_xor_b32 s{sX}, s{sX}, s{sQ4}
    s_lshl2_add_u32 s{sX}, s{g.sRB}, s{sX}
    s_lshl_b32 s{sX}, s{sX}, 8
    s_lshl2_add_u32 s{sFHp}, s{sFHp}, s{sX}
    s_add_u32 s{sFHp}, s{sFHp}, {OFF_FH}
    s_mul_i32 s{sX}, s{sTG}, {P_O}
    s_add_u32 s{sX}, s{sX}, {OFF_O}
    s_add_u32 s{sOR}, s{sX}, s{sPS}
    s_add_u32 s{sOA}, s{sX}, s{sPA}
    s_lshl_b32 s{sFO}, s{sTG}, 7
    s_lshl2_add_u32 s{sFO}, s{sHD}, s{sFO}
    s_add_u32 s{sFO}, s{sFO}, {OFF_FO}
    s_bfe_u32 s{sTB}, s2, 0x20001
    s_bfe_u32 s{sX}, s2, 0x30003
    s_lshl3_add_u32 s{sTB}, s{sTB}, s{sX}
    s_and_b32 s{sCB}, s2, 1
    s_lshr_b32 s{sX}, s2, 6
    s_lshl2_add_u32 s{sCB}, s{sCB}, s{sX}
    s_lshl1_add_u32 s{sX}, s{sCB}, s{sHI}
    s_lshl_b32 s{sFWc}, s{sX}, 8
    s_add_u32 s{sFWc}, s{sFWc}, {OFF_FW}
    s_mul_i32 s{sX}, s{sX}, 37
    s_add_u32 s{sX}, s{sX}, s{sQ4}
    s_mul_i32 s{sWO}, s{sX}, 5120
    s_add_u32 s{sWO}, s{sWO}, {OFF_WP}
    s_lshl_b32 s{sFHc}, s{sTB}, 8
    s_mul_i32 s{sX}, s{sHI}, {27*4}
    s_add_u32 s{sFHc}, s{sFHc}, s{sX}
    s_add_u32 s{sFHc}, s{sFHc}, {OFF_FH}
    s_mul_i32 s{sOUT}, s{sTB}, {64*1280}
    s_mul_i32 s{sX}, s{sCB}, 160
    s_add_u32 s{sOUT}, s{sOUT}, s{sX}
    s_lshr_b32 s{sX}, s{sQ4}, 1
    s_lshl1_add_u32 s{sTB}, s{sTB}, s{sX}
    s_lshl1_add_u32 s{sTB}, s{sTB}, s{sHI}
    s_and_b32 s{sX}, s{sQ4}, 1
    s_lshl_b32 s{sX}, s{sX}, 8
    s_mul_i32 s{sH}, s{sTB}, {P_H//2}
    s_add_u32 s{sH}, s{sH}, s{sX}
    s_add_u32 s{sH}, s{sH}, {OFF_H}
    s_mul_i32 s{sO3}, s{sTB}, {P_O//2}
    s_add_u32 s{sO3}, s{sO3}, s{sX}
    s_add_u32 s{sO3}, s{sO3}, {OFF_O}
    s_lshl_b32 s{sFOc}, s{sTB}, 6
    s_add_u32 s{sFOc}, s{sFOc}, {OFF_FO}
    s_mul_i32 s{sM3}, s{sWAVE}, 5120""")
    assert P_H // 2 == 27 * 2048 and P_O // 2 == 10 * 2048

def stats(a, g):
    raw, e, t = g.raw, g.e, T
    for i in range(5):
        a(f"v_lshlrev_b32 v{e+2*i}, 16, v{raw+i}\nv_and_b32 v{e+2*i+1}, 0xffff0000, v{raw+i}")
    a(f"v_add_f32 v{t}, v{e}, v{e+1}")
    for i in range(2, 10): a(f"v_add_f32 v{t}, v{t}, v{e+i}")
    wave_sum(a, t)
    a(f"v_mul_f32 v{t}, {f32(1.0/D)}, v{t}\nv_readlane_b32 s{sT}, v{t}, 63")
    for i in range(10): a(f"v_subrev_f32 v{e+i}, s{sT}, v{e+i}")
    a(f"v_mul_f32 v{t+1}, v{e}, v{e}")
    for i in range(1, 10): a(f"v_fmac_f32 v{t+1}, v{e+i}, v{e+i}")
    a(f"""s_waitcnt lgkmcnt(0)
    s_mul_i32 s{sTAG}, s{sTAG}, 0x9e3779b1
    s_add_u32 s{sTAG}, s{sTAG}, 0x7f4a7c15
    v_mov_b32 v{vTAG}, s{sTAG}""")
    wave_sum(a, t + 1)
    a(f"""v_mul_f32 v{t+1}, {f32(1.0/D)}, v{t+1}
    v_cvt_pk_bf16_f32 v{t+1}, v{t+1}, v{t+1}
    v_and_b32 v{t+1}, 0xffff0000, v{t+1}
    v_add_f32 v{t+1}, {f32(1e-5)}, v{t+1}
    v_cvt_pk_bf16_f32 v{t+1}, v{t+1}, v{t+1}
    v_and_b32 v{t+1}, 0xffff0000, v{t+1}
    v_sqrt_f32 v{t+1}, v{t+1}
    v_mov_b32 v{t+3}, v{vTAG}
    v_cvt_pk_bf16_f32 v{t+2}, v{t}, v{t+1}
    s_lshl_b32 s{sT}, s{g.sG1}, 3
    s_add_u32 s{sT}, s{sT}, {OFF_ST}""")
    g.st_store = f"""s_mov_b32 exec_lo, 0
    s_brev_b32 exec_hi, 1
    buffer_store_dwordx2 {vr(t+2,2)}, off, {WS}, s{sT} sc1
    s_mov_b64 exec, -1"""

def x_reads(g, dst, ks): return [f"ds_read_b128 {vr(dst+4*q,4)}, v{g.xa+ks} offset:{q*2048}" for q in range(4)]
def w_reads(g, dst, u, base=None, off=0):
    A = g.wa if base is None else base
    return [f"ds_read_b64_tr_b16 {vr(dst+4*p+2*rd,2)}, v{A+p} offset:{off + u*4096 + rd*512}" for p in range(2) for rd in range(2)]
def mm(g, u, W, X, qs=range(4)):
    return [f"v_mfma_f32_16x16x32_bf16 {vr(g.acc[u]+8*q+4*p,4)}, {vr(W+4*p,4)}, {vr(X+4*q,4)}, {vr(g.acc[u]+8*q+4*p,4)}" for p in range(2) for q in qs]
def weave(a, mf, fill):
    for k, m in enumerate(mf):
        a(m)
        for x in fill.get(k, []): a(x)

class Rec:
    def __init__(self): self.L = []
    def __call__(self, text):
        self.L += [l.strip() for l in text.strip().split("\n") if l.strip() and not l.strip().startswith(";")]
    def atom(self, text): self.L.append(text)
Asm.atom = lambda self, text: self(text)

def xs_reads(g, dst, i):
    sl = (i >> 1) % 3
    return [f"ds_read_b128 {vr(dst+4*q,4)}, v{(g.x2 if sl == 2 else g.xb)+(i&1)} offset:{(sl&1)*32768*(sl < 2) + (q&1)*8192 + (q>>1)*1024}" for q in range(4)]
def ws_reads(g, dst, i, u): return w_reads(g, dst, u, g.wb, LW + (i % 5) * 12288)

def g1_start(a, g):
    for x in dma_ops(g, 1): a(x)
    a("s_barrier")
    for x in dma_ops(g, 2): a(x)
    if "pst" in XF: stamp(a)
    a("s_waitcnt vmcnt(12)")
    stats(a, g)
    for x in dma_ops(g, 3): a(x)
    a(g.st_store)
    stamp(a)
    a("s_waitcnt vmcnt(9)\ns_barrier")
    stamp(a)
    for r in xs_reads(g, g.Xf[0], 0): a(r)
    for u in range(3):
        for r in ws_reads(g, g.Wf[0] + 8 * u, 0, u): a(r)

def g1_main(a, g):
    def rec(f, *args):
        r = Rec(); f(r, *args); return r.L
    def burst(n, name):
        return ("cs", name, n, "\n".join([f"s_cmp_ge_u32 s{sWAVE}, 3", f"s_cbranch_scc1 L_{name}"] + [cs_load(g, k) for k in range(n)] + [f"L_{name}:"]))
    side = rec(cs_acc, g, BURST[0], True)
    for j in range(1, len(BURST)):
        nxt = BSTAGE[j + 1] if j + 1 < len(BURST) else BSTAGE[j] + 3
        side += [("at", BSTAGE[j]), ("k", 7), burst(BURST[j], f"c{j}"), ("at", nxt), ("wait", f"c{j}")] + rec(cs_acc, g, BURST[j], False)
    assert sum(BURST) == 10 and max(BURST[1:] + [0]) <= 4
    side += ([("at", 2)] if len(BURST) == 1 else []) + rec(cs_publish, g)
    g.spins = []
    g.l0 = [x + y for x, y in zip(st_loads(g), cs_loads(g, 0))]
    side += [("at", 15)] + sum(([("k", 3 + 6 * j), ("vm", "gr", l)] for j, l in enumerate(g.l0[0])), [])
    if "noside" in XF:
        for x in side:
            if isinstance(x, tuple):
                if x[0] == "wait": a("s_waitcnt vmcnt(0)")
                if x[0] == "vm": a(x[2])
            else: a(x)
        side = []
    out = ["r2"] * 4 + ["r3"] * 4 + ["st"]
    def wait(need):
        idx = max([j for j, x in enumerate(out) if x in need], default=-1)
        if idx >= 0:
            a(f"s_waitcnt vmcnt({sum(1 for x in out[idx+1:] if x[0] != 'c')})"); del out[:idx + 1]
    GP = [int(x) for x in os.environ.get("GP", "1,9,16,21").split(",") if x]
    PER = int(os.environ.get("SIDE", "1"))
    for i in range(16):
        b = i & 1; n = b ^ 1
        mf = sum((mm(g, u, g.Wf[b] + 8 * u, g.Xf[b]) for u in range(3)), [])
        if i == 0: mf = [m[:m.rindex(",")] + ", 0" for m in mf]
        xr = xs_reads(g, g.Xf[n], i + 1); wr = [ws_reads(g, g.Wf[n] + 8 * u, i + 1, u) for u in range(3)]
        rd = [xr[0]] + wr[0][:2] + xr[1:] + wr[0][2:] + wr[1] + wr[2]
        vm = {}
        if i == 0:
            for k, x in enumerate(dma_ops(g, 4) + dma_ops(g, 5)): vm[2 + 3 * k] = (f"r{4 + k // 4}", x)
        elif i + 5 < 20:
            for pos, x in zip((4, 10, 16, 22), dma_ops(g, i + 5)): vm[pos] = (f"r{i+5}", x)
        a("s_waitcnt lgkmcnt(0)")
        if "sst" in XF: stamp(a)
        if "nodma" in XF: vm = {}
        for k, m in enumerate(mf):
            a(m)
            if k == 1:
                wait([f"r{i+1}"] + ([f"r{i+2}"] if b else []))
                a("s_barrier")
            if GP and k in GP: a(f"s_setprio {len(GP) - 1 - GP.index(k)}")
            if k >= 2 and rd: a(rd.pop(0))
            if k in vm: a(vm[k][1]); out.append(vm[k][0])
            if k == 1: continue
            left = PER
            while left and side:
                x = side[0]
                if isinstance(x, tuple):
                    if x[0] == "at" and i < x[1]: break
                    if x[0] == "k" and k < x[1]: break
                    side.pop(0)
                    if x[0] == "per": PER = x[1]
                    if x[0] == "wait": wait([x[1]])
                    if x[0] == "vm": a(x[2]); out.append(x[1]); left = 0
                    if x[0] == "cs": a(x[3]); out.extend([x[1]] * x[2]); left = 0
                    continue
                side.pop(0); a(x); left -= 1
                if "buffer_store" in x: out.append("st")
                while side and isinstance(side[0], str) and ((x.startswith("s_cmp") and "\n" not in x) or side[0].startswith("s_cselect")):
                    x = side.pop(0); a(x)
        if os.environ.get("NOPS"): print("stage", i, "side left", len(side), file=sys.stderr)
    assert not side
    return out

def gran_setup(a, g):
    t = T; vst = g.xa; vcs = g.xa + 1; sTG = g.sRound
    a(f"""s_lshr_b32 s{sTG}, s2, 6
    s_xor_b32 s{sTG}, s{sTG}, s{sQ4}
    s_lshl2_add_u32 s{sTG}, s{g.sRB}, s{sTG}
    s_bfe_u32 s{g.sGP}, s2, 0x10005
    s_lshl1_add_u32 s{g.sGP}, s{sTG}, s{g.sGP}
    s_lshl_b32 s{g.sG0}, s{sTG}, 9
    s_add_u32 s{g.sG0}, s{g.sG0}, {OFF_ST}
    s_lshl_b32 s{g.sC0}, s{g.sC}, 3
    s_add_u32 s{g.sC0}, s{g.sC0}, s{sHI}
    s_lshl_b32 s{g.sC0}, s{g.sC0}, 9
    s_add_u32 s{g.sC0}, s{g.sC0}, {OFF_CS}
    s_add_u32 s{g.sC1}, s{g.sC0}, {30*4096}
    s_add_u32 s{g.sC2}, s{g.sC0}, {60*4096}
    v_and_b32 v{vst}, 15, v{vLANE}
    v_lshrrev_b32 v{vcs}, 4, v{vLANE}
    v_lshlrev_b32 v{vcs}, 6, v{vcs}
    v_add_lshl_u32 v{vcs}, v{vcs}, v{vst}, 4
    v_lshlrev_b32 v{vst}, 3, v{vst}
    v_bfe_u32 v{vSO}, v{vLANE}, 4, 1
    v_lshlrev_b32 v{vSO}, 10, v{vSO}
    v_lshrrev_b32 v{t}, 5, v{vLANE}
    v_lshl_add_u32 v{vSO}, v{t}, 9, v{vSO}
    v_lshl_add_u32 v{vSO}, v{vst}, 1, v{vSO}
    s_and_b32 s{sT}, s2, 32
    v_xor_b32 v{vst}, s{sT}, v{vLANE}
    v_lshlrev_b32 v{vst}, 3, v{vst}
    s_lshl_b32 s{sT}, s{g.sC}, 12
    s_lshl_b32 s{sU}, s{sHI}, 11
    s_add_u32 s{sT}, s{sT}, s{sU}
    s_xor_b32 s{sU}, s{g.sGP}, 1
    s_mul_i32 s{g.sQ0}, s{g.sGP}, {P_QKV}
    s_mul_i32 s{g.sQ1}, s{sU}, {P_QKV}
    s_add_u32 s{g.sQ0}, s{g.sQ0}, s{sT}
    s_add_u32 s{g.sQ1}, s{g.sQ1}, s{sT}
    s_mul_i32 s{sHS}, s{g.sGP}, {P_H}
    s_mul_i32 s{g.sXr}, s{sU}, {P_H}
    s_add_u32 s{sU}, s{sT}, {OFF_H}
    s_add_u32 s{sHS}, s{sHS}, s{sU}
    s_add_u32 s{g.sXr}, s{g.sXr}, s{sU}
    s_lshr_b32 s{sT}, s{sT}, 4
    s_lshl2_add_u32 s{g.sFQ}, s{sTG}, s{sT}
    s_add_u32 s{g.sFQ}, s{g.sFQ}, {OFF_FQ}
    s_cmp_lt_u32 s{g.sC}, 10
    s_cselect_b32 s{g.sQS}, {f32(QSCALE)}, 1.0""")
def st_loads(g): return [f"buffer_load_dwordx2 {vr(g.gr,2)}, v{g.xa}, {WS}, s{g.sG0} offen sc1"], [g.gr + 1]
def cs_loads(g, u):
    return ([f"buffer_load_dwordx4 {vr(g.gr+8+4*p,4)}, v{g.xa+1}, {WS}, s{(g.sC0, g.sC1, g.sC2)[u]} offen offset:{256*p} sc1" for p in range(2)],
            [g.gr + 9 + 2 * k for k in range(4)])
def gate(a, g, name, loads, tags):
    check_ne(a, tags)
    a.atom(f"s_cbranch_vccnz {name}\n{name}_done:")
    g.spins.append((name, loads, tags))
    for p in range(2): a(f"v_mov_b32 v{g.gr+9+4*p}, v{g.gr+10+4*p}")

def gran_use(a, g):
    t = T
    a(f"""v_mov_b32 v{g.gr+4}, v{g.gr}
    s_mov_b32 s{sT}, 0x01000100
    v_permlane32_swap_b32 v{g.gr}, v{g.gr+4}
    v_mov_b32 v{g.gr+2}, v{g.gr}
    v_mov_b32 v{g.gr+6}, v{g.gr+4}
    v_permlane16_swap_b32 v{g.gr}, v{g.gr+2}
    v_permlane16_swap_b32 v{g.gr+4}, v{g.gr+6}""")
    for q in range(4):
        a(f"""v_and_b32 v{t+q}, 0xffff0000, v{g.gr+2*q}
        v_perm_b32 v{g.gr+2*q}, v{g.gr+2*q}, v{g.gr+2*q}, s{sT}
        v_rcp_f32 v{t+4+q}, v{t+q}
        v_xor_b32 v{g.gr+2*q+1}, 0x80008000, v{g.gr+2*q}
        v_xor_b32 v{g.gr+2*q}, 0x80008000, v{g.gr+2*q}
        v_mul_f32 v{g.gr+16+q}, s{g.sQS}, v{t+4+q}""")
def corr(g, u):
    return [f"v_mfma_f32_16x16x16_bf16 {vr(g.acc[u]+8*q+4*p,4)}, {vr(g.gr+8+4*p,2)}, {vr(g.gr+2*q,2)}, {vr(g.acc[u]+8*q+4*p,4)}" for q in range(4) for p in range(2)]
def pack(A):
    return [f"v_cvt_pk_bf16_f32 v{A+r}, v{A+2*r}, v{A+2*r+1}" for r in range(4)]
def swaps(A): return [f"v_permlane16_swap_b32 v{A}, v{A+2}", f"v_permlane16_swap_b32 v{A+1}, v{A+3}"]
def epi_q(g):
    out = []
    for q in range(4):
        A = g.acc[0] + 8 * q; rq = g.gr + 16 + q
        L = [f"v_mul_f32 v{A+r}, v{rq}, v{A+r}" for r in range(8)] + pack(A)
        out.append((L, swaps(A), f"buffer_store_dwordx4 {vr(A,4)}, v{vSO}, {WS}, s{g.sQ1 if q >= 2 else g.sQ0} offen offset:{256*(q&1)} sc1"))
    return out

def gemm1(a, g, w):
    t = T
    out = g1_main(a, g)
    stamp(a)
    X = [g.Xf[0], g.Xf[1], g.Wf[1] + 8, g.X19]; Wa, Wb = g.Wf[0], g.Wf[1]
    def xr(i): return xs_reads(g, X[i - 16], i)
    def wr(i, u, dst): return ws_reads(g, dst, i, u)
    def both(i, dst):
        x, v = xr(i), wr(i, 0, dst)
        return v[:2] + x + v[2:]
    def step(u, W, i, rd, pre=None, extra=None, byq=False):
        fill = {}
        if pre: fill[0] = [pre]
        for k, r in enumerate(rd): fill.setdefault(k // 2, []).append(r)
        for k, x in enumerate(extra or []): fill.setdefault(k * 8 // len(extra), []).append(x)
        mf = mm(g, u, W, X[i - 16])
        if byq: mf = [mf[p * 4 + q] for q in range(4) for p in range(2)]
        weave(a, mf, fill)
    PRIO = "noprio" not in XF
    TP = "tp" in XF
    if PRIO: a("s_setprio 3")
    l1, t1 = cs_loads(g, 1); l2, t2 = cs_loads(g, 2)
    r = Rec(); gate(r, g, "L_sp_st", *g.l0); gran_use(r, g); gu = r.L; h1 = len(gu) // 2
    for x in both(17, Wb)[:4]: a(x)
    a("s_waitcnt lgkmcnt(4)"); step(0, Wa, 16, both(17, Wb)[4:])
    if "qold" in XF:
        a("s_waitcnt lgkmcnt(0)"); step(0, Wb, 17, both(18, Wa), pre="s_waitcnt vmcnt(0)\ns_barrier", extra=gu[:h1])
        a("s_waitcnt lgkmcnt(0)"); step(0, Wa, 18, both(19, Wb), extra=gu[h1:])
        weave(a, corr(g, 0), {0: wr(17, 1, Wa)})
        a("s_waitcnt lgkmcnt(4)"); step(0, Wb, 19, [], extra=["", l1[0], "", l1[1]], byq=True)
        eq = epi_q(g)
        ep = eq[0][0] + eq[1][0][:2] + eq[0][1] + [eq[0][2]] + eq[1][0][2:] + eq[2][0][:2] + eq[1][1] + [eq[1][2]] + eq[2][0][2:] + eq[3][0][:2] + eq[2][1] + [eq[2][2]] + eq[3][0][2:]
        step(1, g.Wf[0] + 8, 16, wr(18, 1, Wb), extra=ep)
    else:
        a("s_waitcnt lgkmcnt(0)"); step(0, Wb, 17, both(18, Wa) + xr(19), pre="s_waitcnt vmcnt(0)\ns_barrier", extra=gu[:h1])
        for x in wr(19, 0, Wb) + gu[h1:]: a(x)
        for m in corr(g, 0): a(m)
        for x in l1: a(x)
        a("s_waitcnt lgkmcnt(0)")
        eq = epi_q(g)
        qq = lambda q: mm(g, 0, Wa, X[2], [q]) + mm(g, 0, Wb, X[3], [q])
        g16 = mm(g, 1, g.Wf[0] + 8, X[0])
        for m in qq(0) + qq(1): a(m)
        def mix(V_, mf, every):
            for k, x in enumerate(V_):
                a(x)
                if k % every == every - 1 and mf: a(mf.pop(0))
            for m in mf: a(m)
        mix(eq[0][0], qq(2), 3)
        mix(eq[1][0][:2] + eq[0][1] + [eq[0][2]] + eq[1][0][2:], qq(3), 3)
        for x in wr(17, 1, Wa) + wr(18, 1, Wb): a(x)
        mix(eq[2][0][:2] + eq[1][1] + [eq[1][2]] + eq[2][0][2:] + eq[3][0][:2] + eq[2][1] + [eq[2][2]] + eq[3][0][2:], g16, 4)
    tmp = g.acc[0]; Z0, Z1, Z2 = tmp + 8, tmp + 16, tmp + 24; G = g.acc[1]; U = g.acc[2]; vc1 = g.xb
    for x in wr(19, 1, Z0)[:2] + eq[3][1] + wr(19, 1, Z0)[2:] + [eq[3][2]]: a(x)
    if "qst" in XF: stamp(a)
    a("s_setprio 2")
    params_a(a, g)
    a("s_waitcnt vmcnt(4)")
    gate(a, g, "L_sp_g", l1, t1)
    a(f"s_mov_b32 s{g.sD0}, {f32(-GC3)}\nv_mov_b32 v{vc1}, {f32(-GC1)}")
    weave(a, corr(g, 1), {0: wr(17, 2, Z1), 2: wr(18, 2, Z2), 7: l2})
    def gq(q): return [m for W, i in ((Wa, 17), (Wb, 18), (Z0, 19)) for m in mm(g, 1, W, X[i - 16], [q])]
    def uk(W, i): return mm(g, 2, W, X[i - 16])
    a("s_waitcnt lgkmcnt(8)")
    for m in gq(0): a(m)
    stamp(a)
    FQ = int(os.environ.get("FQ", "0"))
    u16 = uk(g.Wf[0] + 16, 16)
    for m in u16[:4]: a(m)
    OPEN = int(os.environ.get("OPEN", "3"))
    u19 = [uk(Z1, 19)[p * 4 + q] for q in range(4) for p in range(2)]
    if OPEN == 3: plan = [gq(1) + u16[4:], gq(2) + uk(Z1, 17), gq(3) + corr(g, 2), uk(Z2, 18) + u19]
    else: plan = [gq(1) + u16[4:] + uk(Z1, 17)[:4], gq(2) + corr(g, 2), uk(Z1, 17)[4:] + gq(3) + uk(Z2, 18)[:4], uk(Z2, 18)[4:] + u19]
    for h in range(4):
        if h == FQ:
            if PBC: params_b(a, g); params_c(a, g)
            a("s_waitcnt vmcnt(0)"); flag(a, g.sFQ)
        if h == OPEN - 2: a("s_waitcnt lgkmcnt(0)\ns_setprio 1")
        if h == OPEN - 1:
            assert FQ <= h
            gate(a, g, "L_sp_u", l2, t2)
            if OPEN == 3:
                for x in wr(19, 2, Z1): a(x)
            attn_poll(a, w)
            a("s_setprio 0")
        if h == OPEN:
            attn_open(a, w, early=True)
            a(f"s_setprio {4 - OPEN}")
        if h == 3:
            if OPEN == 2:
                for x in wr(19, 2, Z1): a(x)
                a("s_setprio 1")
                plan[3][4] = "s_waitcnt lgkmcnt(0)\n" + plan[3][4]
            else: a("s_waitcnt lgkmcnt(0)")
        R = range(8)
        Gh = G + 8 * h
        V_ = [f"v_mul_f32 v{Gh+r}, v{t+4+h}, v{Gh+r}" for r in R] + [f"v_mul_f32 v{tmp+r}, v{Gh+r}, v{Gh+r}" for r in R]
        V_ += [f"v_fma_f32 v{tmp+r}, v{tmp+r}, s{g.sD0}, v{vc1}" for r in R] + [f"v_mul_f32 v{tmp+r}, v{tmp+r}, v{Gh+r}" for r in R]
        V_ += [f"v_exp_f32 v{tmp+r}, v{tmp+r}" for r in R] + [f"v_fma_f32 v{tmp+r}, v{tmp+r}, v{t+h}, v{t+h}" for r in R]
        V_ += [f"v_rcp_f32 v{tmp+r}, v{tmp+r}" for r in R] + [f"v_mul_f32 v{Gh+r}, v{Gh+r}, v{tmp+r}" for r in R]
        mf = plan[h]
        if "gtr" in XF:
            pos = ([32 + k for k in range(8)] + [48 + k for k in range(8)])[:len(mf)]
        else:
            cost = [8 if ("exp" in x or "rcp" in x) else 4 for x in V_]; tot = sum(cost); acc_ = 0; pos = []
            for k, c in enumerate(cost):
                while len(pos) < len(mf) and acc_ >= len(pos) * (tot - 40) / len(mf): pos.append(k)
                acc_ += c
        for k, x in enumerate(V_):
            a(x)
            for j, pp in enumerate(pos):
                if pp == k: a(mf[j])
    a("s_setprio 0")
    r = Rec()
    for k in range(32): r(f"v_mul_f32 v{U+k}, v{U+k}, v{G+k}")
    for q in range(4):
        for x in pack(U + 8 * q): r(x)
    for q in range(4):
        for x in swaps(U + 8 * q): r(x)
    w.fin = r.L
    w.hst = [f"buffer_store_dwordx4 {vr(U+8*q,4)}, v{vSO}, {sr(SRD_B,4)}, s{g.sXr if q >= 2 else sHS} offen offset:{256*(q&1)} sc1" for q in range(4)]

def role_r(a, g, w):
    a.label("L_role_r")
    a("s_waitcnt vmcnt(0)")
    stats(a, g)
    a(g.st_store)
    sg = Regs('s', S0 + 17, 96); t = T
    sKS, sOff, sDst, sM, sN, sK2 = (sg.one() for _ in range(6)); sFl = sg.many(5, 1)
    V = Regs('v', 24 + 48 + 8, 252)
    vo = V.many(5, 1); va = V.many(5, 1); fr = V.many(20, 4)
    a(f"s_lshl_b32 s{sT}, s{sWAVE}, 2")
    for i in range(5):
        a(f"""v_add_u32 v{t}, {64*i}, v{vLANE}
        v_mul_u32_u24 v{t+1}, 820, v{t}
        v_lshrrev_b32 v{t+1}, 16, v{t+1}
        v_mul_u32_u24 v{t+2}, 80, v{t+1}
        v_sub_u32 v{t+2}, v{t}, v{t+2}
        v_add_u32 v{t+3}, s{sT}, v{t+1}
        v_lshrrev_b32 v{t+4}, 1, v{t+3}
        v_and_b32 v{t+4}, 4, v{t+4}
        v_or_b32 v{t+4}, v{t+4}, v{t+1}
        v_lshlrev_b32 v{t+4}, 1, v{t+4}
        v_xor_b32 v{t+2}, v{t+2}, v{t+4}
        v_mul_u32_u24 v{t+3}, 1280, v{t+3}
        v_lshl_add_u32 v{vo+i}, v{t+2}, 4, v{t+3}""")
    a(f"""v_lshrrev_b32 v{t}, 4, v{vLANE}
    v_bfe_u32 v{t+1}, v{vLANE}, 2, 2
    v_lshl_add_u32 v{t+2}, v{t}, 3, v{t+1}
    v_mul_u32_u24 v{t+2}, 1280, v{t+2}
    v_and_b32 v{t+3}, 1, v{vLANE}
    v_lshl_add_u32 v{t+2}, v{t+3}, 3, v{t+2}
    v_and_b32 v{t}, 1, v{t}
    v_lshl_add_u32 v{t}, v{t}, 2, v{t+1}
    v_lshlrev_b32 v{t}, 1, v{t}
    v_bfe_u32 v{t+1}, v{vLANE}, 1, 1
    s_mul_i32 s{sT}, s{sWAVE}, 10
    v_add_u32 v{t+1}, s{sT}, v{t+1}""")
    for ct in range(5):
        a(f"v_add_u32 v{t+3}, {2*ct}, v{t+1}\nv_xor_b32 v{t+3}, v{t+3}, v{t}\nv_lshl_add_u32 v{va+ct}, v{t+3}, 4, v{t+2}")
    a(f"""s_sub_u32 s{sKS}, s{g.sC}, 30
    s_lshl_b32 s{sKS}, s{sKS}, 3
    s_add_u32 s{sKS}, s{sKS}, s{g.sRB}
    s_mul_i32 s{sM}, s{sWAVE}, 5120
    s_waitcnt vmcnt(0)
    s_barrier""")
    def fetch(st):
        if st < 3:
            a(f"s_mov_b32 s{SRD_A}, s{pWD}\ns_mov_b32 s{SRD_A+1}, s{pWD+1}\ns_mov_b32 s{SRD_A+2}, {F*D*2}\ns_add_u32 s{sT}, s{sKS}, {16*st}")
        else:
            a(f"""s_mov_b32 s{sT}, {D*D*2}
            s_add_u32 s{sU}, s{sKS}, {16*st}
            s_cmp_lt_u32 s{sU}, 54
            s_cselect_b32 s{SRD_A}, s{pWD}, s{pWO}
            s_cselect_b32 s{SRD_A+1}, s{pWD+1}, s{pWO+1}
            s_cselect_b32 s{SRD_A+2}, {F*D*2}, s{sT}
            s_cselect_b32 s{sT}, 0, 54
            s_sub_u32 s{sT}, s{sU}, s{sT}""")
        a(f"s_mul_i32 s{sOff}, s{sT}, 40960")
        for i in range(5):
            a(f"s_add_u32 m0, s{sM}, {(st%4)*40960 + 1024*i}\nbuffer_load_dwordx4 v{vo+i}, {sr(SRD_A,4)}, s{sOff} offen lds")
    for st in range(4): fetch(st)
    stamp(a, idx=2); stamp(a, idx=3)
    for st in range(5):
        a(f"""s_add_u32 s{sK2}, s{sKS}, {16*st}
        s_cmp_lt_u32 s{sK2}, 54
        s_cselect_b32 s{sT}, 0, 54
        s_cselect_b32 s{sU}, 27, 10
        s_cselect_b32 s{sN}, 0, 27
        s_sub_u32 s{sK2}, s{sK2}, s{sT}
        s_cmp_ge_u32 s{sK2}, s{sU}
        s_cselect_b32 s{sT}, s{sU}, 0
        s_cselect_b32 s{sU}, 1, 0
        s_sub_u32 s{sK2}, s{sK2}, s{sT}
        s_add_u32 s{sK2}, s{sK2}, s{sN}
        s_lshl_b32 s{sT}, s{sWAVE}, 1
        s_add_u32 s{sU}, s{sU}, s{sT}
        s_mul_i32 s{sT}, s{sU}, 37
        s_add_u32 s{sT}, s{sT}, s{sK2}
        s_mul_i32 s{sDst}, s{sT}, 5120
        s_add_u32 s{sDst}, s{sDst}, {OFF_WP}
        s_lshl_b32 s{sU}, s{sU}, 6
        s_add_u32 s{sK2}, s{sK2}, s{sU}
        s_lshl_b32 s{sK2}, s{sK2}, 2
        s_add_u32 s{sFl+st}, s{sK2}, {OFF_FW}""")
        if st == 4:
            a(f"s_cmp_lt_u32 s{sKS}, 10\ns_cselect_b32 s{sDst}, s{sDst}, 0x7ff00000\ns_cselect_b32 s{sFl+st}, s{sFl+st}, 0x7ff00000")
        a(f"s_waitcnt vmcnt({(15, 20, 20, 20, 20)[st]})\ns_barrier")
        for ct in range(5):
            a(f"ds_read_b64_tr_b16 {vr(fr+4*ct,2)}, v{va+ct}\nds_read_b64_tr_b16 {vr(fr+4*ct+2,2)}, v{va+ct} offset:5120")
        for ct in range(5):
            if st < 4: a(f"v_add_u32 v{va+ct}, {40960 if st < 3 else (-3*40960) & 0xffffffff}, v{va+ct}")
        a("s_waitcnt lgkmcnt(0)")
        if st == 0:
            a("s_barrier"); fetch(4)
        for ct in range(4):
            a(f"buffer_store_dwordx4 {vr(fr+4*ct,4)}, v{vL16}, {WS}, s{sDst} offen offset:{1024*ct} sc1")
        a(f"""s_add_u32 s{sDst}, s{sDst}, 4096
        buffer_store_dwordx4 {vr(fr+16,4)}, v{vL16}, {WS}, s{sDst} offen sc1""")
    stamp(a, idx=4)
    params_a(a, g)
    if PBC: params_b(a, g); params_c(a, g)
    a(f"v_mov_b32 v{vSO}, 0\ns_mov_b32 s{sHS}, 0\ns_waitcnt vmcnt(0)")
    for st in range(5): flag(a, sFl + st)
    stamp(a, idx=5)
    n0 = Stamper.n; Stamper.n = w.open_stamp
    attn_open(a, w, "_b")
    Stamper.n = n0
    a("s_branch L_attn")

class AT: pass
def alloc_at():
    w = AT(); V = Regs('v', WK, 252)
    w.Sb = [V.many(32, 4) for b in range(2)]; w.O = [V.many(16, 4) for q in range(2)]
    w.Qm = [V.many(4, 4) for q in range(2)]; w.Km = V.many(4, 4); w.V0 = V.many(4, 4); w.V1 = V.many(4, 4)
    w.Qr = V.many(2, 2); w.Kr = V.many(2, 2)
    return w

MC = int(os.environ.get("MC", "0"))
def phys(c):
    if c == 9: return phys(6)
    if c < MC + 2: return c % 2
    return c - MC if c < MC + 4 else phys(c - 4)
ACCD, WT = HB + 80, HB + 100
NHS = 20 if MC else 27
def hreg(n): return HB + 4 * (n if n < NHS else n - NHS)
class Cnt:
    def __init__(self, a, name, cap): self.a, self.name, self.cap, self.q = a, name, cap, []
    def issue(self, tag, txt, n=1): self.a(txt); self.q += [tag] * n
    def wait(self, *tags):
        idx = max([i for i, x in enumerate(self.q) if x in tags], default=-1)
        if idx >= 0:
            self.a(f"s_waitcnt {self.name}({min(self.cap, len(self.q) - 1 - idx)})"); del self.q[:idx + 1]
def w3_dma(c, R=SRD_WS, loose=False):
    L = []
    for i in range(5):
        pre = ""
        if i in (0, 4) or loose:
            k = 4096 if i == 4 else 0
            pre = f"s_add_u32 m0, s{sM3}, {phys(c)*G3_SLOT + k}\ns_add_u32 s{sW3}, s{sWO}, {c*4*5120 + k}\n"
        L.append(pre + f"buffer_load_dwordx4 v{vL16}, {sr(R,4)}, s{sW3} offen offset:{1024*(i&3)} sc1 lds")
    return L
sW3 = S0 + 30
def b_load(dst, base, k):
    s = f"s_add_u32 s{base}, s{base}, 4096\n" if k and k % 2 == 0 else ""
    return s + f"buffer_load_dwordx4 {vr(dst,4)}, v{vBO}, {WS}, s{base} offen offset:{(k&1)*2048} sc1"

def kv_dma(c):
    b = A_BASE + (c % 3) * A_SLOT; inc = 4 * P_QKV if c else 0
    return [f"s_add_u32 m0, s{sDM}, {b}\ns_add_u32 s{sDO}, s{sDO}, {inc}\nbuffer_load_dwordx4 v{vKVO}, {WS}, s{sDO} offen sc1 lds",
            f"s_add_u32 m0, s{sDM}, {b + A_REG - 512}\ns_nop 0\nbuffer_load_dwordx4 v{vKVO}, {WS}, s{sDO} offen offset:512 sc1 lds",
            f"s_add_u32 m0, s{sDM}, {b + 2*A_REG}\ns_add_u32 s{sDO+1}, s{sDO+1}, {inc}\nbuffer_load_dwordx4 v{vKVO}, {WS}, s{sDO+1} offen sc1 lds"]

vPQ = 244
def q_loads():
    t = vPQ
    return [f"buffer_load_dword v{t}, v{vFQO}, {WS}, s{sT} offen sc1",
            f"buffer_load_dword v{t+1}, v{vFQO}, {WS}, s{sU} offen sc1",
            f"buffer_load_dword v{t+2}, v{vFQO}, {WS}, s{sU} offen offset:2560 sc1"]
PW = int(os.environ.get("PW", "4"))
def attn_poll(a, w):
    a(f"""s_cmp_lg_u32 s{sWAVE}, {PW}
    s_cbranch_scc1 L_q_nopoll
    s_mov_b32 s{sT}, {OFF_FQ}
    s_mov_b32 s{sU}, {OFF_FQ + 2560}""")
    for l in q_loads(): a(l)
    a.label("L_q_nopoll")
def attn_open(a, w, sfx="", early=False):
    t = vPQ
    w.open_stamp = Stamper.n
    stamp(a)
    loads = q_loads()
    a(f"""s_cmp_lg_u32 s{sWAVE}, {PW}
    s_cbranch_scc1 L_sp_q_done{sfx}""")
    if early:
        a("s_waitcnt vmcnt(0)"); check_ne(a, [t, t + 1, t + 2]); a(f"s_cbranch_vccz L_sp_q_done{sfx}")
    else:
        a(f"s_mov_b32 s{sT}, {OFF_FQ}\ns_mov_b32 s{sU}, {OFF_FQ + 2560}")
    spin(a, "L_sp_q" + sfx, loads, [t, t + 1, t + 2], "L_sp_q_done" + sfx, int(os.environ.get("QSL", "2")) if early else SLEEP)
    a.label("L_sp_q_done" + sfx)
    a("s_barrier")
    stamp(a)
    for x in kv_dma(0): a(x)
    a(f"""buffer_load_dwordx4 {vr(w.Qm[0],4)}, v{vL16}, {WS}, s{sQB_} offen sc1
    buffer_load_dwordx4 {vr(w.Qm[1],4)}, v{vL16}, {WS}, s{sQA} offen sc1
    buffer_load_dwordx2 {vr(w.Qr,2)}, v{vQRO}, {WS}, s{sQR} offen sc1""")

def attention(a, w, g):
    t = T; Sb, O, Qm, Km, V0, V1, Qr, Kr = w.Sb, w.O, w.Qm, w.Km, w.V0, w.V1, w.Qr, w.Kr
    dma = kv_dma
    a.label("L_attn")
    if not PBC: params_b(a, g)
    a(f"""; token-side fragment offset of phase 3: lane (t16, g): piece g, row t16
    v_and_b32 v{vBO}, 0xf0, v{vL16}
    v_lshrrev_b32 v{t}, 4, v{vLANE}
    v_lshl_add_u32 v{vBO}, v{t}, 9, v{vBO}
    v_and_b32 v{t+4}, 3, v0
    v_cmp_eq_u32 vcc, 0, v{t+4}
    v_mov_b32 v{t+4}, 0x3f80
    v_lshlrev_b32 v{t+5}, 2, v0
    v_cndmask_b32 v{t+4}, 0, v{t+4}, vcc
    v_add_u32 v{t+5}, {A_ONES}, v{t+5}
    ds_write_b32 v{t+5}, v{t+4}
    v_min_u32 v{t+6}, 26, v{vLANE}
    v_min_u32 v{t+7}, 36, v{vLANE}
    v_lshlrev_b32 v{t+6}, 2, v{t+6}
    v_lshlrev_b32 v{t+7}, 2, v{t+7}
    s_mov_b32 s{SRD_B}, s{pWS}
    s_mov_b32 s{SRD_B+1}, s{pWS+1}
    s_cmp_lt_u32 s{g.sC}, 27
    s_cselect_b32 s{SRD_B+2}, {WS_USED}, 0""")
    NF = int(os.environ.get("NFIN", "54"))
    fin = w.fin + [f"v_mov_b32 v{O[q]+r}, 0" for q in range(2) for r in range(16)]
    for x in fin[:NF]: a(x)
    fin = fin[NF:]
    for x in kv_dma(1): a(x)
    a(f"""s_or_b32 s{sT}, s2, s{sWAVE}
    s_cmp_lg_u32 s{sT}, 0
    s_cbranch_scc1 L_noep
    s_mov_b32 s{sT}, {OFF_EP}
    s_waitcnt vmcnt(0)""")
    flag(a, sT)
    a.label("L_noep")
    def rdKr(i): return f"ds_read_b64 {vr(Kr,2)}, v{vKRA} offset:{((i>>2)%3)*A_SLOT + (i&3)*512}"
    def rdKm(i): return f"ds_read_b128 {vr(Km,4)}, v{vKMA} offset:{((i>>2)%3)*A_SLOT + (i&3)*512}"
    def rdV(i, s):
        R = V1 if s else V0
        return "\n".join(f"ds_read_b64_tr_b16 {vr(R+2*rd,2)}, v{vVA+(i>>2)%3} offset:{(i&3)*512 + s*256 + rd*64}" for rd in range(2))
    def m2b(i): return f"v_mfma_f32_32x32x4_2b_bf16 {vr(Sb[i&1],32)}, {vr(Kr,2)}, {vr(Qr,2)}, 0"
    def m16(i, q): return f"v_mfma_f32_32x32x16_bf16 {vr(Sb[i&1]+16*q,16)}, {vr(Km,4)}, {vr(Qm[q],4)}, {vr(Sb[i&1]+16*q,16)}"
    def smf(i, q, s): return f"v_smfmac_f32_32x32x32_bf16 {vr(O[q],16)}, {vr(V1 if s else V0,4)}, {vr(Sb[i&1]+16*q+8*s,8)}, v{vIDX}"
    a("s_waitcnt vmcnt(3) lgkmcnt(0)\ns_barrier")
    stamp(a)
    n1 = max(0, len(fin) - 34)
    a(rdKr(0)); a(rdKm(0)); a(rdV(0, 0))
    for x in fin[:n1]: a(x)
    a("s_waitcnt lgkmcnt(2)")
    a(m2b(0)); a(rdKr(1))
    for x in fin[n1:n1+18]: a(x)
    a(m16(0, 0))
    for x in fin[n1+18:n1+24]: a(x)
    a(m16(0, 1)); a(rdKm(1))
    for x in fin[n1+24:]: a(x)
    a("s_waitcnt lgkmcnt(0)")
    NT = 32
    PS = [int(x) for x in os.environ.get("PS", "1,3,7").split(",") if x]
    if PS: a("s_setprio 3")
    floads = [f"buffer_load_dword v{t}, v{t+6}, {WS}, s{sFHc} offen sc1", f"buffer_load_dword v{t+1}, v{t+7}, {WS}, s{sFWc} offen sc1"]
    w.floads = floads
    vm = Cnt(a, "vmcnt", 63); lq = Cnt(a, "lgkmcnt", 15); w.vm = vm
    vm.q = ["kv1"] * 3
    hl = lambda n: (f"h{n}", b_load(hreg(n), sH, n))
    wl = lambda c: [(f"w{c}", x) for x in w3_dma(c, loose=True)]
    I0 = 7 - MC
    plan = {c: [] for c in range(3, 8)}; hn = 0
    for k in range(MC + 2):
        c = min(7, max(3 + min(k, 1), I0 + k - 1)); plan[c] += wl(k)
    for c in range(3, 8):
        lim = 27 if c == 7 else min(NHS + 4 * max(0, c - I0), 27, hn + (12 if MC else 9) - len(plan[c]))
        plan[c] += [hl(n) for n in range(hn, lim)]; hn = lim
    nrem = (37 - 4 * (MC + 2)) * 40; per = -(-nrem // 32)
    plan[6].append(("t", f"""s_bfe_u32 s{sT}, s2, 0x30003
    s_lshl2_add_u32 s{sT}, s{sT}, s{sQ4}
    s_mul_i32 s{sT}, s{sT}, {per*128}
    s_mul_i32 s{sU}, s{sQ4}, 5120
    s_sub_u32 s{sT}, s{sT}, s{sU}
    s_add_u32 s{sT}, s{sT}, s{sWO}
    s_add_u32 s{sT}, s{sT}, {4*(MC+2)*5120}
    v_min_u32 v{t+6}, {per-1}, v{vLANE}
    v_lshlrev_b32 v{t+6}, 7, v{t+6}
    buffer_load_dword v{t}, v{t+6}, {WS}, s{sT} offen sc1"""))
    if "code2" in XF:
        plan[7].append(("t", f"""s_getpc_b64 s[{S0+26}:{S0+27}]
        L_pc2:
        s_bfe_u32 s{sT}, s2, 0x20003
        s_lshl3_add_u32 s{sT}, s{sT}, s{sWAVE}
        s_lshl_b32 s{sT}, s{sT}, 8
        s_min_u32 s{sT}, s{sT}, L_end-L_slow_done-136
        s_add_u32 s{sT}, s{sT}, L_slow_done-L_pc2+124
        s_add_u32 s{S0+26}, s{S0+26}, s{sT}
        s_addc_u32 s{S0+27}, s{S0+27}, 0
        s_and_b32 s{S0+26}, s{S0+26}, 0xffffff80
        s_sub_u32 s{S0+26}, s{S0+26}, 4
        s_subb_u32 s{S0+27}, s{S0+27}, 0
        s_mov_b64 exec, 1
        v_mov_b32 v{t+4}, s{S0+26}
        v_mov_b32 v{t+5}, s{S0+27}
        global_load_dwordx2 v[{t+4}:{t+5}], v[{t+4}:{t+5}], off
        s_mov_b64 exec, -1"""))
    if "noorem" not in XF:
        plan[7].insert(5, ("t", f"s_mov_b32 exec_hi, 0\nbuffer_load_dword v{t}, v{vL16}, {WS}, s{sOR} offen sc1\ns_mov_b64 exec, -1"))
    r = Rec(); params_c(r, g); pc = [] if PBC else r.L
    queue = []; dq = []; dn = [0]
    def d_read(j):
        n, ct = divmod(j, 5)
        lq.issue(("d", j), f"ds_read_b128 {vr(WT+4*(j&1),4)}, v14 offset:{phys(n>>2)*G3_SLOT + (n&3)*5120 + ct*1024}")
    def D():
        if not dq: return
        j = dq.pop(0); n, ct = divmod(j, 5)
        vm.wait(f"h{n}"); lq.wait(("d", j))
        a(f"v_mfma_f32_16x16x32_bf16 {vr(ACCD+4*ct,4)}, {vr(WT+4*(j&1),4)}, {vr(hreg(n),4)}, {'0' if n == 0 else vr(ACCD+4*ct,4)}")
        if len(dq) >= 2: d_read(j + 2)
    def Q():
        if queue: vm.issue(*queue.pop(0))
    a.auto = False
    for i in range(NT):
        def E(lo, hi):
            for k in range(lo, hi):
                a(f"v_exp_f32 v{Sb[i&1]+k}, v{Sb[i&1]+k}")
                if pc and k % 4 == 3: a(pc.pop(0))
        last = i == NT - 1
        def prio(pt):
            if not PS: return
            nb = min([b for b in range(2, 27, 4) if b * 4 + 1 > i * 4 + pt] + [NT - 0.25])
            left = int(round(nb * 4 + 1 - (i * 4 + pt)))
            for p, th in enumerate(PS):
                if left == th: a(f"s_setprio {p}")
        prio(0)
        D(); E(0, 2)
        if i: a(smf(i - 1, 1, 1))
        lq.issue(("V1", i), rdV(i, 1), 2); E(2, 5)
        if not last: lq.wait(("Kr", i + 1)); a(m2b(i + 1))
        if (i + 2) % 4 == 0 and i + 2 < NT:
            c = (i + 2) // 4
            assert not queue and not dq, (i, queue, dq)
            vm.wait(f"kv{c}", "fl", f"w{c-I0}")
            if c == 3:
                a.auto = True
                check_ne(a, [t, t + 1])
                a("s_cbranch_vccnz L_sp_h")
                a.label("L_sp_h_done")
                a.auto = False
            a("s_barrier")
            if PS: a("s_setprio 3")
            if c + 1 < 8: queue += [(f"kv{c+1}", x) for x in dma(c + 1)]
            queue += plan.get(c, [])
            if 0 <= c - I0 < MC:
                dq += list(range(20 * (c - I0), 20 * (c - I0) + 20)); d_read(dq[0]); d_read(dq[1])
        if i == 0: queue += [("hs", x) for x in w.hst]
        if i == 4:
            vm.wait("hs"); flag(a, sFHp); vm.q.append("x")
        if i == 8 and MC:
            a(f"s_mul_i32 s{sT}, s{sHI}, {4*5120}\nv_add_u32 v14, s{sT}, v{vL16}")
        if i == 9:
            assert not pc
            queue += [("fl", x) for x in floads]
        if i + 2 < NT: lq.issue(("Kr", i + 2), rdKr(i + 2))
        prio(1)
        E(5, 9); Q(); E(9, 13)
        lq.wait(("V0", i)); a(smf(i, 0, 0))
        if i >= 2: Q()
        prio(2)
        E(13, 16); D(); E(16, 17); D(); E(17, 18)
        lq.wait(("V1", i), ("Km", i + 1), ("Kr", i + 2)); a(smf(i, 0, 1))
        Q(); E(18, 21)
        if not last: a(m16(i + 1, 0))
        prio(3)
        E(21, 24); D(); E(24, 25); D(); E(25, 26)
        a(smf(i, 1, 0))
        if not last: lq.issue(("V0", i + 1), rdV(i + 1, 0), 2)
        E(26, 29)
        if last:
            for q in range(3): a(f"ds_write_b128 v{t+1}, {vr(O[0]+4*q,4)} offset:{1024*q}")
        if i == NT - 2:
            a(f"""s_mul_i32 s{sT}, s{sWAVE}, 3200
            s_add_u32 s{sT}, s{sT}, {A_XCH}
            v_add_u32 v{t+1}, s{sT}, v{vL16}
            s_xor_b32 s{sU}, s{sWAVE}, 4
            s_mul_i32 s{sU}, s{sU}, 3200
            s_add_u32 s{sU}, s{sU}, {A_XCH}
            v_add_u32 v{t+2}, s{sU}, v{vL16}""")
        if not last: a(m16(i + 1, 1))
        if i + 2 < NT: lq.issue(("Km", i + 2), rdKm(i + 2))
        if i >= 10 and (MC or i == 25): Q()
        E(29, 32)
    assert not queue and not dq
    a.auto = True
    a(smf(NT - 1, 1, 1))
    stamp(a)
    vm.wait(f"w{MC}", f"w{MC+1}", "t")
    a("s_waitcnt lgkmcnt(0)\ns_barrier")
    X = Sb[0]; w.X = X
    for q in range(3): a(f"ds_read_b128 {vr(X+4*q,4)}, v{t+2} offset:{1024*q}")
    w.npre = int(os.environ.get("NPRE", "2"))
    for x in w3_dma(MC + 2)[:w.npre]: vm.issue(f"w{MC+2}", x)
    a("s_waitcnt lgkmcnt(0)")
    for r in range(12): a(f"v_add_f32 v{X+r}, v{X+r}, v{O[1]+r}")
    a(f"""v_mov_b32 v{X+12}, v{X+8}
    v_mov_b32 v{X+13}, v{X+8}
    v_mul_f32 v{X+14}, 0, v{X}""")
    a(f"v_permlane32_swap_b32 v{X+13}, v{X+12}")
    for r in range(1, 12): a(f"v_fmac_f32 v{X+14}, 0, v{X+r}")
    a(f"""v_add_f32 v{X+14}, v{X+14}, v{X+12}
    v_cmp_nle_f32 vcc, {f32(2.0**-64)}, v{X+14}
    s_mov_b64 s[{S0+26}:{S0+27}], vcc
    v_cmp_nge_f32 vcc, {f32(2.0**64)}, v{X+14}
    s_or_b64 vcc, vcc, s[{S0+26}:{S0+27}]
    s_cbranch_scc1 L_slow""" if "force_slow" not in XF else "s_branch L_slow")
    a.label("L_slow_done")
    a(f"v_rcp_f32 v{X+13}, v{X+12}")
    for r in range(12): a(f"v_mul_f32 v{X+r}, v{X+r}, v{X+13}")
    for r in range(6): a(f"v_cvt_pk_bf16_f32 v{X+16+r}, v{X+2*r}, v{X+2*r+1}")
    a(f"""buffer_store_dwordx4 {vr(X+16,4)}, v{vL16}, {WS}, s{sOA} offen sc1
    s_mov_b32 exec_hi, 0
    buffer_store_dwordx2 {vr(X+20,2)}, v{vL16}, {WS}, s{sOR} offen sc1
    s_mov_b64 exec, -1""")
    stamp(a)

def attn_cold(a, w):
    t = T; Sb, O, Qm, Km, V0, V1, Qr, Kr, X = w.Sb, w.O, w.Qm, w.Km, w.V0, w.V1, w.Qr, w.Kr, w.X
    a.label("L_sp_h")
    spin(a, "L_sp_h_loop", w.floads, [t, t + 1], "L_sp_h_done")
    a("s_branch L_sp_h_done")
    a.label("L_slow")
    Sx = Sb[1]; NM = Sb[1] + 16; Oa = O[1]; vb = O[0]; mx = O[0] + 8; vho = O[0] + 9; vwa = O[0] + 10; vws = O[0] + 11; vra = O[0] + 12
    sKA, sKS_, sN, sSC = S0 + 26, S0 + 27, S0 + 28, S0 + 29
    a(f"""s_xor_b32 s{sSC}, s{sWAVE}, 4
    s_mul_i32 s{sSC}, s{sSC}, 3200
    s_add_u32 s{sSC}, s{sSC}, {A_XCH}
    v_cmp_lt_u32 vcc, 31, v{vLANE}
    v_and_b32 v{vho}, 31, v{vLANE}
    v_lshlrev_b32 v{vho}, 4, v{vho}
    v_cndmask_b32 v{Qr}, 0, v{Qr}, vcc
    v_cndmask_b32 v{Qr+1}, 0, v{Qr+1}, vcc
    v_mov_b32 v{mx}, 0xff800000
    v_add_u32 v{vwa}, s{sSC}, v{vL16}
    v_add_u32 v{vws}, s{sSC}, v{vho}
    s_bfe_u32 s{sT}, s2, 0x30003
    s_lshl_b32 s{sT}, s{sT}, 2
    s_add_u32 s{sT}, s{sT}, s{sQ4}
    s_mul_i32 s{sT}, s{sT}, {2*P_QKV}
    s_sub_u32 s{sKS_}, s{sQR}, s{sT}
    s_mul_i32 s{sU}, s{sHI}, {P_QKV}
    s_add_u32 s{sT}, s{sT}, s{sU}
    s_sub_u32 s{sKA}, s{sQA}, s{sT}
    s_add_u32 s{sKA}, s{sKA}, {80*512}
    s_add_u32 s{sKS_}, s{sKS_}, {80*512}
    ; transposed V reads from the private scratch [A 512][B 512][S 512]
    v_bfe_u32 v{t+1}, v{vLANE}, 2, 2
    v_lshrrev_b32 v{t}, 5, v{vLANE}
    v_lshl_add_u32 v{t+1}, v{t}, 3, v{t+1}
    v_lshlrev_b32 v{t+1}, 4, v{t+1}
    v_and_b32 v{t+2}, 1, v{vLANE}
    v_lshlrev_b32 v{t+2}, 9, v{t+2}
    v_bfe_u32 v{t+3}, v{vLANE}, 1, 1
    v_lshl_add_u32 v{t+2}, v{t+3}, 3, v{t+2}
    v_mov_b32 v{t+5}, 1024
    v_and_b32 v{t+4}, 19, v{vLANE}
    v_cmp_eq_u32 vcc, 16, v{t+4}
    v_lshlrev_b32 v{t+3}, 3, v{t+3}
    v_add_u32 v{t+3}, {A_ONES}, v{t+3}
    v_cndmask_b32 v{t+2}, v{t+2}, v{t+5}, vcc
    v_cmp_lt_u32 vcc, 16, v{t+4}
    v_add_u32 v{t+2}, s{sSC}, v{t+2}
    v_cndmask_b32 v{t+2}, v{t+2}, v{t+3}, vcc
    v_add_u32 v{vra}, v{t+2}, v{t+1}
    s_mov_b32 s{sN}, 0""")
    def kload():
        a(f"""s_add_u32 s{sT}, s{sKA}, s{sN}
        s_add_u32 s{sU}, s{sKS_}, s{sN}
        buffer_load_dwordx4 {vr(Km,4)}, v{vL16}, {WS}, s{sT} offen sc1
        buffer_load_dwordx2 {vr(Kr,2)}, v{vho}, {WS}, s{sU} offen sc1""")
    def qk(c):
        a(f"""v_mfma_f32_32x32x16_bf16 {vr(Sx,16)}, {vr(Km,4)}, {vr(Qm[1],4)}, {c}
        v_mfma_f32_32x32x8_bf16 {vr(Sx,16)}, {vr(Kr,2)}, {vr(Qr,2)}, {vr(Sx,16)}""")
    def nxt(l): a(f"s_add_u32 s{sN}, s{sN}, {P_QKV}\ns_cmp_lt_u32 s{sN}, {64*P_QKV}\ns_cbranch_scc1 {l}")
    a.label("L_slow_a")
    kload(); a("s_waitcnt vmcnt(0)"); qk("0")
    for r in range(0, 16, 2): a(f"v_max3_f32 v{mx}, v{Sx+r}, v{Sx+r+1}, v{mx}")
    nxt("L_slow_a")
    a(f"""v_mov_b32 v{t}, v{mx}
    v_permlane32_swap_b32 v{t}, v{mx}
    v_max_f32 v{mx}, v{mx}, v{t}
    s_mov_b32 s{sN}, 0""")
    for r in range(16): a(f"v_sub_f32 v{NM+r}, 0, v{mx}\nv_mov_b32 v{Oa+r}, 0")
    a.label("L_slow_b")
    kload()
    a(f"""s_add_u32 s{sT}, s{sT}, {80*512}
    s_add_u32 s{sU}, s{sU}, {80*512}
    buffer_load_dwordx4 {vr(vb,4)}, v{vL16}, {WS}, s{sT} offen sc1
    buffer_load_dwordx2 {vr(vb+4,2)}, v{vho}, {WS}, s{sU} offen sc1
    s_waitcnt vmcnt(0)
    ds_write_b128 v{vwa}, {vr(vb,4)}
    ds_write_b64 v{vws}, {vr(vb+4,2)} offset:1024""")
    qk(vr(NM, 16))
    a("s_waitcnt lgkmcnt(0)")
    for s in range(2):
        for rd in range(2): a(f"ds_read_b64_tr_b16 {vr((V1 if s else V0)+2*rd,2)}, v{vra} offset:{s*256+rd*64}")
    for r in range(16): a(f"v_exp_f32 v{Sx+r}, v{Sx+r}")
    a("s_waitcnt lgkmcnt(0)")
    for s in range(2): a(f"v_smfmac_f32_32x32x32_bf16 {vr(Oa,16)}, {vr(V1 if s else V0,4)}, {vr(Sx+8*s,8)}, v{vIDX}")
    nxt("L_slow_b")
    for r in range(12): a(f"v_mov_b32 v{X+r}, v{Oa+r}")
    a(f"""v_mov_b32 v{X+12}, v{Oa+8}
    v_mov_b32 v{X+13}, v{Oa+8}
    v_permlane32_swap_b32 v{X+13}, v{X+12}
    s_nop 1
    s_branch L_slow_done""")

def gemm3(a, w):
    t = T; V = Regs('v', WK, 252)
    OB = V.many(40, 4); xx = V.many(20, 4); accs = V.many(20, 4); Wf = [V.many(20, 4) for b in range(2)]; accd = ACCD if MC else xx
    N0 = 4 * MC
    wa = vIDX
    RD, RS = phys(5) * G3_SLOT, phys(7) * G3_SLOT
    out = w.vm.q + ["ost"] * 2
    lq = []
    def vm(tag, txt): a(txt); out.append(tag)
    def lds(tag, txt): a(txt); lq.append(tag)
    def w_vm(tag):
        if tag in out:
            idx = max(i for i, x in enumerate(out) if x == tag)
            a(f"s_waitcnt vmcnt({len(out) - 1 - idx})"); del out[:idx + 1]
    def w_lds(tag):
        if tag in lq:
            idx = max(i for i, x in enumerate(lq) if x == tag)
            a(f"s_waitcnt lgkmcnt({min(15, len(lq) - 1 - idx)})"); del lq[:idx + 1]
    for x in w3_dma(MC + 2)[w.npre:]: vm(f"w{MC+2}", x)
    a(f"s_mul_i32 s{sT}, s{sHI}, {4*5120}")
    for k in range(4): a(f"s_add_u32 s{sU}, s{sT}, {k*G3_SLOT}\nv_add_u32 v{wa+k}, s{sU}, v{vL16}")
    def rd(n, ct): lds((n, ct), f"ds_read_b128 {vr(Wf[n&1]+4*ct,4)}, v{wa+phys(n>>2)} offset:{(n&3)*5120 + ct*1024}")
    for n in (N0, N0 + 1):
        for ct in range(5): rd(n, ct)
    vo = 8
    r = Rec()
    r(f"""v_and_b32 v{t+7}, 15, v{vLANE}
    v_lshlrev_b32 v{t+7}, 2, v{t+7}
""")
    srd(r, SRD_B, pX, S * D * 2)
    for q in range(3):
        r(f"v_add_u32 v{t+2}, {512*q}, v0" if q < 2 else f"v_lshrrev_b32 v{t+2}, 1, v0\nv_add_u32 v{t+2}, 1024, v{t+2}")
        r(f"""v_mul_u32_u24 v{t+3}, 3277, v{t+2}
        v_lshrrev_b32 v{t+3}, 16, v{t+3}
        v_bfe_u32 v{t+4}, v{t+3}, 1, 2
        v_xor_b32 v{t+2}, v{t+2}, v{t+4}
        v_mul_u32_u24 v{t+3}, {1280-160}, v{t+3}
        v_lshl_add_u32 v{vo+q}, v{t+2}, 3, v{t+3}""")
    r(f"""v_and_b32 v{t+2}, 1, v0
    v_lshl_add_u32 v{vo+2}, v{t+2}, 2, v{vo+2}
    v_lshlrev_b32 v11, 4, v0
    v_add_u32 v11, {RD}, v11
    v_lshlrev_b32 v12, 3, v0
    v_add_u32 v12, {RD + 16384}, v12
    v_lshrrev_b32 v{t+2}, 4, v{vLANE}
    v_bfe_u32 v{t+3}, v{vLANE}, 1, 2
    v_xor_b32 v{t+2}, v{t+2}, v{t+3}
    v_mul_u32_u24 v14, 80, v{t+7}
    v_lshl_add_u32 v14, v{t+2}, 4, v14
    s_add_u32 s{sT}, s{sM3}, {RD}
    v_add_u32 v14, s{sT}, v14""")
    side = r.L
    x2 = xx if MC else HB; xs = x2 + 8; red = HB + 28; g_ = HB + 52
    oflag = f"buffer_load_dword v{t}, v{t+7}, {WS}, s{sFOc} offen sc1"
    w.oflag = oflag
    N_FLAG, N_POLL, N_CHK = (int(x) for x in os.environ.get("G3N", "5,23,0").split(","))
    WGAP, OGAP = (int(x) for x in os.environ.get("G3G", "3,3").split(","))
    vq = []
    def red_reads(delta):
        for q in range(3):
            for k in range(2):
                lds(("red", q), f"ds_read_b128 {vr(red+8*q+4*k,4)}, v11 offset:{8192*q + 20480*k}" if q < 2 else f"ds_read_b64 {vr(red+16+4*k,2)}, v12 offset:{20480*k}")
    NX = N0 + (5 if MC else 10); CHK = os.environ.get("CHK", "pre"); NOF = int(os.environ.get("NOF", "4"))
    ol = [(f"o{k}", b_load(OB + 4 * k, sO3, k)) for k in range(10)]
    def o_gate():
        w_vm("of")
        check_ne(a, [t])
        a("s_cbranch_vccnz L_sp_o")
        a.label("L_sp_o_done")
        stamp(a)
        pass
        for _ in range(NOF): vm(*ol.pop(0))
    for n in range(N0, 37):
        A = accd if n < 27 else accs
        Bn = hreg(n) if n < 27 else OB + 4 * (n - 27)
        w_vm(f"h{n}")
        first = n in (0, 27)
        if "g3t" in XF and n in (N_FLAG, N_FLAG + 1, 27, 28): stamp(a)
        if "g3st" in XF and n in (12, 14, 16, 18, 20, 22, 24, 26, 27, 28, 29, 31, 33, 35): stamp(a)
        if n == N_FLAG:
            w_vm("ost"); flag(a, sFO); out.append("fl")
        if n % 4 == 2 and n + 2 < 37:
            c = (n + 2) // 4
            assert not any(x[0] == f"w{c}" for x in vq)
            w_vm(f"w{c}")
            a("s_barrier")
            if c + 2 < 9: vq += [(f"w{c+2}", x) for x in w3_dma(c + 2)]
            if c == 8:
                vq += [("w9", f"""s_mul_i32 s{sT}, s{sQ4}, {5120 - 1024}
                s_sub_u32 s{sW3}, s{sWO}, s{sT}
                s_add_u32 s{sW3}, s{sW3}, {36*5120}
                s_sub_u32 s{sT}, s{sM3}, s{sT}
                s_add_u32 m0, s{sT}, {phys(9)*G3_SLOT}
                s_lshl_b32 s{sU}, s{sQ4}, 10
                buffer_load_dwordx4 v{vL16}, {WS}, s{sW3} offen sc1 lds"""),
                       ("w9", f"""s_sub_u32 s{sU}, 4096, s{sU}
                s_add_u32 m0, m0, s{sU}
                s_add_u32 s{sW3}, s{sW3}, s{sU}
                buffer_load_dwordx4 v{vL16}, {WS}, s{sW3} offen sc1 lds""")]
        if "nop3" not in XF: a(f"s_setprio {(1 - n) % 4 if n < 34 else 36 - n}")
        if n == N_POLL: vq.insert(0, ("of", oflag))
        if n == NX:
            assert not side
            vq += [("x", f"buffer_load_dword{'x2' if q < 2 else ''} {vr(x2+2*q,2 if q < 2 else 1)}, v{vo+q}, {sr(SRD_B,4)}, s{sOUT} offen") for q in range(3)]
        if N_CHK and n == N_CHK: o_gate()
        if n == 23:
            assert not side; w_vm("x")
            r = Rec()
            for k in range(5): r(f"v_lshlrev_b32 v{xs+2*k}, 16, v{x2+k}\nv_and_b32 v{xs+2*k+1}, 0xffff0000, v{x2+k}")
            srd(r, SRD_B, pOUT, S * D * 2)
            side = r.L
        if n == 27:
            assert not side and not vq
            if CHK == "pre" and not N_CHK: o_gate()
            for ct in range(5): lds("dw", f"ds_write_b128 v14, {vr(accd+4*ct,4)} offset:{64*ct}")
            if CHK == "mid": o_gate()
            a("s_waitcnt lgkmcnt(0)\ns_barrier"); lq.clear()
            red_reads(0)
            if CHK == "post": o_gate()
            r = Rec(); r(f"s_mov_b32 s{sT}, {f32(-LOG2E)}")
            for k in range(10): r(f"v_add_f32 v{g_+k}, v{red+8*(k//4)+k%4}, v{red+8*(k//4)+4+k%4}")
            for k in range(10): r(f"v_mul_f32 v{red+k}, s{sT}, v{g_+k}")
            for k in range(10): r(f"v_exp_f32 v{red+k}, v{red+k}")
            for k in range(10): r(f"v_add_f32 v{red+k}, 1.0, v{red+k}")
            for k in range(10): r(f"v_rcp_f32 v{red+k}, v{red+k}")
            for k in range(10): r(f"v_mul_f32 v{g_+k}, v{g_+k}, v{red+k}")
            for k in (11, 12, 14): r(f"v_add_u32 v{k}, {(RS-RD) & 0xffffffff}, v{k}")
            NSI = int(os.environ.get("NSI", "64"))
            a("s_waitcnt lgkmcnt(0)"); lq.clear()
            for k, x in enumerate(r.L[:NSI]):
                a(x)
                if k % 10 == 0 and ol and CHK != "end": vm(*ol.pop(0))
            side = r.L[NSI:]
            if CHK == "end": o_gate()
        if n >= 27:
            assert not any(x[0] == f"o{n-27}" for x in ol)
            w_vm(f"o{n-27}")
        for ct in range(5):
            w_lds((n, ct))
            a(f"v_mfma_f32_16x16x32_bf16 {vr(A+4*ct,4)}, {vr(Wf[n&1]+4*ct,4)}, {vr(Bn,4)}, {'0' if first else vr(A+4*ct,4)}")
            if n + 2 < 37: rd(n + 2, ct)
            gap = 5 * n + ct
            if n >= 27 and ol and gap % 2 == 0: vm(*ol.pop(0))
            elif gap % WGAP == 0 and vq: vm(*vq.pop(0))
            elif gap % WGAP == 0 and N_CHK and n >= N_CHK and ol: vm(*ol.pop(0))
            for _ in range(2 if n < NX and MC else 1):
                if side: a(side.pop(0))
    for x in side: a(x)
    assert not vq and not ol
    stamp(a)
    for ct in range(5): a(f"ds_write_b128 v14, {vr(accs+4*ct,4)} offset:{64*ct}")
    a("s_waitcnt lgkmcnt(0)\ns_barrier")
    red_reads(RS - RD)
    for q in range(3):
        a(f"s_waitcnt lgkmcnt({4-2*q})")
        ne = 4 if q < 2 else 2
        for e in range(ne):
            a(f"v_add_f32 v{red+8*q+e}, v{red+8*q+e}, v{red+8*q+4+e}\nv_fmac_f32 v{xs+4*q+e}, v{red+8*q+e}, v{g_+4*q+e}")
        for k in range(ne // 2): a(f"v_cvt_pk_bf16_f32 v{x2+2*q+k}, v{xs+4*q+2*k}, v{xs+4*q+2*k+1}")
        a(f"buffer_store_dword{'x2' if q < 2 else ''} {vr(x2+2*q,ne//2)}, v{vo+q}, {sr(SRD_B,4)}, s{sOUT} offen {os.environ.get('OUTF', '')}")

def build():
    hdr = open("cdna_kernels/%s.s.ref" % NAME).read().split("; Override launch")[0]
    a = Asm(); g = alloc_g1(); w = alloc_at()
    prologue(a, g); g1_setup(a, g)
    a(f"s_cmp_ge_u32 s{g.sC}, 30\ns_cbranch_scc1 L_role_r")
    g1_start(a, g)
    gemm1(a, g, w); attention(a, w, g); gemm3(a, w)
    stamp_flush(a)
    a.label("L_end"); a("s_endpgm")
    a.label("L_sp_o")
    spin(a, "L_sp_o_loop", [w.oflag], [T], "L_sp_o_done", int(os.environ.get("OSL", "4"))); a("s_branch L_sp_o_done")
    for name, loads, tags in g.spins:
        a.label(name)
        spin(a, name + "_loop", loads, tags, name + "_done"); a(f"s_branch {name}_done")
    role_r(a, g, w)
    attn_cold(a, w)
    out = hdr + "; @launch grid=(256,1,1) block=(512,1,1) lds=163840\n"
    out += '.amdgcn_target "amdgcn-amd-amdhsa--gfx950"\n.text\n' + a.text()
    out += f""".section .rodata,"a"
.p2align 6
.amdhsa_kernel {NAME}_kernel
  .amdhsa_next_free_vgpr 256
  .amdhsa_next_free_sgpr 102
  .amdhsa_accum_offset 256
  .amdhsa_group_segment_fixed_size 0
  .amdhsa_kernarg_size 80
  .amdhsa_user_sgpr_count 2
  .amdhsa_user_sgpr_kernarg_segment_ptr 1
  .amdhsa_system_sgpr_workgroup_id_x 1
.end_amdhsa_kernel
"""
    if os.environ.get("NOPS"): print("auto nops:", *a.nops, sep="\n  ", file=sys.stderr)
    return out

if __name__ == "__main__":
    path = sys.argv[1] if len(sys.argv) > 1 else "cdna_kernels/%s.s" % NAME
    open(path, "w").write(build())
```
